```python
import torch

def _softmax(x, axis=-1):
    return torch.softmax(x, dim=axis)
def _gelu(x):
    return torch.nn.functional.gelu(x, approximate="tanh")
def _silu(x):
    return torch.nn.functional.silu(x)
def _sigmoid(x):
    return torch.sigmoid(x)
def _layernorm(x, axis=-1, eps=1e-5):
    m = x.mean(dim=axis, keepdim=True)
    v = x.var(dim=axis, keepdim=True, unbiased=False)
    return (x - m) / torch.sqrt(v + eps)
def _scatter_add(tgt, idx, src, axis=0):
    return tgt.clone().index_add_(axis, idx, src)
def _segment_sum(src, seg, n):
    out = torch.zeros((n,) + src.shape[1:], dtype=src.dtype)
    return out.index_add_(0, seg, src)
def _pad(x, pw):
    flat = tuple(v for pair in reversed(pw) for v in pair)
    return torch.nn.functional.pad(x, flat)

kernel_name = 'interleave_layers__ssm_conv_h3__dense_activation_silu__prompt'

def setup_inputs():

    _w = (lambda a: (lambda t: t.to(torch.bfloat16) if t.is_floating_point() else t)(torch.as_tensor(a)))
    def _A_setup():
        B, S, D = 1, 2048, 448
        ks = 4
        return {
            "q": _w((lambda *s: torch.randn(*s, dtype=torch.bfloat16) * 0.05)(B, S, D)),
            "k": _w((lambda *s: torch.randn(*s, dtype=torch.bfloat16) * 0.2)(B, S, D)),
            "v": _w((lambda *s: torch.randn(*s, dtype=torch.bfloat16) * 0.2)(B, S, D)),
            "shift_k": _w((lambda *s: torch.randn(*s, dtype=torch.bfloat16) * 0.2)(D, ks) * 0.5),
            "ssm_k": _w((lambda *s: torch.randn(*s, dtype=torch.bfloat16) * 0.4)(D, S) * (1.0 / S ** 0.5)),
            "ssm_D": _w((lambda *s: torch.randn(*s, dtype=torch.bfloat16) * 0.2)(D)),
        }
    _A_in = _A_setup()

    def _B_setup():
        B, S, D, F = 1, 2048, 448, 1792
        return {
            "x": _w((lambda *s: torch.randn(*s, dtype=torch.bfloat16) * 0.05)(B, S, D)),
            "w1": _w((lambda *s: torch.randn(*s, dtype=torch.bfloat16) * 0.4)(D, F) * (D ** -0.5)),
            "w2": _w((lambda *s: torch.randn(*s, dtype=torch.bfloat16) * 0.1)(F, D) * (F ** -0.5)),
        }
    _B_in = _B_setup()

    return {
        "A_q": _A_in["q"],
        "A_k": _A_in["k"],
        "A_v": _A_in["v"],
        "A_shift_k": _A_in["shift_k"],
        "A_ssm_k": _A_in["ssm_k"],
        "A_ssm_D": _A_in["ssm_D"],
        "B_x": _B_in["x"],
        "B_w1": _B_in["w1"],
        "B_w2": _B_in["w2"],
    }

def reference(A_q, A_k, A_v, A_shift_k, A_ssm_k, A_ssm_D, B_x, B_w1, B_w2):
    def _A_ref(q, k, v, shift_k, ssm_k, ssm_D):
        B, S, D = q.shape
        ks = shift_k.shape[-1]
        k_pad = _pad(k, ((0, 0), (ks - 1, 0), (0, 0)))
        k_shift = torch.zeros_like(k)
        for t in range(ks):
            k_shift = k_shift + k_pad[:, t:t + S, :] * shift_k[:, ks - 1 - t][None, None, :]
        kv = k_shift * v
        L = 2 * S
        kv_pad = _pad(kv, ((0, 0), (0, S), (0, 0)))
        kf_pad = _pad(ssm_k, ((0, 0), (0, S)))
        kv_f = (lambda x, axes=(-2,-1): torch.fft.rfft2(x.float(), dim=axes))(kv_pad[:, None, :, :], axes=(1, 2))
        kf_f = (lambda x, axes=(-2,-1): torch.fft.rfft2(x.float(), dim=axes))(kf_pad[:, None, :], axes=(1, 2))
        kf_f = (lambda x, *d: x.permute(*d))(kf_f, 1, 2, 0)
        y_f = kv_f * kf_f[None, :, :, :]
        y = (lambda x, s, axes=(-2,-1): torch.fft.irfft2(x, s=s, dim=axes).to(torch.bfloat16))(y_f, (1, L), axes=(1, 2))[:, 0, :S, :]
        y = y + kv * ssm_D[None, None, :]
        return q * y

    def _B_ref(x, w1, w2):
        h = torch.einsum("bsd,df->bsf", x, w1)
        h = _silu(h)
        out = torch.einsum("bsf,fd->bsd", h, w2)
        return out

    x = A_q
    x = x + _A_ref(_layernorm(x, axis=-1), A_k, A_v, A_shift_k, A_ssm_k, A_ssm_D)
    x = x + _B_ref(_layernorm(x, axis=-1), B_w1, B_w2)
    x = x + _A_ref(_layernorm(x, axis=-1), A_k, A_v, A_shift_k, A_ssm_k, A_ssm_D)
    x = x + _B_ref(_layernorm(x, axis=-1), B_w1, B_w2)
    return x
```

```python
import re

def v(i, n=1):
    return f"v{i}" if n == 1 else f"v[{i}:{i+n-1}]"
def a(i, n=1):
    return f"a{i}" if n == 1 else f"a[{i}:{i+n-1}]"
def s(i, n=1):
    return f"s{i}" if n == 1 else f"s[{i}:{i+n-1}]"

_REG = re.compile(r"^(-|abs\(|\|)?\s*([vas])(?:(\d+)|\[(\d+):(\d+)\])\)?\|?$")

def regs_of(tok):
    tok = tok.strip()
    if tok == "vcc":
        return {("s", "vcc")}
    if tok == "exec":
        return {("s", "exec")}
    if tok == "m0":
        return {("s", "m0")}
    m = _REG.match(tok)
    if not m:
        return set()
    k = m.group(2)
    if m.group(3) is not None:
        return {(k, int(m.group(3)))}
    return {(k, i) for i in range(int(m.group(4)), int(m.group(5)) + 1)}

TRANS = ("v_exp_f32", "v_log_f32", "v_rcp_f32", "v_rsq_f32", "v_sqrt_f32", "v_sin_f32", "v_cos_f32", "v_rcp_iflag_f32")

class Ins:
    __slots__ = ("text", "op", "ops", "mods", "kind", "dst", "src", "passes", "srcc", "srcab", "states", "target")
    def __init__(self, text):
        self.text = text
        t = text.split(";")[0].strip()
        parts = t.split(None, 1)
        self.op = parts[0]
        rest = parts[1] if len(parts) > 1 else ""
        toks, depth, cur = [], 0, ""
        for ch in rest:
            if ch in "[(":
                depth += 1
            if ch in "])":
                depth -= 1
            if ch == "," and depth == 0:
                toks.append(cur.strip()); cur = ""
            else:
                cur += ch
        if cur.strip():
            toks.append(cur.strip())
        self.mods = ""
        if toks:
            last = toks[-1].split(None, 1)
            if len(last) > 1 and not last[0].startswith("hwreg") and "(" not in last[0]:
                toks[-1] = last[0]; self.mods = last[1]
        self.ops = toks
        self.states = 1
        self.passes = 0
        self.srcc = set(); self.srcab = set()
        self.target = None
        op = self.op
        R = [regs_of(x) for x in toks]
        U = lambda l: set().union(*l) if l else set()
        self.dst, self.src = set(), set()
        if op.startswith("v_mfma"):
            self.kind = "mfma"
            self.dst = R[0]; self.srcab = R[1] | R[2]; self.srcc = R[3]
            self.src = self.srcab | self.srcc
            if "32x32x16" in op or "32x32x32" in op: self.passes = 8
            elif "16x16x32" in op or "16x16x64" in op or "16x16x16" in op: self.passes = 4
            elif "16x16x4_f32" in op: self.passes = 8
            elif "32x32x2_f32" in op: self.passes = 16
            else: raise ValueError(op)
        elif op.startswith("v_"):
            self.kind = "valu"
            if op.startswith("v_cmp"):
                self.dst = R[0]; self.src = U(R[1:])
            elif op.startswith("v_permlane") and "swap" in op:
                self.dst = R[0] | R[1]; self.src = R[0] | R[1]
            elif op.startswith(("v_add_co", "v_sub_co", "v_subrev_co", "v_addc_co", "v_subb_co")):
                self.dst = R[0] | R[1]; self.src = U(R[2:])
            elif op.startswith(("v_fmac", "v_dot2c", "v_pk_fmac", "v_writelane")):
                self.dst = R[0]; self.src = U(R)
            else:
                self.dst = R[0]; self.src = U(R[1:])
                if op.startswith("v_cndmask") and len(toks) == 3:
                    self.src |= {("s", "vcc")}
            if "dpp" in op or "row_" in self.mods or "quad_perm" in self.mods or "wave_" in self.mods:
                self.src |= R[0] if ("bound_ctrl" not in self.mods) else set()
        elif op.startswith("ds_"):
            self.kind = "ds"
            if op.startswith(("ds_read", "ds_bpermute", "ds_permute", "ds_swizzle")):
                self.dst = R[0]; self.src = U(R[1:])
            else:
                self.src = U(R)
        elif op.startswith(("buffer_", "global_", "flat_")):
            self.kind = "vmem"
            lds = bool(re.search(r"\blds\b", self.mods)) or "_lds_" in op
            if "load" in op and not lds:
                self.dst = R[0]; self.src = U(R[1:])
            elif "atomic" in op and "sc0" in self.mods:
                self.src = U(R); self.dst = R[0]
            else:
                self.src = U(R)
            if lds: self.src |= {("s", "m0")}
        elif op.startswith("s_"):
            self.kind = "salu"
            if op == "s_nop":
                self.states = int(toks[0], 0) + 1
            elif op.startswith(("s_cbranch", "s_branch")):
                self.target = toks[0]
            elif op.startswith(("s_cmp", "s_waitcnt", "s_barrier", "s_endpgm", "s_setprio", "s_sleep", "s_bitcmp")):
                self.src = U(R)
            elif op.startswith("s_load") or op.startswith("s_memtime") or op.startswith("s_memrealtime"):
                self.dst = R[0]; self.src = U(R[1:])
            else:
                self.dst = R[0]; self.src = U(R[1:])
                if "saveexec" in op: self.dst |= {("s", "exec")}
        else:
            raise ValueError("unknown op: " + text)

    def is_dpp(self):
        return self.kind == "valu" and (any(k in self.mods for k in ("row_", "quad_perm", "wave_")) or "dpp" in self.op)
    def is_wide_store(self):
        return self.kind == "vmem" and "store" in self.op and ("x3" in self.op or "x4" in self.op)
    def store_data(self):
        if self.op.startswith("buffer_"): return regs_of(self.ops[0])
        return regs_of(self.ops[1])

def vonly(rs): return {r for r in rs if r[0] in "va"}
def sonly(rs): return {r for r in rs if r[0] == "s"}

def need(p, c):
    n = 0
    if p.kind == "valu":
        pv = vonly(p.dst); ps = sonly(p.dst)
        if pv:
            if c.kind == "mfma" and pv & c.src: n = max(n, 2)
            if c.kind == "valu":
                if c.is_dpp() and pv & c.src: n = max(n, 2)
                if c.op.startswith(("v_readlane", "v_readfirstlane")) and pv & c.src: n = max(n, 1)
                if c.op.startswith("v_permlane") and pv & c.src: n = max(n, 2)
                if p.op.startswith(TRANS) and pv & c.src: n = max(n, 1)
                if ("dst_sel" in p.mods or "op_sel" in p.mods) and pv & (c.src | c.dst): n = max(n, 1)
        if ps:
            if c.kind == "valu" and ps & c.src: n = max(n, 4 if c.op.startswith(("v_readlane", "v_writelane")) else 2)
            if c.kind == "vmem" and ps & c.src: n = max(n, 5)
            if c.kind == "mfma" and ("s", "exec") in ps: n = max(n, 4)
    if p.kind == "mfma":
        P = p.passes
        big = {2: 5, 4: 8, 8: 12, 16: 20}[P]
        part = {2: 4, 4: 6, 8: 10, 16: 18}[P]
        if c.kind == "mfma":
            if p.dst & c.srcab: n = max(n, big)
            if p.dst & c.srcc and not (p.dst == c.srcc and p.passes == c.passes): n = max(n, part)
            if p.dst & c.dst and not (p.dst & c.srcc): n = max(n, big)
        elif c.kind in ("valu", "vmem", "ds"):
            if p.dst & (c.src | c.dst): n = max(n, big)
            if c.kind == "valu" and p.srcc & c.dst: n = max(n, {2: 1, 4: 3, 8: 7, 16: 15}[P])
    if p.kind == "salu" and ("s", "m0") in p.dst and c.kind == "vmem" and ("s", "m0") in c.src: n = max(n, 1)
    if p.is_wide_store() and c.kind in ("valu",) and p.store_data() & c.dst: n = max(n, 2)
    if p.is_wide_store() and c.kind in ("vmem", "ds", "mfma") and p.store_data() & c.dst: n = max(n, 1)
    return n

WINDOW = 24

class Prog:
    def __init__(self):
        self.items = []
        self._uid = 0
    def __call__(self, text):
        for line in text.split("\n"):
            t = line.strip()
            if not t: continue
            if t.startswith(";") or t.startswith("."):
                self.items.append(("raw", t))
            elif re.match(r"^[\w.$]+:$", t):
                self.items.append(("label", t[:-1]))
            else:
                self.items.append(Ins(t))
    def label(self, name): self.items.append(("label", name))
    def uid(self, base="L"):
        self._uid += 1
        return f"{base}_{self._uid}"
    def raw(self, text): self.items.append(("raw", text))

    def fix_hazards(self):
        out = []
        hist = []
        inserted = 0
        for it in self.items:
            if isinstance(it, Ins):
                w = self._required(hist, it)
                while w > 0:
                    k = min(w, 16)
                    nop = Ins(f"s_nop {k-1}")
                    out.append(nop); hist.append(nop); inserted += k; w -= k
                out.append(it); hist.append(it)
                if it.op in ("s_branch", "s_endpgm"): hist = []
                if len(hist) > WINDOW: hist = hist[-WINDOW:]
            else:
                out.append(it)
        self.items = out
        labels = {it[1]: i for i, it in enumerate(out) if not isinstance(it, Ins) and it[0] == "label"}
        for i, it in enumerate(out):
            if isinstance(it, Ins) and it.target:
                if it.target not in labels: raise ValueError("no label " + it.target)
                pre = [x for x in out[max(0, i - WINDOW * 2):i + 1] if isinstance(x, Ins)][-WINDOW:]
                post = [x for x in out[labels[it.target]:labels[it.target] + WINDOW * 2] if isinstance(x, Ins)][:WINDOW]
                h = list(pre)
                for c in post:
                    w = self._required(h, c)
                    if w > 0:
                        raise ValueError(f"hazard across branch {it.text} -> {c.text}: short {w}")
                    h.append(c)
                    if c.op in ("s_branch", "s_endpgm"): break
        return inserted

    @staticmethod
    def _required(hist, c):
        dist = 0; worst = 0
        for p in reversed(hist):
            n = need(p, c)
            if n - dist > worst: worst = n - dist
            dist += p.states
            if dist >= 20: break
        return worst

    def text(self):
        L = []
        for it in self.items:
            if isinstance(it, Ins): L.append("    " + it.text)
            elif it[0] == "label": L.append(it[1] + ":")
            else: L.append(it[1])
        return "\n".join(L) + "\n"
    def count(self):
        return sum(isinstance(x, Ins) for x in self.items)
```

```python
import struct
from asmlib import *
from layout import *

def fbits(x): return "0x%08x" % struct.unpack("<I", struct.pack("<f", x))[0]

P_Q, P_K, P_V, P_SK, P_H, P_DV, P_BX, P_W1, P_W2, P_OUT, P_DBG, P_WS = 16, 18, 20, 22, 24, 26, 28, 30, 32, 34, 36, 38

class K(Prog):
    def __init__(self):
        super().__init__()
        self.vmq = []
        self.lgq = []
    def vm(self, text, tag=None):
        self(text); self.vmq.append(tag)
    def lg(self, text, tag=None):
        self(text); self.lgq.append(tag)
    def _n_after(self, q, tags):
        if isinstance(tags, str): tags = (tags,)
        last = -1
        for i, t in enumerate(q):
            if t in tags: last = i
        if last < 0: return None
        return len(q) - 1 - last
    def wait_vm(self, tags=None):
        if tags is None:
            self("s_waitcnt vmcnt(0)"); self.vmq = []; return
        n = self._n_after(self.vmq, tags)
        if n is None: return
        assert n <= 63, n
        self(f"s_waitcnt vmcnt({n})")
        self.vmq = self.vmq[len(self.vmq) - n:] if n else []
    def wait_lg(self, tags=None):
        if tags is None:
            self("s_waitcnt lgkmcnt(0)"); self.lgq = []; return
        n = self._n_after(self.lgq, tags)
        if n is None: return
        n = min(n, 15)
        self(f"s_waitcnt lgkmcnt({n})")
        self.lgq = self.lgq[len(self.lgq) - n:] if n else []
    def load_ptrs(self):
        self("s_load_dwordx16 s[16:31], s[0:1], 0")
        self("s_load_dwordx8 s[32:39], s[0:1], 64")
    def srd(self, r, ptr, off, size):
        if off:
            self(f"s_add_u32 s{r}, s{ptr}, {hex(off)}")
            self(f"s_addc_u32 s{r+1}, s{ptr+1}, 0")
        else:
            self(f"s_mov_b32 s{r}, s{ptr}")
            self(f"s_mov_b32 s{r+1}, s{ptr+1}")
        self(f"s_mov_b32 s{r+2}, {hex(size)}")
        self(f"s_mov_b32 s{r+3}, 0x20000")
    def csel(self, dst, a, b):
        self(f"s_mov_b32 s{dst}, {b}")
        self(f"s_cselect_b32 s{dst}, {a}, s{dst}")
    def wave_id(self, sreg, tmp):
        self(f"v_lshrrev_b32 v{tmp}, 6, v0")
        self(f"v_readfirstlane_b32 s{sreg}, v{tmp}")
    def div_const(self, q, x, d):
        m = -(-(1 << 32) // d)
        self(f"s_mul_hi_u32 s{q}, s{x}, {hex(m)}")

def kernel_text(name, prog, vgprs, sgprs=96, agprs=0):
    n = prog.fix_hazards()
    acc = 256 if agprs else ((vgprs + 3) // 4) * 4
    nfv = acc + agprs if agprs else vgprs
    head = f".text\n.globl {name}\n.p2align 8\n.type {name},@function\n{name}:\n"
    kd = f""".section .rodata,"a"
.p2align 6
.amdhsa_kernel {name}
  .amdhsa_next_free_vgpr {nfv}
  .amdhsa_next_free_sgpr {sgprs}
  .amdhsa_accum_offset {acc}
  .amdhsa_group_segment_fixed_size 0
  .amdhsa_kernarg_size 96
  .amdhsa_user_sgpr_count 2
  .amdhsa_user_sgpr_kernarg_segment_ptr 1
  .amdhsa_system_sgpr_workgroup_id_x 1
  .amdhsa_float_denorm_mode_32 3
.end_amdhsa_kernel
"""
    return head + prog.text() + kd, n
```

```python
from common import *

HC_COPY = 4160
HC_CH = 8 * HC_COPY
L_U = 2 * HC_CH
U_CH = 512 + 4096
L_CONV_END = L_U + 2 * U_CH
YS_CH = 4096 + 128

def emit_conv_hbuild(p, SH=40):
    p("v_sub_u32 v1, 255, v0")
    p("v_lshlrev_b32 v1, 4, v1")
    p("v_subrev_u32 v2, 16, v1")
    for ch in range(2):
        p(f"v_add_u32 v3, {4096*ch}, v2")
        p(f"v_add_u32 v4, {4096*ch}, v1")
        p.vm(f"buffer_load_dwordx4 {v(16+8*ch,4)}, v3, s[{SH}:{SH+3}], 0 offen", f"h{ch}")
        p.vm(f"buffer_load_dwordx4 {v(20+8*ch,4)}, v4, s[{SH}:{SH+3}], 0 offen", f"h{ch}")

def emit_conv_hbuild2(p):
    p("v_mov_b32 v5, 0xffff")
    p("v_cmp_ne_u32 vcc, 255, v0")
    p("v_lshlrev_b32 v6, 4, v0")
    E1, E2, O1, O2 = 32, 40, 46, 54
    for ch in range(2):
        W = 16 + 8 * ch
        p.wait_vm(f"h{ch}")
        for d in range(4):
            p(f"v_cndmask_b32 v{W+d}, 0, v{W+d}, vcc")
        def o(dst, sidx):
            if sidx % 2 == 0:
                pz = (14 - sidx) // 2
                p(f"v_alignbit_b32 v{dst}, v{W+pz}, v{W+pz}, 16")
            else:
                p(f"v_bfi_b32 v{dst}, v5, v{W+(15-sidx)//2}, v{W+(13-sidx)//2}")
        for n in range(7): o(E1 + n, 2 * n)
        for n in range(6): o(E2 + n, 2 * n + 2)
        for n in range(7): o(O1 + n, 2 * n + 1)
        for n in range(6): o(O2 + n, 2 * n + 3)
        src = {0: E1, 4: E1 + 2, 2: E2, 6: E2 + 2, 1: O1, 5: O1 + 2, 3: O2, 7: O2 + 2}
        for c in range(8):
            p.lg(f"ds_write_b128 v6, {v(src[c],4)} offset:{ch*HC_CH + c*HC_COPY}")
        p("s_nop 1")
    for r in range(4): p(f"v_mov_b32 v{60+r}, 0")
    p("v_and_b32 v7, 15, v0")
    p(f"v_mul_u32_u24 v7, {HC_COPY}, v7")
    p("v_add_u32 v7, 4096, v7")
    p("v_and_b32 v8, 31, v0")
    p("v_lshlrev_b32 v8, 4, v8")
    p("v_bfe_u32 v9, v0, 5, 1")
    p(f"v_mul_u32_u24 v9, {U_CH}, v9")
    p(f"v_add3_u32 v8, v8, v9, s15")
    p.lg(f"ds_write_b128 v7, {v(60,4)}")
    p.lg(f"ds_write_b128 v8, {v(60,4)}")

def emit_conv_uload(p, SU):
    p("v_lshlrev_b32 v10, 4, v0")
    p.vm(f"buffer_load_dwordx4 v[64:67], v10, s[{SU}:{SU+3}], 0 offen", "u")
    p("v_add_u32 v11, 4096, v10")
    p.vm(f"buffer_load_dwordx4 v[68:71], v11, s[{SU}:{SU+3}], 0 offen", "u")

def emit_conv_ustore(p):
    p(f"v_add_u32 v10, {L_U+512}, v10")
    p.wait_vm("u")
    p.lg(f"ds_write_b128 v10, v[64:67]")
    p.lg(f"ds_write_b128 v10, v[68:71] offset:{U_CH}")

def emit_conv_main(p, S_W):
    ACC, FA, FB = 72, 96, 160
    p("v_and_b32 v1, 63, v0")
    p("v_and_b32 v2, 15, v1")
    p("v_lshrrev_b32 v3, 4, v1")
    p("v_and_b32 v4, 7, v2")
    p("v_sub_u32 v4, 7, v4")
    p(f"v_mul_u32_u24 v4, {HC_COPY}, v4")
    p("v_lshrrev_b32 v5, 3, v2")
    p("v_sub_u32 v5, v3, v5")
    p(f"v_add_u32 v5, {253 - 252}, v5")
    p("v_lshl_add_u32 v4, v5, 4, v4")
    p(f"s_and_b32 s6, s{S_W}, 1")
    p(f"s_mul_i32 s7, s6, {HC_CH}")
    p("v_add_u32 v12, s7, v4")
    p(f"s_mul_i32 s7, s6, {U_CH}")
    p(f"s_add_u32 s7, s7, {L_U + 512 - 32 - 64*7}")
    p("v_lshlrev_b32 v5, 5, v2")
    p("v_lshl_add_u32 v5, v3, 4, v5")
    p("v_add_u32 v13, s7, v5")
    for r in range(16): p(f"v_mov_b32 v{ACC+r}, 0")
    p(f"s_cmp_ge_u32 s{S_W}, 2")
    p("s_cbranch_scc1 CONV_set1")
    for st, tiles in ((0, (0, 3, 4, 7)), (1, (1, 2, 5, 6))):
        if st == 1: p.label("CONV_set1")
        mx = max(tiles)
        def reads(rho, buf):
            L = []
            for m in range(mx + 1):
                L.append(f"ds_read_b128 {v(FA+32*buf+4*m,4)}, v12 offset:{512*(7-m)+64*(7-rho)}")
                L.append(f"ds_read_b128 {v(FB+32*buf+4*m,4)}, v13 offset:{512*m+64*(7-rho)}")
            return L
        for t in reads(0, 0): p.lg(t, "f0")
        for rho in range(8):
            buf = rho & 1
            nxt = reads(rho + 1, buf ^ 1) if rho < 7 else []
            p.wait_lg()
            mf = [(ti, nt, mu) for ti, nt in enumerate(tiles) for mu in range(nt + 1)]
            k = 0
            for idx, (ti, nt, mu) in enumerate(mf):
                p(f"v_mfma_f32_16x16x32_bf16 {v(ACC+4*ti,4)}, {v(FA+32*buf+4*mu,4)}, {v(FB+32*buf+4*(nt-mu),4)}, {v(ACC+4*ti,4)}")
                if k < len(nxt):
                    p.lg(nxt[k], "fn"); k += 1
            while k < len(nxt):
                p.lg(nxt[k], "fn"); k += 1
        p("s_barrier")
        p(f"s_mul_i32 s7, s6, {U_CH}")
        p(f"s_add_u32 s7, s7, {L_U + 512}")
        p("v_lshlrev_b32 v5, 5, v2")
        p("v_lshl_add_u32 v5, v3, 3, v5")
        p("v_add_u32 v6, s7, v5")
        p(f"s_mul_i32 s7, s6, {YS_CH}")
        p("v_add_u32 v7, s7, v5")
        for ti, nt in enumerate(tiles):
            p.lg(f"ds_read_b64 {v(FA+2*ti,2)}, v6 offset:{512*nt}", f"u{ti}")
        p("v_mov_b32 v8, 0xffff0000")
        for ti, nt in enumerate(tiles):
            p.wait_lg(f"u{ti}")
            u = FA + 2 * ti; t = FB + 4 * ti
            p(f"v_lshlrev_b32 v{t}, 16, v{u}")
            p(f"v_and_b32 v{t+1}, v8, v{u}")
            p(f"v_lshlrev_b32 v{t+2}, 16, v{u+1}")
            p(f"v_and_b32 v{t+3}, v8, v{u+1}")
            for r in range(4):
                p(f"v_fma_f32 v{t+r}, v{t+r}, s14, v{ACC+4*ti+r}")
            p(f"v_cvt_pk_bf16_f32 v{t}, v{t}, v{t+1}")
            p(f"v_cvt_pk_bf16_f32 v{t+1}, v{t+2}, v{t+3}")
            p.lg(f"ds_write_b64 v7, {v(t,2)} offset:{512*nt}")
        p.wait_lg()
        if st == 0: p("s_branch CONV_join")
    p.label("CONV_join")
    p("s_barrier")

def emit_conv_out(p, SY):
    p("v_and_b32 v1, 3, v0")
    p("v_lshrrev_b32 v2, 2, v0")
    p("v_lshrrev_b32 v3, 1, v1")
    p("v_and_b32 v4, 1, v1")
    p(f"v_mul_u32_u24 v3, {YS_CH}, v3")
    p("v_lshl_add_u32 v3, v4, 4, v3")
    p("v_lshl_add_u32 v3, v2, 5, v3")
    p.lg("ds_read_b128 v[16:19], v3", "y0")
    p.lg(f"ds_read_b128 v[20:23], v3 offset:{64*32}", "y1")
    p(f"v_mul_u32_u24 v5, {D*32}, v2")
    p("v_lshl_add_u32 v5, v1, 4, v5")
    p("s_lshl_b32 s7, s2, 6")
    p("v_add_u32 v5, s7, v5")
    p(f"v_add_u32 v6, {64*D*32}, v5")
    p.wait_lg("y0")
    p.vm(f"buffer_store_dwordx4 v[16:19], v5, s[{SY}:{SY+3}], 0 offen")
    p.wait_lg("y1")
    p.vm(f"buffer_store_dwordx4 v[20:23], v6, s[{SY}:{SY+3}], 0 offen")

def k_conv():
    p = K()
    p("s_cmp_ge_u32 s2, 224")
    p("s_cbranch_scc1 CONV_end")
    p.load_ptrs()
    p.wave_id(3, 1)
    p("s_waitcnt lgkmcnt(0)")
    SH, SU, SY = 40, 44, 48
    p("s_lshl_b32 s4, s2, 13")
    p(f"s_add_u32 s{SH}, s{P_H}, s4"); p(f"s_addc_u32 s{SH+1}, s{P_H+1}, 0")
    p(f"s_mov_b32 s{SH+2}, 8192"); p(f"s_mov_b32 s{SH+3}, 0x20000")
    p(f"s_add_u32 s{SU}, s{P_WS}, s4"); p(f"s_addc_u32 s{SU+1}, s{P_WS+1}, 0")
    if WS_KVT:
        p(f"s_add_u32 s{SU}, s{SU}, {hex(WS_KVT)}"); p(f"s_addc_u32 s{SU+1}, s{SU+1}, 0")
    p(f"s_mov_b32 s{SU+2}, 8192"); p(f"s_mov_b32 s{SU+3}, 0x20000")
    p.srd(SY, P_WS, WS_YB, MAT)
    p("s_lshl_b32 s4, s2, 2")
    p(f"s_load_dword s13, s[{P_DV}:{P_DV+1}], s4")
    p(f"s_mov_b32 s15, {L_U}")
    emit_conv_hbuild(p, SH)
    emit_conv_uload(p, SU)
    emit_conv_hbuild2(p)
    emit_conv_ustore(p)
    p("s_waitcnt lgkmcnt(0)"); p.lgq = []
    p("s_and_b32 s6, s3, 1")
    p("s_lshl_b32 s12, s13, 16")
    p("s_and_b32 s14, s13, 0xffff0000")
    p("s_cmp_eq_u32 s6, 0")
    p("s_cselect_b32 s14, s12, s14")
    p("s_barrier")
    emit_conv_main(p, 3)
    emit_conv_out(p, SY)
    p.label("CONV_end")
    p("s_endpgm")
    return kernel_text("conv_kernel", p, 224)
```

```python
from common import *

L_X = 0
L_RING = 57344
SLOT = 14336
SH_ = 480
L_MLP_END = L_RING + 7 * SLOT

ACC = 16
FA = 128
FB = 184
TMP = 216
V_XE, V_XO, V_A, V_HW, V_HR, V_DMA, V_PO, V_PO1 = 4, 5, 6, 7, 8, 9, 10, 11
V_A2 = 239
V_XD = 232

def mlp_ids(p):
    p("s_and_b32 s4, s2, 7")
    p("s_lshr_b32 s5, s2, 3")
    p("s_lshl_b32 s4, s4, 5")
    p("s_add_u32 s4, s4, s5")
    p("s_lshr_b32 s5, s4, 3")
    p("s_and_b32 s6, s4, 7")

def mlp_setup(p):
    p("v_and_b32 v1, 63, v0")
    p("v_and_b32 v2, 15, v1")
    p("v_lshrrev_b32 v3, 4, v1")
    p("s_lshr_b32 s7, s3, 1")
    p("s_and_b32 s8, s3, 1")
    p("s_lshl_b32 s9, s8, 5")
    p("v_add_u32 v12, s9, v2")
    p(f"v_mul_u32_u24 v12, {ROWB}, v12")
    p("v_and_b32 v13, 2, v2")
    p("v_xor_b32 v13, v13, v3")
    p("v_lshl_add_u32 v12, v13, 4, v12")
    p("v_bfe_u32 v13, v2, 2, 1")
    p(f"v_lshl_add_u32 v{V_XE}, v13, 6, v12")
    p("v_xor_b32 v13, 1, v13")
    p(f"v_lshl_add_u32 v{V_XO}, v13, 6, v12")
    p("s_mul_i32 s9, s7, 7168")
    p(f"s_add_u32 s9, s9, {L_RING}")
    p(f"v_lshl_add_u32 v{V_A}, v1, 4, s9")
    p(f"v_add_u32 v{V_A2}, {4*SLOT}, v{V_A}")
    p("s_lshl_b32 s9, s8, 5")
    p("v_add_u32 v12, s9, v2")
    p(f"v_mul_u32_u24 v12, {SH_}, v12")
    p("v_lshl_add_u32 v12, v3, 3, v12")
    p("s_mul_i32 s9, s7, 224")
    p(f"v_add_u32 v{V_HW}, s9, v12")
    p(f"v_mul_u32_u24 v12, {SH_}, v2")
    p(f"v_lshl_add_u32 v{V_HR}, v3, 4, v12")
    p(f"v_lshlrev_b32 v{V_DMA}, 4, v1")
    p(f"v_mul_u32_u24 v12, {ROWB}, v2")
    p("s_lshl_b32 s9, s3, 6")
    p("v_lshl_add_u32 v13, v3, 4, v12")
    p(f"v_add_u32 v{V_PO}, s9, v13")
    p("s_add_u32 s9, s7, 12")
    p("s_lshl_b32 s9, s9, 6")
    p("s_lshl_b32 s12, s8, 5")
    p("s_add_u32 s9, s9, s12")
    p("v_lshl_add_u32 v13, v3, 3, v12")
    p(f"v_add_u32 v{V_PO1}, s9, v13")
    for i in range(7):
        p(f"v_add_u32 v12, {64*i}, v1")
        p("v_mul_u32_u24 v13, 1171, v12")
        p("v_lshrrev_b32 v13, 16, v13")
        p("v_mul_u32_u24 v14, 56, v13")
        p("v_sub_u32 v14, v12, v14")
        p("v_and_b32 v15, 6, v13")
        p("v_xor_b32 v14, v14, v15")
        p(f"v_mul_u32_u24 v13, {ROWB}, v13")
        p(f"v_lshl_add_u32 v{V_XD+i}, v14, 4, v13")

def dma_x(p, SX, tag="x"):
    p(f"s_mul_i32 s12, s3, {16*ROWB}")
    for hf in range(2):
        for i in range(7):
            p(f"s_add_u32 s13, s12, {L_X + hf*8*ROWB + 1024*i}")
            p("s_mov_b32 m0, s13")
            p(f"s_add_u32 s14, s12, {hf*8*ROWB}")
            p.vm(f"buffer_load_dwordx4 v{V_XD+i}, s[{SX}:{SX+3}], s14 offen lds", tag)

def dma_w1_pair(p, SW1, c0, tag):
    s0, s1 = (c0 % 7) * SLOT, ((c0 + 1) % 7) * SLOT
    p(f"s_mul_i32 s12, s3, 7168")
    p(f"s_add_u32 s12, s12, {c0*SLOT}")
    p(f"s_cmp_ge_u32 s3, 2")
    p.csel(13, L_RING+s1, L_RING+s0)
    p("s_and_b32 s14, s3, 1")
    p("s_mul_i32 s14, s14, 7168")
    p("s_add_u32 s13, s13, s14")
    for grp, cnt in ((0, 4), (4, 3)):
        if grp:
            p("s_add_u32 s13, s13, 4096"); p("s_add_u32 s12, s12, 4096")
        p("s_mov_b32 m0, s13")
        for i in range(cnt):
            p.vm(f"buffer_load_dwordx4 v{V_DMA}, s[{SW1}:{SW1+3}], s12 offen offset:{1024*i} lds", tag)

def load_w2(p, SW2, lo, hi, tag="w2"):
    for f in range(lo, hi):
        if (f - lo) % 4 == 0:
            p(f"s_mov_b32 s12, {1024*f}")
        p.vm(f"buffer_load_dwordx4 {a(4*f,4)}, v{V_DMA}, s[{SW2}:{SW2+3}], s12 offen offset:{1024*((f-lo)%4)}", tag)

def gemm1(p, SW1, SW2=None):
    def reads(k):
        buf = k & 1
        L = []
        for nt in range(2):
            base = V_XO if k & 1 else V_XE
            L.append(f"ds_read_b128 {v(FB+16*buf+4*nt,4)}, v{base} offset:{L_X + 128*(k>>1) + nt*16*ROWB}")
        for T in range(7):
            sl = k % 7
            L.append(f"ds_read_b128 {v(FA+28*buf+4*T,4)}, v{V_A if sl < 4 else V_A2} offset:{(sl % 4)*SLOT + 1024*T}")
        return L
    p.wait_vm(("x", "c0"))
    p("s_barrier")
    for t in reads(0): p.lg(t)
    for r in range(56): p(f"v_mov_b32 v{ACC+r}, 0")
    w2next = 0
    for k in range(14):
        buf = k & 1
        p.wait_lg()
        if k < 13:
            p.wait_vm(f"c{(k+1)//2*2}")
        p("s_barrier")
        if k % 2 == 0 and k + 6 < 14:
            dma_w1_pair(p, SW1, k + 6, f"c{k+6}")
        if SW2 is not None and w2next < 49:
            hi = min(49, w2next + 4)
            load_w2(p, SW2, w2next, hi); w2next = hi
        nxt = reads(k + 1) if k < 13 else []
        q = 0
        for T in range(7):
            for nt in range(2):
                acc = v(ACC + 8*T + 4*nt, 4)
                p(f"v_mfma_f32_16x16x32_bf16 {acc}, {v(FA+28*buf+4*T,4)}, {v(FB+16*buf+4*nt,4)}, {acc}")
                if q < len(nxt): p.lg(nxt[q]); q += 1

def silu_phase(p):
    for T in range(7):
        for nt in range(2):
            z = ACC + 8*T + 4*nt; t = TMP
            for r in range(4): p(f"v_exp_f32_e64 v{t+r}, -v{z+r}")
            for r in range(4): p(f"v_add_f32 v{t+r}, 1.0, v{t+r}")
            for r in range(4): p(f"v_rcp_f32 v{t+r}, v{t+r}")
            for r in range(4): p(f"v_mul_f32 v{t+r}, v{z+r}, v{t+r}")
            o = TMP + 4 + 2*((2*T+nt) & 1)
            p(f"v_cvt_pk_bf16_f32 v{o}, v{t}, v{t+1}")
            p(f"v_cvt_pk_bf16_f32 v{o+1}, v{t+2}, v{t+3}")
            p.lg(f"ds_write_b64 v{V_HW}, {v(o,2)} offset:{L_X + nt*16*SH_ + 32*T}")
    p.wait_lg()
    p("s_barrier")

def gemm2(p):
    def reads(k):
        buf = k & 1
        return [f"ds_read_b128 {v(FB+16*buf+4*nt,4)}, v{V_HR} offset:{L_X + nt*16*SH_ + 64*k}" for nt in range(4)]
    for t in reads(0): p.lg(t)
    for r in range(112): p(f"v_mov_b32 v{ACC+r}, 0")
    p.wait_vm("w2")
    for k in range(7):
        buf = k & 1
        p.wait_lg()
        nxt = reads(k + 1) if k < 6 else []
        q = 0
        for T in range(7):
            for nt in range(4):
                acc = v(ACC + 16*T + 4*nt, 4)
                p(f"v_mfma_f32_16x16x32_bf16 {acc}, {a(4*(7*k+T),4)}, {v(FB+16*buf+4*nt,4)}, {acc}")
                if q < len(nxt): p.lg(nxt[q]); q += 1

def store_partials(p, SP, flags=""):
    for nt in range(4):
        p(f"s_mov_b32 s12, {nt*16*ROWB}")
        for P in range(3):
            o = FA + 4*((nt*3+P) % 8)
            a0 = ACC + 16*(2*P) + 4*nt; a1 = ACC + 16*(2*P+1) + 4*nt
            p(f"v_cvt_pk_bf16_f32 v{o}, v{a0}, v{a0+1}")
            p(f"v_cvt_pk_bf16_f32 v{o+1}, v{a0+2}, v{a0+3}")
            p(f"v_cvt_pk_bf16_f32 v{o+2}, v{a1}, v{a1+1}")
            p(f"v_cvt_pk_bf16_f32 v{o+3}, v{a1+2}, v{a1+3}")
            p.vm(f"buffer_store_dwordx4 {v(o,4)}, v{V_PO}, s[{SP}:{SP+3}], s12 offen offset:{256*P} {flags}")
        o = FA + 32 + 2*nt
        a0 = ACC + 16*6 + 4*nt
        p(f"v_cvt_pk_bf16_f32 v{o}, v{a0}, v{a0+1}")
        p(f"v_cvt_pk_bf16_f32 v{o+1}, v{a0+2}, v{a0+3}")
        p.vm(f"buffer_store_dwordx2 {v(o,2)}, v{V_PO1}, s[{SP}:{SP+3}], s12 offen {flags}")

def k_mlp():
    p = K()
    p("s_cmp_ge_u32 s2, 256")
    p("s_cbranch_scc1 MLP_end")
    p.load_ptrs()
    p.wave_id(3, 1)
    mlp_ids(p)
    mlp_setup(p)
    p("s_waitcnt lgkmcnt(0)")
    SX, SW1, SW2, SP = 40, 44, 48, 52
    p(f"s_mul_i32 s12, s5, {64*ROWB}")
    p(f"s_add_u32 s12, s12, {hex(WS_XB)}")
    p(f"s_add_u32 s{SX}, s{P_WS}, s12"); p(f"s_addc_u32 s{SX+1}, s{P_WS+1}, 0")
    p(f"s_mov_b32 s{SX+2}, {64*ROWB}"); p(f"s_mov_b32 s{SX+3}, 0x20000")
    p(f"s_mul_i32 s12, s6, {14*SLOT}")
    p(f"s_add_u32 s12, s12, {hex(WS_W1P)}")
    p(f"s_add_u32 s{SW1}, s{P_WS}, s12"); p(f"s_addc_u32 s{SW1+1}, s{P_WS+1}, 0")
    p(f"s_mov_b32 s{SW1+2}, {14*SLOT}"); p(f"s_mov_b32 s{SW1+3}, 0x20000")
    p("s_lshl_b32 s12, s6, 2"); p("s_add_u32 s12, s12, s3")
    p(f"s_mul_i32 s12, s12, {49*1024}")
    p(f"s_add_u32 s12, s12, {hex(WS_W2P)}")
    p(f"s_add_u32 s{SW2}, s{P_WS}, s12"); p(f"s_addc_u32 s{SW2+1}, s{P_WS+1}, 0")
    p(f"s_mov_b32 s{SW2+2}, {49*1024}"); p(f"s_mov_b32 s{SW2+3}, 0x20000")
    p("s_lshl_b32 s12, s5, 3"); p("s_add_u32 s12, s12, s6")
    p(f"s_mul_i32 s12, s12, {64*ROWB}")
    p(f"s_add_u32 s12, s12, {hex(WS_PB)}")
    p(f"s_add_u32 s{SP}, s{P_WS}, s12"); p(f"s_addc_u32 s{SP+1}, s{P_WS+1}, 0")
    p(f"s_mov_b32 s{SP+2}, {64*ROWB}"); p(f"s_mov_b32 s{SP+3}, 0x20000")
    dma_x(p, SX)
    for c in (0, 2, 4): dma_w1_pair(p, SW1, c, f"c{c}")
    gemm1(p, SW1, SW2)
    silu_phase(p)
    gemm2(p)
    store_partials(p, SP)
    p.label("MLP_end")
    p("s_endpgm")
    return kernel_text("mlp_kernel", p, 256, agprs=196)
```

```python
from common import *

def emit_prep(p, g="s2"):
    S_RBK, S_CG, S_W = 4, 5, 3
    SK_, SV_, SSK, SKVT, SSRC, SDST = 40, 44, 48, 52, 56, 60
    LA, LB = 0, 8192
    p.wave_id(S_W, 1)
    p.div_const(S_RBK, 2, 7)
    p(f"s_mul_i32 s{S_CG}, s{S_RBK}, 7")
    p(f"s_sub_u32 s{S_CG}, s2, s{S_CG}")
    p("s_waitcnt lgkmcnt(0)")
    p.srd(SK_, P_K, 0, MAT); p.srd(SV_, P_V, 0, MAT); p.srd(SSK, P_SK, 0, D * 8); p.srd(SKVT, P_WS, WS_KVT, MAT)
    p("v_and_b32 v1, 15, v0")
    p("v_lshrrev_b32 v2, 4, v0")
    p(f"s_lshl_b32 s6, s{S_RBK}, 6")
    p("s_sub_u32 s6, s6, 3")
    p("v_lshl_add_u32 v3, v2, 2, s6")
    p(f"v_mul_i32_i24 v4, {ROWB}, v3")
    p(f"s_lshl_b32 s7, s{S_CG}, 7")
    p("v_lshl_add_u32 v5, v1, 3, s7")
    p("v_add_u32 v4, v4, v5")
    for i in range(1, 7):
        p(f"v_add_u32 v{4+i+1}, {ROWB*i}, v4")
    off = lambda i: "v4" if i == 0 else f"v{5+i}"
    p("v_lshlrev_b32 v12, 2, v5")
    for i in range(7):
        p.vm(f"buffer_load_dwordx2 {v(16+2*i,2)}, {off(i)}, s[{SK_}:{SK_+3}], 0 offen", "k")
    for i in range(4):
        p.vm(f"buffer_load_dwordx2 {v(30+2*i,2)}, {off(i+3)}, s[{SV_}:{SV_+3}], 0 offen", "k")
    p.vm(f"buffer_load_dwordx4 v[38:41], v12, s[{SSK}:{SSK+3}], 0 offen", "k")
    p.vm(f"buffer_load_dwordx4 v[42:45], v12, s[{SSK}:{SSK+3}], 0 offen offset:16", "k")
    S_J, S_R, S_ISW2, S_STR = 8, 9, 10, 11
    p("s_cmp_ge_u32 s2, 112")
    p(f"s_cselect_b32 s{S_ISW2}, 1, 0")
    p("s_cselect_b32 s12, 112, 0")
    p("s_sub_u32 s12, s2, s12")
    p.div_const(S_J, 12, 14)
    p(f"s_mul_i32 s13, s{S_J}, 14")
    p(f"s_sub_u32 s{S_R}, s12, s13")
    p(f"s_mul_i32 s13, s{S_R}, {32*3584}")
    p(f"s_mul_i32 s14, s{S_J}, 448")
    p("s_add_u32 s13, s13, s14")
    p(f"s_lshr_b32 s14, s{S_R}, 1")
    p(f"s_mul_i32 s15, s14, {32*896}")
    p(f"s_mul_i32 s64, s{S_J}, {224*896}")
    p("s_add_u32 s15, s15, s64")
    p(f"s_and_b32 s64, s{S_R}, 1")
    p("s_mul_i32 s65, s64, 448")
    p("s_add_u32 s15, s15, s65")
    p(f"s_cmp_eq_u32 s{S_ISW2}, 1")
    p("s_cselect_b32 s13, s15, s13")
    p.csel(S_STR, 896, 3584)
    p(f"s_cselect_b32 s{SSRC}, s{P_W2}, s{P_W1}")
    p(f"s_cselect_b32 s{SSRC+1}, s{P_W2+1}, s{P_W1+1}")
    p(f"s_mov_b32 s{SSRC+2}, {hex(D*F*2)}")
    p(f"s_mov_b32 s{SSRC+3}, 0x20000")
    for m in range(4):
        p(f"v_add_u32 v13, {256*m}, v0")
        p("v_mul_u32_u24 v14, 2341, v13")
        p("v_lshrrev_b32 v14, 16, v14")
        p("v_mul_u32_u24 v15, 28, v14")
        p("v_sub_u32 v15, v13, v15")
        p(f"v_mul_lo_u32 v14, v14, s{S_STR}")
        p("v_lshl_add_u32 v14, v15, 4, v14")
        p("v_add_u32 v14, s13, v14")
        if m == 3:
            p("v_cmp_gt_u32 vcc, 896, v13")
            p("v_cndmask_b32 v14, -1, v14, vcc")
        p.vm(f"buffer_load_dwordx4 {v(48+4*m,4)}, v14, s[{SSRC}:{SSRC+3}], 0 offen", "w")
    KF, SF, VF, AC, OP = 64, 92, 108, 124, 140
    p("v_mov_b32 v15, 0xffff0000")
    p.wait_vm("k")
    for i in range(7):
        for d in range(2):
            p(f"v_lshlrev_b32 v{KF+4*i+2*d}, 16, v{16+2*i+d}")
            p(f"v_and_b32 v{KF+4*i+2*d+1}, v15, v{16+2*i+d}")
    for e in range(4):
        for j in range(4):
            src = 38 + 2*e + (j >> 1)
            if j & 1: p(f"v_and_b32 v{SF+4*j+e}, v15, v{src}")
            else: p(f"v_lshlrev_b32 v{SF+4*j+e}, 16, v{src}")
    for i in range(4):
        for d in range(2):
            p(f"v_lshlrev_b32 v{VF+4*i+2*d}, 16, v{30+2*i+d}")
            p(f"v_and_b32 v{VF+4*i+2*d+1}, v15, v{30+2*i+d}")
    for j in range(4):
        for r in range(4):
            for e in (0, 2):
                kf = v(KF+4*(r+3-j)+e, 2); sf = v(SF+4*j+e, 2); ac = v(AC+4*r+e, 2)
                if j == 0: p(f"v_pk_mul_f32 {ac}, {kf}, {sf}")
                else: p(f"v_pk_fma_f32 {ac}, {kf}, {sf}, {ac}")
    for r in range(4):
        for e in (0, 2):
            p(f"v_pk_mul_f32 {v(AC+4*r+e,2)}, {v(AC+4*r+e,2)}, {v(VF+4*r+e,2)}")
    for e in range(4):
        p(f"v_cvt_pk_bf16_f32 v{OP+2*e}, v{AC+e}, v{AC+4+e}")
        p(f"v_cvt_pk_bf16_f32 v{OP+2*e+1}, v{AC+8+e}, v{AC+12+e}")
    p("v_xor_b32 v13, v1, v2")
    p("v_lshlrev_b32 v13, 3, v13")
    p("v_lshl_add_u32 v13, v1, 9, v13")
    for e in range(4):
        p.lg(f"ds_write_b64 v13, {v(OP+2*e,2)} offset:{LA+128*e}")
    p.wait_vm("w")
    p("v_lshlrev_b32 v14, 4, v0")
    for m in range(3):
        p.lg(f"ds_write_b128 v14, {v(48+4*m,4)} offset:{LB+4096*m}")
    p(f"s_cmp_ge_u32 s{S_W}, 2")
    p("s_cbranch_scc1 PREP_skip3")
    p(f"ds_write_b128 v14, {v(60,4)} offset:{LB+4096*3}")
    p.label("PREP_skip3")
    p.wait_lg()
    p("s_barrier")
    p("v_lshrrev_b32 v1, 3, v0")
    p("v_and_b32 v2, 7, v0")
    p("v_lshlrev_b32 v3, 1, v2")
    p(f"s_lshl_b32 s6, s{S_CG}, 6")
    p(f"s_lshl_b32 s7, s{S_RBK}, 7")
    for pi in range(2):
        p(f"v_add_u32 v4, {32*pi}, v1")
        p("v_lshrrev_b32 v5, 2, v4")
        p("v_xor_b32 v6, v3, v5")
        p("v_xor_b32 v7, 1, v6")
        p("v_lshlrev_b32 v8, 7, v4")
        p("v_lshl_add_u32 v6, v6, 3, v8")
        p("v_lshl_add_u32 v7, v7, 3, v8")
        p.lg(f"ds_read_b64 {v(16+4*pi,2)}, v6 offset:{LA}", f"a{pi}")
        p.lg(f"ds_read_b64 {v(18+4*pi,2)}, v7 offset:{LA}", f"a{pi}")
        p("v_add_u32 v8, s6, v4")
        p("v_lshlrev_b32 v8, 12, v8")
        p("v_lshl_add_u32 v8, v2, 4, v8")
        p(f"v_add_u32 v{24+pi}, s7, v8")
    for pi in range(2):
        p.wait_lg(f"a{pi}")
        p.vm(f"buffer_store_dwordx4 {v(16+4*pi,4)}, v{24+pi}, s[{SKVT}:{SKVT+3}], 0 offen")
    p("v_and_b32 v1, 63, v0")
    p("v_lshrrev_b32 v2, 4, v1")
    p("v_bfe_u32 v3, v1, 2, 2")
    p("v_and_b32 v4, 3, v1")
    p("v_lshl_add_u32 v2, v2, 3, v3")
    p("v_mul_u32_u24 v2, 448, v2")
    p("v_lshlrev_b32 v5, 4, v1")
    p(f"s_cmp_eq_u32 s{S_ISW2}, 1")
    p.csel(13, hex(WS_W2P), hex(WS_W1P))
    p(f"s_add_u32 s{SDST}, s{P_WS}, s13")
    p(f"s_addc_u32 s{SDST+1}, s{P_WS+1}, 0")
    p(f"s_mov_b32 s{SDST+2}, {hex(W1P_BYTES)}")
    p(f"s_mov_b32 s{SDST+3}, 0x20000")
    ST, SB, SSUB = 64, 65, 66
    for m in range(4):
        lab = f"PREP_t{m}"
        p(f"s_add_u32 s{ST}, s{S_W}, {4*m}")
        if m == 3:
            p(f"s_cmp_ge_u32 s{ST}, 14")
            p(f"s_cbranch_scc1 {lab}")
        p(f"s_mul_i32 s67, s{S_J}, 14")
        p(f"s_add_u32 s67, s67, s{S_R}")
        p("s_mul_i32 s67, s67, 14")
        p(f"s_add_u32 s67, s67, s{ST}")
        p(f"s_lshl_b32 s68, s{ST}, 5")
        p(f"s_and_b32 s{SSUB}, s{ST}, 1")
        p(f"s_lshr_b32 s69, s{ST}, 1")
        p(f"s_and_b32 s70, s{S_R}, 1")
        p("s_mul_i32 s70, s70, 7")
        p(f"s_add_u32 s{SB}, s70, s69")
        p(f"s_lshr_b32 s71, s{S_R}, 1")
        p("s_mul_i32 s71, s71, 7")
        p(f"s_mul_i32 s72, s{S_J}, 196")
        p("s_add_u32 s71, s71, s72")
        p(f"s_and_b32 s72, s{SB}, 3")
        p("s_mul_i32 s72, s72, 49")
        p(f"s_lshr_b32 s73, s{SB}, 2")
        p("s_lshl_b32 s73, s73, 1")
        p(f"s_add_u32 s73, s73, s{SSUB}")
        p("s_add_u32 s72, s72, s73")
        p("s_lshl_b32 s74, s69, 6")
        p(f"s_lshl_b32 s75, s{SSUB}, 3")
        p("s_add_u32 s75, s75, s74")
        p(f"s_sub_u32 s76, s{SB}, 12")
        p("s_lshl_b32 s76, s76, 1")
        p(f"s_add_u32 s76, s76, s{SSUB}")
        p("s_mul_i32 s76, s76, 49")
        p("s_add_u32 s76, s76, 6")
        p(f"s_lshl_b32 s77, s{SSUB}, 5")
        p("s_add_u32 s77, s77, s74")
        p(f"s_cmp_lt_u32 s{SB}, 12")
        p("s_cselect_b32 s72, s72, s76")
        p("s_cselect_b32 s75, s75, s77")
        p("s_cselect_b32 s78, 4, 3")
        p("s_add_u32 s72, s72, s71")
        p(f"s_cmp_eq_u32 s{S_ISW2}, 1")
        p("s_cselect_b32 s67, s72, s67")
        p("s_cselect_b32 s68, s75, s68")
        p("s_cselect_b32 s78, s78, 3")
        p("s_lshl_b32 s67, s67, 10")
        p("v_lshlrev_b32 v6, s78, v4")
        p("v_add3_u32 v6, v6, v2, s68")
        p.lg(f"ds_read_b64_tr_b16 {v(28,2)}, v6 offset:{LB}")
        p.lg(f"ds_read_b64_tr_b16 {v(30,2)}, v6 offset:{LB+4*448}")
        p.wait_lg()
        p(f"buffer_store_dwordx4 {v(28,4)}, v5, s[{SDST}:{SDST+3}], s67 offen")
        p("s_nop 1")
        if m == 3: p.label(lab)

def k_prep():
    p = K()
    p("s_cmp_ge_u32 s2, 224")
    p("s_cbranch_scc1 PREP_end")
    p.load_ptrs()
    emit_prep(p)
    p.label("PREP_end")
    p("s_endpgm")
    return kernel_text("prep_kernel", p, 160)
```

```python
from common import *

X, T, YV, PK, TMP = 16, 32, 48, 64, 72
OFFA, OFFB = 8, 9
ACT = "s[10:11]"

def wg_rows(p):
    p("s_and_b32 s4, s2, 7")
    p("s_lshr_b32 s5, s2, 3")
    p("s_lshl_b32 s4, s4, 5")
    p("s_add_u32 s4, s4, s5")

def lane_setup(p):
    p("v_and_b32 v1, 31, v0")
    p("v_lshrrev_b32 v2, 5, v0")
    p("v_cmp_gt_u32 s[10:11], 28, v1")
    p(f"v_mul_u32_u24 v3, {ROWB}, v2")
    p("v_lshl_add_u32 v3, v1, 4, v3")
    p("s_lshl_b32 s6, s4, 3")
    p(f"s_mul_i32 s6, s6, {ROWB}")
    p("v_add_u32 v3, s6, v3")
    p(f"v_cndmask_b32 v{OFFA}, -1, v3, {ACT}")
    p("v_add_u32 v3, 448, v3")
    p(f"v_cndmask_b32 v{OFFB}, -1, v3, {ACT}")

def unpack(p, dst, src, n):
    for i in range(n):
        p(f"v_lshlrev_b32 v{dst+2*i}, 16, v{src+i}")
        p(f"v_and_b32 v{dst+2*i+1}, v7, v{src+i}")

def pack(p, dst, src, n):
    for i in range(n):
        p(f"v_cvt_pk_bf16_f32 v{dst+i}, v{src+2*i}, v{src+2*i+1}")

def allreduce32(p, r, t):
    for m in ("quad_perm:[1,0,3,2]", "quad_perm:[2,3,0,1]", "row_half_mirror", "row_mirror"):
        p(f"v_add_f32_dpp v{r}, v{r}, v{r} {m} row_mask:0xf bank_mask:0xf")
    p(f"v_mov_b32 v{t}, v{r}")
    p(f"v_permlane16_swap_b32 v{r}, v{t}")
    p(f"v_add_f32 v{r}, v{r}, v{t}")

def sum16(p, dst, src):
    p(f"v_pk_add_f32 {v(TMP,2)}, {v(src,2)}, {v(src+2,2)}")
    p(f"v_pk_add_f32 {v(TMP+2,2)}, {v(src+4,2)}, {v(src+6,2)}")
    p(f"v_pk_add_f32 {v(TMP+4,2)}, {v(src+8,2)}, {v(src+10,2)}")
    p(f"v_pk_add_f32 {v(TMP+6,2)}, {v(src+12,2)}, {v(src+14,2)}")
    p(f"v_pk_add_f32 {v(TMP,2)}, {v(TMP,2)}, {v(TMP+2,2)}")
    p(f"v_pk_add_f32 {v(TMP+4,2)}, {v(TMP+4,2)}, {v(TMP+6,2)}")
    p(f"v_pk_add_f32 {v(TMP,2)}, {v(TMP,2)}, {v(TMP+4,2)}")
    p(f"v_add_f32 v{dst}, v{TMP}, v{TMP+1}")
    p(f"v_cndmask_b32 v{dst}, 0, v{dst}, {ACT}")

def layernorm(p, src, dst, scale=None):
    M, V_ = TMP + 8, TMP + 10
    sum16(p, M, src)
    allreduce32(p, M, TMP + 9)
    p(f"v_mul_f32 v{M}, {fbits(-1.0/D)}, v{M}")
    p(f"v_mov_b32 v{M+1}, v{M}")
    for i in range(0, 16, 2):
        p(f"v_pk_add_f32 {v(dst+i,2)}, {v(src+i,2)}, {v(M,2)}")
    p(f"v_pk_mul_f32 {v(TMP,2)}, {v(dst,2)}, {v(dst,2)}")
    p(f"v_pk_mul_f32 {v(TMP+2,2)}, {v(dst+2,2)}, {v(dst+2,2)}")
    for i in range(4, 16, 4):
        p(f"v_pk_fma_f32 {v(TMP,2)}, {v(dst+i,2)}, {v(dst+i,2)}, {v(TMP,2)}")
        p(f"v_pk_fma_f32 {v(TMP+2,2)}, {v(dst+i+2,2)}, {v(dst+i+2,2)}, {v(TMP+2,2)}")
    p(f"v_pk_add_f32 {v(TMP,2)}, {v(TMP,2)}, {v(TMP+2,2)}")
    p(f"v_add_f32 v{V_}, v{TMP}, v{TMP+1}")
    p(f"v_cndmask_b32 v{V_}, 0, v{V_}, {ACT}")
    allreduce32(p, V_, TMP + 11)
    p(f"v_mov_b32 v{V_+1}, {fbits(1e-5)}")
    p(f"v_fmac_f32 v{V_+1}, {fbits(1.0/D)}, v{V_}")
    p(f"v_rsq_f32 v{V_}, v{V_+1}")
    if scale is not None:
        p(f"v_mul_f32 v{V_}, {fbits(scale)}, v{V_}")
    else:
        p("s_nop 0")
    p(f"v_mov_b32 v{V_+1}, v{V_}")
    for i in range(0, 16, 2):
        p(f"v_pk_mul_f32 {v(dst+i,2)}, {v(dst+i,2)}, {v(V_,2)}")

def round_bf16(p, x):
    pack(p, PK, x, 8)
    unpack(p, x, PK, 8)

def load_y(p, SY, LY):
    p("s_lshr_b32 s7, s4, 1")
    p(f"s_mul_i32 s7, s7, {D*32}")
    p("s_and_b32 s8, s4, 1")
    p("s_lshl_b32 s8, s8, 4")
    p("s_add_u32 s7, s7, s8")
    p("v_lshlrev_b32 v3, 5, v0")
    p("v_add_u32 v3, s7, v3")
    p(f"v_add_u32 v4, {256*32}, v3")
    p("v_cmp_gt_u32 vcc, 192, v0")
    p("v_cndmask_b32 v4, -1, v4, vcc")
    p.vm(f"buffer_load_dwordx4 {v(T,4)}, v3, s[{SY}:{SY+3}], 0 offen", "y")
    p.vm(f"buffer_load_dwordx4 {v(T+4,4)}, v4, s[{SY}:{SY+3}], 0 offen", "y")

def load_y2(p, LY):
    p("v_lshlrev_b32 v3, 2, v0")
    p.wait_vm("y")
    for wq in range(4):
        p.lg(f"ds_write_b32 v3, v{T+wq} offset:{LY+2048*wq}")
        p.lg(f"ds_write_b32 v3, v{T+4+wq} offset:{LY+2048*wq+1024}")
    p.wait_lg()
    p("s_barrier")
    p("v_lshrrev_b32 v4, 6, v0")
    p("v_lshlrev_b32 v4, 11, v4")
    p("v_lshl_add_u32 v4, v1, 5, v4")
    for k in range(2):
        p.lg(f"ds_read_b128 {v(T+8*k,4)}, v4 offset:{LY+896*k}", "yy")
        p.lg(f"ds_read_b128 {v(T+8*k+4,4)}, v4 offset:{LY+896*k+16}", "yy")
    p("v_bfe_u32 v5, v0, 5, 1")
    p("v_mov_b32 v6, 0x01000c0c")
    p("v_mov_b32 v3, 0x03020c0c")
    p("v_cmp_eq_u32 vcc, 1, v5")
    p("v_cndmask_b32 v6, v6, v3, vcc")
    p.wait_lg()
    for i in range(16):
        p(f"v_perm_b32 v{YV+i}, v{T+i}, v{T+i}, v6")

def gate(p):
    layernorm(p, X, T)
    for i in range(0, 16, 2):
        p(f"v_pk_fma_f32 {v(X+i,2)}, {v(T+i,2)}, {v(YV+i,2)}, {v(X+i,2)}")
    round_bf16(p, X)

def add_partials(p, SP):
    p("s_lshr_b32 s7, s4, 3")
    p(f"s_mul_i32 s7, s7, {8*64*ROWB}")
    p("s_and_b32 s8, s4, 7")
    p(f"s_mul_i32 s8, s8, {8*ROWB}")
    p("s_add_u32 s7, s7, s8")
    p(f"v_mul_u32_u24 v3, {ROWB}, v2")
    p("v_lshl_add_u32 v3, v1, 4, v3")
    p("v_add_u32 v3, s7, v3")
    p(f"v_cndmask_b32 v4, -1, v3, {ACT}")
    p("v_add_u32 v3, 448, v3")
    p(f"v_cndmask_b32 v5, -1, v3, {ACT}")
    PB_ = 96
    for j in range(8):
        p(f"s_mov_b32 s9, {j*64*ROWB}")
        p.vm(f"buffer_load_dwordx4 {v(PB_+8*j,4)}, v4, s[{SP}:{SP+3}], s9 offen", f"p{j}")
        p.vm(f"buffer_load_dwordx4 {v(PB_+8*j+4,4)}, v5, s[{SP}:{SP+3}], s9 offen", f"p{j}")

def add_partials2(p):
    PB_ = 96
    p("v_mov_b32 v3, 0x00003f80")
    p("v_mov_b32 v4, 0x3f800000")
    for i in range(16): p(f"v_mov_b32 v{T+i}, 0")
    for j in range(8):
        p.wait_vm(f"p{j}")
        for i in range(8):
            p(f"v_dot2c_f32_bf16 v{T+2*i}, v{PB_+8*j+i}, v3")
            p(f"v_dot2c_f32_bf16 v{T+2*i+1}, v{PB_+8*j+i}, v4")
    p(f"s_mov_b32 s9, {fbits(LN2)}")
    for i in range(16):
        p(f"v_fmac_f32 v{X+i}, s9, v{T+i}")
    round_bf16(p, X)

def k_row(mode):
    p = K()
    L = f"ROW{mode}"
    p("s_cmp_ge_u32 s2, 256")
    p(f"s_cbranch_scc1 {L}_end")
    p.load_ptrs()
    wg_rows(p)
    lane_setup(p)
    p("v_mov_b32 v7, 0xffff0000")
    p("s_waitcnt lgkmcnt(0)")
    SX, SY, SXB, SP, SO = 40, 44, 48, 52, 56
    if mode == 1: p.srd(SX, P_Q, 0, MAT)
    else: p.srd(SX, P_WS, WS_XR, MAT)
    p.srd(SY, P_WS, WS_YB, MAT); p.srd(SXB, P_WS, WS_XB, MAT); p.srd(SP, P_WS, WS_PB, PB_BYTES)
    if mode == 3: p.srd(SO, P_OUT, 0, MAT)
    else: p.srd(SO, P_WS, WS_XR, MAT)
    p.vm(f"buffer_load_dwordx4 {v(PK,4)}, v{OFFA}, s[{SX}:{SX+3}], 0 offen", "x")
    p.vm(f"buffer_load_dwordx4 {v(PK+4,4)}, v{OFFB}, s[{SX}:{SX+3}], 0 offen", "x")
    if mode != 3: load_y(p, SY, 0)
    if mode != 1: add_partials(p, SP)
    if mode != 3: load_y2(p, 0)
    p.wait_vm("x")
    unpack(p, X, PK, 8)
    if mode != 1: add_partials2(p)
    if mode != 3:
        gate(p)
        p.vm(f"buffer_store_dwordx4 {v(PK,4)}, v{OFFA}, s[{SO}:{SO+3}], 0 offen")
        p.vm(f"buffer_store_dwordx4 {v(PK+4,4)}, v{OFFB}, s[{SO}:{SO+3}], 0 offen")
        layernorm(p, X, T, LOG2E)
        pack(p, 88, T, 8)
        p.vm(f"buffer_store_dwordx4 {v(88,4)}, v{OFFA}, s[{SXB}:{SXB+3}], 0 offen")
        p.vm(f"buffer_store_dwordx4 {v(92,4)}, v{OFFB}, s[{SXB}:{SXB+3}], 0 offen")
    else:
        p.vm(f"buffer_store_dwordx4 {v(PK,4)}, v{OFFA}, s[{SO}:{SO+3}], 0 offen")
        p.vm(f"buffer_store_dwordx4 {v(PK+4,4)}, v{OFFB}, s[{SO}:{SO+3}], 0 offen")
    p.label(f"{L}_end")
    p("s_endpgm")
    return kernel_text(f"row{mode}_kernel", p, 160)
```

```python
S, D, F = 2048, 448, 1792
ROWB = D * 2
MAT = S * D * 2
WS_KVT = 0
WS_YB  = 0x200000
WS_XB  = 0x400000
WS_XR  = 0x600000
WS_W1P = 0x800000
WS_W2P = 0xA00000
WS_PB  = 0xC00000
PB_BYTES = 32 * 8 * 64 * ROWB
WS_FLAGS = 0x1C00000
WS_END = 0x1D00000
W1P_BYTES = 8 * 14 * 14 * 1024
W2P_BYTES = 8 * 4 * 49 * 1024
LOG2E = 1.4426950408889634
LN2 = 0.6931471805599453
```

```python
import sys
from common import *
from k_prep import k_prep
from k_conv import k_conv, L_CONV_END
from k_row import k_row
from k_mlp import k_mlp, L_MLP_END

HEADER = open("interleave_layers__ssm_conv_h3__dense_activation_silu__prompt.s.ref").read().split("; Override launch")[0]

def build(upto=99):
    launches = [("prep_kernel", 256, 8192 + 14336 + 2048), ("conv_kernel", 256, L_CONV_END), ("row1_kernel", 256, 8192),
                ("mlp_kernel", 256, L_MLP_END), ("row2_kernel", 256, 8192), ("mlp_kernel", 256, L_MLP_END), ("row3_kernel", 256, 8192)][:upto]
    txt = HEADER
    for n, g, l in launches:
        txt += f"; @launch kernel={n} grid=({g},1,1) block=(256,1,1) lds={l}\n"
    txt += '.amdgcn_target "amdgcn-amd-amdhsa--gfx950"\n'
    for f in (k_prep, k_conv, lambda: k_row(1), k_mlp, lambda: k_row(2), lambda: k_row(3)):
        t, n = f()
        txt += t
        print("nops inserted:", n, file=sys.stderr)
    return txt

if __name__ == "__main__":
    out = sys.argv[1]
    open(out, "w").write(build())
```

```python
import struct
from asmlib import *
from layout import *

def fbits(x): return "0x%08x" % struct.unpack("<I", struct.pack("<f", x))[0]

P_Q, P_K, P_V, P_SK, P_H, P_DV, P_BX, P_W1, P_W2, P_OUT, P_DBG, P_WS = 16, 18, 20, 22, 24, 26, 28, 30, 32, 34, 36, 38

STAMPS = [False]

class K(Prog):
    def __init__(self):
        super().__init__()
        self.vmq = []
        self.lgq = []
    def vm(self, text, tag=None):
        self(text); self.vmq.append(tag)
    def lg(self, text, tag=None):
        self(text); self.lgq.append(tag)
    def _n_after(self, q, tags):
        if isinstance(tags, str): tags = (tags,)
        last = -1
        for i, t in enumerate(q):
            if t in tags: last = i
        if last < 0: return None
        return len(q) - 1 - last
    def wait_vm(self, tags=None):
        if tags is None:
            self("s_waitcnt vmcnt(0)"); self.vmq = []; return
        n = self._n_after(self.vmq, tags)
        if n is None: return
        assert n <= 63, n
        self(f"s_waitcnt vmcnt({n})")
        self.vmq = self.vmq[len(self.vmq) - n:] if n else []
    def wait_lg(self, tags=None):
        if tags is None:
            self("s_waitcnt lgkmcnt(0)"); self.lgq = []; return
        n = self._n_after(self.lgq, tags)
        if n is None: return
        n = min(n, 15)
        self(f"s_waitcnt lgkmcnt({n})")
        self.lgq = self.lgq[len(self.lgq) - n:] if n else []
    def load_ptrs(self):
        self("s_load_dwordx16 s[16:31], s[0:1], 0")
        self("s_load_dwordx8 s[32:39], s[0:1], 64")
    def srd(self, r, ptr, off, size):
        if off:
            self(f"s_add_u32 s{r}, s{ptr}, {hex(off)}")
            self(f"s_addc_u32 s{r+1}, s{ptr+1}, 0")
        else:
            self(f"s_mov_b32 s{r}, s{ptr}")
            self(f"s_mov_b32 s{r+1}, s{ptr+1}")
        self(f"s_mov_b32 s{r+2}, {hex(size)}")
        self(f"s_mov_b32 s{r+3}, 0x20000")
    def stamp_init(self):
        if not STAMPS[0]: return
        self.srd(92, P_WS, WS_FLAGS + 0x80000, 0x40000)
    def stamp(self, sid):
        if not STAMPS[0]: return
        self("s_memrealtime s[88:89]")
        self("s_memtime s[90:91]")
        self("s_waitcnt lgkmcnt(0)")
        self("v_mov_b32 v250, s88")
        self("v_mov_b32 v251, s90")
        self("s_lshl_b32 s91, s2, 3")
        self(f"s_add_u32 s91, s91, {sid*2048}")
        self("v_mov_b32 v252, s91")
        self("s_mov_b64 s[88:89], exec")
        self("s_mov_b64 exec, 1")
        self("buffer_store_dwordx2 v[250:251], v252, s[92:95], 0 offen")
        self("s_mov_b64 exec, s[88:89]")
        self.vmq.append("stamp")
        self.lgq = []
    def csel(self, dst, a, b):
        self(f"s_mov_b32 s{dst}, {b}")
        self(f"s_cselect_b32 s{dst}, {a}, s{dst}")
    def wave_id(self, sreg, tmp):
        self(f"v_lshrrev_b32 v{tmp}, 6, v0")
        self(f"v_readfirstlane_b32 s{sreg}, v{tmp}")
    def div_const(self, q, x, d):
        m = -(-(1 << 32) // d)
        self(f"s_mul_hi_u32 s{q}, s{x}, {hex(m)}")

def kernel_text(name, prog, vgprs, sgprs=96, agprs=0):
    n = prog.fix_hazards()
    if STAMPS[0]: vgprs = 256
    acc = 256 if agprs else ((vgprs + 3) // 4) * 4
    nfv = acc + agprs if agprs else vgprs
    head = f".text\n.globl {name}\n.p2align 8\n.type {name},@function\n{name}:\n"
    kd = f""".section .rodata,"a"
.p2align 6
.amdhsa_kernel {name}
  .amdhsa_next_free_vgpr {nfv}
  .amdhsa_next_free_sgpr {sgprs}
  .amdhsa_accum_offset {acc}
  .amdhsa_group_segment_fixed_size 0
  .amdhsa_kernarg_size 96
  .amdhsa_user_sgpr_count 2
  .amdhsa_user_sgpr_kernarg_segment_ptr 1
  .amdhsa_system_sgpr_workgroup_id_x 1
  .amdhsa_float_denorm_mode_32 3
.end_amdhsa_kernel
"""
    return head + prog.text() + kd, n
```

```python
S, D, F = 2048, 448, 1792
ROWB = D * 2
MAT = S * D * 2
WS_KVT = 0
WS_YB  = 0x200000
WS_XB  = 0x400000
WS_XR  = 0x600000
WS_XB2 = 0x600000
WS_XP = WS_KVT
WS_W1P = 0x800000
WS_W2P = 0xA00000
WS_PB  = 0xC00000
PB_BYTES = 32 * 8 * 64 * ROWB
WS_PB2 = 0x1A00000
WS_FLAGS = 0x2800000
WS_END = 0x2900000
W1P_BYTES = 8 * 14 * 14 * 1024
W2P_BYTES = 8 * 4 * 49 * 1024
LOG2E = 1.4426950408889634
LN2 = 0.6931471805599453
FL_S1A, FL_S1B, FL_S2, FL_XCC, FL_A0, FL_C0, FL_A1, FL_C1 = [i * 2048 for i in range(8)]
FL_S1R, FL_S2R, FL_S1BR = 0x4000, 0x8000, 0xC000
FL_CA, FL_CC = 0x10000, 0x11000
FLAGS_BYTES = 0x14000
```

```python
import sys
from common import *
import common

KNAME = "interleave_layers__ssm_conv_h3__dense_activation_silu__prompt_kernel"
HEADER = open("interleave_layers__ssm_conv_h3__dense_activation_silu__prompt.s.ref").read().split("; Override launch")[0]

S_W, S_RB, S_CL, S_MEM, S_A, S_B = 3, 4, 5, 6, 7, 8
SA, SB_, SC, SD, SE, SF_ = 40, 44, 48, 52, 56, 60
S_FL, S_W1, S_X, S_PW, S_PR = 64, 68, 72, 76, 80
S_N, S_FAST, S_LAY = 84, 86, 87
ACT = "s[88:89]"
S_T = 90
V_XE, V_XO, V_A, V_A2, V_HW, V_HR, V_L16, V_PO, V_PO1 = 200, 201, 202, 203, 204, 205, 206, 207, 208
V_XD = 209
XP = 224
YV = 232
OFFA, OFFB = 248, 249
VN = 250
LA, LB = 0, 8192
HC_COPY = 4160; HC_CH = 8 * HC_COPY; L_U = 2 * HC_CH; U_CH = 512 + 4096; YS_CH = 4096 + 128
LY = 0
L_X = 0; SH_ = 480; L_RING = 57344; CHUNK = 28672
LDS_BYTES = 163840

def sr(r): return f"s[{r}:{r+3}]"

def stamp(p, sid):
    if not common.STAMPS[0]: return
    p("s_memrealtime s[96:97]")
    p("s_memtime s[98:99]")
    p("s_waitcnt lgkmcnt(0)")
    p("v_mov_b32 v252, s96")
    p("v_mov_b32 v253, s98")
    p("s_lshl_b32 s99, s2, 3")
    p(f"s_add_u32 s99, s99, {sid*2048}")
    p("v_mov_b32 v254, s99")
    p("s_mov_b64 s[96:97], exec")
    p("s_mov_b64 exec, 1")
    p("buffer_store_dwordx2 v[252:253], v254, s[92:95], 0 offen")
    p("s_mov_b64 exec, s[96:97]")
    p.vmq.append("stamp")
    p.lgq = []

def flag_store(p, table, idx_sreg, layer_off=False, cluster=False):
    lab = p.uid("sig")
    p(f"s_cmp_eq_u32 s{S_W}, 0")
    p(f"s_cbranch_scc0 {lab}")
    p(f"s_lshl_b32 s{S_T}, s{idx_sreg}, 3")
    p(f"s_add_u32 s{S_T}, s{S_T}, {table}")
    if layer_off:
        p(f"s_lshl_b32 s{S_T+1}, s{S_LAY}, 12")
        p(f"s_add_u32 s{S_T}, s{S_T}, s{S_T+1}")
    p(f"v_mov_b32 v{VN}, s{S_N}")
    p(f"v_mov_b32 v{VN+1}, s{S_N+1}")
    p(f"v_mov_b32 v1, s{S_T}")
    p("s_mov_b64 exec, 1")
    if cluster:
        l2 = p.uid("sigslow"); l3 = p.uid("sigdone")
        p(f"s_cmp_eq_u32 s{S_FAST}, 1")
        p(f"s_cbranch_scc0 {l2}")
        p(f"buffer_store_dwordx2 {v(VN,2)}, v1, {sr(S_FL)}, 0 offen")
        p(f"s_branch {l3}")
        p.label(l2)
        p("buffer_wbl2 sc1")
        p("s_waitcnt vmcnt(0)")
        p(f"buffer_store_dwordx2 {v(VN,2)}, v1, {sr(S_FL)}, 0 offen sc1")
        p.label(l3)
    else:
        p(f"buffer_store_dwordx2 {v(VN,2)}, v1, {sr(S_FL)}, 0 offen sc1")
    p("s_mov_b64 exec, -1")
    p.label(lab)

def signal(p, table, idx_sreg, layer_off=False, cluster=False):
    p.wait_vm()
    p("s_barrier")
    flag_store(p, table, idx_sreg, layer_off, cluster)

def setexec(p, nl):
    m = (1 << nl) - 1
    lo, hi = m & 0xffffffff, m >> 32
    p(f"s_mov_b32 exec_lo, {hex(lo) if lo != 0xffffffff else -1}")
    p(f"s_mov_b32 exec_hi, {hex(hi) if hi != 0xffffffff else -1}")

def poll(p, offs, n_loads, masks, cluster=False, all_waves=False):
    lab = p.uid("poll"); done = p.uid("polld"); skip = p.uid("polls")
    if not all_waves:
        p(f"s_cmp_eq_u32 s{S_W}, 0")
        p(f"s_cbranch_scc0 {skip}")
    p(f"s_mov_b32 s{S_T}, 0")
    p.label(lab)
    for i in range(n_loads):
        setexec(p, masks[i])
        p(f"buffer_load_dwordx2 {v(2+2*i,2)}, v{offs[i]}, {sr(S_FL)}, 0 offen sc1")
    p("s_waitcnt vmcnt(0)")
    p("s_mov_b32 s9, 1")
    for i in range(n_loads):
        setexec(p, masks[i])
        p(f"v_cmp_eq_u64 vcc, {s(S_N,2)}, {v(2+2*i,2)}")
        p("s_nop 4")
        p("s_cmp_eq_u64 vcc, exec")
        p("s_cselect_b32 s9, s9, 0")
    p("s_mov_b64 exec, -1")
    p("s_cmp_eq_u32 s9, 1")
    p(f"s_cbranch_scc1 {done}")
    p(f"s_add_u32 s{S_T}, s{S_T}, 1")
    p(f"s_cmp_lt_u32 s{S_T}, 0x8000")
    p(f"s_cbranch_scc0 {done}")
    p("s_sleep 1")
    p(f"s_branch {lab}")
    p.label(done)
    if cluster:
        l2 = p.uid("acq")
        p(f"s_cmp_eq_u32 s{S_FAST}, 1")
        p(f"s_cbranch_scc1 {l2}")
        p("buffer_inv sc1")
        p("s_waitcnt vmcnt(0)")
        p.label(l2)
    p.label(skip)
    p("s_barrier")
    p.vmq = []

def get_nonce(p):
    lab = p.uid("non"); done = p.uid("nond")
    p(f"s_mov_b32 s{S_T}, 0")
    p.label(lab)
    p("v_mov_b32 v1, 0")
    p(f"buffer_load_dwordx2 v[2:3], v1, {sr(SF_)}, 0 offen sc1")
    p("s_waitcnt vmcnt(0)")
    p(f"v_readfirstlane_b32 s{S_N}, v2")
    p(f"v_readfirstlane_b32 s{S_N+1}, v3")
    p("s_nop 3")
    p(f"s_or_b32 s9, s{S_N}, s{S_N+1}")
    p("s_cmp_lg_u32 s9, 0")
    p(f"s_cbranch_scc1 {done}")
    p(f"s_add_u32 s{S_T}, s{S_T}, 1")
    p(f"s_cmp_lt_u32 s{S_T}, 0x8000")
    p(f"s_cbranch_scc0 {done}")
    p("s_sleep 1")
    p(f"s_branch {lab}")
    p.label(done)
    p.vmq = []

def prep(p):
    S_RBK, S_CG = 12, 13
    SK_, SV_, SSK, SKVT, SSRC, SDST = SA, SB_, SC, SD, SE, S_W1
    T0 = 72
    p.div_const(S_RBK, 2, 7)
    p(f"s_mul_i32 s{S_CG}, s{S_RBK}, 7")
    p(f"s_sub_u32 s{S_CG}, s2, s{S_CG}")
    p.srd(SK_, P_K, 0, MAT); p.srd(SV_, P_V, 0, MAT); p.srd(SSK, P_SK, 0, D * 8); p.srd(SKVT, P_WS, WS_KVT, MAT)
    p("v_and_b32 v1, 15, v0")
    p("v_lshrrev_b32 v2, 4, v0")
    p(f"s_lshl_b32 s9, s{S_RBK}, 6")
    p("s_sub_u32 s9, s9, 3")
    p("v_lshl_add_u32 v3, v2, 2, s9")
    p(f"v_mul_i32_i24 v4, {ROWB}, v3")
    p(f"s_lshl_b32 s10, s{S_CG}, 7")
    p("v_lshl_add_u32 v5, v1, 3, s10")
    p("v_add_u32 v4, v4, v5")
    for i in range(1, 7):
        p(f"v_add_u32 v{5+i}, {ROWB*i}, v4")
    off = lambda i: "v4" if i == 0 else f"v{5+i}"
    p("v_lshlrev_b32 v12, 2, v5")
    for i in range(7):
        p.vm(f"buffer_load_dwordx2 {v(16+2*i,2)}, {off(i)}, {sr(SK_)}, 0 offen", "k")
    for i in range(4):
        p.vm(f"buffer_load_dwordx2 {v(30+2*i,2)}, {off(i+3)}, {sr(SV_)}, 0 offen", "k")
    p.vm(f"buffer_load_dwordx4 v[38:41], v12, {sr(SSK)}, 0 offen", "k")
    p.vm(f"buffer_load_dwordx4 v[42:45], v12, {sr(SSK)}, 0 offen offset:16", "k")
    S_J, S_R, S_ISW2, S_STR = T0, T0 + 1, T0 + 2, T0 + 3
    p("s_cmp_ge_u32 s2, 112")
    p(f"s_cselect_b32 s{S_ISW2}, 1, 0")
    p("s_cselect_b32 s9, 112, 0")
    p("s_sub_u32 s9, s2, s9")
    p.div_const(S_J, 9, 14)
    p(f"s_mul_i32 s10, s{S_J}, 14")
    p(f"s_sub_u32 s{S_R}, s9, s10")
    p(f"s_mul_i32 s10, s{S_R}, {32*3584}")
    p(f"s_mul_i32 s11, s{S_J}, 448")
    p("s_add_u32 s10, s10, s11")
    p(f"s_lshr_b32 s11, s{S_R}, 1")
    p(f"s_mul_i32 s11, s11, {32*896}")
    p(f"s_mul_i32 s14, s{S_J}, {224*896}")
    p("s_add_u32 s11, s11, s14")
    p(f"s_and_b32 s14, s{S_R}, 1")
    p("s_mul_i32 s14, s14, 448")
    p("s_add_u32 s11, s11, s14")
    p(f"s_cmp_eq_u32 s{S_ISW2}, 1")
    p("s_cselect_b32 s10, s11, s10")
    p.csel(S_STR, 896, 3584)
    p(f"s_cselect_b32 s{SSRC}, s{P_W2}, s{P_W1}")
    p(f"s_cselect_b32 s{SSRC+1}, s{P_W2+1}, s{P_W1+1}")
    p(f"s_mov_b32 s{SSRC+2}, {hex(D*F*2)}")
    p(f"s_mov_b32 s{SSRC+3}, 0x20000")
    for m in range(4):
        p(f"v_add_u32 v13, {256*m}, v0")
        p("v_mul_u32_u24 v14, 2341, v13")
        p("v_lshrrev_b32 v14, 16, v14")
        p("v_mul_u32_u24 v15, 28, v14")
        p("v_sub_u32 v15, v13, v15")
        p(f"v_mul_lo_u32 v14, v14, s{S_STR}")
        p("v_lshl_add_u32 v14, v15, 4, v14")
        p("v_add_u32 v14, s10, v14")
        if m == 3:
            p("v_cmp_gt_u32 vcc, 896, v13")
            p("v_cndmask_b32 v14, -1, v14, vcc")
        p.vm(f"buffer_load_dwordx4 {v(48+4*m,4)}, v14, {sr(SSRC)}, 0 offen", "w")
    early_loads(p)
    p.wait_vm("w")
    p("v_lshlrev_b32 v14, 4, v0")
    for m in range(3):
        p.lg(f"ds_write_b128 v14, {v(48+4*m,4)} offset:{LB+4096*m}")
    lab = p.uid("skip3")
    p(f"s_cmp_ge_u32 s{S_W}, 2")
    p(f"s_cbranch_scc1 {lab}")
    p(f"ds_write_b128 v14, {v(60,4)} offset:{LB+4096*3}")
    p.label(lab)
    p.wait_lg()
    p("s_barrier")
    p("v_and_b32 v46, 63, v0")
    p("v_lshrrev_b32 v47, 4, v46")
    p("v_bfe_u32 v48, v46, 2, 2")
    p("v_and_b32 v49, 3, v46")
    p("v_lshl_add_u32 v47, v47, 3, v48")
    p("v_mul_u32_u24 v47, 448, v47")
    p("v_lshlrev_b32 v50, 4, v46")
    p(f"s_cmp_eq_u32 s{S_ISW2}, 1")
    p.csel(9, hex(WS_W2P), hex(WS_W1P))
    p(f"s_add_u32 s{SDST}, s{P_WS}, s9")
    p(f"s_addc_u32 s{SDST+1}, s{P_WS+1}, 0")
    p(f"s_mov_b32 s{SDST+2}, {hex(W1P_BYTES)}")
    p(f"s_mov_b32 s{SDST+3}, 0x20000")
    t = [T0 + 4 + i for i in range(8)]
    for m in range(4):
        lab = p.uid("pk")
        ST = 14
        p(f"s_add_u32 s{ST}, s{S_W}, {4*m}")
        if m == 3:
            p(f"s_cmp_ge_u32 s{ST}, 14")
            p(f"s_cbranch_scc1 {lab}")
        p(f"s_cmp_ge_u32 s{ST}, 7")
        p(f"s_cselect_b32 s{t[0]}, 1, 0")
        p(f"s_mul_i32 s{t[1]}, s{t[0]}, 7")
        p(f"s_sub_u32 s{t[1]}, s{ST}, s{t[1]}")
        p(f"s_mul_i32 s{t[2]}, s{S_J}, 7")
        p(f"s_add_u32 s{t[2]}, s{t[2]}, s{t[1]}")
        p(f"s_lshl_b32 s{t[2]}, s{t[2]}, 1")
        p(f"s_add_u32 s{t[2]}, s{t[2]}, s{t[0]}")
        p(f"s_mul_i32 s{t[2]}, s{t[2]}, 14")
        p(f"s_add_u32 s{t[2]}, s{t[2]}, s{S_R}")
        p(f"s_lshl_b32 s{t[3]}, s{ST}, 5")
        p(f"s_and_b32 s9, s{ST}, 1")
        p(f"s_lshr_b32 s10, s{ST}, 1")
        p(f"s_and_b32 s11, s{S_R}, 1")
        p("s_mul_i32 s11, s11, 7")
        p("s_add_u32 s11, s11, s10")
        p(f"s_lshr_b32 s15, s{S_R}, 1")
        p("s_mul_i32 s15, s15, 7")
        p(f"s_mul_i32 s{t[0]}, s{S_J}, 196")
        p(f"s_add_u32 s15, s15, s{t[0]}")
        p(f"s_and_b32 s{t[0]}, s11, 3")
        p(f"s_mul_i32 s{t[0]}, s{t[0]}, 49")
        p(f"s_lshr_b32 s{t[1]}, s11, 2")
        p(f"s_lshl_b32 s{t[1]}, s{t[1]}, 1")
        p(f"s_add_u32 s{t[1]}, s{t[1]}, s9")
        p(f"s_add_u32 s{t[0]}, s{t[0]}, s{t[1]}")
        p(f"s_lshl_b32 s10, s10, 6")
        p(f"s_lshl_b32 s{t[1]}, s9, 3")
        p(f"s_add_u32 s{t[1]}, s{t[1]}, s10")
        p(f"s_sub_u32 s{t[4]}, s11, 12")
        p(f"s_lshl_b32 s{t[4]}, s{t[4]}, 1")
        p(f"s_add_u32 s{t[4]}, s{t[4]}, s9")
        p(f"s_mul_i32 s{t[4]}, s{t[4]}, 49")
        p(f"s_add_u32 s{t[4]}, s{t[4]}, 6")
        p(f"s_lshl_b32 s{t[5]}, s9, 5")
        p(f"s_add_u32 s{t[5]}, s{t[5]}, s10")
        p("s_cmp_lt_u32 s11, 12")
        p(f"s_cselect_b32 s{t[0]}, s{t[0]}, s{t[4]}")
        p(f"s_cselect_b32 s{t[1]}, s{t[1]}, s{t[5]}")
        p(f"s_cselect_b32 s{t[6]}, 4, 3")
        p(f"s_add_u32 s{t[0]}, s{t[0]}, s15")
        p(f"s_cmp_eq_u32 s{S_ISW2}, 1")
        p(f"s_cselect_b32 s{t[2]}, s{t[0]}, s{t[2]}")
        p(f"s_cselect_b32 s{t[3]}, s{t[1]}, s{t[3]}")
        p(f"s_cselect_b32 s{t[6]}, s{t[6]}, 3")
        p(f"s_lshl_b32 s{t[2]}, s{t[2]}, 10")
        p(f"v_lshlrev_b32 v51, s{t[6]}, v49")
        p(f"v_add3_u32 v51, v51, v47, s{t[3]}")
        o = 52 + 4 * (m & 1)
        p.lg(f"ds_read_b64_tr_b16 {v(o,2)}, v51 offset:{LB}")
        p.lg(f"ds_read_b64_tr_b16 {v(o+2,2)}, v51 offset:{LB+4*448}")
        p.wait_lg()
        p(f"buffer_store_dwordx4 {v(o,4)}, v50, {sr(SDST)}, s{t[2]} offen sc1")
        if m == 3: p.label(lab)
    p.vmq.append("wst")
    KF, SF, VF, AC, OP = 64, 92, 108, 124, 140
    p("v_mov_b32 v15, 0xffff0000")
    for i in range(7):
        for d in range(2):
            p(f"v_lshlrev_b32 v{KF+4*i+2*d}, 16, v{16+2*i+d}")
            p(f"v_and_b32 v{KF+4*i+2*d+1}, v15, v{16+2*i+d}")
    for e in range(4):
        for j in range(4):
            src = 38 + 2*e + (j >> 1)
            if j & 1: p(f"v_and_b32 v{SF+4*j+e}, v15, v{src}")
            else: p(f"v_lshlrev_b32 v{SF+4*j+e}, 16, v{src}")
    for i in range(4):
        for d in range(2):
            p(f"v_lshlrev_b32 v{VF+4*i+2*d}, 16, v{30+2*i+d}")
            p(f"v_and_b32 v{VF+4*i+2*d+1}, v15, v{30+2*i+d}")
    for j in range(4):
        for r in range(4):
            for e in (0, 2):
                kf = v(KF+4*(r+3-j)+e, 2); sf = v(SF+4*j+e, 2); ac = v(AC+4*r+e, 2)
                if j == 0: p(f"v_pk_mul_f32 {ac}, {kf}, {sf}")
                else: p(f"v_pk_fma_f32 {ac}, {kf}, {sf}, {ac}")
    for r in range(4):
        for e in (0, 2):
            p(f"v_pk_mul_f32 {v(AC+4*r+e,2)}, {v(AC+4*r+e,2)}, {v(VF+4*r+e,2)}")
    for e in range(4):
        p(f"v_cvt_pk_bf16_f32 v{OP+2*e}, v{AC+e}, v{AC+4+e}")
        p(f"v_cvt_pk_bf16_f32 v{OP+2*e+1}, v{AC+8+e}, v{AC+12+e}")
    p("v_xor_b32 v13, v1, v2")
    p("v_lshlrev_b32 v13, 3, v13")
    p("v_lshl_add_u32 v13, v1, 9, v13")
    for e in range(4):
        p.lg(f"ds_write_b64 v13, {v(OP+2*e,2)} offset:{LA+128*e}")
    p.wait_lg()
    p("s_barrier")
    p("v_lshrrev_b32 v1, 3, v0")
    p("v_and_b32 v2, 7, v0")
    p("v_lshlrev_b32 v3, 1, v2")
    p(f"s_lshl_b32 s9, s{S_CG}, 6")
    p(f"s_lshl_b32 s10, s{S_RBK}, 7")
    for pi in range(2):
        p(f"v_add_u32 v4, {32*pi}, v1")
        p("v_lshrrev_b32 v5, 2, v4")
        p("v_xor_b32 v6, v3, v5")
        p("v_xor_b32 v7, 1, v6")
        p("v_lshlrev_b32 v8, 7, v4")
        p("v_lshl_add_u32 v6, v6, 3, v8")
        p("v_lshl_add_u32 v7, v7, 3, v8")
        p.lg(f"ds_read_b64 {v(16+4*pi,2)}, v6 offset:{LA}", f"a{pi}")
        p.lg(f"ds_read_b64 {v(18+4*pi,2)}, v7 offset:{LA}", f"a{pi}")
        p("v_add_u32 v8, s9, v4")
        p("v_lshlrev_b32 v8, 12, v8")
        p("v_lshl_add_u32 v8, v2, 4, v8")
        p(f"v_add_u32 v{24+pi}, s10, v8")
    for pi in range(2):
        p.wait_lg(f"a{pi}")
        p.vm(f"buffer_store_dwordx4 {v(16+4*pi,4)}, v{24+pi}, {sr(SKVT)}, 0 offen sc1")

HW = 160
def early_loads(p):
    SH = SF_
    p("s_lshl_b32 s9, s2, 13")
    p(f"s_add_u32 s{SH}, s{P_H}, s9"); p(f"s_addc_u32 s{SH+1}, s{P_H+1}, 0")
    p(f"s_mov_b32 s{SH+2}, 8192"); p(f"s_mov_b32 s{SH+3}, 0x20000")
    p("v_sub_u32 v176, 255, v0")
    p("v_lshlrev_b32 v176, 4, v176")
    p("v_subrev_u32 v177, 16, v176")
    for ch in range(2):
        p(f"v_add_u32 v178, {4096*ch}, v177")
        p(f"v_add_u32 v179, {4096*ch}, v176")
        p.vm(f"buffer_load_dwordx4 {v(HW+8*ch,4)}, v178, {sr(SH)}, 0 offen", "h")
        p.vm(f"buffer_load_dwordx4 {v(HW+4+8*ch,4)}, v179, {sr(SH)}, 0 offen", "h")

def hbuild(p):
    p("v_mov_b32 v5, 0xffff")
    p("v_cmp_ne_u32 vcc, 255, v0")
    p("v_lshlrev_b32 v6, 4, v0")
    E1, E2, O1, O2 = 32, 40, 46, 54
    for ch in range(2):
        W = HW + 8 * ch
        for d in range(4):
            p(f"v_cndmask_b32 v{W+d}, 0, v{W+d}, vcc")
        def o(dst, sidx):
            if sidx % 2 == 0:
                pz = (14 - sidx) // 2
                p(f"v_alignbit_b32 v{dst}, v{W+pz}, v{W+pz}, 16")
            else:
                p(f"v_bfi_b32 v{dst}, v5, v{W+(15-sidx)//2}, v{W+(13-sidx)//2}")
        for n in range(7): o(E1 + n, 2 * n)
        for n in range(6): o(E2 + n, 2 * n + 2)
        for n in range(7): o(O1 + n, 2 * n + 1)
        for n in range(6): o(O2 + n, 2 * n + 3)
        src = {0: E1, 4: E1 + 2, 2: E2, 6: E2 + 2, 1: O1, 5: O1 + 2, 3: O2, 7: O2 + 2}
        for c in range(8):
            p.lg(f"ds_write_b128 v6, {v(src[c],4)} offset:{ch*HC_CH + c*HC_COPY}")
        p("s_nop 1")
    for r in range(4): p(f"v_mov_b32 v{60+r}, 0")
    p("v_and_b32 v7, 15, v0")
    p(f"v_mul_u32_u24 v7, {HC_COPY}, v7")
    p("v_add_u32 v7, 4096, v7")
    p("v_and_b32 v8, 31, v0")
    p("v_lshlrev_b32 v8, 4, v8")
    p("v_bfe_u32 v9, v0, 5, 1")
    p(f"v_mul_u32_u24 v9, {U_CH}, v9")
    p(f"s_mov_b32 s9, {L_U}")
    p("v_add3_u32 v8, v8, v9, s9")
    p.lg(f"ds_write_b128 v7, {v(60,4)}")
    p.lg(f"ds_write_b128 v8, {v(60,4)}")

def load_w2(p, SW2):
    for f in range(49):
        if f % 4 == 0: p(f"s_mov_b32 s9, {1024*f}")
        p.vm(f"buffer_load_dwordx4 {a(4*f,4)}, v{V_L16}, {sr(SW2)}, s9 offen offset:{1024*(f%4)} sc1", "w2")

def conv_main(p):
    ACC, FA, FB = 72, 96, 16
    fb = lambda buf, m: (16 + 28 * buf + 4 * m) if m < 7 else (160 + 4 * buf)
    p("v_and_b32 v1, 63, v0")
    p("v_and_b32 v2, 15, v1")
    p("v_lshrrev_b32 v3, 4, v1")
    p("v_and_b32 v4, 7, v2")
    p("v_sub_u32 v4, 7, v4")
    p(f"v_mul_u32_u24 v4, {HC_COPY}, v4")
    p("v_lshrrev_b32 v5, 3, v2")
    p("v_sub_u32 v5, v3, v5")
    p("v_add_u32 v5, 1, v5")
    p("v_lshl_add_u32 v4, v5, 4, v4")
    p(f"s_mul_i32 s9, s{S_B}, {HC_CH}")
    p("v_add_u32 v12, s9, v4")
    p(f"s_mul_i32 s9, s{S_B}, {U_CH}")
    p(f"s_add_u32 s9, s9, {L_U + 512 - 32 - 64*7}")
    p("v_lshlrev_b32 v5, 5, v2")
    p("v_lshl_add_u32 v5, v3, 4, v5")
    p("v_add_u32 v13, s9, v5")
    set1 = p.uid("cset1"); join = p.uid("cjoin")
    p(f"s_cmp_eq_u32 s{S_A}, 1")
    p(f"s_cbranch_scc1 {set1}")
    for st, tiles in ((0, (0, 3, 4, 7)), (1, (1, 2, 5, 6))):
        if st == 1: p.label(set1)
        mx = max(tiles)
        def reads(rho, buf):
            L = []
            for m in range(mx + 1):
                L.append(f"ds_read_b128 {v(FA+32*buf+4*m,4)}, v12 offset:{512*(7-m)+64*(7-rho)}")
                L.append(f"ds_read_b128 {v(fb(buf,m),4)}, v13 offset:{512*m+64*(7-rho)}")
            return L
        for t in reads(0, 0): p.lg(t)
        for rho in range(8):
            buf = rho & 1
            nxt = reads(rho + 1, buf ^ 1) if rho < 7 else []
            p.wait_lg()
            mf = [(ti, nt, mu) for ti, nt in enumerate(tiles) for mu in range(nt + 1)]
            k = 0
            for idx, (ti, nt, mu) in enumerate(mf):
                c = "0" if (rho == 0 and mu == 0) else v(ACC+4*ti,4)
                p(f"v_mfma_f32_16x16x32_bf16 {v(ACC+4*ti,4)}, {v(FA+32*buf+4*mu,4)}, {v(fb(buf,nt-mu),4)}, {c}")
                for _ in range(2 if idx < 4 else 1):
                    if k < len(nxt):
                        p.lg(nxt[k]); k += 1
            while k < len(nxt):
                p.lg(nxt[k]); k += 1
        p("s_barrier")
        p(f"s_mul_i32 s9, s{S_B}, {U_CH}")
        p(f"s_add_u32 s9, s9, {L_U + 512}")
        p("v_lshlrev_b32 v5, 5, v2")
        p("v_lshl_add_u32 v5, v3, 3, v5")
        p("v_add_u32 v6, s9, v5")
        p(f"s_mul_i32 s9, s{S_B}, {YS_CH}")
        p("v_add_u32 v7, s9, v5")
        for ti, nt in enumerate(tiles):
            p.lg(f"ds_read_b64 {v(FA+2*ti,2)}, v6 offset:{512*nt}", f"u{ti}")
        p("v_mov_b32 v8, 0xffff0000")
        for ti, nt in enumerate(tiles):
            p.wait_lg(f"u{ti}")
            u = FA + 2 * ti; t = 16 + 4 * ti
            p(f"v_lshlrev_b32 v{t}, 16, v{u}")
            p(f"v_and_b32 v{t+1}, v8, v{u}")
            p(f"v_lshlrev_b32 v{t+2}, 16, v{u+1}")
            p(f"v_and_b32 v{t+3}, v8, v{u+1}")
            for r in range(4):
                p(f"v_fma_f32 v{t+r}, v{t+r}, s14, v{ACC+4*ti+r}")
            p(f"v_cvt_pk_bf16_f32 v{t}, v{t}, v{t+1}")
            p(f"v_cvt_pk_bf16_f32 v{t+1}, v{t+2}, v{t+3}")
            p.lg(f"ds_write_b64 v7, {v(t,2)} offset:{512*nt}")
        p.wait_lg()
        if st == 0: p(f"s_branch {join}")
    p.label(join)
    p("s_barrier")

def conv_out(p, SY):
    p("v_and_b32 v1, 3, v0")
    p("v_lshrrev_b32 v2, 2, v0")
    p("v_lshrrev_b32 v3, 1, v1")
    p("v_and_b32 v4, 1, v1")
    p(f"v_mul_u32_u24 v3, {YS_CH}, v3")
    p("v_lshl_add_u32 v3, v4, 4, v3")
    p("v_lshl_add_u32 v3, v2, 5, v3")
    p.lg("ds_read_b128 v[16:19], v3", "y0")
    p.lg(f"ds_read_b128 v[20:23], v3 offset:{64*32}", "y1")
    p(f"v_mul_u32_u24 v5, {D*32}, v2")
    p("v_lshl_add_u32 v5, v1, 4, v5")
    p("s_lshl_b32 s9, s2, 6")
    p("v_add_u32 v5, s9, v5")
    p(f"v_add_u32 v6, {64*D*32}, v5")
    p.wait_lg("y0")
    p.vm(f"buffer_store_dwordx4 v[16:19], v5, {sr(SY)}, 0 offen sc1")
    p.wait_lg("y1")
    p.vm(f"buffer_store_dwordx4 v[20:23], v6, {sr(SY)}, 0 offen sc1")

X, T, PK, TMP = 16, 32, 64, 72
def row_setup(p):
    p("v_and_b32 v1, 31, v0")
    p("v_lshrrev_b32 v2, 5, v0")
    p(f"v_cmp_gt_u32 {ACT}, 28, v1")
    p(f"v_mul_u32_u24 v3, {ROWB}, v2")
    p("v_lshl_add_u32 v3, v1, 4, v3")
    p(f"s_mul_i32 s9, s{S_RB}, {8*ROWB}")
    p("v_add_u32 v3, s9, v3")
    p(f"v_cndmask_b32 v{OFFA}, -1, v3, {ACT}")
    p("v_add_u32 v3, 448, v3")
    p(f"v_cndmask_b32 v{OFFB}, -1, v3, {ACT}")

def unpack(p, dst, src, n):
    for i in range(n):
        p(f"v_lshlrev_b32 v{dst+2*i}, 16, v{src+i}")
        p(f"v_and_b32 v{dst+2*i+1}, v7, v{src+i}")
def pack(p, dst, src, n):
    for i in range(n):
        p(f"v_cvt_pk_bf16_f32 v{dst+i}, v{src+2*i}, v{src+2*i+1}")
def allreduce32(p, r, t):
    for m in ("quad_perm:[1,0,3,2]", "quad_perm:[2,3,0,1]", "row_half_mirror", "row_mirror"):
        p(f"v_add_f32_dpp v{r}, v{r}, v{r} {m} row_mask:0xf bank_mask:0xf")
    p(f"v_mov_b32 v{t}, v{r}")
    p(f"v_permlane16_swap_b32 v{r}, v{t}")
    p(f"v_add_f32 v{r}, v{r}, v{t}")
def sum16(p, dst, src):
    p(f"v_pk_add_f32 {v(TMP,2)}, {v(src,2)}, {v(src+2,2)}")
    p(f"v_pk_add_f32 {v(TMP+2,2)}, {v(src+4,2)}, {v(src+6,2)}")
    p(f"v_pk_add_f32 {v(TMP+4,2)}, {v(src+8,2)}, {v(src+10,2)}")
    p(f"v_pk_add_f32 {v(TMP+6,2)}, {v(src+12,2)}, {v(src+14,2)}")
    p(f"v_pk_add_f32 {v(TMP,2)}, {v(TMP,2)}, {v(TMP+2,2)}")
    p(f"v_pk_add_f32 {v(TMP+4,2)}, {v(TMP+4,2)}, {v(TMP+6,2)}")
    p(f"v_pk_add_f32 {v(TMP,2)}, {v(TMP,2)}, {v(TMP+4,2)}")
    p(f"v_add_f32 v{dst}, v{TMP}, v{TMP+1}")
    p(f"v_cndmask_b32 v{dst}, 0, v{dst}, {ACT}")
def layernorm(p, src, dst, scale=None):
    M, V_ = TMP + 8, TMP + 10
    sum16(p, M, src)
    allreduce32(p, M, TMP + 9)
    p(f"v_mul_f32 v{M}, {fbits(-1.0/D)}, v{M}")
    p(f"v_mov_b32 v{M+1}, v{M}")
    for i in range(0, 16, 2):
        p(f"v_pk_add_f32 {v(dst+i,2)}, {v(src+i,2)}, {v(M,2)}")
    p(f"v_pk_mul_f32 {v(TMP,2)}, {v(dst,2)}, {v(dst,2)}")
    p(f"v_pk_mul_f32 {v(TMP+2,2)}, {v(dst+2,2)}, {v(dst+2,2)}")
    for i in range(4, 16, 4):
        p(f"v_pk_fma_f32 {v(TMP,2)}, {v(dst+i,2)}, {v(dst+i,2)}, {v(TMP,2)}")
        p(f"v_pk_fma_f32 {v(TMP+2,2)}, {v(dst+i+2,2)}, {v(dst+i+2,2)}, {v(TMP+2,2)}")
    p(f"v_pk_add_f32 {v(TMP,2)}, {v(TMP,2)}, {v(TMP+2,2)}")
    p(f"v_add_f32 v{V_}, v{TMP}, v{TMP+1}")
    p(f"v_cndmask_b32 v{V_}, 0, v{V_}, {ACT}")
    allreduce32(p, V_, TMP + 11)
    p(f"v_mov_b32 v{V_+1}, {fbits(1e-5)}")
    p(f"v_fmac_f32 v{V_+1}, {fbits(1.0/D)}, v{V_}")
    p(f"v_rsq_f32 v{V_}, v{V_+1}")
    if scale is not None: p(f"v_mul_f32 v{V_}, {fbits(scale)}, v{V_}")
    else: p("s_nop 0")
    p(f"v_mov_b32 v{V_+1}, v{V_}")
    for i in range(0, 16, 2):
        p(f"v_pk_mul_f32 {v(dst+i,2)}, {v(dst+i,2)}, {v(V_,2)}")

def y_load(p, SY):
    p(f"s_lshr_b32 s9, s{S_RB}, 1")
    p(f"s_mul_i32 s9, s9, {D*32}")
    p(f"s_and_b32 s10, s{S_RB}, 1")
    p("s_lshl_b32 s10, s10, 4")
    p("s_add_u32 s9, s9, s10")
    p("v_lshlrev_b32 v3, 5, v0")
    p("v_add_u32 v3, s9, v3")
    p(f"v_add_u32 v4, {256*32}, v3")
    p("v_cmp_gt_u32 vcc, 192, v0")
    p("v_cndmask_b32 v4, -1, v4, vcc")
    p.vm(f"buffer_load_dwordx4 {v(T,4)}, v3, {sr(SY)}, 0 offen sc1", "y")
    p.vm(f"buffer_load_dwordx4 {v(T+4,4)}, v4, {sr(SY)}, 0 offen sc1", "y")

def y_transpose(p):
    p("v_lshlrev_b32 v3, 2, v0")
    p.wait_vm("y")
    for wq in range(4):
        p.lg(f"ds_write_b32 v3, v{T+wq} offset:{LY+2048*wq}")
        p.lg(f"ds_write_b32 v3, v{T+4+wq} offset:{LY+2048*wq+1024}")
    p.wait_lg()
    p("s_barrier")
    p("v_and_b32 v1, 31, v0")
    p("v_lshrrev_b32 v4, 6, v0")
    p("v_lshlrev_b32 v4, 11, v4")
    p("v_lshl_add_u32 v4, v1, 5, v4")
    for k in range(2):
        p.lg(f"ds_read_b128 {v(T+8*k,4)}, v4 offset:{LY+896*k}")
        p.lg(f"ds_read_b128 {v(T+8*k+4,4)}, v4 offset:{LY+896*k+16}")
    p("v_bfe_u32 v5, v0, 5, 1")
    p("v_mov_b32 v6, 0x01000c0c")
    p("v_mov_b32 v3, 0x03020c0c")
    p("v_cmp_eq_u32 vcc, 1, v5")
    p("v_cndmask_b32 v6, v6, v3, vcc")
    p.wait_lg()
    for i in range(16):
        p(f"v_perm_b32 v{YV+i}, v{T+i}, v{T+i}, v6")

def xcc_check(p):
    lab = p.uid("xc"); done = p.uid("xcd")
    p("v_and_b32 v1, 7, v0")
    p(f"s_lshl_b32 s9, s{S_CL}, 6")
    p(f"s_add_u32 s9, s9, {FL_XCC}")
    p("v_lshl_add_u32 v1, v1, 3, s9")
    p(f"s_mov_b32 s{S_T}, 0")
    p.label(lab)
    p(f"buffer_load_dwordx2 v[2:3], v1, {sr(S_FL)}, 0 offen sc1")
    p("s_waitcnt vmcnt(0)")
    p(f"v_subrev_u32 v2, s{S_N}, v2")
    p(f"v_cmp_eq_u32 vcc, s{S_N+1}, v3")
    p(f"v_cmp_gt_u32 s[10:11], 16, v2")
    p("s_nop 4")
    p("s_and_b64 vcc, vcc, s[10:11]")
    p("s_cmp_eq_u64 vcc, exec")
    p(f"s_cbranch_scc1 {done}")
    p(f"s_add_u32 s{S_T}, s{S_T}, 1")
    p(f"s_cmp_lt_u32 s{S_T}, 0x8000")
    p(f"s_cbranch_scc0 {done}")
    p("s_sleep 1")
    p(f"s_branch {lab}")
    p.label(done)
    p("s_getreg_b32 s9, hwreg(HW_REG_XCC_ID, 0, 4)")
    p("v_cmp_eq_u32 vcc, s9, v2")
    p("s_nop 4")
    p("s_cmp_eq_u64 vcc, exec")
    p(f"s_cselect_b32 s{S_FAST}, 1, 0")
    if FORCE_SLOW: p(f"s_mov_b32 s{S_FAST}, 0")
    p.vmq = []

def add_partials(p):
    p("v_and_b32 v1, 31, v0")
    p("v_lshrrev_b32 v2, 5, v0")
    p(f"s_mul_i32 s9, s{S_MEM}, {8*ROWB}")
    p(f"v_mul_u32_u24 v3, {ROWB}, v2")
    p("v_lshl_add_u32 v3, v1, 4, v3")
    p("v_add_u32 v3, s9, v3")
    p(f"v_cndmask_b32 v4, -1, v3, {ACT}")
    p("v_add_u32 v3, 448, v3")
    p(f"v_cndmask_b32 v5, -1, v3, {ACT}")
    PB_ = 96
    for j in range(8):
        p(f"s_mov_b32 s9, {j*64*ROWB}")
        p.vm(f"buffer_load_dwordx4 {v(PB_+8*j,4)}, v4, {sr(S_PR)}, s9 offen sc1", f"p{j}")
        p.vm(f"buffer_load_dwordx4 {v(PB_+8*j+4,4)}, v5, {sr(S_PR)}, s9 offen sc1", f"p{j}")
    p("v_mov_b32 v7, 0xffff0000")
    p("v_mov_b32 v3, 0x00003f80")
    p("v_mov_b32 v4, 0x3f800000")
    unpack(p, X, XP, 8)
    for i in range(16): p(f"v_mov_b32 v{T+i}, 0")
    for j in range(8):
        p.wait_vm(f"p{j}")
        for i in range(8):
            p(f"v_dot2c_f32_bf16 v{T+2*i}, v{PB_+8*j+i}, v3")
            p(f"v_dot2c_f32_bf16 v{T+2*i+1}, v{PB_+8*j+i}, v4")
    p(f"s_mov_b32 s9, {fbits(LN2)}")
    for i in range(16):
        p(f"v_fmac_f32 v{X+i}, s9, v{T+i}")
    pack(p, XP, X, 8)

def xh(phi):
    return a(196 + 4 * phi, 4) if phi < 15 else v(148 + 4 * (phi - 15), 4)

def mlp_setup(p):
    p("v_and_b32 v1, 63, v0")
    p("v_and_b32 v2, 15, v1")
    p("v_lshrrev_b32 v3, 4, v1")
    p(f"s_lshl_b32 s9, s{S_B}, 5")
    p("v_add_u32 v12, s9, v2")
    p(f"v_mul_u32_u24 v12, {ROWB}, v12")
    p("v_and_b32 v13, 2, v2")
    p("v_xor_b32 v13, v13, v3")
    p("v_lshl_add_u32 v12, v13, 4, v12")
    p("v_bfe_u32 v13, v2, 2, 1")
    p(f"v_lshl_add_u32 v{V_XE}, v13, 6, v12")
    p("v_xor_b32 v13, 1, v13")
    p(f"v_lshl_add_u32 v{V_XO}, v13, 6, v12")
    p(f"s_mul_i32 s9, s{S_A}, 14336")
    p(f"s_add_u32 s9, s9, {L_RING}")
    p(f"v_lshl_add_u32 v{V_A}, v1, 4, s9")
    p(f"v_add_u32 v{V_A2}, {2*CHUNK}, v{V_A}")
    p(f"s_lshl_b32 s9, s{S_B}, 5")
    p("v_add_u32 v12, s9, v2")
    p(f"v_mul_u32_u24 v12, {SH_}, v12")
    p("v_lshl_add_u32 v12, v3, 3, v12")
    p(f"s_mul_i32 s9, s{S_A}, 224")
    p(f"v_add_u32 v{V_HW}, s9, v12")
    p(f"v_mul_u32_u24 v12, {SH_}, v2")
    p(f"v_lshl_add_u32 v{V_HR}, v3, 4, v12")
    p(f"v_lshlrev_b32 v{V_L16}, 4, v1")
    p(f"v_mul_u32_u24 v12, {ROWB}, v2")
    p(f"s_lshl_b32 s9, s{S_W}, 6")
    p("v_lshl_add_u32 v13, v3, 4, v12")
    p(f"v_add_u32 v{V_PO}, s9, v13")
    p(f"s_add_u32 s9, s{S_A}, 12")
    p("s_lshl_b32 s9, s9, 6")
    p(f"s_lshl_b32 s10, s{S_B}, 5")
    p("s_add_u32 s9, s9, s10")
    p("v_lshl_add_u32 v13, v3, 3, v12")
    p(f"v_add_u32 v{V_PO1}, s9, v13")
    for i in range(7):
        p(f"v_add_u32 v12, {64*i}, v1")
        p("v_mul_u32_u24 v13, 1171, v12")
        p("v_lshrrev_b32 v13, 16, v13")
        p("v_mul_u32_u24 v14, 56, v13")
        p("v_sub_u32 v14, v12, v14")
        p("v_and_b32 v15, 6, v13")
        p("v_xor_b32 v14, v14, v15")
        p(f"v_mul_u32_u24 v13, {ROWB}, v13")
        p(f"v_lshl_add_u32 v{V_XD+i}, v14, 4, v13")

def dma_x(p):
    p(f"s_mul_i32 s9, s{S_W}, {16*ROWB}")
    for hf in range(2):
        p(f"s_add_u32 s11, s9, {hf*8*ROWB}")
        for i in range(7):
            p(f"s_add_u32 m0, s11, {L_X + 1024*i}")
            p.vm(f"buffer_load_dwordx4 v{V_XD+i}, {sr(S_X)}, s11 offen sc1 lds", "x")

def dma_w1(p, chunk, tag):
    p(f"s_mul_i32 s9, s{S_W}, 7168")
    p(f"s_add_u32 s10, s9, {L_RING + (chunk % 3) * CHUNK}")
    p(f"s_add_u32 s9, s9, {chunk * CHUNK}")
    for grp, cnt in ((0, 4), (4, 3)):
        if grp:
            p("s_add_u32 s10, s10, 4096"); p("s_add_u32 s9, s9, 4096")
        p("s_mov_b32 m0, s10")
        for i in range(cnt):
            p.vm(f"buffer_load_dwordx4 v{V_L16}, {sr(S_W1)}, s9 offen offset:{1024*i} sc1 lds", tag)

def interleave(p, M, O, first=0):
    n = len(M) - first
    done = 0
    for i, m in enumerate(M):
        p(m)
        if i >= first:
            want = (len(O) * (i - first + 1) + n - 1) // n
            while done < want:
                t, kind, tag = O[done]; done += 1
                if kind == "lg": p.lg(t, tag)
                elif kind == "vm": p.vm(t, tag)
                else: p(t)

FA, AC1, ST_, HO = 16, 72, 88, 96
def silu_ops(T):
    z = AC1 + 8 * (T & 1); t = ST_
    O = []
    for r in range(8): O.append((f"v_exp_f32_e64 v{t+r}, -v{z+r}", "", None))
    for r in range(8): O.append((f"v_add_f32 v{t+r}, 1.0, v{t+r}", "", None))
    for r in range(8): O.append((f"v_rcp_f32 v{t+r}, v{t+r}", "", None))
    for r in range(8): O.append((f"v_mul_f32 v{t+r}, v{z+r}, v{t+r}", "", None))
    for nt in range(2):
        O.append((f"v_cvt_pk_bf16_f32 v{HO+2*nt}, v{t+4*nt}, v{t+4*nt+1}", "", None))
        O.append((f"v_cvt_pk_bf16_f32 v{HO+2*nt+1}, v{t+4*nt+2}, v{t+4*nt+3}", "", None))
    for nt in range(2):
        O.append((f"ds_write_b64 v{V_HW}, {v(HO+2*nt,2)} offset:{L_X + nt*16*SH_ + 32*T}", "lg", "hw"))
    return O

def gemm1(p):
    def areads(h):
        T, half, buf = h >> 1, h & 1, h & 1
        sl = T % 3
        base, o = (V_A, sl * CHUNK) if sl < 2 else (V_A2, 0)
        return [(f"ds_read_b128 {v(FA+28*buf+4*i,4)}, v{base} offset:{o + 1024*(7*half+i)}", "lg", f"g{h}") for i in range(7)]
    p.wait_vm("x")
    p("s_barrier")
    stamp(p, 12)
    for t, _, tag in areads(0): p.lg(t, tag)
    for k in range(14):
        for nt in range(2):
            base = V_XO if k & 1 else V_XE
            p.lg(f"ds_read_b128 {xh(2*k+nt)}, v{base} offset:{L_X + 128*(k>>1) + nt*16*ROWB}", f"x{k}")
    for h in range(14):
        T, half, buf = h >> 1, h & 1, h & 1
        p.wait_lg(f"g{h}")
        if h == 0: p.wait_lg("x6")
        if h == 1: p.wait_lg("x13")
        if half == 1:
            if T + 1 >= 3 and T + 1 <= 6: p.wait_vm(f"c{T+1}")
            p("s_barrier")
            if T + 3 <= 6: dma_w1(p, T + 3, f"c{T+3}")
        O = areads(h + 1) if h < 13 else []
        if T >= 1:
            so = silu_ops(T - 1)
            cut = 19
            O = O + (so[:cut] if half == 0 else so[cut:])
        M = []
        for i in range(7):
            k = 7 * half + i
            for nt in range(2):
                acc = v(AC1 + 8 * (T & 1) + 4 * nt, 4)
                M.append(f"v_mfma_f32_16x16x32_bf16 {acc}, {v(FA+28*buf+4*i,4)}, {xh(2*k+nt)}, {'0' if k == 0 else acc}")
        interleave(p, M, O, first=0)
    for t, kind, tag in silu_ops(6):
        if kind == "lg": p.lg(t, tag)
        else: p(t)
    p.wait_lg()
    p("s_barrier")

AC2, CO = 72, 16
def gemm2(p):
    for nt in range(4):
        for k in range(7):
            p.lg(f"ds_read_b128 {xh(7*nt+k)}, v{V_HR} offset:{L_X + nt*16*SH_ + 64*k}", f"h{nt}")
    lab = p.uid("nopf")
    p(f"s_cmp_eq_u32 s{S_LAY}, 0")
    p(f"s_cbranch_scc0 {lab}")
    for c in range(3): dma_w1(p, c, "pf")
    p.label(lab)
    p.vmq = []
    units = [(P, nt) for P in range(3) for nt in range(4)] + [(3, nt) for nt in range(4)]
    def epi(u):
        P, nt = units[u]; ac = AC2 + 8 * (u & 1); o = CO + 4 * (u & 3)
        O = []
        O.append((f"v_cvt_pk_bf16_f32 v{o}, v{ac}, v{ac+1}", "", None))
        O.append((f"v_cvt_pk_bf16_f32 v{o+1}, v{ac+2}, v{ac+3}", "", None))
        if P < 3:
            O.append((f"v_cvt_pk_bf16_f32 v{o+2}, v{ac+4}, v{ac+5}", "", None))
            O.append((f"v_cvt_pk_bf16_f32 v{o+3}, v{ac+6}, v{ac+7}", "", None))
        O.append((f"s_mov_b32 s9, {nt*16*ROWB}", "", None))
        if P < 3: O.append((f"buffer_store_dwordx4 {v(o,4)}, v{V_PO}, {sr(S_PW)}, s9 offen offset:{256*P}", "vm", "ps"))
        else: O.append((f"buffer_store_dwordx2 {v(o,2)}, v{V_PO1}, {sr(S_PW)}, s9 offen", "vm", "ps"))
        return O
    for u, (P, nt) in enumerate(units):
        ac = AC2 + 8 * (u & 1)
        if u < 4: p.wait_lg(f"h{nt}")
        M = []
        for k in range(7):
            for sub in range(2 if P < 3 else 1):
                Tt = 2 * P + sub
                acc = v(ac + 4 * sub, 4)
                M.append(f"v_mfma_f32_16x16x32_bf16 {acc}, {a(4*(7*k+Tt),4)}, {xh(7*nt+k)}, {'0' if k == 0 else acc}")
        interleave(p, M, epi(u - 1) if u else [], first=8 if P < 3 else 4)
    for t, kind, tag in epi(len(units) - 1):
        if kind == "vm": p.vm(t, tag)
        else: p(t)

FORCE_SLOW = False
def build(stamps=False, force_slow=False):
    global FORCE_SLOW
    FORCE_SLOW = force_slow
    common.STAMPS[0] = stamps
    p = K()
    p("s_cmp_ge_u32 s2, 256")
    p("s_cbranch_scc1 K_end")
    p.load_ptrs()
    p("s_getpc_b64 s[12:13]")
    p.label("K_pc")
    p("v_lshlrev_b32 v1, 7, v0")
    p("v_cmp_gt_u32 vcc, (K_end - K_pc), v1")
    p("s_and_saveexec_b64 s[14:15], vcc")
    p.vm("global_load_dword v255, v1, s[12:13]", "code")
    p("s_mov_b64 exec, s[14:15]")
    p.wave_id(S_W, 1)
    p("s_and_b32 s4, s2, 7")
    p("s_lshr_b32 s5, s2, 3")
    p("s_lshl_b32 s4, s4, 5")
    p("s_add_u32 s4, s4, s5")
    p("s_lshr_b32 s5, s4, 3")
    p("s_and_b32 s6, s4, 7")
    p(f"s_lshr_b32 s{S_A}, s{S_W}, 1")
    p(f"s_and_b32 s{S_B}, s{S_W}, 1")
    p(f"s_mov_b32 s{S_LAY}, 0")
    p(f"s_mov_b32 s{S_FAST}, 0")
    p("s_waitcnt lgkmcnt(0)")
    p.srd(S_FL, P_WS, WS_FLAGS, FLAGS_BYTES)
    if stamps: p.srd(92, P_WS, WS_FLAGS + 0x80000, 0x40000)
    stamp(p, 0)
    lab = p.uid("nn")
    p("s_cmp_eq_u32 s2, 0")
    p(f"s_cbranch_scc0 {lab}")
    p(f"s_cmp_eq_u32 s{S_W}, 0")
    p(f"s_cbranch_scc0 {lab}")
    p.srd(SF_, P_DBG, 0, 256)
    p("s_memrealtime s[10:11]")
    p("s_waitcnt lgkmcnt(0)")
    p("s_lshl_b64 s[10:11], s[10:11], 4")
    p("s_or_b32 s11, s11, 0x40000000")
    p("v_mov_b32 v2, s10"); p("v_mov_b32 v3, s11"); p("v_mov_b32 v1, 0")
    p("s_mov_b64 exec, 1")
    p(f"buffer_store_dwordx2 v[2:3], v1, {sr(SF_)}, 0 offen sc1")
    p("s_mov_b64 exec, -1")
    p.label(lab)
    row_setup(p)
    p.srd(SA, P_Q, 0, MAT)
    p.vm(f"buffer_load_dwordx4 {v(XP,4)}, v{OFFA}, {sr(SA)}, 0 offen", "q")
    p.vm(f"buffer_load_dwordx4 {v(XP+4,4)}, v{OFFB}, {sr(SA)}, 0 offen", "q")
    p("s_cmp_ge_u32 s2, 224")
    p("s_cbranch_scc1 K_noprep")
    prep(p)
    stamp(p, 1)
    p.srd(SF_, P_DBG, 0, 256)
    get_nonce(p)
    signal(p, FL_S1A, 2)
    stamp(p, 2)
    hbuild(p)
    p("s_branch K_prepdone")
    p.label("K_noprep")
    p.srd(SF_, P_DBG, 0, 256)
    get_nonce(p)
    p.label("K_prepdone")
    p.vmq = []; p.lgq = []
    lab = p.uid("xp")
    p(f"s_cmp_eq_u32 s{S_W}, 0")
    p(f"s_cbranch_scc0 {lab}")
    p("s_getreg_b32 s9, hwreg(HW_REG_XCC_ID, 0, 4)")
    p(f"s_add_u32 s9, s9, s{S_N}")
    p("v_mov_b32 v2, s9"); p(f"v_mov_b32 v3, s{S_N+1}")
    p(f"s_lshl_b32 s9, s{S_RB}, 3"); p(f"s_add_u32 s9, s9, {FL_XCC}")
    p("v_mov_b32 v1, s9")
    p("s_mov_b64 exec, 1")
    p(f"buffer_store_dwordx2 v[2:3], v1, {sr(S_FL)}, 0 offen sc1")
    p("s_mov_b64 exec, -1")
    p.label(lab)
    mlp_setup(p)
    p(f"s_mul_i32 s9, s{S_MEM}, {7*CHUNK}"); p(f"s_add_u32 s9, s9, {hex(WS_W1P)}")
    p(f"s_add_u32 s{S_W1}, s{P_WS}, s9"); p(f"s_addc_u32 s{S_W1+1}, s{P_WS+1}, 0")
    p(f"s_mov_b32 s{S_W1+2}, {7*CHUNK}"); p(f"s_mov_b32 s{S_W1+3}, 0x20000")
    p(f"s_mul_i32 s9, s{S_CL}, {64*ROWB}"); p(f"s_add_u32 s9, s9, {hex(WS_XB)}")
    p(f"s_add_u32 s{S_X}, s{P_WS}, s9"); p(f"s_addc_u32 s{S_X+1}, s{P_WS+1}, 0")
    p(f"s_mov_b32 s{S_X+2}, {64*ROWB}"); p(f"s_mov_b32 s{S_X+3}, 0x20000")
    p(f"s_mul_i32 s9, s{S_RB}, {64*ROWB}"); p(f"s_add_u32 s9, s9, {hex(WS_PB)}")
    p(f"s_add_u32 s{S_PW}, s{P_WS}, s9"); p(f"s_addc_u32 s{S_PW+1}, s{P_WS+1}, 0")
    p(f"s_mov_b32 s{S_PW+2}, {64*ROWB}"); p(f"s_mov_b32 s{S_PW+3}, 0x20000")
    p(f"s_mul_i32 s9, s{S_CL}, {8*64*ROWB}"); p(f"s_add_u32 s9, s9, {hex(WS_PB)}")
    p(f"s_add_u32 s{S_PR}, s{P_WS}, s9"); p(f"s_addc_u32 s{S_PR+1}, s{P_WS+1}, 0")
    p(f"s_mov_b32 s{S_PR+2}, {8*64*ROWB}"); p(f"s_mov_b32 s{S_PR+3}, 0x20000")
    p("v_and_b32 v1, 63, v0")
    p("s_lshr_b32 s9, s2, 5")
    p("s_min_u32 s9, s9, 6")
    p("v_mul_u32_u24 v8, 7, v1")
    p("v_add_u32 v8, s9, v8")
    p(f"s_mul_i32 s9, s{S_MEM}, 14")
    p("v_subrev_u32 v9, 32, v1")
    p("v_add_u32 v9, s9, v9")
    p("v_add_u32 v10, 98, v9")
    p("v_cmp_gt_u32 vcc, 46, v1")
    p("v_cndmask_b32 v9, v10, v9, vcc")
    p("v_cmp_gt_u32 vcc, 32, v1")
    p("v_cndmask_b32 v8, v9, v8, vcc")
    p("v_lshlrev_b32 v8, 3, v8")
    p(f"v_add_u32 v8, {FL_S1A}, v8")
    p("s_waitcnt lgkmcnt(0)")
    poll(p, [8], 1, [60])
    stamp(p, 3)
    p(f"s_lshl_b32 s9, s{S_MEM}, 2"); p(f"s_add_u32 s9, s9, s{S_W}")
    p(f"s_mul_i32 s9, s9, {49*1024}"); p(f"s_add_u32 s9, s9, {hex(WS_W2P)}")
    p(f"s_add_u32 s{SE}, s{P_WS}, s9"); p(f"s_addc_u32 s{SE+1}, s{P_WS+1}, 0")
    p(f"s_mov_b32 s{SE+2}, {49*1024}"); p(f"s_mov_b32 s{SE+3}, 0x20000")
    p.srd(SD, P_WS, WS_YB, MAT)
    p("s_cmp_ge_u32 s2, 224")
    p("s_cbranch_scc1 K_noconv")
    p("s_lshl_b32 s9, s2, 13")
    p(f"s_add_u32 s{SA}, s{P_WS}, s9"); p(f"s_addc_u32 s{SA+1}, s{P_WS+1}, 0")
    p(f"s_mov_b32 s{SA+2}, 8192"); p(f"s_mov_b32 s{SA+3}, 0x20000")
    p("v_lshlrev_b32 v10, 4, v0")
    p.vm(f"buffer_load_dwordx4 v[64:67], v10, {sr(SA)}, 0 offen sc1", "u")
    p("v_add_u32 v11, 4096, v10")
    p.vm(f"buffer_load_dwordx4 v[68:71], v11, {sr(SA)}, 0 offen sc1", "u")
    p("s_lshl_b32 s9, s2, 2")
    p(f"s_load_dword s13, s[{P_DV}:{P_DV+1}], s9")
    load_w2(p, SE)
    p(f"v_add_u32 v10, {L_U+512}, v10")
    p.wait_vm("u")
    p.lg("ds_write_b128 v10, v[64:67]")
    p.lg(f"ds_write_b128 v10, v[68:71] offset:{U_CH}")
    p("s_waitcnt lgkmcnt(0)"); p.lgq = []
    p("s_lshl_b32 s12, s13, 16")
    p("s_and_b32 s14, s13, 0xffff0000")
    p(f"s_cmp_eq_u32 s{S_B}, 0")
    p("s_cselect_b32 s14, s12, s14")
    p("s_barrier")
    stamp(p, 4)
    conv_main(p)
    stamp(p, 5)
    conv_out(p, SD)
    signal(p, FL_S2, 2)
    stamp(p, 6)
    p("s_branch K_convdone")
    p.label("K_noconv")
    p.vmq = []
    load_w2(p, SE)
    p.wait_vm()
    p.label("K_convdone")
    p.vmq = []; p.lgq = []
    xcc_check(p)
    p("v_and_b32 v1, 63, v0")
    for i in range(4):
        p(f"v_lshlrev_b32 v{10+i}, 3, v1")
        p(f"v_add_u32 v{10+i}, {FL_S2 + 512*i}, v{10+i}")
    poll(p, [10, 11, 12, 13], 4, [64, 64, 64, 32])
    stamp(p, 7)
    y_load(p, SD)
    for c in range(3): dma_w1(p, c, "pf")
    y_transpose(p)
    stamp(p, 8)
    p("v_mov_b32 v7, 0xffff0000")
    p.label("K_layer")
    p.vmq = []; p.lgq = []
    p("v_mov_b32 v7, 0xffff0000")
    unpack(p, X, XP, 8)
    layernorm(p, X, T)
    for i in range(0, 16, 2):
        p(f"v_pk_fma_f32 {v(X+i,2)}, {v(T+i,2)}, {v(YV+i,2)}, {v(X+i,2)}")
    pack(p, XP, X, 8)
    unpack(p, X, XP, 8)
    layernorm(p, X, T, LOG2E)
    pack(p, PK, T, 8)
    p(f"s_mul_i32 s9, s{S_CL}, {64*ROWB}")
    p(f"v_subrev_u32 v3, s9, v{OFFA}")
    p(f"v_subrev_u32 v4, s9, v{OFFB}")
    p(f"v_cndmask_b32 v3, -1, v3, {ACT}")
    p(f"v_cndmask_b32 v4, -1, v4, {ACT}")
    p.vm(f"buffer_store_dwordx4 {v(PK,4)}, v3, {sr(S_X)}, 0 offen")
    p.vm(f"buffer_store_dwordx4 {v(PK+4,4)}, v4, {sr(S_X)}, 0 offen")
    stamp(p, 9)
    signal(p, FL_A0, S_RB, layer_off=True, cluster=True)
    stamp(p, 10)
    def cluster_offs():
        p("v_and_b32 v1, 7, v0")
        p(f"s_lshl_b32 s9, s{S_CL}, 6")
        p(f"s_lshl_b32 s10, s{S_LAY}, 12")
        p("s_add_u32 s9, s9, s10")
    cluster_offs()
    p(f"s_add_u32 s9, s9, {FL_A0}")
    p("v_lshl_add_u32 v10, v1, 3, s9")
    poll(p, [10], 1, [8], cluster=True)
    stamp(p, 11)
    dma_x(p)
    gemm1(p)
    stamp(p, 13)
    gemm2(p)
    stamp(p, 14)
    signal(p, FL_C0, S_RB, layer_off=True, cluster=True)
    stamp(p, 15)
    cluster_offs()
    p(f"s_add_u32 s9, s9, {FL_C0}")
    p("v_lshl_add_u32 v10, v1, 3, s9")
    poll(p, [10], 1, [8], cluster=True)
    stamp(p, 16)
    add_partials(p)
    stamp(p, 17)
    p(f"s_cmp_eq_u32 s{S_LAY}, 1")
    p("s_cbranch_scc1 K_final")
    p(f"s_mov_b32 s{S_LAY}, 1")
    p(f"s_add_u32 s{S_X}, s{S_X}, {hex(WS_XB2 - WS_XB)}"); p(f"s_addc_u32 s{S_X+1}, s{S_X+1}, 0")
    p(f"s_add_u32 s{S_PW}, s{S_PW}, {hex(WS_PB2 - WS_PB)}"); p(f"s_addc_u32 s{S_PW+1}, s{S_PW+1}, 0")
    p(f"s_add_u32 s{S_PR}, s{S_PR}, {hex(WS_PB2 - WS_PB)}"); p(f"s_addc_u32 s{S_PR+1}, s{S_PR+1}, 0")
    p("s_branch K_layer")
    p.label("K_final")
    p.srd(SA, P_OUT, 0, MAT)
    p(f"buffer_store_dwordx4 {v(XP,4)}, v{OFFA}, {sr(SA)}, 0 offen")
    p(f"buffer_store_dwordx4 {v(XP+4,4)}, v{OFFB}, {sr(SA)}, 0 offen")
    p.label("K_end")
    p("s_endpgm")
    txt, n = kernel_text(KNAME, p, 256, sgprs=102, agprs=256)
    print("nops inserted:", n, "instructions:", p.count(), file=sys.stderr)
    head = HEADER + f"; @launch grid=(256,1,1) block=(256,1,1) lds={LDS_BYTES}\n" + '.amdgcn_target "amdgcn-amd-amdhsa--gfx950"\n'
    return head + txt

if __name__ == "__main__":
    open(sys.argv[1], "w").write(build(stamps="st" in sys.argv[2:], force_slow="slow" in sys.argv[2:]))
```

```python
import sys
from common import *
import common
EXP = set(sys.argv[2:])

KNAME = "interleave_layers__ssm_conv_h3__dense_activation_silu__prompt_kernel"
HEADER = open("interleave_layers__ssm_conv_h3__dense_activation_silu__prompt.s.ref").read().split("; Override launch")[0]

S_W, S_RB, S_CL, S_MEM, S_A, S_B = 3, 4, 5, 6, 7, 8
SA, SB_, SC, SD, SE, SF_ = 40, 44, 48, 52, 56, 60
S_FL, S_W1, S_X, S_PW, S_PR = 64, 68, 72, 76, 80
S_N, S_FAST, S_LAY = 84, 86, 87
S_W7 = 100
ACT = "s[88:89]"
S_T = 90
V_XE, V_XO, V_A, V_A2, V_HW, V_HR, V_L16, V_PO, V_PO1 = 200, 201, 202, 203, 204, 205, 206, 207, 208
V_XD = 209
V_PWA, V_PWB = 216, 217
XP = 224
YV = 232
OFFA, OFFB = 248, 249
VN = 250
LA, LB = 0, 8192
HC_COPY = 4160; HC_CH = 8 * HC_COPY; L_U = 2 * HC_CH; U_CH = 512 + 4096; YS_CH = 4096 + 128
LY = 0
L_X = 0; SH_ = 480; L_RING = 57344; CHUNK = 28672
LDS_BYTES = 163840
L_FASTW = 163836 - 60

def sr(r): return f"s[{r}:{r+3}]"

def stamp(p, sid, layered=False):
    if not common.STAMPS[0]: return
    p("s_memrealtime s[96:97]")
    p("s_memtime s[98:99]")
    p("s_waitcnt lgkmcnt(0)")
    if layered:
        p(f"s_mul_i32 s97, s{S_LAY}, 10")
        p(f"s_add_u32 m0, s97, {sid}")
        p("s_nop 3")
        p("v_writelane_b32 v252, s96, m0")
        p("v_writelane_b32 v253, s98, m0")
    else:
        p(f"v_writelane_b32 v252, s96, {sid}")
        p(f"v_writelane_b32 v253, s98, {sid}")
    p.lgq = []

def stamp_flush(p):
    if not common.STAMPS[0]: return
    lab = p.uid("sf")
    p(f"s_cmp_eq_u32 s{S_W}, 0")
    p(f"s_cbranch_scc0 {lab}")
    p("v_lshlrev_b32 v1, 2, v0")
    p("s_lshl_b32 s9, s2, 9")
    p("v_add_u32 v1, s9, v1")
    p("buffer_store_dword v252, v1, s[92:95], 0 offen")
    p("buffer_store_dword v253, v1, s[92:95], 0 offen offset:256")
    p.label(lab)

def flag_store(p, table, idx_sreg, layer_off=False, cluster=False):
    lab = p.uid("sig")
    p(f"s_cmp_eq_u32 s{S_W}, 0")
    p(f"s_cbranch_scc0 {lab}")
    p(f"s_lshl_b32 s{S_T}, s{idx_sreg}, 3")
    p(f"s_add_u32 s{S_T}, s{S_T}, {table}")
    if layer_off:
        p(f"s_lshl_b32 s{S_T+1}, s{S_LAY}, 12")
        p(f"s_add_u32 s{S_T}, s{S_T}, s{S_T+1}")
    p(f"v_mov_b32 v{VN}, s{S_N}")
    p(f"v_mov_b32 v{VN+1}, s{S_N+1}")
    p(f"v_mov_b32 v1, s{S_T}")
    p("s_mov_b64 exec, 1")
    if cluster:
        l2 = p.uid("sigslow"); l3 = p.uid("sigdone")
        p(f"s_cmp_eq_u32 s{S_FAST}, 1")
        p(f"s_cbranch_scc0 {l2}")
        p(f"buffer_store_dwordx2 {v(VN,2)}, v1, {sr(S_FL)}, 0 offen")
        p(f"s_branch {l3}")
        p.label(l2)
        p("buffer_wbl2 sc1")
        p("s_waitcnt vmcnt(0)")
        p(f"buffer_store_dwordx2 {v(VN,2)}, v1, {sr(S_FL)}, 0 offen sc1")
        p.label(l3)
    else:
        p(f"buffer_store_dwordx2 {v(VN,2)}, v1, {sr(S_FL)}, 0 offen sc1")
    p("s_mov_b64 exec, -1")
    p.label(lab)

def flag_store_rep(p, table, idx_sreg):
    lab = p.uid("sigr")
    p(f"s_cmp_eq_u32 s{S_W}, 0")
    p(f"s_cbranch_scc0 {lab}")
    p(f"s_lshl_b32 s{S_T}, s{idx_sreg}, 3")
    p(f"s_add_u32 s{S_T}, s{S_T}, {table}")
    p(f"v_mov_b32 v{VN}, s{S_N}")
    p(f"v_mov_b32 v{VN+1}, s{S_N+1}")
    p("v_lshlrev_b32 v1, 11, v0")
    p(f"v_add_u32 v1, s{S_T}, v1")
    p("s_mov_b64 exec, 0xff")
    p(f"buffer_store_dwordx2 {v(VN,2)}, v1, {sr(S_FL)}, 0 offen sc1")
    p("s_mov_b64 exec, -1")
    p.label(lab)

def signal(p, table, idx_sreg, layer_off=False, cluster=False, upto=None):
    if upto: p.wait_vm(upto)
    else: p.wait_vm()
    p("s_barrier")
    if table in (FL_S1R, FL_S2R): flag_store_rep(p, table, idx_sreg)
    else: flag_store(p, table, idx_sreg, layer_off, cluster)

def setexec(p, nl):
    m = (1 << nl) - 1
    lo, hi = m & 0xffffffff, m >> 32
    p(f"s_mov_b32 exec_lo, {hex(lo) if lo != 0xffffffff else -1}")
    p(f"s_mov_b32 exec_hi, {hex(hi) if hi != 0xffffffff else -1}")

def poll(p, offs, n_loads, masks, cluster=False, all_waves=False):
    lab = p.uid("poll"); done = p.uid("polld"); skip = p.uid("polls")
    if not all_waves:
        p(f"s_cmp_eq_u32 s{S_W}, 0")
        p(f"s_cbranch_scc0 {skip}")
    p(f"s_mov_b32 s{S_T}, 0")
    p.label(lab)
    for i in range(n_loads):
        setexec(p, masks[i])
        p(f"buffer_load_dwordx2 {v(2+2*i,2)}, v{offs[i]}, {sr(S_FL)}, 0 offen sc1")
    p("s_waitcnt vmcnt(0)")
    p("s_mov_b32 s9, 1")
    for i in range(n_loads):
        setexec(p, masks[i])
        p(f"v_cmp_eq_u64 vcc, {s(S_N,2)}, {v(2+2*i,2)}")
        p("s_nop 4")
        p("s_cmp_eq_u64 vcc, exec")
        p("s_cselect_b32 s9, s9, 0")
    p("s_mov_b64 exec, -1")
    p("s_cmp_eq_u32 s9, 1")
    p(f"s_cbranch_scc1 {done}")
    p(f"s_add_u32 s{S_T}, s{S_T}, 1")
    p(f"s_cmp_lt_u32 s{S_T}, 0x8000")
    p(f"s_cbranch_scc0 {done}")
    p("s_sleep 1")
    p(f"s_branch {lab}")
    p.label(done)
    if cluster:
        l2 = p.uid("acq")
        p(f"s_cmp_eq_u32 s{S_FAST}, 1")
        p(f"s_cbranch_scc1 {l2}")
        p("buffer_inv sc1")
        p("s_waitcnt vmcnt(0)")
        p.label(l2)
    p.label(skip)
    p("s_barrier")
    p.vmq = []

def get_nonce(p):
    lab = p.uid("non"); done = p.uid("nond")
    p(f"s_mov_b32 s{S_T}, 0")
    p.label(lab)
    p("v_mov_b32 v1, 0")
    p(f"buffer_load_dwordx2 v[2:3], v1, {sr(SF_)}, 0 offen sc1")
    p("s_waitcnt vmcnt(0)")
    p(f"v_readfirstlane_b32 s{S_N}, v2")
    p(f"v_readfirstlane_b32 s{S_N+1}, v3")
    p("s_nop 3")
    p(f"s_or_b32 s9, s{S_N}, s{S_N+1}")
    p("s_cmp_lg_u32 s9, 0")
    p(f"s_cbranch_scc1 {done}")
    p(f"s_add_u32 s{S_T}, s{S_T}, 1")
    p(f"s_cmp_lt_u32 s{S_T}, 0x8000")
    p(f"s_cbranch_scc0 {done}")
    p("s_sleep 1")
    p(f"s_branch {lab}")
    p.label(done)
    p.vmq = []

def tlb_warm(p):
    if 'notlb' in EXP: return
    ent = [(P_K, None), (P_V, None), (P_SK, 0), (P_W1, 0), (P_W2, 0), (P_H, "h"), (P_Q, "q"), (P_DV, 0), (P_DBG, 0), (P_OUT, "q"),
           (P_WS, WS_KVT), (P_WS, WS_YB), (P_WS, WS_W1P), (P_WS, WS_W2P), (P_WS, WS_FLAGS), (P_WS, "pb0"), (P_WS, "pb1")]
    lab = p.uid("tw")
    p(f"s_cmp_eq_u32 s{S_W}, 0")
    p(f"s_cbranch_scc0 {lab}")
    p(f"v_mov_b32 v2, s{P_K}"); p(f"v_mov_b32 v3, s{P_K+1}")
    p(f"s_mul_i32 s9, s{S_RB}, {8*ROWB}")
    p("s_min_u32 s10, s2, 223"); p("s_lshl_b32 s10, s10, 13")
    p(f"s_mul_i32 s11, s{S_CL}, {8*64*ROWB}"); p(f"s_add_u32 s11, s11, {hex(WS_PB)}")
    for i, (ptr, off) in enumerate(ent):
        if off in (None, 0):
            lo, hi = ptr, ptr + 1
        else:
            if off == "q": src = "s9"
            elif off == "h": src = "s10"
            elif off == "pb0": src = "s11"
            elif off == "pb1":
                p(f"s_add_u32 s11, s11, {8*64*ROWB - 128}"); src = "s11"
            else: src = hex(off)
            p(f"s_add_u32 s12, s{ptr}, {src}"); p(f"s_addc_u32 s13, s{ptr+1}, 0")
            lo, hi = 12, 13
        p(f"v_writelane_b32 v2, s{lo}, {i}")
        p(f"v_writelane_b32 v3, s{hi}, {i}")
    setexec(p, len(ent))
    p("global_load_dword v254, v[2:3], off")
    p("s_mov_b64 exec, -1")
    p.label(lab)

def prep(p):
    S_RBK, S_CG = 12, 13
    SK_, SV_, SSK, SKVT, SSRC, SDST = SA, SB_, SC, SD, SE, S_W1
    T0 = 72
    p.div_const(S_RBK, 2, 7)
    p(f"s_mul_i32 s{S_CG}, s{S_RBK}, 7")
    p(f"s_sub_u32 s{S_CG}, s2, s{S_CG}")
    p.srd(SK_, P_K, 0, MAT); p.srd(SV_, P_V, 0, MAT); p.srd(SSK, P_SK, 0, D * 8); p.srd(SKVT, P_WS, WS_KVT, MAT)
    p("v_and_b32 v1, 15, v0")
    p("v_lshrrev_b32 v2, 4, v0")
    p(f"s_lshl_b32 s9, s{S_RBK}, 6")
    p("s_sub_u32 s9, s9, 3")
    p("v_lshl_add_u32 v3, v2, 2, s9")
    p(f"v_mul_i32_i24 v4, {ROWB}, v3")
    p(f"s_lshl_b32 s10, s{S_CG}, 7")
    p("v_lshl_add_u32 v5, v1, 3, s10")
    p("v_add_u32 v4, v4, v5")
    for i in range(1, 7):
        p(f"v_add_u32 v{5+i}, {ROWB*i}, v4")
    off = lambda i: "v4" if i == 0 else f"v{5+i}"
    p("v_lshlrev_b32 v12, 2, v5")
    for i in range(7):
        p.vm(f"buffer_load_dwordx2 {v(16+2*i,2)}, {off(i)}, {sr(SK_)}, 0 offen", "k")
    for i in range(4):
        p.vm(f"buffer_load_dwordx2 {v(30+2*i,2)}, {off(i+3)}, {sr(SV_)}, 0 offen", "k")
    p.vm(f"buffer_load_dwordx4 v[38:41], v12, {sr(SSK)}, 0 offen", "k")
    p.vm(f"buffer_load_dwordx4 v[42:45], v12, {sr(SSK)}, 0 offen offset:16", "k")
    if 'pp' in EXP: stamp(p, 34)
    S_J, S_R, S_ISW2, S_STR = T0, T0 + 1, T0 + 2, T0 + 3
    p("s_cmp_ge_u32 s2, 112")
    p(f"s_cselect_b32 s{S_ISW2}, 1, 0")
    p("s_cselect_b32 s9, 112, 0")
    p("s_sub_u32 s9, s2, s9")
    p.div_const(S_J, 9, 14)
    p(f"s_mul_i32 s10, s{S_J}, 14")
    p(f"s_sub_u32 s{S_R}, s9, s10")
    p(f"s_mul_i32 s10, s{S_R}, {32*3584}")
    p(f"s_mul_i32 s11, s{S_J}, 448")
    p("s_add_u32 s10, s10, s11")
    p(f"s_lshr_b32 s11, s{S_R}, 1")
    p(f"s_mul_i32 s11, s11, {32*896}")
    p(f"s_mul_i32 s14, s{S_J}, {224*896}")
    p("s_add_u32 s11, s11, s14")
    p(f"s_and_b32 s14, s{S_R}, 1")
    p("s_mul_i32 s14, s14, 448")
    p("s_add_u32 s11, s11, s14")
    p(f"s_cmp_eq_u32 s{S_ISW2}, 1")
    p("s_cselect_b32 s10, s11, s10")
    p.csel(S_STR, 896, 3584)
    p(f"s_cselect_b32 s{SSRC}, s{P_W2}, s{P_W1}")
    p(f"s_cselect_b32 s{SSRC+1}, s{P_W2+1}, s{P_W1+1}")
    p(f"s_mov_b32 s{SSRC+2}, {hex(D*F*2)}")
    p(f"s_mov_b32 s{SSRC+3}, 0x20000")
    for m in range(4):
        p(f"v_add_u32 v13, {256*m}, v0")
        p("v_mul_u32_u24 v14, 2341, v13")
        p("v_lshrrev_b32 v14, 16, v14")
        p("v_mul_u32_u24 v15, 28, v14")
        p("v_sub_u32 v15, v13, v15")
        p(f"v_mul_lo_u32 v14, v14, s{S_STR}")
        p("v_lshl_add_u32 v14, v15, 4, v14")
        p("v_add_u32 v14, s10, v14")
        if m == 3:
            p("v_cmp_gt_u32 vcc, 896, v13")
            p("v_cndmask_b32 v14, -1, v14, vcc")
        p.vm(f"buffer_load_dwordx4 {v(48+4*m,4)}, v14, {sr(SSRC)}, 0 offen", "w")
    if 'pp' in EXP: stamp(p, 35)
    p("v_and_b32 v46, 63, v0")
    p("v_lshrrev_b32 v47, 4, v46")
    p("v_bfe_u32 v14, v46, 2, 2")
    p("v_and_b32 v15, 3, v46")
    p("v_lshl_add_u32 v47, v47, 3, v14")
    p("v_mul_u32_u24 v47, 448, v47")
    p("v_lshlrev_b32 v46, 4, v46")
    p(f"s_cmp_eq_u32 s{S_ISW2}, 1")
    p.csel(9, hex(WS_W2P), hex(WS_W1P))
    p(f"s_add_u32 s{SDST}, s{P_WS}, s9")
    p(f"s_addc_u32 s{SDST+1}, s{P_WS+1}, 0")
    p(f"s_mov_b32 s{SDST+2}, {hex(W1P_BYTES)}")
    p(f"s_mov_b32 s{SDST+3}, 0x20000")
    t = [76, 77, 78, 79]
    for m in range(4):
        ST, DST = 14, 80 + m
        p(f"s_add_u32 s{ST}, s{S_W}, {4*m}")
        p(f"s_cmp_ge_u32 s{ST}, 7")
        p(f"s_cselect_b32 s{t[0]}, 1, 0")
        p(f"s_mul_i32 s{t[1]}, s{t[0]}, 7")
        p(f"s_sub_u32 s{t[1]}, s{ST}, s{t[1]}")
        p(f"s_mul_i32 s{DST}, s{S_J}, 7")
        p(f"s_add_u32 s{DST}, s{DST}, s{t[1]}")
        p(f"s_lshl_b32 s{DST}, s{DST}, 1")
        p(f"s_add_u32 s{DST}, s{DST}, s{t[0]}")
        p(f"s_mul_i32 s{DST}, s{DST}, 14")
        p(f"s_add_u32 s{DST}, s{DST}, s{S_R}")
        p(f"s_and_b32 s9, s{ST}, 1")
        p(f"s_lshr_b32 s10, s{ST}, 1")
        p(f"s_and_b32 s11, s{S_R}, 1")
        p("s_mul_i32 s11, s11, 7")
        p("s_add_u32 s11, s11, s10")
        p(f"s_lshr_b32 s15, s{S_R}, 1")
        p("s_mul_i32 s15, s15, 7")
        p(f"s_mul_i32 s{t[0]}, s{S_J}, 196")
        p(f"s_add_u32 s15, s15, s{t[0]}")
        p(f"s_and_b32 s{t[0]}, s11, 3")
        p(f"s_mul_i32 s{t[0]}, s{t[0]}, 49")
        p(f"s_lshr_b32 s{t[1]}, s11, 2")
        p(f"s_lshl_b32 s{t[1]}, s{t[1]}, 1")
        p(f"s_add_u32 s{t[1]}, s{t[1]}, s9")
        p(f"s_add_u32 s{t[0]}, s{t[0]}, s{t[1]}")
        p(f"s_lshl_b32 s10, s10, 6")
        p(f"s_lshl_b32 s{t[1]}, s9, 3")
        p(f"s_add_u32 s{t[1]}, s{t[1]}, s10")
        p(f"s_sub_u32 s{t[2]}, s11, 12")
        p(f"s_lshl_b32 s{t[2]}, s{t[2]}, 1")
        p(f"s_add_u32 s{t[2]}, s{t[2]}, s9")
        p(f"s_mul_i32 s{t[2]}, s{t[2]}, 49")
        p(f"s_add_u32 s{t[2]}, s{t[2]}, 6")
        p(f"s_lshl_b32 s{t[3]}, s9, 5")
        p(f"s_add_u32 s{t[3]}, s{t[3]}, s10")
        p("s_cmp_lt_u32 s11, 12")
        p(f"s_cselect_b32 s{t[0]}, s{t[0]}, s{t[2]}")
        p(f"s_cselect_b32 s{t[1]}, s{t[1]}, s{t[3]}")
        p(f"s_cselect_b32 s{t[2]}, 4, 3")
        p(f"s_add_u32 s{t[0]}, s{t[0]}, s15")
        p(f"s_lshl_b32 s{t[3]}, s{ST}, 5")
        p(f"s_cmp_eq_u32 s{S_ISW2}, 1")
        p(f"s_cselect_b32 s{DST}, s{t[0]}, s{DST}")
        p(f"s_cselect_b32 s{t[1]}, s{t[1]}, s{t[3]}")
        p(f"s_cselect_b32 s{t[2]}, s{t[2]}, 3")
        p(f"s_lshl_b32 s{DST}, s{DST}, 10")
        p(f"v_lshlrev_b32 v{144+m}, s{t[2]}, v15")
        p(f"v_add3_u32 v{144+m}, v{144+m}, v47, s{t[1]}")
    mlp_setup(p)
    if 'pp' in EXP: stamp(p, 30)
    p.wait_vm("w")
    if 'pp' in EXP: stamp(p, 31)
    early_loads(p)
    p("v_lshlrev_b32 v14, 4, v0")
    for m in range(3):
        p.lg(f"ds_write_b128 v14, {v(48+4*m,4)} offset:{LB+4096*m}")
    lab = p.uid("skip3")
    p(f"s_cmp_ge_u32 s{S_W}, 2")
    p(f"s_cbranch_scc1 {lab}")
    p(f"ds_write_b128 v14, {v(60,4)} offset:{LB+4096*3}")
    p.label(lab)
    p.wait_lg()
    p("s_barrier")
    for m in range(4):
        p.lg(f"ds_read_b64_tr_b16 {v(48+4*m,2)}, v{144+m} offset:{LB}", f"t{m}")
        p.lg(f"ds_read_b64_tr_b16 {v(48+4*m+2,2)}, v{144+m} offset:{LB+4*448}", f"t{m}")
    for m in range(3):
        p.wait_lg(f"t{m}")
        p.vm(f"buffer_store_dwordx4 {v(48+4*m,4)}, v46, {sr(SDST)}, s{80+m} offen sc1", "wst")
    lab = p.uid("pk")
    p.wait_lg()
    p(f"s_cmp_ge_u32 s{S_W}, 2")
    p(f"s_cbranch_scc1 {lab}")
    p(f"buffer_store_dwordx4 {v(60,4)}, v46, {sr(SDST)}, s83 offen sc1")
    p.label(lab)
    p.srd(SF_, P_DBG, 0, 256)
    p("v_mov_b32 v47, 0")
    p.vm(f"buffer_load_dwordx2 v[150:151], v47, {sr(SF_)}, 0 offen sc1", "nonce")
    if 'pp' in EXP: stamp(p, 32)
    KF, SF, VF, AC, OP = 64, 92, 108, 124, 140
    p("v_mov_b32 v15, 0xffff0000")
    for i in range(7):
        for d in range(2):
            p(f"v_lshlrev_b32 v{KF+4*i+2*d}, 16, v{16+2*i+d}")
            p(f"v_and_b32 v{KF+4*i+2*d+1}, v15, v{16+2*i+d}")
    for e in range(4):
        for j in range(4):
            src = 38 + 2*e + (j >> 1)
            if j & 1: p(f"v_and_b32 v{SF+4*j+e}, v15, v{src}")
            else: p(f"v_lshlrev_b32 v{SF+4*j+e}, 16, v{src}")
    for i in range(4):
        for d in range(2):
            p(f"v_lshlrev_b32 v{VF+4*i+2*d}, 16, v{30+2*i+d}")
            p(f"v_and_b32 v{VF+4*i+2*d+1}, v15, v{30+2*i+d}")
    for j in range(4):
        for r in range(4):
            for e in (0, 2):
                kf = v(KF+4*(r+3-j)+e, 2); sf = v(SF+4*j+e, 2); ac = v(AC+4*r+e, 2)
                if j == 0: p(f"v_pk_mul_f32 {ac}, {kf}, {sf}")
                else: p(f"v_pk_fma_f32 {ac}, {kf}, {sf}, {ac}")
    for r in range(4):
        for e in (0, 2):
            p(f"v_pk_mul_f32 {v(AC+4*r+e,2)}, {v(AC+4*r+e,2)}, {v(VF+4*r+e,2)}")
    for e in range(4):
        p(f"v_cvt_pk_bf16_f32 v{OP+2*e}, v{AC+e}, v{AC+4+e}")
        p(f"v_cvt_pk_bf16_f32 v{OP+2*e+1}, v{AC+8+e}, v{AC+12+e}")
    if 'pp' in EXP: stamp(p, 33)
    p("v_xor_b32 v13, v1, v2")
    p("v_lshlrev_b32 v13, 3, v13")
    p("v_lshl_add_u32 v13, v1, 9, v13")
    for e in range(4):
        p.lg(f"ds_write_b64 v13, {v(OP+2*e,2)} offset:{LA+128*e}")
    p.wait_lg()
    p("s_barrier")
    p("v_lshrrev_b32 v1, 3, v0")
    p("v_and_b32 v2, 7, v0")
    p("v_lshlrev_b32 v3, 1, v2")
    p(f"s_lshl_b32 s9, s{S_CG}, 6")
    p(f"s_lshl_b32 s10, s{S_RBK}, 7")
    for pi in range(2):
        p(f"v_add_u32 v4, {32*pi}, v1")
        p("v_lshrrev_b32 v5, 2, v4")
        p("v_xor_b32 v6, v3, v5")
        p("v_xor_b32 v7, 1, v6")
        p("v_lshlrev_b32 v8, 7, v4")
        p("v_lshl_add_u32 v6, v6, 3, v8")
        p("v_lshl_add_u32 v7, v7, 3, v8")
        p.lg(f"ds_read_b64 {v(16+4*pi,2)}, v6 offset:{LA}", f"a{pi}")
        p.lg(f"ds_read_b64 {v(18+4*pi,2)}, v7 offset:{LA}", f"a{pi}")
        p("v_add_u32 v8, s9, v4")
        p("v_lshlrev_b32 v8, 12, v8")
        p("v_lshl_add_u32 v8, v2, 4, v8")
        p(f"v_add_u32 v{24+pi}, s10, v8")
    for pi in range(2):
        p.wait_lg(f"a{pi}")
        p.vm(f"buffer_store_dwordx4 {v(16+4*pi,4)}, v{24+pi}, {sr(SKVT)}, 0 offen sc1", "kvst")

HW = 160
def code_prefetch(p):
    if 'nocode' in EXP: return
    p("s_getpc_b64 s[90:91]")
    lab = p.uid("K_pc")
    p.label(lab)
    p("v_lshlrev_b32 v180, 7, v0")
    p(f"v_cmp_gt_u32 vcc, (K_end - {lab}), v180")
    p("s_and_saveexec_b64 s[10:11], vcc")
    p.vm("global_load_dword v255, v180, s[90:91]", "code")
    p("s_mov_b64 exec, s[10:11]")

def q_loads(p):
    row_setup(p)
    p.srd(SF_, P_Q, 0, MAT)
    p.vm(f"buffer_load_dwordx4 {v(XP,4)}, v{OFFA}, {sr(SF_)}, 0 offen", "q")
    p.vm(f"buffer_load_dwordx4 {v(XP+4,4)}, v{OFFB}, {sr(SF_)}, 0 offen", "q")

def early_loads(p):
    SH = SF_
    p("s_lshl_b32 s9, s2, 13")
    p(f"s_add_u32 s{SH}, s{P_H}, s9"); p(f"s_addc_u32 s{SH+1}, s{P_H+1}, 0")
    p(f"s_mov_b32 s{SH+2}, 8192"); p(f"s_mov_b32 s{SH+3}, 0x20000")
    p("v_sub_u32 v176, 255, v0")
    p("v_lshlrev_b32 v176, 4, v176")
    p("v_subrev_u32 v177, 16, v176")
    for ch in range(2):
        p(f"v_add_u32 v178, {4096*ch}, v177")
        p(f"v_add_u32 v179, {4096*ch}, v176")
        p.vm(f"buffer_load_dwordx4 {v(HW+8*ch,4)}, v178, {sr(SH)}, 0 offen", "h")
        p.vm(f"buffer_load_dwordx4 {v(HW+4+8*ch,4)}, v179, {sr(SH)}, 0 offen", "h")
    q_loads(p)

def hbuild(p):
    p("v_mov_b32 v5, 0xffff")
    p("v_cmp_ne_u32 vcc, 255, v0")
    p("v_lshlrev_b32 v6, 4, v0")
    E1, E2, O1, O2 = 32, 40, 46, 54
    for ch in range(2):
        W = HW + 8 * ch
        for d in range(4):
            p(f"v_cndmask_b32 v{W+d}, 0, v{W+d}, vcc")
        def o(dst, sidx):
            if sidx % 2 == 0:
                pz = (14 - sidx) // 2
                p(f"v_alignbit_b32 v{dst}, v{W+pz}, v{W+pz}, 16")
            else:
                p(f"v_bfi_b32 v{dst}, v5, v{W+(15-sidx)//2}, v{W+(13-sidx)//2}")
        for n in range(7): o(E1 + n, 2 * n)
        for n in range(6): o(E2 + n, 2 * n + 2)
        for n in range(7): o(O1 + n, 2 * n + 1)
        for n in range(6): o(O2 + n, 2 * n + 3)
        src = {0: E1, 4: E1 + 2, 2: E2, 6: E2 + 2, 1: O1, 5: O1 + 2, 3: O2, 7: O2 + 2}
        for c in range(8):
            p.lg(f"ds_write_b128 v6, {v(src[c],4)} offset:{ch*HC_CH + c*HC_COPY}")
        p("s_nop 1")
    for r in range(4): p(f"v_mov_b32 v{60+r}, 0")
    p("v_and_b32 v7, 15, v0")
    p(f"v_mul_u32_u24 v7, {HC_COPY}, v7")
    p("v_add_u32 v7, 4096, v7")
    p("v_and_b32 v8, 31, v0")
    p("v_lshlrev_b32 v8, 4, v8")
    p("v_bfe_u32 v9, v0, 5, 1")
    p(f"v_mul_u32_u24 v9, {U_CH}, v9")
    p(f"s_mov_b32 s9, {L_U}")
    p("v_add3_u32 v8, v8, v9, s9")
    p.lg(f"ds_write_b128 v7, {v(60,4)}")
    p.lg(f"ds_write_b128 v8, {v(60,4)}")

W2A, W2B = 25, 37
def w2_items(SW2):
    G = []
    for f in range(49):
        it = []
        base = f - f % 4
        if f % 4 == 0 or f in (W2A, W2B): it.append((f"s_mov_b32 s15, {1024*base}", "", None))
        it.append((f"buffer_load_dwordx4 {a(4*f,4)}, v{V_L16}, {sr(SW2)}, s15 offen offset:{1024*(f%4)} sc1", "vm", "w2"))
        G.append(it)
    return G

def load_w2(p, SW2):
    for f in range(49):
        if f % 4 == 0: p(f"s_mov_b32 s9, {1024*f}")
        p.vm(f"buffer_load_dwordx4 {a(4*f,4)}, v{V_L16}, {sr(SW2)}, s9 offen offset:{1024*(f%4)} sc1", "w2")

def conv_main(p):
    ACC, FA, FB = 72, 96, 16
    fb = lambda buf, m: (16 + 28 * buf + 4 * m) if m < 7 else (160 + 4 * buf)
    p("v_and_b32 v1, 63, v0")
    p("v_and_b32 v2, 15, v1")
    p("v_lshrrev_b32 v3, 4, v1")
    p("v_and_b32 v4, 7, v2")
    p("v_sub_u32 v4, 7, v4")
    p(f"v_mul_u32_u24 v4, {HC_COPY}, v4")
    p("v_lshrrev_b32 v5, 3, v2")
    p("v_sub_u32 v5, v3, v5")
    p("v_add_u32 v5, 1, v5")
    p("v_lshl_add_u32 v4, v5, 4, v4")
    p(f"s_mul_i32 s9, s{S_B}, {HC_CH}")
    p("v_add_u32 v12, s9, v4")
    p(f"s_mul_i32 s9, s{S_B}, {U_CH}")
    p(f"s_add_u32 s9, s9, {L_U + 512 - 32 - 64*7}")
    p("v_lshlrev_b32 v5, 5, v2")
    p("v_lshl_add_u32 v5, v3, 4, v5")
    p("v_add_u32 v13, s9, v5")
    set1 = p.uid("cset1"); join = p.uid("cjoin")
    p(f"s_cmp_eq_u32 s{S_A}, 1")
    p(f"s_cbranch_scc1 {set1}")
    for st, tiles in ((0, (0, 3, 4, 7)), (1, (1, 2, 5, 6))):
        if st == 1: p.label(set1)
        mx = max(tiles)
        def reads(rho, buf):
            L = []
            for m in range(mx + 1):
                L.append((f"ds_read_b128 {v(FA+32*buf+4*m,4)}, v12 offset:{512*(7-m)+64*(7-rho)}", "lg", f"r{rho}_{m}"))
                L.append((f"ds_read_b128 {v(fb(buf,m),4)}, v13 offset:{512*m+64*(7-rho)}", "lg", f"r{rho}_{m}"))
            return L
        saved_vm = list(p.vmq)
        w2 = w2_items(SE)[:W2A] if 'now2' not in EXP else []
        for it in reads(0, 0): emit(p, it)
        first = set()
        for rho in range(8):
            buf = rho & 1
            nxt = reads(rho + 1, buf ^ 1) if rho < 7 else []
            mf = sorted([(max(mu, nt - mu), ti, nt, mu) for ti, nt in enumerate(tiles) for mu in range(nt + 1)])
            M = []; seen = -1
            for (mm, ti, nt, mu) in mf:
                c = v(ACC+4*ti,4) if ti in first else "0"
                first.add(ti)
                t = f"v_mfma_f32_16x16x32_bf16 {v(ACC+4*ti,4)}, {v(FA+32*buf+4*mu,4)}, {v(fb(buf,nt-mu),4)}, {c}"
                w = []
                if mm > seen: w.append((None, "wlg", f"r{rho}_{mm}")); seen = mm
                M.append((t, w))
            N = {}
            for i, it in enumerate(nxt): N.setdefault(i, []).append(it)
            slots = [9, 11, 13, 15, 17]
            for q_ in range(5 if rho < 5 else 0):
                if w2: N.setdefault(slots[q_], []).extend(w2.pop(0))
            schedule(p, M, [], N)
        assert not w2
        p.vmq = saved_vm + ["w2"]
        p("s_barrier")
        p(f"s_mul_i32 s9, s{S_B}, {U_CH}")
        p(f"s_add_u32 s9, s9, {L_U + 512}")
        p("v_lshlrev_b32 v5, 5, v2")
        p("v_lshl_add_u32 v5, v3, 3, v5")
        p("v_add_u32 v6, s9, v5")
        p(f"s_mul_i32 s9, s{S_B}, {YS_CH}")
        p("v_add_u32 v7, s9, v5")
        for ti, nt in enumerate(tiles):
            p.lg(f"ds_read_b64 {v(FA+2*ti,2)}, v6 offset:{512*nt}", f"u{ti}")
        p("v_mov_b32 v8, 0xffff0000")
        for ti, nt in enumerate(tiles):
            p.wait_lg(f"u{ti}")
            u = FA + 2 * ti; t = 16 + 4 * ti
            p(f"v_lshlrev_b32 v{t}, 16, v{u}")
            p(f"v_and_b32 v{t+1}, v8, v{u}")
            p(f"v_lshlrev_b32 v{t+2}, 16, v{u+1}")
            p(f"v_and_b32 v{t+3}, v8, v{u+1}")
            for r in range(4):
                p(f"v_fma_f32 v{t+r}, v{t+r}, s14, v{ACC+4*ti+r}")
            p(f"v_cvt_pk_bf16_f32 v{t}, v{t}, v{t+1}")
            p(f"v_cvt_pk_bf16_f32 v{t+1}, v{t+2}, v{t+3}")
            p.lg(f"ds_write_b64 v7, {v(t,2)} offset:{512*nt}")
        p.wait_lg()
        if st == 0: p(f"s_branch {join}")
    p.label(join)
    p("s_barrier")

def conv_out(p, SY):
    p("v_and_b32 v1, 3, v0")
    p("v_lshrrev_b32 v2, 2, v0")
    p("v_lshrrev_b32 v3, 1, v1")
    p("v_and_b32 v4, 1, v1")
    p(f"v_mul_u32_u24 v3, {YS_CH}, v3")
    p("v_lshl_add_u32 v3, v4, 4, v3")
    p("v_lshl_add_u32 v3, v2, 5, v3")
    p.lg("ds_read_b128 v[16:19], v3", "y0")
    p.lg(f"ds_read_b128 v[20:23], v3 offset:{64*32}", "y1")
    p(f"v_mul_u32_u24 v5, {D*32}, v2")
    p("v_lshl_add_u32 v5, v1, 4, v5")
    p("s_lshl_b32 s9, s2, 6")
    p("v_add_u32 v5, s9, v5")
    p(f"v_add_u32 v6, {64*D*32}, v5")
    p.wait_lg("y0")
    p.vm(f"buffer_store_dwordx4 v[16:19], v5, {sr(SY)}, 0 offen sc1", "yst")
    p.wait_lg("y1")
    p.vm(f"buffer_store_dwordx4 v[20:23], v6, {sr(SY)}, 0 offen sc1", "yst")

X, T, PK, TMP = 16, 32, 64, 72
def row_setup(p):
    p("v_and_b32 v181, 31, v0")
    p("v_lshrrev_b32 v182, 5, v0")
    p(f"v_cmp_gt_u32 {ACT}, 28, v181")
    p(f"v_mul_u32_u24 v183, {ROWB}, v182")
    p("v_lshl_add_u32 v183, v181, 4, v183")
    p(f"s_mul_i32 s9, s{S_RB}, {8*ROWB}")
    p("v_add_u32 v183, s9, v183")
    p(f"v_cndmask_b32 v{OFFA}, -1, v183, {ACT}")
    p("v_add_u32 v183, 448, v183")
    p(f"v_cndmask_b32 v{OFFB}, -1, v183, {ACT}")

def unpack(p, dst, src, n):
    for i in range(n):
        p(f"v_lshlrev_b32 v{dst+2*i}, 16, v{src+i}")
        p(f"v_and_b32 v{dst+2*i+1}, v7, v{src+i}")
def pack(p, dst, src, n):
    for i in range(n):
        p(f"v_cvt_pk_bf16_f32 v{dst+i}, v{src+2*i}, v{src+2*i+1}")
def allreduce32(p, r, t):
    for m in ("quad_perm:[1,0,3,2]", "quad_perm:[2,3,0,1]", "row_half_mirror", "row_mirror"):
        p(f"v_add_f32_dpp v{r}, v{r}, v{r} {m} row_mask:0xf bank_mask:0xf")
    p(f"v_mov_b32 v{t}, v{r}")
    p(f"v_permlane16_swap_b32 v{r}, v{t}")
    p(f"v_add_f32 v{r}, v{r}, v{t}")
def sum16(p, dst, src):
    p(f"v_pk_add_f32 {v(TMP,2)}, {v(src,2)}, {v(src+2,2)}")
    p(f"v_pk_add_f32 {v(TMP+2,2)}, {v(src+4,2)}, {v(src+6,2)}")
    p(f"v_pk_add_f32 {v(TMP+4,2)}, {v(src+8,2)}, {v(src+10,2)}")
    p(f"v_pk_add_f32 {v(TMP+6,2)}, {v(src+12,2)}, {v(src+14,2)}")
    p(f"v_pk_add_f32 {v(TMP,2)}, {v(TMP,2)}, {v(TMP+2,2)}")
    p(f"v_pk_add_f32 {v(TMP+4,2)}, {v(TMP+4,2)}, {v(TMP+6,2)}")
    p(f"v_pk_add_f32 {v(TMP,2)}, {v(TMP,2)}, {v(TMP+4,2)}")
    p(f"v_add_f32 v{dst}, v{TMP}, v{TMP+1}")
    p(f"v_cndmask_b32 v{dst}, 0, v{dst}, {ACT}")
def layernorm(p, src, dst, scale=None):
    M, V_ = TMP + 8, TMP + 10
    sum16(p, M, src)
    allreduce32(p, M, TMP + 9)
    p(f"v_mul_f32 v{M}, {fbits(-1.0/D)}, v{M}")
    p(f"v_mov_b32 v{M+1}, v{M}")
    for i in range(0, 16, 2):
        p(f"v_pk_add_f32 {v(dst+i,2)}, {v(src+i,2)}, {v(M,2)}")
    p(f"v_pk_mul_f32 {v(TMP,2)}, {v(dst,2)}, {v(dst,2)}")
    p(f"v_pk_mul_f32 {v(TMP+2,2)}, {v(dst+2,2)}, {v(dst+2,2)}")
    for i in range(4, 16, 4):
        p(f"v_pk_fma_f32 {v(TMP,2)}, {v(dst+i,2)}, {v(dst+i,2)}, {v(TMP,2)}")
        p(f"v_pk_fma_f32 {v(TMP+2,2)}, {v(dst+i+2,2)}, {v(dst+i+2,2)}, {v(TMP+2,2)}")
    p(f"v_pk_add_f32 {v(TMP,2)}, {v(TMP,2)}, {v(TMP+2,2)}")
    p(f"v_add_f32 v{V_}, v{TMP}, v{TMP+1}")
    p(f"v_cndmask_b32 v{V_}, 0, v{V_}, {ACT}")
    allreduce32(p, V_, TMP + 11)
    p(f"v_mov_b32 v{V_+1}, {fbits(1e-5)}")
    p(f"v_fmac_f32 v{V_+1}, {fbits(1.0/D)}, v{V_}")
    p(f"v_rsq_f32 v{V_}, v{V_+1}")
    if scale is not None: p(f"v_mul_f32 v{V_}, {fbits(scale)}, v{V_}")
    else: p("s_nop 0")
    p(f"v_mov_b32 v{V_+1}, v{V_}")
    for i in range(0, 16, 2):
        p(f"v_pk_mul_f32 {v(dst+i,2)}, {v(dst+i,2)}, {v(V_,2)}")

def y_load(p, SY):
    p(f"s_lshr_b32 s9, s{S_RB}, 1")
    p(f"s_mul_i32 s9, s9, {D*32}")
    p(f"s_and_b32 s10, s{S_RB}, 1")
    p("s_lshl_b32 s10, s10, 4")
    p("s_add_u32 s9, s9, s10")
    p("v_lshlrev_b32 v3, 5, v0")
    p("v_add_u32 v3, s9, v3")
    p(f"v_add_u32 v4, {256*32}, v3")
    p("v_cmp_gt_u32 vcc, 192, v0")
    p("v_cndmask_b32 v4, -1, v4, vcc")
    p.vm(f"buffer_load_dwordx4 {v(T,4)}, v3, {sr(SY)}, 0 offen sc1", "y")
    p.vm(f"buffer_load_dwordx4 {v(T+4,4)}, v4, {sr(SY)}, 0 offen sc1", "y")

def y_transpose(p):
    p("v_lshlrev_b32 v3, 2, v0")
    p.wait_vm("y")
    for wq in range(4):
        p.lg(f"ds_write_b32 v3, v{T+wq} offset:{LY+2048*wq}")
        p.lg(f"ds_write_b32 v3, v{T+4+wq} offset:{LY+2048*wq+1024}")
    p.wait_lg()
    p("s_barrier")
    p("v_and_b32 v1, 31, v0")
    p("v_lshrrev_b32 v4, 6, v0")
    p("v_lshlrev_b32 v4, 11, v4")
    p("v_lshl_add_u32 v4, v1, 5, v4")
    for k in range(2):
        p.lg(f"ds_read_b128 {v(T+8*k,4)}, v4 offset:{LY+896*k}")
        p.lg(f"ds_read_b128 {v(T+8*k+4,4)}, v4 offset:{LY+896*k+16}")
    p("v_bfe_u32 v5, v0, 5, 1")
    p("v_mov_b32 v6, 0x01000c0c")
    p("v_mov_b32 v3, 0x03020c0c")
    p("v_cmp_eq_u32 vcc, 1, v5")
    p("v_cndmask_b32 v6, v6, v3, vcc")
    p.wait_lg()
    for i in range(16):
        p(f"v_perm_b32 v{YV+i}, v{T+i}, v{T+i}, v6")

def poll_s2(p):
    lab = p.uid("s2"); done = p.uid("s2d"); skip = p.uid("s2s")
    p("v_and_b32 v1, 63, v0")
    p("s_and_b32 s9, s2, 7"); p("s_lshl_b32 s9, s9, 11"); p(f"s_add_u32 s9, s9, {FL_S2R}")
    for i in range(4):
        p(f"v_lshl_add_u32 v{12+i}, v1, 3, s9")
        if i: p(f"v_add_u32 v{12+i}, {512*i}, v{12+i}")
    p("v_and_b32 v16, 7, v0")
    p(f"s_lshl_b32 s9, s{S_CL}, 6")
    p(f"s_add_u32 s9, s9, {FL_XCC}")
    p("v_lshl_add_u32 v16, v16, 3, s9")
    p(f"s_cmp_eq_u32 s{S_W}, 0")
    p(f"s_cbranch_scc0 {skip}")
    if 's2st' in EXP:
        p("s_waitcnt vmcnt(0)"); stamp(p, 41)
    p(f"s_mov_b32 s{S_T}, 0")
    p.label(lab)
    masks = [64, 64, 64, 32]
    for i in range(4):
        setexec(p, masks[i])
        p(f"buffer_load_dwordx2 {v(2+2*i,2)}, v{12+i}, {sr(S_FL)}, 0 offen sc1")
    p("s_mov_b64 exec, -1")
    p(f"buffer_load_dwordx2 v[10:11], v16, {sr(S_FL)}, 0 offen sc1")
    p("s_waitcnt vmcnt(0)")
    p(f"v_subrev_u32 v10, s{S_N}, v10")
    p(f"v_cmp_eq_u32 vcc, s{S_N+1}, v11")
    p("v_cmp_gt_u32 s[10:11], 16, v10")
    p("s_nop 4")
    p("s_and_b64 vcc, vcc, s[10:11]")
    p("s_cmp_eq_u64 vcc, exec")
    p("s_cselect_b32 s9, 1, 0")
    for i in range(4):
        setexec(p, masks[i])
        p(f"v_cmp_eq_u64 vcc, {s(S_N,2)}, {v(2+2*i,2)}")
        p("s_nop 4")
        p("s_cmp_eq_u64 vcc, exec")
        p("s_cselect_b32 s9, s9, 0")
    p("s_mov_b64 exec, -1")
    p("s_cmp_eq_u32 s9, 1")
    p(f"s_cbranch_scc1 {done}")
    p(f"s_add_u32 s{S_T}, s{S_T}, 1")
    p(f"s_cmp_lt_u32 s{S_T}, 0x8000")
    p(f"s_cbranch_scc0 {done}")
    p("s_sleep 1")
    p(f"s_branch {lab}")
    p.label(done)
    if 's2st' in EXP:
        p(f"v_writelane_b32 v253, s{S_T}, 42"); p(f"v_writelane_b32 v252, s{S_T}, 43"); p(f"v_writelane_b32 v253, s{S_T}, 43")
    p("s_getreg_b32 s9, hwreg(HW_REG_XCC_ID, 0, 4)")
    p("v_cmp_eq_u32 vcc, s9, v10")
    p("s_nop 4")
    p("s_cmp_eq_u64 vcc, exec")
    p("s_cselect_b32 s9, 1, 0")
    if FORCE_SLOW: p("s_mov_b32 s9, 0")
    p("v_mov_b32 v2, s9")
    p(f"v_mov_b32 v3, {L_FASTW}")
    p("ds_write_b32 v3, v2")
    p("s_waitcnt lgkmcnt(0)")
    p.label(skip)
    p("s_barrier")
    p.vmq = []; p.lgq = []
    p(f"v_mov_b32 v3, {L_FASTW}")
    p.lg("ds_read_b32 v17, v3", "fw")

def fast_get(p):
    p.wait_lg("fw")
    p(f"v_readfirstlane_b32 s{S_FAST}, v17")

def add_partials(p):
    p("v_and_b32 v1, 31, v0")
    p("v_lshrrev_b32 v2, 5, v0")
    p(f"s_mul_i32 s9, s{S_MEM}, {8*ROWB}")
    p(f"v_mul_u32_u24 v3, {ROWB}, v2")
    p("v_lshl_add_u32 v3, v1, 4, v3")
    p("v_add_u32 v3, s9, v3")
    p(f"v_cndmask_b32 v4, -1, v3, {ACT}")
    p("v_add_u32 v3, 448, v3")
    p(f"v_cndmask_b32 v5, -1, v3, {ACT}")
    PB_ = 96
    for j in range(8):
        p(f"s_mov_b32 s9, {j*64*ROWB}")
        fl = "" if 'plainp' in EXP else ("nt" if 'ntp' in EXP else "sc1")
        p.vm(f"buffer_load_dwordx4 {v(PB_+8*j,4)}, v4, {sr(S_PR)}, s9 offen {fl}", f"p{j}")
        p.vm(f"buffer_load_dwordx4 {v(PB_+8*j+4,4)}, v5, {sr(S_PR)}, s9 offen {fl}", f"p{j}")
    p("v_mov_b32 v7, 0xffff0000")
    p("v_mov_b32 v3, 0x00003f80")
    p("v_mov_b32 v4, 0x3f800000")
    unpack(p, X, XP, 8)
    for i in range(16): p(f"v_mov_b32 v{T+i}, 0")
    if 'pst' in EXP:
        p.wait_vm(); stamp(p, 18, True)
    for j in range(8):
        p.wait_vm(f"p{j}")
        for i in range(8):
            p(f"v_dot2c_f32_bf16 v{T+2*i}, v{PB_+8*j+i}, v3")
            p(f"v_dot2c_f32_bf16 v{T+2*i+1}, v{PB_+8*j+i}, v4")
    p(f"s_mov_b32 s9, {fbits(LN2)}")
    for i in range(16):
        p(f"v_fmac_f32 v{X+i}, s9, v{T+i}")
    pack(p, XP, X, 8)

def xh(phi):
    return a(196 + 4 * phi, 4) if phi < 15 else v(148 + 4 * (phi - 15), 4)

def mlp_setup(p):
    p("v_and_b32 v181, 63, v0")
    p("v_and_b32 v182, 15, v181")
    p("v_lshrrev_b32 v183, 4, v181")
    p(f"s_lshl_b32 s9, s{S_B}, 5")
    p("v_add_u32 v184, s9, v182")
    p(f"v_mul_u32_u24 v184, {ROWB}, v184")
    p("v_and_b32 v185, 2, v182")
    p("v_xor_b32 v185, v185, v183")
    p("v_lshl_add_u32 v184, v185, 4, v184")
    p("v_bfe_u32 v185, v182, 2, 1")
    p(f"v_lshl_add_u32 v{V_XE}, v185, 6, v184")
    p("v_xor_b32 v185, 1, v185")
    p(f"v_lshl_add_u32 v{V_XO}, v185, 6, v184")
    p(f"s_mul_i32 s9, s{S_A}, 14336")
    p(f"s_add_u32 s9, s9, {L_RING}")
    p(f"v_lshl_add_u32 v{V_A}, v181, 4, s9")
    p(f"v_add_u32 v{V_A2}, {2*CHUNK}, v{V_A}")
    p(f"s_lshl_b32 s9, s{S_B}, 5")
    p("v_add_u32 v184, s9, v182")
    p(f"v_mul_u32_u24 v184, {SH_}, v184")
    p("v_lshl_add_u32 v184, v183, 3, v184")
    p(f"s_mul_i32 s9, s{S_A}, 224")
    p(f"v_add_u32 v{V_HW}, s9, v184")
    p(f"v_mul_u32_u24 v184, {SH_}, v182")
    p(f"v_lshl_add_u32 v{V_HR}, v183, 4, v184")
    p(f"v_lshlrev_b32 v{V_L16}, 4, v181")
    p(f"v_lshlrev_b32 v{V_PWA}, 7, v0")
    p(f"v_add_u32 v{V_PWB}, {256*128}, v{V_PWA}")
    p(f"v_mul_u32_u24 v184, {ROWB}, v182")
    p(f"s_lshl_b32 s9, s{S_W}, 6")
    p("v_lshl_add_u32 v185, v183, 4, v184")
    p(f"v_add_u32 v{V_PO}, s9, v185")
    p(f"s_add_u32 s9, s{S_A}, 12")
    p("s_lshl_b32 s9, s9, 6")
    p(f"s_lshl_b32 s10, s{S_B}, 5")
    p("s_add_u32 s9, s9, s10")
    p("v_lshl_add_u32 v185, v183, 3, v184")
    p(f"v_add_u32 v{V_PO1}, s9, v185")
    for i in range(7):
        p(f"v_add_u32 v184, {64*i}, v181")
        p("v_mul_u32_u24 v185, 1171, v184")
        p("v_lshrrev_b32 v185, 16, v185")
        p("v_mul_u32_u24 v186, 56, v185")
        p("v_sub_u32 v186, v184, v186")
        p("v_and_b32 v187, 6, v185")
        p("v_xor_b32 v186, v186, v187")
        p(f"v_mul_u32_u24 v185, {ROWB}, v185")
        p(f"v_lshl_add_u32 v{V_XD+i}, v186, 4, v185")

def dma_x(p):
    p(f"s_mul_i32 s9, s{S_W}, {16*ROWB}")
    for hf in range(2):
        p(f"s_add_u32 s11, s9, {hf*8*ROWB}")
        for i in range(7):
            p(f"s_add_u32 m0, s11, {L_X + 1024*i}")
            p.vm(f"buffer_load_dwordx4 v{V_XD+i}, {sr(S_X)}, s11 offen sc1 lds", "x")

def dma_w1_items(chunk, tag, g=12):
    G = []
    for i in range(7):
        it = []
        if i in (0, 4):
            o = 4096 if i else 0
            it += [(f"s_add_u32 m0, s{S_W7}, {L_RING + (chunk % 3) * CHUNK + o}", "", None),
                   (f"s_add_u32 s{g}, s{S_W7}, {chunk * CHUNK + o}", "", None)]
        it.append((f"buffer_load_dwordx4 v{V_L16}, {sr(S_W1)}, s{g} offen offset:{1024*(i%4)} sc1 lds", "vm", tag))
        G.append(it)
    return G

def dma_w1(p, chunk, tag):
    p(f"s_mul_i32 s9, s{S_W}, 7168")
    p(f"s_add_u32 s10, s9, {L_RING + (chunk % 3) * CHUNK}")
    p(f"s_add_u32 s9, s9, {chunk * CHUNK}")
    for grp, cnt in ((0, 4), (4, 3)):
        if grp:
            p("s_add_u32 s10, s10, 4096"); p("s_add_u32 s9, s9, 4096")
        p("s_mov_b32 m0, s10")
        for i in range(cnt):
            p.vm(f"buffer_load_dwordx4 v{V_L16}, {sr(S_W1)}, s9 offen offset:{1024*i} sc1 lds", tag)

def cost(t):
    op = t.split()[0]
    if op.startswith(("v_exp", "v_rcp", "v_rsq")): return 8
    if op.startswith("v_"): return 4
    return 0

def emit(p, item):
    t, kind, tag = item
    if kind == "lg": p.lg(t, tag)
    elif kind == "vm": p.vm(t, tag)
    elif kind == "wlg": p.wait_lg(tag)
    elif kind == "wvm": p.wait_vm(tag)
    else: p(t)

def schedule(p, M, V=(), N=None, vstart=0, vend=None):
    N = N or {}
    vend = len(M) if vend is None else vend
    total = sum(cost(x[0]) for x in V)
    done, cum = 0, 0
    for i, m in enumerate(M):
        if isinstance(m, tuple):
            for w in m[1]: emit(p, w)
            m = m[0]
        p(m)
        for it in N.get(i, []): emit(p, it)
        if i >= vstart and done < len(V):
            last = (i >= vend - 1)
            target = total * (i - vstart + 1) / max(1, vend - vstart)
            while done < len(V) and (last or cum + cost(V[done][0]) / 2 <= target):
                cum += cost(V[done][0]); emit(p, V[done]); done += 1
    while done < len(V):
        emit(p, V[done]); done += 1

def interleave(p, M, O, first=0):
    n = len(M) - first
    done = 0
    for i, m in enumerate(M):
        p(m)
        if i >= first:
            want = (len(O) * (i - first + 1) + n - 1) // n
            while done < want:
                t, kind, tag = O[done]; done += 1
                if kind == "lg": p.lg(t, tag)
                elif kind == "vm": p.vm(t, tag)
                else: p(t)

FA, AC1, ST_, HO = 16, 72, 96, 104
def silu_stages(T):
    z = AC1 + 8 * (T % 3); t = ST_
    E = [(f"v_exp_f32_e64 v{t+r}, -v{z+r}", "", None) for r in range(8)]
    A = [(f"v_add_f32 v{t+r}, 1.0, v{t+r}", "", None) for r in range(8)]
    C = [(f"v_rcp_f32 v{t+r}, v{t+r}", "", None) for r in range(8)]
    M = [(f"v_mul_f32 v{t+r}, v{z+r}, v{t+r}", "", None) for r in range(8)]
    V = []
    for nt in range(2):
        V.append((f"v_cvt_pk_bf16_f32 v{HO+2*nt}, v{t+4*nt}, v{t+4*nt+1}", "", None))
        V.append((f"v_cvt_pk_bf16_f32 v{HO+2*nt+1}, v{t+4*nt+2}, v{t+4*nt+3}", "", None))
    W = [(f"ds_write_b64 v{V_HW}, {v(HO+2*nt,2)} offset:{L_X + nt*16*SH_ + 32*T}", "lg", "hw") for nt in range(2)]
    return E, A, C, M, V, W

def gemm1(p):
    def areads(h):
        T, half, buf = h >> 1, h & 1, h & 1
        sl = T % 3
        base, o = (V_A, sl * CHUNK) if sl < 2 else (V_A2, 0)
        return [(f"ds_read_b128 {v(FA+28*buf+4*i,4)}, v{base} offset:{o + 1024*(7*half+i)}", "lg", f"g{h}") for i in range(7)]
    p.wait_vm("x")
    p("s_barrier")
    stamp(p, 12, True)
    if 'ldwb' in EXP: prewarm_ld(p, 128)
    def xread(k, nt):
        base = V_XO if k & 1 else V_XE
        return (f"ds_read_b128 {xh(2*k+nt)}, v{base} offset:{L_X + 128*(k>>1) + nt*16*ROWB}", "lg", f"x{k}")
    a0 = areads(0)
    for k in range(7):
        t, kind, _ = a0[k]
        emit(p, (t, kind, f"a0_{k}")); emit(p, xread(k, 0)); emit(p, xread(k, 1))
    silu = 'nosilu' not in EXP
    for h in range(14):
        T, half, buf = h >> 1, h & 1, h & 1
        nxt = areads(h + 1) if h < 13 else []
        pre = [[] for _ in range(14)]
        val = [[] for _ in range(14)]
        post = [[] for _ in range(14)]
        for i, it in enumerate(nxt): pre[i].append(it)
        if h == 0:
            extra = [xread(k, nt) for k in range(7, 14) for nt in range(2)]
            for i in range(14): pre[i].append(extra[i])
        if half == 1 and T + 3 <= 6 and 'nodma1' not in EXP:
            for i, grp in enumerate(dma_w1_items(T + 3, f"c{T+3}")):
                sal = [x for x in grp if x[1] == ""]; dm = [x for x in grp if x[1] == "vm"]
                pre[i] = sal + pre[i] + dm
        if h == 8 and 'noldwc' not in EXP and 'psc1' not in EXP:
            fl = "sc1" if 'ldsc1' in EXP else ""
            pre[8].append((f"buffer_load_dword v255, v{V_PWA}, {sr(S_PW)}, 0 offen {fl}", "vm", "pw"))
            pre[11].append((f"buffer_load_dword v255, v{V_PWB}, {sr(S_PW)}, 0 offen {fl}", "vm", "pw"))
        if silu:
            if half == 0 and T >= 2:
                E, A, C, M, V, W = silu_stages(T - 2)
                seq = M + V
                order = [2, 2, 2, 2, 2, 1, 1]
                for g_, cnt in enumerate(order):
                    for _ in range(cnt): val[g_].append(seq.pop(0))
                pre[7].append(W[0]); pre[9].append(W[1])
            if half == 0 and T >= 1:
                E = silu_stages(T - 1)[0]
                for r in range(7): val[7 + r].append(E[r])
                val[13].append(E[7])
            if half == 1 and T >= 1:
                E, A, C, M, V, W = silu_stages(T - 1)
                for r in range(7): val[r].append(A[r])
                val[6].append(A[7])
                for r in range(7): val[7 + r].append(C[r])
                val[13].append(C[7])
        if h < 13:
            w = [(None, "wlg", f"g{h+1}")]
            if h == 0: w.append((None, "wlg", "x13"))
            if half == 0 and 3 <= T + 1 <= 6: w.append((None, "wvm", f"c{T+1}"))
            pre[13] = w + pre[13] if h != 0 else pre[13] + w
        for q_ in range(14):
            i, nt = q_ >> 1, q_ & 1
            k = 7 * half + i
            if h == 0 and nt == 0:
                p.wait_lg(f"a0_{i}"); p.wait_lg(f"x{k}")
            acc = v(AC1 + 8 * (T % 3) + 4 * nt, 4)
            p(f"v_mfma_f32_16x16x32_bf16 {acc}, {v(FA+28*buf+4*i,4)}, {xh(2*k+nt)}, {'0' if k == 0 else acc}")
            for it in pre[q_] + val[q_] + post[q_]: emit(p, it)
        if half == 0 and 'nobar1' not in EXP: p("s_barrier")
        if 'tt' in EXP: p(f"s_memtime s[{40+0}:{41}]" if False else f"s_memtime s[{34+2*(h+3)}:{35+2*(h+3)}]") if False else None
        if 'tt' in EXP and h < 12: p(f"s_memtime s[{40+2*h}:{41+2*h}]")
    if 'tt' in EXP:
        p("s_waitcnt lgkmcnt(0)"); p.lgq = []
        for h in range(12): p(f"v_mov_b32 v{108+h}, s{40+2*h}")
        p("s_lshl_b32 s9, s2, 6"); p(f"s_mul_i32 s10, s{S_LAY}, 16384"); p("s_add_u32 s9, s9, s10"); p(f"s_add_u32 s9, s9, {0x30000}")
        p("v_mov_b32 v120, s9")
        p("s_mov_b64 s[10:11], exec"); p("s_mov_b64 exec, 1")
        for q_ in range(3): p.vm(f"buffer_store_dwordx4 {v(108+4*q_,4)}, v120, s[92:95], 0 offen offset:{16*q_}")
        p("s_mov_b64 exec, s[10:11]")
    if silu:
        E, A, C, M, V, W = silu_stages(5)
        for it in M + V + W: emit(p, it)
        E, A, C, M, V, W = silu_stages(6)
        for it in E + A + C + M + V + W: emit(p, it)
    p.wait_lg()
    p("s_barrier")

AC2, CO = 72, 16
def gemm2(p):
    hread = lambda nt, k: (f"ds_read_b128 {xh(7*nt+k)}, v{V_HR} offset:{L_X + nt*16*SH_ + 64*k}", "lg", f"h{nt}_{k}")
    for k in range(7): emit(p, hread(0, k))
    pf = []
    units = [(P, nt) for P in range(3) for nt in range(4)] + [(3, nt) for nt in range(4)]
    def epi(u):
        P, nt = units[u]; ac = AC2 + 8 * (u & 1); o = CO + 4 * (u & 3)
        O = []
        O.append((f"v_cvt_pk_bf16_f32 v{o}, v{ac}, v{ac+1}", "", None))
        O.append((f"v_cvt_pk_bf16_f32 v{o+1}, v{ac+2}, v{ac+3}", "", None))
        if P < 3:
            O.append((f"v_cvt_pk_bf16_f32 v{o+2}, v{ac+4}, v{ac+5}", "", None))
            O.append((f"v_cvt_pk_bf16_f32 v{o+3}, v{ac+6}, v{ac+7}", "", None))
        st = [(f"s_mov_b32 s9, {nt*16*ROWB}", "", None)]
        sfl = "sc1" if 'psc1' in EXP else ("nt" if 'psnt' in EXP else ("sc0" if 'pssc0' in EXP else ""))
        if P < 3: st.append((f"buffer_store_dwordx4 {v(o,4)}, v{V_PO}, {sr(S_PW)}, s9 offen offset:{256*P} {sfl}", "vm", "ps"))
        elif 'nost6' in EXP: pass
        else: st.append((f"buffer_store_dwordx2 {v(o,2)}, v{V_PO1}, {sr(S_PW)}, s9 offen {sfl}", "vm", "ps"))
        return O, st
    for u, (P, nt) in enumerate(units):
        ac = AC2 + 8 * (u & 1)
        M = []
        for k in range(7):
            for sub in range(2 if P < 3 else 1):
                Tt = 2 * P + sub
                acc = v(ac + 4 * sub, 4)
                t = f"v_mfma_f32_16x16x32_bf16 {acc}, {a(4*(7*k+Tt),4)}, {xh(7*nt+k)}, {'0' if k == 0 else acc}"
                w = [(None, "wlg", f"h{nt}_{k}")] if (u < 4 and sub == 0) else []
                M.append((t, w))
        n = len(M)
        N = {}
        if u < 3:
            for k in range(7): N.setdefault(2 * k, []).append(hread(u + 1, k))
        V, st = epi(u - 1) if u else ([], [])
        if u >= 4 and pf:
            for g_ in range(3 if n == 14 else 0):
                if pf: N.setdefault(1 + 2 * g_, []).extend(pf.pop(0))
        if st and 'nostore' not in EXP: N.setdefault(n - 1 if n == 7 else 12, []).extend(st)
        schedule(p, M, V, N, vstart=(4 if n == 7 else 7), vend=(6 if n == 7 else 11))
    assert not pf
    V, st = epi(len(units) - 1)
    for it in V + st: emit(p, it)

def prewarm_ld(p, stride=128):
    n = 57344 // stride
    for i in range((n + 255) // 256):
        p(f"v_add_u32 v2, {256*i}, v0")
        p(f"v_mul_u32_u24 v2, {stride}, v2")
        p.vm(f"buffer_load_dword v255, v2, {sr(S_PW)}, 0 offen", "pw")

def prewarm(p):
    if 'nowarm' in EXP: return
    fl = "sc1" if 'wsc1' in EXP else ("nt" if 'wnt' in EXP else "")
    stride = 64 if 'w64' in EXP else 128
    for i in range((57344 // stride + 255) // 256):
        p(f"v_add_u32 v2, {256*i}, v0")
        p(f"v_mul_u32_u24 v2, {stride}, v2")
        p(f"buffer_store_dword v0, v2, {sr(S_PW)}, 0 offen {fl}")
    p("v_lshlrev_b32 v1, 7, v0")
    p(f"s_mul_i32 s9, s{S_MEM}, {8*ROWB}")
    p("v_add_u32 v2, s9, v1")
    p(f"v_cmp_gt_u32 vcc, {8*ROWB}, v1")
    p("v_cndmask_b32 v2, -1, v2, vcc")
    p(f"buffer_store_dword v0, v2, {sr(S_X)}, 0 offen {fl}")

FORCE_SLOW = False
def build(stamps=False, force_slow=False):
    global FORCE_SLOW
    FORCE_SLOW = force_slow
    common.STAMPS[0] = stamps
    p = K()
    p("s_cmp_ge_u32 s2, 256")
    p("s_cbranch_scc1 K_end")
    p.load_ptrs()
    code_prefetch(p)
    p.wave_id(S_W, 1)
    p("s_and_b32 s4, s2, 7")
    p("s_lshr_b32 s5, s2, 3")
    p("s_lshl_b32 s4, s4, 5")
    p("s_add_u32 s4, s4, s5")
    p("s_lshr_b32 s5, s4, 3")
    p("s_and_b32 s6, s4, 7")
    p(f"s_lshr_b32 s{S_A}, s{S_W}, 1")
    p(f"s_and_b32 s{S_B}, s{S_W}, 1")
    p(f"s_mov_b32 s{S_LAY}, 0")
    p(f"s_mov_b32 s{S_FAST}, 0")
    p(f"s_mul_i32 s{S_W7}, s{S_W}, 7168")
    p("s_waitcnt lgkmcnt(0)")
    if stamps:
        p.srd(92, P_WS, WS_FLAGS + 0x80000, 0x40000)
        p("v_mov_b32 v252, 0"); p("v_mov_b32 v253, 0")
    stamp(p, 0)
    lab = p.uid("nn")
    p("s_cmp_eq_u32 s2, 0")
    p(f"s_cbranch_scc0 {lab}")
    p(f"s_cmp_eq_u32 s{S_W}, 0")
    p(f"s_cbranch_scc0 {lab}")
    p.srd(SF_, P_DBG, 0, 256)
    p("s_memrealtime s[10:11]")
    p("s_waitcnt lgkmcnt(0)")
    p("s_lshl_b64 s[10:11], s[10:11], 4")
    p("s_or_b32 s11, s11, 0x40000000")
    p("v_mov_b32 v2, s10"); p("v_mov_b32 v3, s11"); p("v_mov_b32 v1, 0")
    p("s_mov_b64 exec, 1")
    p(f"buffer_store_dwordx2 v[2:3], v1, {sr(SF_)}, 0 offen sc1")
    p("s_mov_b64 exec, -1")
    p.label(lab)
    p.srd(S_FL, P_WS, WS_FLAGS, FLAGS_BYTES)
    p("s_cmp_ge_u32 s2, 224")
    p("s_cbranch_scc1 K_noprep")
    prep(p)
    stamp(p, 1)
    p.wait_vm("kvst")
    p(f"v_readfirstlane_b32 s{S_N}, v150")
    p(f"v_readfirstlane_b32 s{S_N+1}, v151")
    p("s_nop 3")
    p(f"s_or_b32 s9, s{S_N}, s{S_N+1}")
    p("s_cmp_lg_u32 s9, 0")
    lab = p.uid("haven")
    p(f"s_cbranch_scc1 {lab}")
    p.srd(SF_, P_DBG, 0, 256)
    get_nonce(p)
    p.label(lab)
    p("s_barrier")
    flag_store_rep(p, FL_S1R, 2)
    stamp(p, 2)
    p.wait_vm()
    hbuild(p)
    p("s_branch K_prepdone")
    p.label("K_noprep")
    mlp_setup(p)
    q_loads(p)
    p.srd(SF_, P_DBG, 0, 256)
    get_nonce(p)
    p("s_barrier")
    p.label("K_prepdone")
    p.vmq = []; p.lgq = []
    lab = p.uid("xp")
    p(f"s_cmp_eq_u32 s{S_W}, 0")
    p(f"s_cbranch_scc0 {lab}")
    p("s_getreg_b32 s9, hwreg(HW_REG_XCC_ID, 0, 4)")
    p(f"s_add_u32 s9, s9, s{S_N}")
    p("v_mov_b32 v2, s9"); p(f"v_mov_b32 v3, s{S_N+1}")
    p(f"s_lshl_b32 s9, s{S_RB}, 3"); p(f"s_add_u32 s9, s9, {FL_XCC}")
    p("v_mov_b32 v1, s9")
    p("s_mov_b64 exec, 1")
    p(f"buffer_store_dwordx2 v[2:3], v1, {sr(S_FL)}, 0 offen sc1")
    p("s_mov_b64 exec, -1")
    p.label(lab)
    p(f"s_mul_i32 s9, s{S_MEM}, {7*CHUNK}"); p(f"s_add_u32 s9, s9, {hex(WS_W1P)}")
    p(f"s_add_u32 s{S_W1}, s{P_WS}, s9"); p(f"s_addc_u32 s{S_W1+1}, s{P_WS+1}, 0")
    p(f"s_mov_b32 s{S_W1+2}, {7*CHUNK}"); p(f"s_mov_b32 s{S_W1+3}, 0x20000")
    p(f"s_mul_i32 s9, s{S_CL}, {64*ROWB}"); p(f"s_add_u32 s9, s9, {hex(WS_XP)}")
    p(f"s_add_u32 s{S_X}, s{P_WS}, s9"); p(f"s_addc_u32 s{S_X+1}, s{P_WS+1}, 0")
    p(f"s_mov_b32 s{S_X+2}, {64*ROWB}"); p(f"s_mov_b32 s{S_X+3}, 0x20000")
    p(f"s_mul_i32 s9, s{S_RB}, {64*ROWB}"); p(f"s_add_u32 s9, s9, {hex(WS_PB)}")
    p(f"s_add_u32 s{S_PW}, s{P_WS}, s9"); p(f"s_addc_u32 s{S_PW+1}, s{P_WS+1}, 0")
    p(f"s_mov_b32 s{S_PW+2}, {64*ROWB}"); p(f"s_mov_b32 s{S_PW+3}, 0x20000")
    p(f"s_mul_i32 s9, s{S_CL}, {8*64*ROWB}"); p(f"s_add_u32 s9, s9, {hex(WS_PB)}")
    p(f"s_add_u32 s{S_PR}, s{P_WS}, s9"); p(f"s_addc_u32 s{S_PR+1}, s{P_WS+1}, 0")
    p(f"s_mov_b32 s{S_PR+2}, {8*64*ROWB}"); p(f"s_mov_b32 s{S_PR+3}, 0x20000")
    if 'warm1' in EXP: prewarm(p)
    p("v_and_b32 v1, 63, v0")
    p("s_lshr_b32 s9, s2, 5")
    p("s_min_u32 s9, s9, 6")
    p("v_mul_u32_u24 v8, 7, v1")
    p("v_add_u32 v8, s9, v8")
    p(f"s_mul_i32 s9, s{S_MEM}, 14")
    p("v_subrev_u32 v9, 32, v1")
    p("v_add_u32 v9, s9, v9")
    p("v_add_u32 v10, 98, v9")
    p("v_cmp_gt_u32 vcc, 46, v1")
    p("v_cndmask_b32 v9, v10, v9, vcc")
    p("v_cmp_gt_u32 vcc, 32, v1")
    p("v_cndmask_b32 v8, v9, v8, vcc")
    p("v_lshlrev_b32 v8, 3, v8")
    p("s_and_b32 s9, s2, 7"); p("s_lshl_b32 s9, s9, 11"); p(f"s_add_u32 s9, s9, {FL_S1R}")
    p("v_add_u32 v8, s9, v8")
    p("s_waitcnt lgkmcnt(0)")
    poll(p, [8], 1, [60])
    stamp(p, 3)
    p(f"s_lshl_b32 s9, s{S_MEM}, 2"); p(f"s_add_u32 s9, s9, s{S_W}")
    p(f"s_mul_i32 s9, s9, {49*1024}"); p(f"s_add_u32 s9, s9, {hex(WS_W2P)}")
    p(f"s_add_u32 s{SE}, s{P_WS}, s9"); p(f"s_addc_u32 s{SE+1}, s{P_WS+1}, 0")
    p(f"s_mov_b32 s{SE+2}, {49*1024}"); p(f"s_mov_b32 s{SE+3}, 0x20000")
    p.srd(SD, P_WS, WS_YB, MAT)
    p("s_cmp_ge_u32 s2, 224")
    p("s_cbranch_scc1 K_noconv")
    p("s_lshl_b32 s9, s2, 13")
    p(f"s_add_u32 s{SA}, s{P_WS}, s9"); p(f"s_addc_u32 s{SA+1}, s{P_WS+1}, 0")
    p(f"s_mov_b32 s{SA+2}, 8192"); p(f"s_mov_b32 s{SA+3}, 0x20000")
    p("v_lshlrev_b32 v10, 4, v0")
    p.vm(f"buffer_load_dwordx4 v[64:67], v10, {sr(SA)}, 0 offen sc1", "u")
    p("v_add_u32 v11, 4096, v10")
    p.vm(f"buffer_load_dwordx4 v[68:71], v11, {sr(SA)}, 0 offen sc1", "u")
    p("s_lshl_b32 s9, s2, 2")
    p(f"s_load_dword s13, s[{P_DV}:{P_DV+1}], s9")
    p(f"v_add_u32 v10, {L_U+512}, v10")
    p.wait_vm("u")
    p.lg("ds_write_b128 v10, v[64:67]")
    p.lg(f"ds_write_b128 v10, v[68:71] offset:{U_CH}")
    p("s_waitcnt lgkmcnt(0)"); p.lgq = []
    p("s_lshl_b32 s12, s13, 16")
    p("s_and_b32 s14, s13, 0xffff0000")
    p(f"s_cmp_eq_u32 s{S_B}, 0")
    p("s_cselect_b32 s14, s12, s14")
    p("s_barrier")
    if 'warm2' in EXP: prewarm(p)
    stamp(p, 4)
    conv_main(p)
    stamp(p, 5)
    conv_out(p, SD)
    for g_ in w2_items(SE)[W2A:W2B]:
        for it in g_: emit(p, it)
    signal(p, FL_S2R, 2, upto="yst")
    stamp(p, 6)
    p("s_branch K_convdone")
    p.label("K_noconv")
    p.vmq = []
    for g_ in w2_items(SE)[:W2B]:
        for it in g_: emit(p, it)
    p.wait_vm()
    p.label("K_convdone")
    p.vmq = []; p.lgq = []
    if 'warm3' in EXP: prewarm(p)
    poll_s2(p)
    stamp(p, 7)
    y_load(p, SD)
    fast_get(p)
    for g_ in w2_items(SE)[W2B:]:
        for it in g_: emit(p, it)
    y_transpose(p)
    stamp(p, 8)
    p("v_mov_b32 v7, 0xffff0000")
    p.label("K_layer")
    p.vmq = []; p.lgq = []
    q = K()
    q("v_mov_b32 v7, 0xffff0000")
    unpack(q, X, XP, 8)
    layernorm(q, X, T)
    for i in range(0, 16, 2):
        q(f"v_pk_fma_f32 {v(X+i,2)}, {v(T+i,2)}, {v(YV+i,2)}, {v(X+i,2)}")
    pack(q, XP, X, 8)
    unpack(q, X, XP, 8)
    layernorm(q, X, T, LOG2E)
    pack(q, PK, T, 8)
    body = [it.text for it in q.items]
    pf = [g for c in range(2) for g in dma_w1_items(c, "pf")]
    step = len(body) // (len(pf) + 1)
    for i, t in enumerate(body):
        p(t)
        if pf and i % step == step - 1:
            for it in pf.pop(0): emit(p, it)
    assert not pf
    p(f"s_mul_i32 s9, s{S_CL}, {64*ROWB}")
    p(f"v_subrev_u32 v3, s9, v{OFFA}")
    p(f"v_subrev_u32 v4, s9, v{OFFB}")
    p(f"v_cndmask_b32 v3, -1, v3, {ACT}")
    p(f"v_cndmask_b32 v4, -1, v4, {ACT}")
    p.vm(f"buffer_store_dwordx4 {v(PK,4)}, v3, {sr(S_X)}, 0 offen", "xs")
    p.vm(f"buffer_store_dwordx4 {v(PK+4,4)}, v4, {sr(S_X)}, 0 offen", "xs")
    for g_ in dma_w1_items(2, "pf2"):
        for it in g_: emit(p, it)
    stamp(p, 9, True)
    signal(p, FL_A0, S_RB, layer_off=True, cluster=True, upto="xs")
    stamp(p, 10, True)
    def cluster_offs():
        p("v_and_b32 v1, 7, v0")
        p(f"s_lshl_b32 s9, s{S_CL}, 6")
        p(f"s_lshl_b32 s10, s{S_LAY}, 12")
        p("s_add_u32 s9, s9, s10")
    cluster_offs()
    p(f"s_add_u32 s9, s9, {FL_A0}")
    p("v_lshl_add_u32 v10, v1, 3, s9")
    poll(p, [10], 1, [8], cluster=True)
    stamp(p, 11, True)
    dma_x(p)
    if 'ldw128' in EXP: prewarm_ld(p, 128)
    if 'ldw64' in EXP: prewarm_ld(p, 64)
    gemm1(p)
    stamp(p, 13, True)
    gemm2(p)
    stamp(p, 14, True)
    signal(p, FL_C0, S_RB, layer_off=True, cluster=True)
    if 'wb2' in EXP:
        lab = p.uid("wb2")
        p(f"s_cmp_eq_u32 s{S_LAY}, 1"); p(f"s_cbranch_scc0 {lab}")
        p(f"s_cmp_eq_u32 s{S_W}, 3"); p(f"s_cbranch_scc0 {lab}")
        p(f"s_and_b32 s9, s{S_RB}, 31"); p("s_cmp_eq_u32 s9, 0"); p(f"s_cbranch_scc0 {lab}")
        p("buffer_wbl2 sc1")
        p.label(lab)
    stamp(p, 15, True)
    cluster_offs()
    p(f"s_add_u32 s9, s9, {FL_C0}")
    p("v_lshl_add_u32 v10, v1, 3, s9")
    poll(p, [10], 1, [8], cluster=True)
    if 'wb' in EXP:
        lab = p.uid("wb")
        p(f"s_cmp_eq_u32 s{S_LAY}, 1"); p(f"s_cbranch_scc0 {lab}")
        p(f"s_cmp_eq_u32 s{S_MEM}, 0"); p(f"s_cbranch_scc0 {lab}")
        p(f"s_cmp_eq_u32 s{S_W}, 3"); p(f"s_cbranch_scc0 {lab}")
        p("buffer_wbl2 sc1")
        p.label(lab)
    stamp(p, 16, True)
    add_partials(p)
    stamp(p, 17, True)
    p(f"s_cmp_eq_u32 s{S_LAY}, 1")
    p("s_cbranch_scc1 K_final")
    p(f"s_mov_b32 s{S_LAY}, 1")
    p("s_branch K_layer")
    p.label("K_final")
    p.srd(SA, P_OUT, 0, MAT)
    ofl = "sc1" if 'osc1' in EXP else ("nt" if 'ont' in EXP else "")
    p(f"buffer_store_dwordx4 {v(XP,4)}, v{OFFA}, {sr(SA)}, 0 offen {ofl}")
    p(f"buffer_store_dwordx4 {v(XP+4,4)}, v{OFFB}, {sr(SA)}, 0 offen {ofl}")
    stamp(p, 40)
    stamp_flush(p)
    p.label("K_end")
    p("s_endpgm")
    txt, n = kernel_text(KNAME, p, 256, sgprs=102, agprs=256)
    print("nops inserted:", n, "instructions:", p.count(), file=sys.stderr)
    head = HEADER + f"; @launch grid=(256,1,1) block=(256,1,1) lds={LDS_BYTES}\n" + '.amdgcn_target "amdgcn-amd-amdhsa--gfx950"\n'
    return head + txt

if __name__ == "__main__":
    open(sys.argv[1], "w").write(build(stamps="st" in sys.argv[2:], force_slow="slow" in sys.argv[2:]))
```

```python
import sys
from common import *
import common
EXP = set(sys.argv[2:])

KNAME = "interleave_layers__ssm_conv_h3__dense_activation_silu__prompt_kernel"
HEADER = open("interleave_layers__ssm_conv_h3__dense_activation_silu__prompt.s.ref").read().split("; Override launch")[0]

S_W, S_RB, S_CL, S_MEM, S_A, S_B = 3, 4, 5, 6, 7, 8
SA, SB_, SC, SD, SE, SF_ = 40, 44, 48, 52, 56, 60
S_FL, S_W1, S_X, S_PW, S_PR = 64, 68, 72, 76, 80
S_N, S_FAST, S_LAY = 84, 86, 87
S_W7 = 100
ACT = "s[88:89]"
S_T = 90
V_XE, V_XO, V_A, V_A2, V_HW, V_HR, V_L16, V_PO, V_PO1 = 200, 201, 202, 203, 204, 205, 206, 207, 208
V_XD = 209
V_PWA, V_PWB = 216, 217
XP = 224
YV = 232
OFFA, OFFB = 248, 249
VN = 250
LA, LB = 0, 8192
HC_COPY = 4160; HC_CH = 8 * HC_COPY; L_U = 2 * HC_CH; U_CH = 512 + 4096; YS_CH = 4096 + 128
LY = 0
L_X = 0; SH_ = 480; L_RING = 57344; CHUNK = 28672
LDS_BYTES = 163840
L_FASTW = 163836 - 60

def sr(r): return f"s[{r}:{r+3}]"

def stamp(p, sid, layered=False):
    if not common.STAMPS[0]: return
    p("s_memrealtime s[96:97]")
    p("s_memtime s[98:99]")
    p("s_waitcnt lgkmcnt(0)")
    if layered:
        p(f"s_mul_i32 s97, s{S_LAY}, 10")
        p(f"s_add_u32 m0, s97, {sid}")
        p("s_nop 3")
        p("v_writelane_b32 v252, s96, m0")
        p("v_writelane_b32 v253, s98, m0")
    else:
        p(f"v_writelane_b32 v252, s96, {sid}")
        p(f"v_writelane_b32 v253, s98, {sid}")
    p.lgq = []

def stamp_flush(p):
    if not common.STAMPS[0]: return
    lab = p.uid("sf")
    p(f"s_cmp_eq_u32 s{S_W}, 0")
    p(f"s_cbranch_scc0 {lab}")
    p("v_lshlrev_b32 v1, 2, v0")
    p("s_lshl_b32 s9, s2, 9")
    p("v_add_u32 v1, s9, v1")
    p("buffer_store_dword v252, v1, s[92:95], 0 offen")
    p("buffer_store_dword v253, v1, s[92:95], 0 offen offset:256")
    if 'dbgst' in EXP:
        wg = [x for x in EXP if x.startswith('wg')]
        wg = int(wg[0][2:]) if wg else 0
        l2 = p.uid("sf2")
        p(f"s_cmp_eq_u32 s2, {wg}")
        p(f"s_cbranch_scc0 {l2}")
        p.srd(SA, P_DBG, 0, 256)
        sel = [0, 2, 3, 5, 7, 9, 12, 13, 14, 17, 22, 23, 24, 40]
        p("s_nop 4")
        p("v_readlane_b32 s12, v252, 0")
        for i, sid in enumerate(sel):
            p(f"v_readlane_b32 s9, v252, {sid}")
            p("s_nop 3")
            p("s_sub_u32 s9, s9, s12")
            if i == 0: p("s_mov_b32 s9, s12")
            p(f"v_writelane_b32 v1, s9, {i}")
        p("v_and_b32 v2, 63, v0")
        p("v_lshlrev_b32 v2, 2, v2")
        p("v_add_u32 v2, 8, v2")
        p("s_mov_b32 exec_lo, 0x3fff"); p("s_mov_b32 exec_hi, 0")
        p(f"buffer_store_dword v1, v2, {sr(SA)}, 0 offen")
        p("s_mov_b64 exec, -1")
        p.label(l2)
    p.label(lab)

def flag_store(p, table, idx_sreg, layer_off=False, cluster=False):
    lab = p.uid("sig")
    p(f"s_cmp_eq_u32 s{S_W}, 0")
    p(f"s_cbranch_scc0 {lab}")
    p(f"s_lshl_b32 s{S_T}, s{idx_sreg}, 3")
    p(f"s_add_u32 s{S_T}, s{S_T}, {table}")
    if layer_off:
        p(f"s_lshl_b32 s{S_T+1}, s{S_LAY}, 12")
        p(f"s_add_u32 s{S_T}, s{S_T}, s{S_T+1}")
    p(f"v_mov_b32 v{VN}, s{S_N}")
    p(f"v_mov_b32 v{VN+1}, s{S_N+1}")
    p(f"v_mov_b32 v1, s{S_T}")
    p("s_mov_b64 exec, 1")
    if cluster:
        l2 = p.uid("sigslow"); l3 = p.uid("sigdone")
        p(f"s_cmp_eq_u32 s{S_FAST}, 1")
        p(f"s_cbranch_scc0 {l2}")
        p(f"buffer_store_dwordx2 {v(VN,2)}, v1, {sr(S_FL)}, 0 offen")
        p(f"s_branch {l3}")
        p.label(l2)
        p("buffer_wbl2 sc1")
        p("s_waitcnt vmcnt(0)")
        p(f"buffer_store_dwordx2 {v(VN,2)}, v1, {sr(S_FL)}, 0 offen sc1")
        p.label(l3)
    else:
        p(f"buffer_store_dwordx2 {v(VN,2)}, v1, {sr(S_FL)}, 0 offen sc1")
    p("s_mov_b64 exec, -1")
    p.label(lab)

def flag_store_rep(p, table, idx_sreg):
    lab = p.uid("sigr")
    p(f"s_cmp_eq_u32 s{S_W}, 0")
    p(f"s_cbranch_scc0 {lab}")
    p(f"s_lshl_b32 s{S_T}, s{idx_sreg}, 3")
    p(f"s_add_u32 s{S_T}, s{S_T}, {table}")
    p(f"v_mov_b32 v{VN}, s{S_N}")
    p(f"v_mov_b32 v{VN+1}, s{S_N+1}")
    p("v_lshlrev_b32 v1, 11, v0")
    p(f"v_add_u32 v1, s{S_T}, v1")
    p("s_mov_b64 exec, 0xff")
    p(f"buffer_store_dwordx2 {v(VN,2)}, v1, {sr(S_FL)}, 0 offen sc1")
    p("s_mov_b64 exec, -1")
    p.label(lab)

def signal(p, table, idx_sreg, layer_off=False, cluster=False, upto=None):
    if upto: p.wait_vm(upto)
    else: p.wait_vm()
    p("s_barrier")
    if table in (FL_S1R, FL_S2R): flag_store_rep(p, table, idx_sreg)
    else: flag_store(p, table, idx_sreg, layer_off, cluster)

def setexec(p, nl):
    m = (1 << nl) - 1
    lo, hi = m & 0xffffffff, m >> 32
    p(f"s_mov_b32 exec_lo, {hex(lo) if lo != 0xffffffff else -1}")
    p(f"s_mov_b32 exec_hi, {hex(hi) if hi != 0xffffffff else -1}")

def poll(p, offs, n_loads, masks, cluster=False, all_waves=False):
    lab = p.uid("poll"); done = p.uid("polld"); skip = p.uid("polls")
    if not all_waves:
        p(f"s_cmp_eq_u32 s{S_W}, 0")
        p(f"s_cbranch_scc0 {skip}")
    p(f"s_mov_b32 s{S_T}, 0")
    p.label(lab)
    for i in range(n_loads):
        setexec(p, masks[i])
        p(f"buffer_load_dwordx2 {v(2+2*i,2)}, v{offs[i]}, {sr(S_FL)}, 0 offen sc1")
    p("s_waitcnt vmcnt(0)")
    p("s_mov_b32 s9, 1")
    for i in range(n_loads):
        setexec(p, masks[i])
        p(f"v_cmp_eq_u64 vcc, {s(S_N,2)}, {v(2+2*i,2)}")
        p("s_nop 4")
        p("s_cmp_eq_u64 vcc, exec")
        p("s_cselect_b32 s9, s9, 0")
    p("s_mov_b64 exec, -1")
    p("s_cmp_eq_u32 s9, 1")
    p(f"s_cbranch_scc1 {done}")
    p(f"s_add_u32 s{S_T}, s{S_T}, 1")
    p(f"s_cmp_lt_u32 s{S_T}, 0x8000")
    p(f"s_cbranch_scc0 {done}")
    p("s_sleep 1")
    p(f"s_branch {lab}")
    p.label(done)
    if cluster:
        l2 = p.uid("acq")
        p(f"s_cmp_eq_u32 s{S_FAST}, 1")
        p(f"s_cbranch_scc1 {l2}")
        p("buffer_inv sc1")
        p("s_waitcnt vmcnt(0)")
        p.label(l2)
    p.label(skip)
    p("s_barrier")
    p.vmq = []

def get_nonce(p):
    lab = p.uid("non"); done = p.uid("nond")
    p(f"s_mov_b32 s{S_T}, 0")
    p.label(lab)
    p("v_mov_b32 v1, 0")
    p(f"buffer_load_dwordx2 v[2:3], v1, {sr(SF_)}, 0 offen sc1")
    p("s_waitcnt vmcnt(0)")
    p(f"v_readfirstlane_b32 s{S_N}, v2")
    p(f"v_readfirstlane_b32 s{S_N+1}, v3")
    p("s_nop 3")
    p(f"s_or_b32 s9, s{S_N}, s{S_N+1}")
    p("s_cmp_lg_u32 s9, 0")
    p(f"s_cbranch_scc1 {done}")
    p(f"s_add_u32 s{S_T}, s{S_T}, 1")
    p(f"s_cmp_lt_u32 s{S_T}, 0x8000")
    p(f"s_cbranch_scc0 {done}")
    p("s_sleep 1")
    p(f"s_branch {lab}")
    p.label(done)
    p.vmq = []

def tlb_warm(p):
    if 'notlb' in EXP: return
    ent = [(P_K, None), (P_V, None), (P_SK, 0), (P_W1, 0), (P_W2, 0), (P_H, "h"), (P_Q, "q"), (P_DV, 0), (P_DBG, 0), (P_OUT, "q"),
           (P_WS, WS_KVT), (P_WS, WS_YB), (P_WS, WS_W1P), (P_WS, WS_W2P), (P_WS, WS_FLAGS), (P_WS, "pb0"), (P_WS, "pb1")]
    lab = p.uid("tw")
    p(f"s_cmp_eq_u32 s{S_W}, 0")
    p(f"s_cbranch_scc0 {lab}")
    p(f"v_mov_b32 v2, s{P_K}"); p(f"v_mov_b32 v3, s{P_K+1}")
    p(f"s_mul_i32 s9, s{S_RB}, {8*ROWB}")
    p("s_min_u32 s10, s2, 223"); p("s_lshl_b32 s10, s10, 13")
    p(f"s_mul_i32 s11, s{S_CL}, {8*64*ROWB}"); p(f"s_add_u32 s11, s11, {hex(WS_PB)}")
    for i, (ptr, off) in enumerate(ent):
        if off in (None, 0):
            lo, hi = ptr, ptr + 1
        else:
            if off == "q": src = "s9"
            elif off == "h": src = "s10"
            elif off == "pb0": src = "s11"
            elif off == "pb1":
                p(f"s_add_u32 s11, s11, {8*64*ROWB - 128}"); src = "s11"
            else: src = hex(off)
            p(f"s_add_u32 s12, s{ptr}, {src}"); p(f"s_addc_u32 s13, s{ptr+1}, 0")
            lo, hi = 12, 13
        p(f"v_writelane_b32 v2, s{lo}, {i}")
        p(f"v_writelane_b32 v3, s{hi}, {i}")
    setexec(p, len(ent))
    p("global_load_dword v254, v[2:3], off")
    p("s_mov_b64 exec, -1")
    p.label(lab)

def prep(p):
    S_RBK, S_CG = 12, 13
    SK_, SV_, SSK, SKVT, SSRC, SDST = SA, SB_, SC, SD, SE, S_W1
    T0 = 72
    p.div_const(S_RBK, 2, 7)
    p(f"s_mul_i32 s{S_CG}, s{S_RBK}, 7")
    p(f"s_sub_u32 s{S_CG}, s2, s{S_CG}")
    p.srd(SK_, P_K, 0, MAT); p.srd(SV_, P_V, 0, MAT); p.srd(SSK, P_SK, 0, D * 8); p.srd(SKVT, P_WS, WS_KVT, MAT)
    p("v_and_b32 v1, 15, v0")
    p("v_lshrrev_b32 v2, 4, v0")
    p(f"s_lshl_b32 s9, s{S_RBK}, 6")
    p("s_sub_u32 s9, s9, 3")
    p("v_lshl_add_u32 v3, v2, 2, s9")
    p(f"v_mul_i32_i24 v4, {ROWB}, v3")
    p(f"s_lshl_b32 s10, s{S_CG}, 7")
    p("v_lshl_add_u32 v5, v1, 3, s10")
    p("v_add_u32 v4, v4, v5")
    for i in range(1, 7):
        p(f"v_add_u32 v{5+i}, {ROWB*i}, v4")
    off = lambda i: "v4" if i == 0 else f"v{5+i}"
    p("v_lshlrev_b32 v12, 2, v5")
    for i in range(7):
        p.vm(f"buffer_load_dwordx2 {v(16+2*i,2)}, {off(i)}, {sr(SK_)}, 0 offen", "k")
    for i in range(4):
        p.vm(f"buffer_load_dwordx2 {v(30+2*i,2)}, {off(i+3)}, {sr(SV_)}, 0 offen", "k")
    p.vm(f"buffer_load_dwordx4 v[38:41], v12, {sr(SSK)}, 0 offen", "k")
    p.vm(f"buffer_load_dwordx4 v[42:45], v12, {sr(SSK)}, 0 offen offset:16", "k")
    if 'pp' in EXP: stamp(p, 34)
    S_J, S_R, S_ISW2, S_STR = T0, T0 + 1, T0 + 2, T0 + 3
    p("s_cmp_ge_u32 s2, 112")
    p(f"s_cselect_b32 s{S_ISW2}, 1, 0")
    p("s_cselect_b32 s9, 112, 0")
    p("s_sub_u32 s9, s2, s9")
    p.div_const(S_J, 9, 14)
    p(f"s_mul_i32 s10, s{S_J}, 14")
    p(f"s_sub_u32 s{S_R}, s9, s10")
    p(f"s_mul_i32 s10, s{S_R}, {32*3584}")
    p(f"s_mul_i32 s11, s{S_J}, 448")
    p("s_add_u32 s10, s10, s11")
    p(f"s_lshr_b32 s11, s{S_R}, 1")
    p(f"s_mul_i32 s11, s11, {32*896}")
    p(f"s_mul_i32 s14, s{S_J}, {224*896}")
    p("s_add_u32 s11, s11, s14")
    p(f"s_and_b32 s14, s{S_R}, 1")
    p("s_mul_i32 s14, s14, 448")
    p("s_add_u32 s11, s11, s14")
    p(f"s_cmp_eq_u32 s{S_ISW2}, 1")
    p("s_cselect_b32 s10, s11, s10")
    p.csel(S_STR, 896, 3584)
    p(f"s_cselect_b32 s{SSRC}, s{P_W2}, s{P_W1}")
    p(f"s_cselect_b32 s{SSRC+1}, s{P_W2+1}, s{P_W1+1}")
    p(f"s_mov_b32 s{SSRC+2}, {hex(D*F*2)}")
    p(f"s_mov_b32 s{SSRC+3}, 0x20000")
    for m in range(4):
        p(f"v_add_u32 v13, {256*m}, v0")
        p("v_mul_u32_u24 v14, 2341, v13")
        p("v_lshrrev_b32 v14, 16, v14")
        p("v_mul_u32_u24 v15, 28, v14")
        p("v_sub_u32 v15, v13, v15")
        p(f"v_mul_lo_u32 v14, v14, s{S_STR}")
        p("v_lshl_add_u32 v14, v15, 4, v14")
        p("v_add_u32 v14, s10, v14")
        if m == 3:
            p("v_cmp_gt_u32 vcc, 896, v13")
            p("v_cndmask_b32 v14, -1, v14, vcc")
        p.vm(f"buffer_load_dwordx4 {v(48+4*m,4)}, v14, {sr(SSRC)}, 0 offen", "w")
    if 'pp' in EXP: stamp(p, 35)
    p("v_and_b32 v46, 63, v0")
    p("v_lshrrev_b32 v47, 4, v46")
    p("v_bfe_u32 v14, v46, 2, 2")
    p("v_and_b32 v15, 3, v46")
    p("v_lshl_add_u32 v47, v47, 3, v14")
    p("v_mul_u32_u24 v47, 448, v47")
    p("v_lshlrev_b32 v46, 4, v46")
    p(f"s_cmp_eq_u32 s{S_ISW2}, 1")
    p.csel(9, hex(WS_W2P), hex(WS_W1P))
    p(f"s_add_u32 s{SDST}, s{P_WS}, s9")
    p(f"s_addc_u32 s{SDST+1}, s{P_WS+1}, 0")
    p(f"s_mov_b32 s{SDST+2}, {hex(W1P_BYTES)}")
    p(f"s_mov_b32 s{SDST+3}, 0x20000")
    t = [76, 77, 78, 79]
    for m in range(4):
        ST, DST = 14, 80 + m
        p(f"s_add_u32 s{ST}, s{S_W}, {4*m}")
        p(f"s_cmp_ge_u32 s{ST}, 7")
        p(f"s_cselect_b32 s{t[0]}, 1, 0")
        p(f"s_mul_i32 s{t[1]}, s{t[0]}, 7")
        p(f"s_sub_u32 s{t[1]}, s{ST}, s{t[1]}")
        p(f"s_mul_i32 s{DST}, s{S_J}, 7")
        p(f"s_add_u32 s{DST}, s{DST}, s{t[1]}")
        p(f"s_lshl_b32 s{DST}, s{DST}, 1")
        p(f"s_add_u32 s{DST}, s{DST}, s{t[0]}")
        p(f"s_mul_i32 s{DST}, s{DST}, 14")
        p(f"s_add_u32 s{DST}, s{DST}, s{S_R}")
        p(f"s_and_b32 s9, s{ST}, 1")
        p(f"s_lshr_b32 s10, s{ST}, 1")
        p(f"s_and_b32 s11, s{S_R}, 1")
        p("s_mul_i32 s11, s11, 7")
        p("s_add_u32 s11, s11, s10")
        p(f"s_lshr_b32 s15, s{S_R}, 1")
        p("s_mul_i32 s15, s15, 7")
        p(f"s_mul_i32 s{t[0]}, s{S_J}, 196")
        p(f"s_add_u32 s15, s15, s{t[0]}")
        p(f"s_and_b32 s{t[0]}, s11, 3")
        p(f"s_mul_i32 s{t[0]}, s{t[0]}, 49")
        p(f"s_lshr_b32 s{t[1]}, s11, 2")
        p(f"s_lshl_b32 s{t[1]}, s{t[1]}, 1")
        p(f"s_add_u32 s{t[1]}, s{t[1]}, s9")
        p(f"s_add_u32 s{t[0]}, s{t[0]}, s{t[1]}")
        p(f"s_lshl_b32 s10, s10, 6")
        p(f"s_lshl_b32 s{t[1]}, s9, 3")
        p(f"s_add_u32 s{t[1]}, s{t[1]}, s10")
        p(f"s_sub_u32 s{t[2]}, s11, 12")
        p(f"s_lshl_b32 s{t[2]}, s{t[2]}, 1")
        p(f"s_add_u32 s{t[2]}, s{t[2]}, s9")
        p(f"s_mul_i32 s{t[2]}, s{t[2]}, 49")
        p(f"s_add_u32 s{t[2]}, s{t[2]}, 6")
        p(f"s_lshl_b32 s{t[3]}, s9, 5")
        p(f"s_add_u32 s{t[3]}, s{t[3]}, s10")
        p("s_cmp_lt_u32 s11, 12")
        p(f"s_cselect_b32 s{t[0]}, s{t[0]}, s{t[2]}")
        p(f"s_cselect_b32 s{t[1]}, s{t[1]}, s{t[3]}")
        p(f"s_cselect_b32 s{t[2]}, 4, 3")
        p(f"s_add_u32 s{t[0]}, s{t[0]}, s15")
        p(f"s_lshl_b32 s{t[3]}, s{ST}, 5")
        p(f"s_cmp_eq_u32 s{S_ISW2}, 1")
        p(f"s_cselect_b32 s{DST}, s{t[0]}, s{DST}")
        p(f"s_cselect_b32 s{t[1]}, s{t[1]}, s{t[3]}")
        p(f"s_cselect_b32 s{t[2]}, s{t[2]}, 3")
        p(f"s_lshl_b32 s{DST}, s{DST}, 10")
        p(f"v_lshlrev_b32 v{144+m}, s{t[2]}, v15")
        p(f"v_add3_u32 v{144+m}, v{144+m}, v47, s{t[1]}")
    mlp_setup(p)
    if 'pp' in EXP: stamp(p, 30)
    p.wait_vm("w")
    if 'pp' in EXP: stamp(p, 31)
    early_loads(p)
    p("v_lshlrev_b32 v14, 4, v0")
    for m in range(3):
        p.lg(f"ds_write_b128 v14, {v(48+4*m,4)} offset:{LB+4096*m}")
    lab = p.uid("skip3")
    p(f"s_cmp_ge_u32 s{S_W}, 2")
    p(f"s_cbranch_scc1 {lab}")
    p(f"ds_write_b128 v14, {v(60,4)} offset:{LB+4096*3}")
    p.label(lab)
    p.wait_lg()
    p("s_barrier")
    for m in range(4):
        p.lg(f"ds_read_b64_tr_b16 {v(48+4*m,2)}, v{144+m} offset:{LB}", f"t{m}")
        p.lg(f"ds_read_b64_tr_b16 {v(48+4*m+2,2)}, v{144+m} offset:{LB+4*448}", f"t{m}")
    for m in range(3):
        p.wait_lg(f"t{m}")
        p.vm(f"buffer_store_dwordx4 {v(48+4*m,4)}, v46, {sr(SDST)}, s{80+m} offen sc1", "wst")
    lab = p.uid("pk")
    p.wait_lg()
    p(f"s_cmp_ge_u32 s{S_W}, 2")
    p(f"s_cbranch_scc1 {lab}")
    p(f"buffer_store_dwordx4 {v(60,4)}, v46, {sr(SDST)}, s83 offen sc1")
    p.label(lab)
    p.srd(SF_, P_DBG, 0, 256)
    p("v_mov_b32 v47, 0")
    p.vm(f"buffer_load_dwordx2 v[150:151], v47, {sr(SF_)}, 0 offen sc1", "nonce")
    if 'pp' in EXP: stamp(p, 32)
    KF, SF, VF, AC, OP = 64, 92, 108, 124, 140
    p("v_mov_b32 v15, 0xffff0000")
    for i in range(7):
        for d in range(2):
            p(f"v_lshlrev_b32 v{KF+4*i+2*d}, 16, v{16+2*i+d}")
            p(f"v_and_b32 v{KF+4*i+2*d+1}, v15, v{16+2*i+d}")
    for e in range(4):
        for j in range(4):
            src = 38 + 2*e + (j >> 1)
            if j & 1: p(f"v_and_b32 v{SF+4*j+e}, v15, v{src}")
            else: p(f"v_lshlrev_b32 v{SF+4*j+e}, 16, v{src}")
    for i in range(4):
        for d in range(2):
            p(f"v_lshlrev_b32 v{VF+4*i+2*d}, 16, v{30+2*i+d}")
            p(f"v_and_b32 v{VF+4*i+2*d+1}, v15, v{30+2*i+d}")
    for j in range(4):
        for r in range(4):
            for e in (0, 2):
                kf = v(KF+4*(r+3-j)+e, 2); sf = v(SF+4*j+e, 2); ac = v(AC+4*r+e, 2)
                if j == 0: p(f"v_pk_mul_f32 {ac}, {kf}, {sf}")
                else: p(f"v_pk_fma_f32 {ac}, {kf}, {sf}, {ac}")
    for r in range(4):
        for e in (0, 2):
            p(f"v_pk_mul_f32 {v(AC+4*r+e,2)}, {v(AC+4*r+e,2)}, {v(VF+4*r+e,2)}")
    for e in range(4):
        p(f"v_cvt_pk_bf16_f32 v{OP+2*e}, v{AC+e}, v{AC+4+e}")
        p(f"v_cvt_pk_bf16_f32 v{OP+2*e+1}, v{AC+8+e}, v{AC+12+e}")
    if 'pp' in EXP: stamp(p, 33)
    p("v_xor_b32 v13, v1, v2")
    p("v_lshlrev_b32 v13, 3, v13")
    p("v_lshl_add_u32 v13, v1, 9, v13")
    for e in range(4):
        p.lg(f"ds_write_b64 v13, {v(OP+2*e,2)} offset:{LA+128*e}")
    p.wait_lg()
    p("s_barrier")
    p("v_lshrrev_b32 v1, 3, v0")
    p("v_and_b32 v2, 7, v0")
    p("v_lshlrev_b32 v3, 1, v2")
    p(f"s_lshl_b32 s9, s{S_CG}, 6")
    p(f"s_lshl_b32 s10, s{S_RBK}, 7")
    for pi in range(2):
        p(f"v_add_u32 v4, {32*pi}, v1")
        p("v_lshrrev_b32 v5, 2, v4")
        p("v_xor_b32 v6, v3, v5")
        p("v_xor_b32 v7, 1, v6")
        p("v_lshlrev_b32 v8, 7, v4")
        p("v_lshl_add_u32 v6, v6, 3, v8")
        p("v_lshl_add_u32 v7, v7, 3, v8")
        p.lg(f"ds_read_b64 {v(16+4*pi,2)}, v6 offset:{LA}", f"a{pi}")
        p.lg(f"ds_read_b64 {v(18+4*pi,2)}, v7 offset:{LA}", f"a{pi}")
        p("v_add_u32 v8, s9, v4")
        p("v_lshlrev_b32 v8, 12, v8")
        p("v_lshl_add_u32 v8, v2, 4, v8")
        p(f"v_add_u32 v{24+pi}, s10, v8")
    for pi in range(2):
        p.wait_lg(f"a{pi}")
        p.vm(f"buffer_store_dwordx4 {v(16+4*pi,4)}, v{24+pi}, {sr(SKVT)}, 0 offen sc1", "kvst")

HW = 160
def code_prefetch(p):
    if 'nocode' in EXP: return
    p("s_getpc_b64 s[90:91]")
    lab = p.uid("K_pc")
    p.label(lab)
    p("v_lshlrev_b32 v180, 7, v0")
    p(f"v_cmp_gt_u32 vcc, (K_end - {lab}), v180")
    p("s_and_saveexec_b64 s[10:11], vcc")
    p.vm("global_load_dword v255, v180, s[90:91]", "code")
    p("s_mov_b64 exec, s[10:11]")

def q_loads(p):
    row_setup(p)
    p.srd(SF_, P_Q, 0, MAT)
    p.vm(f"buffer_load_dwordx4 {v(XP,4)}, v{OFFA}, {sr(SF_)}, 0 offen", "q")
    p.vm(f"buffer_load_dwordx4 {v(XP+4,4)}, v{OFFB}, {sr(SF_)}, 0 offen", "q")

def early_loads(p):
    SH = SF_
    p("s_lshl_b32 s9, s2, 13")
    p(f"s_add_u32 s{SH}, s{P_H}, s9"); p(f"s_addc_u32 s{SH+1}, s{P_H+1}, 0")
    p(f"s_mov_b32 s{SH+2}, 8192"); p(f"s_mov_b32 s{SH+3}, 0x20000")
    p("v_sub_u32 v176, 255, v0")
    p("v_lshlrev_b32 v176, 4, v176")
    p("v_subrev_u32 v177, 16, v176")
    for ch in range(2):
        p(f"v_add_u32 v178, {4096*ch}, v177")
        p(f"v_add_u32 v179, {4096*ch}, v176")
        p.vm(f"buffer_load_dwordx4 {v(HW+8*ch,4)}, v178, {sr(SH)}, 0 offen", "h")
        p.vm(f"buffer_load_dwordx4 {v(HW+4+8*ch,4)}, v179, {sr(SH)}, 0 offen", "h")
    q_loads(p)

def hbuild(p):
    p("v_mov_b32 v5, 0xffff")
    p("v_cmp_ne_u32 vcc, 255, v0")
    p("v_lshlrev_b32 v6, 4, v0")
    E1, E2, O1, O2 = 32, 40, 46, 54
    for ch in range(2):
        W = HW + 8 * ch
        for d in range(4):
            p(f"v_cndmask_b32 v{W+d}, 0, v{W+d}, vcc")
        def o(dst, sidx):
            if sidx % 2 == 0:
                pz = (14 - sidx) // 2
                p(f"v_alignbit_b32 v{dst}, v{W+pz}, v{W+pz}, 16")
            else:
                p(f"v_bfi_b32 v{dst}, v5, v{W+(15-sidx)//2}, v{W+(13-sidx)//2}")
        for n in range(7): o(E1 + n, 2 * n)
        for n in range(6): o(E2 + n, 2 * n + 2)
        for n in range(7): o(O1 + n, 2 * n + 1)
        for n in range(6): o(O2 + n, 2 * n + 3)
        src = {0: E1, 4: E1 + 2, 2: E2, 6: E2 + 2, 1: O1, 5: O1 + 2, 3: O2, 7: O2 + 2}
        for c in range(8):
            p.lg(f"ds_write_b128 v6, {v(src[c],4)} offset:{ch*HC_CH + c*HC_COPY}")
        p("s_nop 1")
    for r in range(4): p(f"v_mov_b32 v{60+r}, 0")
    p("v_and_b32 v7, 15, v0")
    p(f"v_mul_u32_u24 v7, {HC_COPY}, v7")
    p("v_add_u32 v7, 4096, v7")
    p("v_and_b32 v8, 31, v0")
    p("v_lshlrev_b32 v8, 4, v8")
    p("v_bfe_u32 v9, v0, 5, 1")
    p(f"v_mul_u32_u24 v9, {U_CH}, v9")
    p(f"s_mov_b32 s9, {L_U}")
    p("v_add3_u32 v8, v8, v9, s9")
    p.lg(f"ds_write_b128 v7, {v(60,4)}")
    p.lg(f"ds_write_b128 v8, {v(60,4)}")

W2A, W2B = 25, 37
def w2_items(SW2):
    G = []
    for f in range(49):
        it = []
        base = f - f % 4
        if f % 4 == 0 or f in (W2A, W2B): it.append((f"s_mov_b32 s15, {1024*base}", "", None))
        it.append((f"buffer_load_dwordx4 {a(4*f,4)}, v{V_L16}, {sr(SW2)}, s15 offen offset:{1024*(f%4)} sc1", "vm", "w2"))
        G.append(it)
    return G

def load_w2(p, SW2):
    for f in range(49):
        if f % 4 == 0: p(f"s_mov_b32 s9, {1024*f}")
        p.vm(f"buffer_load_dwordx4 {a(4*f,4)}, v{V_L16}, {sr(SW2)}, s9 offen offset:{1024*(f%4)} sc1", "w2")

def conv_main(p):
    ACC, FA, FB = 72, 96, 16
    fb = lambda buf, m: (16 + 28 * buf + 4 * m) if m < 7 else (160 + 4 * buf)
    p("v_and_b32 v1, 63, v0")
    p("v_and_b32 v2, 15, v1")
    p("v_lshrrev_b32 v3, 4, v1")
    p("v_and_b32 v4, 7, v2")
    p("v_sub_u32 v4, 7, v4")
    p(f"v_mul_u32_u24 v4, {HC_COPY}, v4")
    p("v_lshrrev_b32 v5, 3, v2")
    p("v_sub_u32 v5, v3, v5")
    p("v_add_u32 v5, 1, v5")
    p("v_lshl_add_u32 v4, v5, 4, v4")
    p(f"s_mul_i32 s9, s{S_B}, {HC_CH}")
    p("v_add_u32 v12, s9, v4")
    p(f"s_mul_i32 s9, s{S_B}, {U_CH}")
    p(f"s_add_u32 s9, s9, {L_U + 512 - 32 - 64*7}")
    p("v_lshlrev_b32 v5, 5, v2")
    p("v_lshl_add_u32 v5, v3, 4, v5")
    p("v_add_u32 v13, s9, v5")
    set1 = p.uid("cset1"); join = p.uid("cjoin")
    p(f"s_cmp_eq_u32 s{S_A}, 1")
    p(f"s_cbranch_scc1 {set1}")
    for st, tiles in ((0, (0, 3, 4, 7)), (1, (1, 2, 5, 6))):
        if st == 1: p.label(set1)
        mx = max(tiles)
        def reads(rho, buf):
            L = []
            for m in range(mx + 1):
                L.append((f"ds_read_b128 {v(FA+32*buf+4*m,4)}, v12 offset:{512*(7-m)+64*(7-rho)}", "lg", f"r{rho}_{m}"))
                L.append((f"ds_read_b128 {v(fb(buf,m),4)}, v13 offset:{512*m+64*(7-rho)}", "lg", f"r{rho}_{m}"))
            return L
        saved_vm = list(p.vmq)
        w2 = w2_items(SE)[:W2A] if 'now2' not in EXP else []
        for it in reads(0, 0): emit(p, it)
        first = set()
        for rho in range(8):
            buf = rho & 1
            nxt = reads(rho + 1, buf ^ 1) if rho < 7 else []
            mf = sorted([(max(mu, nt - mu), ti, nt, mu) for ti, nt in enumerate(tiles) for mu in range(nt + 1)])
            M = []; seen = -1
            for (mm, ti, nt, mu) in mf:
                c = v(ACC+4*ti,4) if ti in first else "0"
                first.add(ti)
                t = f"v_mfma_f32_16x16x32_bf16 {v(ACC+4*ti,4)}, {v(FA+32*buf+4*mu,4)}, {v(fb(buf,nt-mu),4)}, {c}"
                w = []
                if mm > seen: w.append((None, "wlg", f"r{rho}_{mm}")); seen = mm
                M.append((t, w))
            N = {}
            for i, it in enumerate(nxt): N.setdefault(i, []).append(it)
            slots = [9, 11, 13, 15, 17]
            for q_ in range(5 if rho < 5 else 0):
                if w2: N.setdefault(slots[q_], []).extend(w2.pop(0))
            schedule(p, M, [], N)
        assert not w2
        p.vmq = saved_vm + ["w2"]
        p("s_barrier")
        p(f"s_mul_i32 s9, s{S_B}, {U_CH}")
        p(f"s_add_u32 s9, s9, {L_U + 512}")
        p("v_lshlrev_b32 v5, 5, v2")
        p("v_lshl_add_u32 v5, v3, 3, v5")
        p("v_add_u32 v6, s9, v5")
        p(f"s_mul_i32 s9, s{S_B}, {YS_CH}")
        p("v_add_u32 v7, s9, v5")
        for ti, nt in enumerate(tiles):
            p.lg(f"ds_read_b64 {v(FA+2*ti,2)}, v6 offset:{512*nt}", f"u{ti}")
        p("v_mov_b32 v8, 0xffff0000")
        for ti, nt in enumerate(tiles):
            p.wait_lg(f"u{ti}")
            u = FA + 2 * ti; t = 16 + 4 * ti
            p(f"v_lshlrev_b32 v{t}, 16, v{u}")
            p(f"v_and_b32 v{t+1}, v8, v{u}")
            p(f"v_lshlrev_b32 v{t+2}, 16, v{u+1}")
            p(f"v_and_b32 v{t+3}, v8, v{u+1}")
            for r in range(4):
                p(f"v_fma_f32 v{t+r}, v{t+r}, s14, v{ACC+4*ti+r}")
            p(f"v_cvt_pk_bf16_f32 v{t}, v{t}, v{t+1}")
            p(f"v_cvt_pk_bf16_f32 v{t+1}, v{t+2}, v{t+3}")
            p.lg(f"ds_write_b64 v7, {v(t,2)} offset:{512*nt}")
        p.wait_lg()
        if st == 0: p(f"s_branch {join}")
    p.label(join)
    p("s_barrier")

def conv_out(p, SY):
    p("v_and_b32 v1, 3, v0")
    p("v_lshrrev_b32 v2, 2, v0")
    p("v_lshrrev_b32 v3, 1, v1")
    p("v_and_b32 v4, 1, v1")
    p(f"v_mul_u32_u24 v3, {YS_CH}, v3")
    p("v_lshl_add_u32 v3, v4, 4, v3")
    p("v_lshl_add_u32 v3, v2, 5, v3")
    p.lg("ds_read_b128 v[16:19], v3", "y0")
    p.lg(f"ds_read_b128 v[20:23], v3 offset:{64*32}", "y1")
    p(f"v_mul_u32_u24 v5, {D*32}, v2")
    p("v_lshl_add_u32 v5, v1, 4, v5")
    p("s_lshl_b32 s9, s2, 6")
    p("v_add_u32 v5, s9, v5")
    p(f"v_add_u32 v6, {64*D*32}, v5")
    p.wait_lg("y0")
    p.vm(f"buffer_store_dwordx4 v[16:19], v5, {sr(SY)}, 0 offen sc1", "yst")
    p.wait_lg("y1")
    p.vm(f"buffer_store_dwordx4 v[20:23], v6, {sr(SY)}, 0 offen sc1", "yst")

X, T, PK, TMP = 16, 32, 64, 72
def row_setup(p):
    p("v_and_b32 v181, 31, v0")
    p("v_lshrrev_b32 v182, 5, v0")
    p(f"v_cmp_gt_u32 {ACT}, 28, v181")
    p(f"v_mul_u32_u24 v183, {ROWB}, v182")
    p("v_lshl_add_u32 v183, v181, 4, v183")
    p(f"s_mul_i32 s9, s{S_RB}, {8*ROWB}")
    p("v_add_u32 v183, s9, v183")
    p(f"v_cndmask_b32 v{OFFA}, -1, v183, {ACT}")
    p("v_add_u32 v183, 448, v183")
    p(f"v_cndmask_b32 v{OFFB}, -1, v183, {ACT}")

def unpack(p, dst, src, n):
    for i in range(n):
        p(f"v_lshlrev_b32 v{dst+2*i}, 16, v{src+i}")
        p(f"v_and_b32 v{dst+2*i+1}, v7, v{src+i}")
def pack(p, dst, src, n):
    for i in range(n):
        p(f"v_cvt_pk_bf16_f32 v{dst+i}, v{src+2*i}, v{src+2*i+1}")
def allreduce32(p, r, t):
    for m in ("quad_perm:[1,0,3,2]", "quad_perm:[2,3,0,1]", "row_half_mirror", "row_mirror"):
        p(f"v_add_f32_dpp v{r}, v{r}, v{r} {m} row_mask:0xf bank_mask:0xf")
    p(f"v_mov_b32 v{t}, v{r}")
    p(f"v_permlane16_swap_b32 v{r}, v{t}")
    p(f"v_add_f32 v{r}, v{r}, v{t}")
def sum16(p, dst, src):
    p(f"v_pk_add_f32 {v(TMP,2)}, {v(src,2)}, {v(src+2,2)}")
    p(f"v_pk_add_f32 {v(TMP+2,2)}, {v(src+4,2)}, {v(src+6,2)}")
    p(f"v_pk_add_f32 {v(TMP+4,2)}, {v(src+8,2)}, {v(src+10,2)}")
    p(f"v_pk_add_f32 {v(TMP+6,2)}, {v(src+12,2)}, {v(src+14,2)}")
    p(f"v_pk_add_f32 {v(TMP,2)}, {v(TMP,2)}, {v(TMP+2,2)}")
    p(f"v_pk_add_f32 {v(TMP+4,2)}, {v(TMP+4,2)}, {v(TMP+6,2)}")
    p(f"v_pk_add_f32 {v(TMP,2)}, {v(TMP,2)}, {v(TMP+4,2)}")
    p(f"v_add_f32 v{dst}, v{TMP}, v{TMP+1}")
    p(f"v_cndmask_b32 v{dst}, 0, v{dst}, {ACT}")
def layernorm(p, src, dst, scale=None):
    M, V_ = TMP + 8, TMP + 10
    sum16(p, M, src)
    allreduce32(p, M, TMP + 9)
    p(f"v_mul_f32 v{M}, {fbits(-1.0/D)}, v{M}")
    p(f"v_mov_b32 v{M+1}, v{M}")
    for i in range(0, 16, 2):
        p(f"v_pk_add_f32 {v(dst+i,2)}, {v(src+i,2)}, {v(M,2)}")
    p(f"v_pk_mul_f32 {v(TMP,2)}, {v(dst,2)}, {v(dst,2)}")
    p(f"v_pk_mul_f32 {v(TMP+2,2)}, {v(dst+2,2)}, {v(dst+2,2)}")
    for i in range(4, 16, 4):
        p(f"v_pk_fma_f32 {v(TMP,2)}, {v(dst+i,2)}, {v(dst+i,2)}, {v(TMP,2)}")
        p(f"v_pk_fma_f32 {v(TMP+2,2)}, {v(dst+i+2,2)}, {v(dst+i+2,2)}, {v(TMP+2,2)}")
    p(f"v_pk_add_f32 {v(TMP,2)}, {v(TMP,2)}, {v(TMP+2,2)}")
    p(f"v_add_f32 v{V_}, v{TMP}, v{TMP+1}")
    p(f"v_cndmask_b32 v{V_}, 0, v{V_}, {ACT}")
    allreduce32(p, V_, TMP + 11)
    p(f"v_mov_b32 v{V_+1}, {fbits(1e-5)}")
    p(f"v_fmac_f32 v{V_+1}, {fbits(1.0/D)}, v{V_}")
    p(f"v_rsq_f32 v{V_}, v{V_+1}")
    if scale is not None: p(f"v_mul_f32 v{V_}, {fbits(scale)}, v{V_}")
    else: p("s_nop 0")
    p(f"v_mov_b32 v{V_+1}, v{V_}")
    for i in range(0, 16, 2):
        p(f"v_pk_mul_f32 {v(dst+i,2)}, {v(dst+i,2)}, {v(V_,2)}")

def y_load(p, SY):
    p(f"s_lshr_b32 s9, s{S_RB}, 1")
    p(f"s_mul_i32 s9, s9, {D*32}")
    p(f"s_and_b32 s10, s{S_RB}, 1")
    p("s_lshl_b32 s10, s10, 4")
    p("s_add_u32 s9, s9, s10")
    p("v_lshlrev_b32 v3, 5, v0")
    p("v_add_u32 v3, s9, v3")
    p(f"v_add_u32 v4, {256*32}, v3")
    p("v_cmp_gt_u32 vcc, 192, v0")
    p("v_cndmask_b32 v4, -1, v4, vcc")
    p.vm(f"buffer_load_dwordx4 {v(T,4)}, v3, {sr(SY)}, 0 offen sc1", "y")
    p.vm(f"buffer_load_dwordx4 {v(T+4,4)}, v4, {sr(SY)}, 0 offen sc1", "y")

def y_transpose(p):
    p("v_lshlrev_b32 v3, 2, v0")
    p.wait_vm("y")
    for wq in range(4):
        p.lg(f"ds_write_b32 v3, v{T+wq} offset:{LY+2048*wq}")
        p.lg(f"ds_write_b32 v3, v{T+4+wq} offset:{LY+2048*wq+1024}")
    p.wait_lg()
    p("s_barrier")
    p("v_and_b32 v1, 31, v0")
    p("v_lshrrev_b32 v4, 6, v0")
    p("v_lshlrev_b32 v4, 11, v4")
    p("v_lshl_add_u32 v4, v1, 5, v4")
    for k in range(2):
        p.lg(f"ds_read_b128 {v(T+8*k,4)}, v4 offset:{LY+896*k}")
        p.lg(f"ds_read_b128 {v(T+8*k+4,4)}, v4 offset:{LY+896*k+16}")
    p("v_bfe_u32 v5, v0, 5, 1")
    p("v_mov_b32 v6, 0x01000c0c")
    p("v_mov_b32 v3, 0x03020c0c")
    p("v_cmp_eq_u32 vcc, 1, v5")
    p("v_cndmask_b32 v6, v6, v3, vcc")
    p.wait_lg()
    for i in range(16):
        p(f"v_perm_b32 v{YV+i}, v{T+i}, v{T+i}, v6")

def poll_s2(p):
    lab = p.uid("s2"); done = p.uid("s2d"); skip = p.uid("s2s")
    p("v_and_b32 v1, 63, v0")
    p("s_and_b32 s9, s2, 7"); p("s_lshl_b32 s9, s9, 11"); p(f"s_add_u32 s9, s9, {FL_S2R}")
    for i in range(4):
        p(f"v_lshl_add_u32 v{12+i}, v1, 3, s9")
        if i: p(f"v_add_u32 v{12+i}, {512*i}, v{12+i}")
    p("v_and_b32 v16, 7, v0")
    p(f"s_lshl_b32 s9, s{S_CL}, 6")
    p(f"s_add_u32 s9, s9, {FL_XCC}")
    p("v_lshl_add_u32 v16, v16, 3, s9")
    p(f"s_cmp_eq_u32 s{S_W}, 0")
    p(f"s_cbranch_scc0 {skip}")
    if 's2st' in EXP:
        p("s_waitcnt vmcnt(0)"); stamp(p, 41)
    p(f"s_mov_b32 s{S_T}, 0")
    p.label(lab)
    masks = [64, 64, 64, 32]
    for i in range(4):
        setexec(p, masks[i])
        p(f"buffer_load_dwordx2 {v(2+2*i,2)}, v{12+i}, {sr(S_FL)}, 0 offen sc1")
    p("s_mov_b64 exec, -1")
    p(f"buffer_load_dwordx2 v[10:11], v16, {sr(S_FL)}, 0 offen sc1")
    p("s_waitcnt vmcnt(0)")
    p(f"v_subrev_u32 v10, s{S_N}, v10")
    p(f"v_cmp_eq_u32 vcc, s{S_N+1}, v11")
    p("v_cmp_gt_u32 s[10:11], 16, v10")
    p("s_nop 4")
    p("s_and_b64 vcc, vcc, s[10:11]")
    p("s_cmp_eq_u64 vcc, exec")
    p("s_cselect_b32 s9, 1, 0")
    for i in range(4):
        setexec(p, masks[i])
        p(f"v_cmp_eq_u64 vcc, {s(S_N,2)}, {v(2+2*i,2)}")
        p("s_nop 4")
        p("s_cmp_eq_u64 vcc, exec")
        p("s_cselect_b32 s9, s9, 0")
    p("s_mov_b64 exec, -1")
    p("s_cmp_eq_u32 s9, 1")
    p(f"s_cbranch_scc1 {done}")
    p(f"s_add_u32 s{S_T}, s{S_T}, 1")
    p(f"s_cmp_lt_u32 s{S_T}, 0x8000")
    p(f"s_cbranch_scc0 {done}")
    p("s_sleep 1")
    p(f"s_branch {lab}")
    p.label(done)
    if 's2st' in EXP:
        p(f"v_writelane_b32 v253, s{S_T}, 42"); p(f"v_writelane_b32 v252, s{S_T}, 43"); p(f"v_writelane_b32 v253, s{S_T}, 43")
    p("s_getreg_b32 s9, hwreg(HW_REG_XCC_ID, 0, 4)")
    p("v_cmp_eq_u32 vcc, s9, v10")
    p("s_nop 4")
    p("s_cmp_eq_u64 vcc, exec")
    p("s_cselect_b32 s9, 1, 0")
    if FORCE_SLOW: p("s_mov_b32 s9, 0")
    p("v_mov_b32 v2, s9")
    p(f"v_mov_b32 v3, {L_FASTW}")
    p("ds_write_b32 v3, v2")
    p("s_waitcnt lgkmcnt(0)")
    p.label(skip)
    p("s_barrier")
    p.vmq = []; p.lgq = []
    p(f"v_mov_b32 v3, {L_FASTW}")
    p.lg("ds_read_b32 v17, v3", "fw")

def fast_get(p):
    p.wait_lg("fw")
    p(f"v_readfirstlane_b32 s{S_FAST}, v17")

def add_partials(p):
    p("v_and_b32 v1, 31, v0")
    p("v_lshrrev_b32 v2, 5, v0")
    p(f"s_mul_i32 s9, s{S_MEM}, {8*ROWB}")
    p(f"v_mul_u32_u24 v3, {ROWB}, v2")
    p("v_lshl_add_u32 v3, v1, 4, v3")
    p("v_add_u32 v3, s9, v3")
    p(f"v_cndmask_b32 v4, -1, v3, {ACT}")
    p("v_add_u32 v3, 448, v3")
    p(f"v_cndmask_b32 v5, -1, v3, {ACT}")
    PB_ = 96
    for j in range(8):
        p(f"s_mov_b32 s9, {j*64*ROWB}")
        fl = "" if 'plainp' in EXP else ("nt" if 'ntp' in EXP else "sc1")
        p.vm(f"buffer_load_dwordx4 {v(PB_+8*j,4)}, v4, {sr(S_PR)}, s9 offen {fl}", f"p{j}")
        p.vm(f"buffer_load_dwordx4 {v(PB_+8*j+4,4)}, v5, {sr(S_PR)}, s9 offen {fl}", f"p{j}")
    p("v_mov_b32 v7, 0xffff0000")
    p("v_mov_b32 v3, 0x00003f80")
    p("v_mov_b32 v4, 0x3f800000")
    unpack(p, X, XP, 8)
    for i in range(16): p(f"v_mov_b32 v{T+i}, 0")
    if 'pst' in EXP:
        p.wait_vm(); stamp(p, 18, True)
    for j in range(8):
        p.wait_vm(f"p{j}")
        for i in range(8):
            p(f"v_dot2c_f32_bf16 v{T+2*i}, v{PB_+8*j+i}, v3")
            p(f"v_dot2c_f32_bf16 v{T+2*i+1}, v{PB_+8*j+i}, v4")
    p(f"s_mov_b32 s9, {fbits(LN2)}")
    for i in range(16):
        p(f"v_fmac_f32 v{X+i}, s9, v{T+i}")
    pack(p, XP, X, 8)

def xh(phi):
    return a(196 + 4 * phi, 4) if phi < 15 else v(148 + 4 * (phi - 15), 4)

def mlp_setup(p):
    p("v_and_b32 v181, 63, v0")
    p("v_and_b32 v182, 15, v181")
    p("v_lshrrev_b32 v183, 4, v181")
    p(f"s_lshl_b32 s9, s{S_B}, 5")
    p("v_add_u32 v184, s9, v182")
    p(f"v_mul_u32_u24 v184, {ROWB}, v184")
    p("v_and_b32 v185, 2, v182")
    p("v_xor_b32 v185, v185, v183")
    p("v_lshl_add_u32 v184, v185, 4, v184")
    p("v_bfe_u32 v185, v182, 2, 1")
    p(f"v_lshl_add_u32 v{V_XE}, v185, 6, v184")
    p("v_xor_b32 v185, 1, v185")
    p(f"v_lshl_add_u32 v{V_XO}, v185, 6, v184")
    p(f"s_mul_i32 s9, s{S_A}, 14336")
    p(f"s_add_u32 s9, s9, {L_RING}")
    p(f"v_lshl_add_u32 v{V_A}, v181, 4, s9")
    p(f"v_add_u32 v{V_A2}, {2*CHUNK}, v{V_A}")
    p(f"s_lshl_b32 s9, s{S_B}, 5")
    p("v_add_u32 v184, s9, v182")
    p(f"v_mul_u32_u24 v184, {SH_}, v184")
    p("v_lshl_add_u32 v184, v183, 3, v184")
    p(f"s_mul_i32 s9, s{S_A}, 224")
    p(f"v_add_u32 v{V_HW}, s9, v184")
    p(f"v_mul_u32_u24 v184, {SH_}, v182")
    p(f"v_lshl_add_u32 v{V_HR}, v183, 4, v184")
    p(f"v_lshlrev_b32 v{V_L16}, 4, v181")
    p(f"v_lshlrev_b32 v{V_PWA}, 7, v0")
    p(f"v_add_u32 v{V_PWB}, {256*128}, v{V_PWA}")
    p(f"v_mul_u32_u24 v184, {ROWB}, v182")
    p(f"s_lshl_b32 s9, s{S_W}, 6")
    p("v_lshl_add_u32 v185, v183, 4, v184")
    p(f"v_add_u32 v{V_PO}, s9, v185")
    p(f"s_add_u32 s9, s{S_A}, 12")
    p("s_lshl_b32 s9, s9, 6")
    p(f"s_lshl_b32 s10, s{S_B}, 5")
    p("s_add_u32 s9, s9, s10")
    p("v_lshl_add_u32 v185, v183, 3, v184")
    p(f"v_add_u32 v{V_PO1}, s9, v185")
    for i in range(7):
        p(f"v_add_u32 v184, {64*i}, v181")
        p("v_mul_u32_u24 v185, 1171, v184")
        p("v_lshrrev_b32 v185, 16, v185")
        p("v_mul_u32_u24 v186, 56, v185")
        p("v_sub_u32 v186, v184, v186")
        p("v_and_b32 v187, 6, v185")
        p("v_xor_b32 v186, v186, v187")
        p(f"v_mul_u32_u24 v185, {ROWB}, v185")
        p(f"v_lshl_add_u32 v{V_XD+i}, v186, 4, v185")

def dma_x(p):
    p(f"s_mul_i32 s9, s{S_W}, {16*ROWB}")
    for hf in range(2):
        p(f"s_add_u32 s11, s9, {hf*8*ROWB}")
        for i in range(7):
            p(f"s_add_u32 m0, s11, {L_X + 1024*i}")
            p.vm(f"buffer_load_dwordx4 v{V_XD+i}, {sr(S_X)}, s11 offen sc1 lds", "x")

def dma_w1_items(chunk, tag, g=12):
    G = []
    for i in range(7):
        it = []
        if i in (0, 4):
            o = 4096 if i else 0
            it += [(f"s_add_u32 m0, s{S_W7}, {L_RING + (chunk % 3) * CHUNK + o}", "", None),
                   (f"s_add_u32 s{g}, s{S_W7}, {chunk * CHUNK + o}", "", None)]
        it.append((f"buffer_load_dwordx4 v{V_L16}, {sr(S_W1)}, s{g} offen offset:{1024*(i%4)} sc1 lds", "vm", tag))
        G.append(it)
    return G

def dma_w1(p, chunk, tag):
    p(f"s_mul_i32 s9, s{S_W}, 7168")
    p(f"s_add_u32 s10, s9, {L_RING + (chunk % 3) * CHUNK}")
    p(f"s_add_u32 s9, s9, {chunk * CHUNK}")
    for grp, cnt in ((0, 4), (4, 3)):
        if grp:
            p("s_add_u32 s10, s10, 4096"); p("s_add_u32 s9, s9, 4096")
        p("s_mov_b32 m0, s10")
        for i in range(cnt):
            p.vm(f"buffer_load_dwordx4 v{V_L16}, {sr(S_W1)}, s9 offen offset:{1024*i} sc1 lds", tag)

def cost(t):
    op = t.split()[0]
    if op.startswith(("v_exp", "v_rcp", "v_rsq")): return 8
    if op.startswith("v_"): return 4
    return 0

def emit(p, item):
    t, kind, tag = item
    if kind == "lg": p.lg(t, tag)
    elif kind == "vm": p.vm(t, tag)
    elif kind == "wlg": p.wait_lg(tag)
    elif kind == "wvm": p.wait_vm(tag)
    else: p(t)

def schedule(p, M, V=(), N=None, vstart=0, vend=None):
    N = N or {}
    vend = len(M) if vend is None else vend
    total = sum(cost(x[0]) for x in V)
    done, cum = 0, 0
    for i, m in enumerate(M):
        if isinstance(m, tuple):
            for w in m[1]: emit(p, w)
            m = m[0]
        p(m)
        for it in N.get(i, []): emit(p, it)
        if i >= vstart and done < len(V):
            last = (i >= vend - 1)
            target = total * (i - vstart + 1) / max(1, vend - vstart)
            while done < len(V) and (last or cum + cost(V[done][0]) / 2 <= target):
                cum += cost(V[done][0]); emit(p, V[done]); done += 1
    while done < len(V):
        emit(p, V[done]); done += 1

def interleave(p, M, O, first=0):
    n = len(M) - first
    done = 0
    for i, m in enumerate(M):
        p(m)
        if i >= first:
            want = (len(O) * (i - first + 1) + n - 1) // n
            while done < want:
                t, kind, tag = O[done]; done += 1
                if kind == "lg": p.lg(t, tag)
                elif kind == "vm": p.vm(t, tag)
                else: p(t)

FA, AC1, ST_, HO = 16, 72, 96, 104
def silu_stages(T):
    z = AC1 + 8 * (T % 3); t = ST_
    E = [(f"v_exp_f32_e64 v{t+r}, -v{z+r}", "", None) for r in range(8)]
    A = [(f"v_add_f32 v{t+r}, 1.0, v{t+r}", "", None) for r in range(8)]
    C = [(f"v_rcp_f32 v{t+r}, v{t+r}", "", None) for r in range(8)]
    M = [(f"v_mul_f32 v{t+r}, v{z+r}, v{t+r}", "", None) for r in range(8)]
    V = []
    for nt in range(2):
        V.append((f"v_cvt_pk_bf16_f32 v{HO+2*nt}, v{t+4*nt}, v{t+4*nt+1}", "", None))
        V.append((f"v_cvt_pk_bf16_f32 v{HO+2*nt+1}, v{t+4*nt+2}, v{t+4*nt+3}", "", None))
    W = [(f"ds_write_b64 v{V_HW}, {v(HO+2*nt,2)} offset:{L_X + nt*16*SH_ + 32*T}", "lg", "hw") for nt in range(2)]
    return E, A, C, M, V, W

def gemm1(p):
    def areads(h):
        T, half, buf = h >> 1, h & 1, h & 1
        sl = T % 3
        base, o = (V_A, sl * CHUNK) if sl < 2 else (V_A2, 0)
        return [(f"ds_read_b128 {v(FA+28*buf+4*i,4)}, v{base} offset:{o + 1024*(7*half+i)}", "lg", f"g{h}") for i in range(7)]
    p.wait_vm("x")
    p("s_barrier")
    stamp(p, 12, True)
    if 'ldwb' in EXP: prewarm_ld(p, 128)
    def xread(k, nt):
        base = V_XO if k & 1 else V_XE
        return (f"ds_read_b128 {xh(2*k+nt)}, v{base} offset:{L_X + 128*(k>>1) + nt*16*ROWB}", "lg", f"x{k}")
    a0 = areads(0)
    for k in range(7):
        t, kind, _ = a0[k]
        emit(p, (t, kind, f"a0_{k}")); emit(p, xread(k, 0)); emit(p, xread(k, 1))
    silu = 'nosilu' not in EXP
    for h in range(14):
        T, half, buf = h >> 1, h & 1, h & 1
        nxt = areads(h + 1) if h < 13 else []
        pre = [[] for _ in range(14)]
        val = [[] for _ in range(14)]
        post = [[] for _ in range(14)]
        for i, it in enumerate(nxt): pre[i].append(it)
        if h == 0:
            extra = [xread(k, nt) for k in range(7, 14) for nt in range(2)]
            for i in range(14): pre[i].append(extra[i])
        if half == 1 and T + 3 <= 6 and 'nodma1' not in EXP:
            for i, grp in enumerate(dma_w1_items(T + 3, f"c{T+3}")):
                sal = [x for x in grp if x[1] == ""]; dm = [x for x in grp if x[1] == "vm"]
                pre[i] = sal + pre[i] + dm
        if h == 8 and 'noldwc' not in EXP and 'psc1' not in EXP:
            fl = "sc1" if 'ldsc1' in EXP else ""
            pre[8].append((f"buffer_load_dword v255, v{V_PWA}, {sr(S_PW)}, 0 offen {fl}", "vm", "pw"))
            pre[11].append((f"buffer_load_dword v255, v{V_PWB}, {sr(S_PW)}, 0 offen {fl}", "vm", "pw"))
        if silu:
            if half == 0 and T >= 2:
                E, A, C, M, V, W = silu_stages(T - 2)
                seq = M + V
                order = [2, 2, 2, 2, 2, 1, 1]
                for g_, cnt in enumerate(order):
                    for _ in range(cnt): val[g_].append(seq.pop(0))
                pre[7].append(W[0]); pre[9].append(W[1])
            if half == 0 and T >= 1:
                E = silu_stages(T - 1)[0]
                for r in range(7): val[7 + r].append(E[r])
                val[13].append(E[7])
            if half == 1 and T >= 1:
                E, A, C, M, V, W = silu_stages(T - 1)
                for r in range(7): val[r].append(A[r])
                val[6].append(A[7])
                for r in range(7): val[7 + r].append(C[r])
                val[13].append(C[7])
        if h < 13:
            w = [(None, "wlg", f"g{h+1}")]
            if h == 0: w.append((None, "wlg", "x13"))
            if half == 0 and 3 <= T + 1 <= 6: w.append((None, "wvm", f"c{T+1}"))
            pre[13] = w + pre[13] if h != 0 else pre[13] + w
        for q_ in range(14):
            i, nt = q_ >> 1, q_ & 1
            k = 7 * half + i
            if h == 0 and nt == 0:
                p.wait_lg(f"a0_{i}"); p.wait_lg(f"x{k}")
            acc = v(AC1 + 8 * (T % 3) + 4 * nt, 4)
            p(f"v_mfma_f32_16x16x32_bf16 {acc}, {v(FA+28*buf+4*i,4)}, {xh(2*k+nt)}, {'0' if k == 0 else acc}")
            for it in pre[q_] + val[q_] + post[q_]: emit(p, it)
        if half == 0 and 'nobar1' not in EXP: p("s_barrier")
        if 'tt' in EXP: p(f"s_memtime s[{40+0}:{41}]" if False else f"s_memtime s[{34+2*(h+3)}:{35+2*(h+3)}]") if False else None
        if 'tt' in EXP and h < 12: p(f"s_memtime s[{40+2*h}:{41+2*h}]")
    if 'tt' in EXP:
        p("s_waitcnt lgkmcnt(0)"); p.lgq = []
        for h in range(12): p(f"v_mov_b32 v{108+h}, s{40+2*h}")
        p("s_lshl_b32 s9, s2, 6"); p(f"s_mul_i32 s10, s{S_LAY}, 16384"); p("s_add_u32 s9, s9, s10"); p(f"s_add_u32 s9, s9, {0x30000}")
        p("v_mov_b32 v120, s9")
        p("s_mov_b64 s[10:11], exec"); p("s_mov_b64 exec, 1")
        for q_ in range(3): p.vm(f"buffer_store_dwordx4 {v(108+4*q_,4)}, v120, s[92:95], 0 offen offset:{16*q_}")
        p("s_mov_b64 exec, s[10:11]")
    if silu:
        E, A, C, M, V, W = silu_stages(5)
        for it in M + V + W: emit(p, it)
        E, A, C, M, V, W = silu_stages(6)
        for it in E + A + C + M + V + W: emit(p, it)
    p.wait_lg()
    p("s_barrier")

AC2, CO = 72, 16
def gemm2(p):
    hread = lambda nt, k: (f"ds_read_b128 {xh(7*nt+k)}, v{V_HR} offset:{L_X + nt*16*SH_ + 64*k}", "lg", f"h{nt}_{k}")
    for k in range(7): emit(p, hread(0, k))
    pf = []
    units = [(P, nt) for P in range(3) for nt in range(4)] + [(3, nt) for nt in range(4)]
    def epi(u):
        P, nt = units[u]; ac = AC2 + 8 * (u & 1); o = CO + 4 * (u & 3)
        O = []
        O.append((f"v_cvt_pk_bf16_f32 v{o}, v{ac}, v{ac+1}", "", None))
        O.append((f"v_cvt_pk_bf16_f32 v{o+1}, v{ac+2}, v{ac+3}", "", None))
        if P < 3:
            O.append((f"v_cvt_pk_bf16_f32 v{o+2}, v{ac+4}, v{ac+5}", "", None))
            O.append((f"v_cvt_pk_bf16_f32 v{o+3}, v{ac+6}, v{ac+7}", "", None))
        st = [(f"s_mov_b32 s9, {nt*16*ROWB}", "", None)]
        sfl = "sc1" if 'psc1' in EXP else ("nt" if 'psnt' in EXP else ("sc0" if 'pssc0' in EXP else ""))
        if P < 3: st.append((f"buffer_store_dwordx4 {v(o,4)}, v{V_PO}, {sr(S_PW)}, s9 offen offset:{256*P} {sfl}", "vm", "ps"))
        elif 'nost6' in EXP: pass
        else: st.append((f"buffer_store_dwordx2 {v(o,2)}, v{V_PO1}, {sr(S_PW)}, s9 offen {sfl}", "vm", "ps"))
        return O, st
    for u, (P, nt) in enumerate(units):
        ac = AC2 + 8 * (u & 1)
        M = []
        for k in range(7):
            for sub in range(2 if P < 3 else 1):
                Tt = 2 * P + sub
                acc = v(ac + 4 * sub, 4)
                t = f"v_mfma_f32_16x16x32_bf16 {acc}, {a(4*(7*k+Tt),4)}, {xh(7*nt+k)}, {'0' if k == 0 else acc}"
                w = [(None, "wlg", f"h{nt}_{k}")] if (u < 4 and sub == 0) else []
                M.append((t, w))
        n = len(M)
        N = {}
        if u < 3:
            for k in range(7): N.setdefault(2 * k, []).append(hread(u + 1, k))
        V, st = epi(u - 1) if u else ([], [])
        if u >= 4 and pf:
            for g_ in range(3 if n == 14 else 0):
                if pf: N.setdefault(1 + 2 * g_, []).extend(pf.pop(0))
        if st and 'nostore' not in EXP: N.setdefault(n - 1 if n == 7 else 12, []).extend(st)
        schedule(p, M, V, N, vstart=(4 if n == 7 else 7), vend=(6 if n == 7 else 11))
    assert not pf
    V, st = epi(len(units) - 1)
    for it in V + st: emit(p, it)

def prewarm_ld(p, stride=128):
    n = 57344 // stride
    for i in range((n + 255) // 256):
        p(f"v_add_u32 v2, {256*i}, v0")
        p(f"v_mul_u32_u24 v2, {stride}, v2")
        p.vm(f"buffer_load_dword v255, v2, {sr(S_PW)}, 0 offen", "pw")

def prewarm(p):
    if 'nowarm' in EXP: return
    fl = "sc1" if 'wsc1' in EXP else ("nt" if 'wnt' in EXP else "")
    stride = 64 if 'w64' in EXP else 128
    for i in range((57344 // stride + 255) // 256):
        p(f"v_add_u32 v2, {256*i}, v0")
        p(f"v_mul_u32_u24 v2, {stride}, v2")
        p(f"buffer_store_dword v0, v2, {sr(S_PW)}, 0 offen {fl}")
    p("v_lshlrev_b32 v1, 7, v0")
    p(f"s_mul_i32 s9, s{S_MEM}, {8*ROWB}")
    p("v_add_u32 v2, s9, v1")
    p(f"v_cmp_gt_u32 vcc, {8*ROWB}, v1")
    p("v_cndmask_b32 v2, -1, v2, vcc")
    p(f"buffer_store_dword v0, v2, {sr(S_X)}, 0 offen {fl}")

FORCE_SLOW = False
def build(stamps=False, force_slow=False):
    global FORCE_SLOW
    FORCE_SLOW = force_slow
    common.STAMPS[0] = stamps
    p = K()
    p("s_cmp_ge_u32 s2, 256")
    p("s_cbranch_scc1 K_end")
    p.load_ptrs()
    code_prefetch(p)
    p.wave_id(S_W, 1)
    p("s_and_b32 s4, s2, 7")
    p("s_lshr_b32 s5, s2, 3")
    p("s_lshl_b32 s4, s4, 5")
    p("s_add_u32 s4, s4, s5")
    p("s_lshr_b32 s5, s4, 3")
    p("s_and_b32 s6, s4, 7")
    p(f"s_lshr_b32 s{S_A}, s{S_W}, 1")
    p(f"s_and_b32 s{S_B}, s{S_W}, 1")
    p(f"s_mov_b32 s{S_LAY}, 0")
    p(f"s_mov_b32 s{S_FAST}, 0")
    p(f"s_mul_i32 s{S_W7}, s{S_W}, 7168")
    p("s_waitcnt lgkmcnt(0)")
    if stamps:
        p.srd(92, P_WS, WS_FLAGS + 0x80000, 0x40000)
        p("v_mov_b32 v252, 0"); p("v_mov_b32 v253, 0")
    stamp(p, 0)
    lab = p.uid("nn")
    p("s_cmp_eq_u32 s2, 0")
    p(f"s_cbranch_scc0 {lab}")
    p(f"s_cmp_eq_u32 s{S_W}, 0")
    p(f"s_cbranch_scc0 {lab}")
    p.srd(SF_, P_DBG, 0, 256)
    p("s_memrealtime s[10:11]")
    p("s_waitcnt lgkmcnt(0)")
    p("s_lshl_b64 s[10:11], s[10:11], 4")
    p("s_or_b32 s11, s11, 0x40000000")
    p("v_mov_b32 v2, s10"); p("v_mov_b32 v3, s11"); p("v_mov_b32 v1, 0")
    p("s_mov_b64 exec, 1")
    p(f"buffer_store_dwordx2 v[2:3], v1, {sr(SF_)}, 0 offen sc1")
    p("s_mov_b64 exec, -1")
    p.label(lab)
    p.srd(S_FL, P_WS, WS_FLAGS, FLAGS_BYTES)
    p("s_cmp_ge_u32 s2, 224")
    p("s_cbranch_scc1 K_noprep")
    prep(p)
    stamp(p, 1)
    p.wait_vm("kvst")
    p(f"v_readfirstlane_b32 s{S_N}, v150")
    p(f"v_readfirstlane_b32 s{S_N+1}, v151")
    p("s_nop 3")
    p(f"s_or_b32 s9, s{S_N}, s{S_N+1}")
    p("s_cmp_lg_u32 s9, 0")
    lab = p.uid("haven")
    p(f"s_cbranch_scc1 {lab}")
    p.srd(SF_, P_DBG, 0, 256)
    get_nonce(p)
    p.label(lab)
    p("s_barrier")
    flag_store_rep(p, FL_S1R, 2)
    stamp(p, 2)
    p.wait_vm()
    hbuild(p)
    p("s_branch K_prepdone")
    p.label("K_noprep")
    mlp_setup(p)
    q_loads(p)
    p.srd(SF_, P_DBG, 0, 256)
    get_nonce(p)
    p("s_barrier")
    p.label("K_prepdone")
    p.vmq = []; p.lgq = []
    lab = p.uid("xp")
    p(f"s_cmp_eq_u32 s{S_W}, 0")
    p(f"s_cbranch_scc0 {lab}")
    p("s_getreg_b32 s9, hwreg(HW_REG_XCC_ID, 0, 4)")
    p(f"s_add_u32 s9, s9, s{S_N}")
    p("v_mov_b32 v2, s9"); p(f"v_mov_b32 v3, s{S_N+1}")
    p(f"s_lshl_b32 s9, s{S_RB}, 3"); p(f"s_add_u32 s9, s9, {FL_XCC}")
    p("v_mov_b32 v1, s9")
    p("s_mov_b64 exec, 1")
    p(f"buffer_store_dwordx2 v[2:3], v1, {sr(S_FL)}, 0 offen sc1")
    p("s_mov_b64 exec, -1")
    p.label(lab)
    p(f"s_mul_i32 s9, s{S_MEM}, {7*CHUNK}"); p(f"s_add_u32 s9, s9, {hex(WS_W1P)}")
    p(f"s_add_u32 s{S_W1}, s{P_WS}, s9"); p(f"s_addc_u32 s{S_W1+1}, s{P_WS+1}, 0")
    p(f"s_mov_b32 s{S_W1+2}, {7*CHUNK}"); p(f"s_mov_b32 s{S_W1+3}, 0x20000")
    p(f"s_mul_i32 s9, s{S_CL}, {64*ROWB}"); p(f"s_add_u32 s9, s9, {hex(WS_XP)}")
    p(f"s_add_u32 s{S_X}, s{P_WS}, s9"); p(f"s_addc_u32 s{S_X+1}, s{P_WS+1}, 0")
    p(f"s_mov_b32 s{S_X+2}, {64*ROWB}"); p(f"s_mov_b32 s{S_X+3}, 0x20000")
    p(f"s_mul_i32 s9, s{S_RB}, {64*ROWB}"); p(f"s_add_u32 s9, s9, {hex(WS_PB)}")
    p(f"s_add_u32 s{S_PW}, s{P_WS}, s9"); p(f"s_addc_u32 s{S_PW+1}, s{P_WS+1}, 0")
    p(f"s_mov_b32 s{S_PW+2}, {64*ROWB}"); p(f"s_mov_b32 s{S_PW+3}, 0x20000")
    p(f"s_mul_i32 s9, s{S_CL}, {8*64*ROWB}"); p(f"s_add_u32 s9, s9, {hex(WS_PB)}")
    p(f"s_add_u32 s{S_PR}, s{P_WS}, s9"); p(f"s_addc_u32 s{S_PR+1}, s{P_WS+1}, 0")
    p(f"s_mov_b32 s{S_PR+2}, {8*64*ROWB}"); p(f"s_mov_b32 s{S_PR+3}, 0x20000")
    if 'warm1' in EXP: prewarm(p)
    p("v_and_b32 v1, 63, v0")
    p("s_lshr_b32 s9, s2, 5")
    p("s_min_u32 s9, s9, 6")
    p("v_mul_u32_u24 v8, 7, v1")
    p("v_add_u32 v8, s9, v8")
    p(f"s_mul_i32 s9, s{S_MEM}, 14")
    p("v_subrev_u32 v9, 32, v1")
    p("v_add_u32 v9, s9, v9")
    p("v_add_u32 v10, 98, v9")
    p("v_cmp_gt_u32 vcc, 46, v1")
    p("v_cndmask_b32 v9, v10, v9, vcc")
    p("v_cmp_gt_u32 vcc, 32, v1")
    p("v_cndmask_b32 v8, v9, v8, vcc")
    p("v_lshlrev_b32 v8, 3, v8")
    p("s_and_b32 s9, s2, 7"); p("s_lshl_b32 s9, s9, 11"); p(f"s_add_u32 s9, s9, {FL_S1R}")
    p("v_add_u32 v8, s9, v8")
    p("s_waitcnt lgkmcnt(0)")
    poll(p, [8], 1, [60])
    stamp(p, 3)
    p(f"s_lshl_b32 s9, s{S_MEM}, 2"); p(f"s_add_u32 s9, s9, s{S_W}")
    p(f"s_mul_i32 s9, s9, {49*1024}"); p(f"s_add_u32 s9, s9, {hex(WS_W2P)}")
    p(f"s_add_u32 s{SE}, s{P_WS}, s9"); p(f"s_addc_u32 s{SE+1}, s{P_WS+1}, 0")
    p(f"s_mov_b32 s{SE+2}, {49*1024}"); p(f"s_mov_b32 s{SE+3}, 0x20000")
    p.srd(SD, P_WS, WS_YB, MAT)
    p("s_cmp_ge_u32 s2, 224")
    p("s_cbranch_scc1 K_noconv")
    p("s_lshl_b32 s9, s2, 13")
    p(f"s_add_u32 s{SA}, s{P_WS}, s9"); p(f"s_addc_u32 s{SA+1}, s{P_WS+1}, 0")
    p(f"s_mov_b32 s{SA+2}, 8192"); p(f"s_mov_b32 s{SA+3}, 0x20000")
    p("v_lshlrev_b32 v10, 4, v0")
    p.vm(f"buffer_load_dwordx4 v[64:67], v10, {sr(SA)}, 0 offen sc1", "u")
    p("v_add_u32 v11, 4096, v10")
    p.vm(f"buffer_load_dwordx4 v[68:71], v11, {sr(SA)}, 0 offen sc1", "u")
    p("s_lshl_b32 s9, s2, 2")
    p(f"s_load_dword s13, s[{P_DV}:{P_DV+1}], s9")
    p(f"v_add_u32 v10, {L_U+512}, v10")
    p.wait_vm("u")
    p.lg("ds_write_b128 v10, v[64:67]")
    p.lg(f"ds_write_b128 v10, v[68:71] offset:{U_CH}")
    p("s_waitcnt lgkmcnt(0)"); p.lgq = []
    p("s_lshl_b32 s12, s13, 16")
    p("s_and_b32 s14, s13, 0xffff0000")
    p(f"s_cmp_eq_u32 s{S_B}, 0")
    p("s_cselect_b32 s14, s12, s14")
    p("s_barrier")
    if 'warm2' in EXP: prewarm(p)
    stamp(p, 4)
    conv_main(p)
    stamp(p, 5)
    conv_out(p, SD)
    for g_ in w2_items(SE)[W2A:W2B]:
        for it in g_: emit(p, it)
    signal(p, FL_S2R, 2, upto="yst")
    stamp(p, 6)
    p("s_branch K_convdone")
    p.label("K_noconv")
    p.vmq = []
    for g_ in w2_items(SE)[:W2B]:
        for it in g_: emit(p, it)
    p.wait_vm()
    p.label("K_convdone")
    p.vmq = []; p.lgq = []
    if 'warm3' in EXP: prewarm(p)
    poll_s2(p)
    stamp(p, 7)
    y_load(p, SD)
    fast_get(p)
    for g_ in w2_items(SE)[W2B:]:
        for it in g_: emit(p, it)
    y_transpose(p)
    stamp(p, 8)
    p("v_mov_b32 v7, 0xffff0000")
    p.label("K_layer")
    p.vmq = []; p.lgq = []
    q = K()
    q("v_mov_b32 v7, 0xffff0000")
    unpack(q, X, XP, 8)
    layernorm(q, X, T)
    for i in range(0, 16, 2):
        q(f"v_pk_fma_f32 {v(X+i,2)}, {v(T+i,2)}, {v(YV+i,2)}, {v(X+i,2)}")
    pack(q, XP, X, 8)
    unpack(q, X, XP, 8)
    layernorm(q, X, T, LOG2E)
    pack(q, PK, T, 8)
    body = [it.text for it in q.items]
    pf = [g for c in range(2) for g in dma_w1_items(c, "pf")]
    step = len(body) // (len(pf) + 1)
    for i, t in enumerate(body):
        p(t)
        if pf and i % step == step - 1:
            for it in pf.pop(0): emit(p, it)
    assert not pf
    p(f"s_mul_i32 s9, s{S_CL}, {64*ROWB}")
    p(f"v_subrev_u32 v3, s9, v{OFFA}")
    p(f"v_subrev_u32 v4, s9, v{OFFB}")
    p(f"v_cndmask_b32 v3, -1, v3, {ACT}")
    p(f"v_cndmask_b32 v4, -1, v4, {ACT}")
    p.vm(f"buffer_store_dwordx4 {v(PK,4)}, v3, {sr(S_X)}, 0 offen", "xs")
    p.vm(f"buffer_store_dwordx4 {v(PK+4,4)}, v4, {sr(S_X)}, 0 offen", "xs")
    for g_ in dma_w1_items(2, "pf2"):
        for it in g_: emit(p, it)
    stamp(p, 9, True)
    signal(p, FL_A0, S_RB, layer_off=True, cluster=True, upto="xs")
    stamp(p, 10, True)
    def cluster_offs():
        p("v_and_b32 v1, 7, v0")
        p(f"s_lshl_b32 s9, s{S_CL}, 6")
        p(f"s_lshl_b32 s10, s{S_LAY}, 12")
        p("s_add_u32 s9, s9, s10")
    cluster_offs()
    p(f"s_add_u32 s9, s9, {FL_A0}")
    p("v_lshl_add_u32 v10, v1, 3, s9")
    poll(p, [10], 1, [8], cluster=True)
    stamp(p, 11, True)
    dma_x(p)
    if 'ldw128' in EXP: prewarm_ld(p, 128)
    if 'ldw64' in EXP: prewarm_ld(p, 64)
    gemm1(p)
    stamp(p, 13, True)
    gemm2(p)
    stamp(p, 14, True)
    signal(p, FL_C0, S_RB, layer_off=True, cluster=True)
    if 'wb2' in EXP:
        lab = p.uid("wb2")
        p(f"s_cmp_eq_u32 s{S_LAY}, 1"); p(f"s_cbranch_scc0 {lab}")
        p(f"s_cmp_eq_u32 s{S_W}, 3"); p(f"s_cbranch_scc0 {lab}")
        p(f"s_and_b32 s9, s{S_RB}, 31"); p("s_cmp_eq_u32 s9, 0"); p(f"s_cbranch_scc0 {lab}")
        p("buffer_wbl2 sc1")
        p.label(lab)
    stamp(p, 15, True)
    cluster_offs()
    p(f"s_add_u32 s9, s9, {FL_C0}")
    p("v_lshl_add_u32 v10, v1, 3, s9")
    poll(p, [10], 1, [8], cluster=True)
    if 'wb' in EXP:
        lab = p.uid("wb")
        p(f"s_cmp_eq_u32 s{S_LAY}, 1"); p(f"s_cbranch_scc0 {lab}")
        p(f"s_cmp_eq_u32 s{S_MEM}, 0"); p(f"s_cbranch_scc0 {lab}")
        p(f"s_cmp_eq_u32 s{S_W}, 3"); p(f"s_cbranch_scc0 {lab}")
        p("buffer_wbl2 sc1")
        p.label(lab)
    stamp(p, 16, True)
    add_partials(p)
    stamp(p, 17, True)
    p(f"s_cmp_eq_u32 s{S_LAY}, 1")
    p("s_cbranch_scc1 K_final")
    p(f"s_mov_b32 s{S_LAY}, 1")
    p("s_branch K_layer")
    p.label("K_final")
    p.srd(SA, P_OUT, 0, MAT)
    ofl = "sc1" if 'osc1' in EXP else ("nt" if 'ont' in EXP else "")
    p(f"buffer_store_dwordx4 {v(XP,4)}, v{OFFA}, {sr(SA)}, 0 offen {ofl}")
    p(f"buffer_store_dwordx4 {v(XP+4,4)}, v{OFFB}, {sr(SA)}, 0 offen {ofl}")
    stamp(p, 40)
    stamp_flush(p)
    p.label("K_end")
    p("s_endpgm")
    txt, n = kernel_text(KNAME, p, 256, sgprs=102, agprs=256)
    print("nops inserted:", n, "instructions:", p.count(), file=sys.stderr)
    head = HEADER + f"; @launch grid=(256,1,1) block=(256,1,1) lds={LDS_BYTES}\n" + '.amdgcn_target "amdgcn-amd-amdhsa--gfx950"\n'
    return head + txt

if __name__ == "__main__":
    open(sys.argv[1], "w").write(build(stamps="st" in sys.argv[2:], force_slow="slow" in sys.argv[2:]))
```

```python
import sys
from common import *
import common
EXP = set(sys.argv[2:])

KNAME = "interleave_layers__ssm_conv_h3__dense_activation_silu__prompt_kernel"
HEADER = open("interleave_layers__ssm_conv_h3__dense_activation_silu__prompt.s.ref").read().split("; Override launch")[0]

S_W, S_RB, S_CL, S_MEM, S_A, S_B = 3, 4, 5, 6, 7, 8
SA, SB_, SC, SD, SE, SF_ = 40, 44, 48, 52, 56, 60
S_FL, S_W1, S_X, S_PW, S_PR = 64, 68, 72, 76, 80
S_N, S_FAST, S_LAY = 84, 86, 87
S_W7, S_W14 = 100, 101
ACT = "s[88:89]"
S_T = 90
V_XE, V_XO, V_A, V_A2, V_HW, V_HR, V_L16, V_PO, V_PO1 = 200, 201, 202, 203, 204, 205, 206, 207, 208
V_XD = 209
V_PWA, V_PWB = 216, 217
V_HW1, V_A3 = 218, 219
XP = 224
YV = 232
OFFA, OFFB = 248, 249
VN = 250
LA, LB = 0, 8192
HC_COPY = 4160; HC_CH = 8 * HC_COPY; L_U = 2 * HC_CH; U_CH = 512 + 4096; YS_CH = 4096 + 128
LY = 0
L_X = 0; SH_ = 448; L_RING = 57344; CHUNK = 28672
def slot_base(c):
    return CHUNK if c == 3 else L_RING + (c if c < 3 else c - 4) * CHUNK
LDS_BYTES = 163840
L_FASTW = 163836 - 60

def sr(r): return f"s[{r}:{r+3}]"

def stamp(p, sid, layered=False):
    if not common.STAMPS[0]: return
    p("s_memrealtime s[96:97]")
    p("s_memtime s[98:99]")
    p("s_waitcnt lgkmcnt(0)")
    if layered:
        p(f"s_mul_i32 s97, s{S_LAY}, 10")
        p(f"s_add_u32 m0, s97, {sid}")
        p("s_nop 3")
        p("v_writelane_b32 v252, s96, m0")
        p("v_writelane_b32 v253, s98, m0")
    else:
        p(f"v_writelane_b32 v252, s96, {sid}")
        p(f"v_writelane_b32 v253, s98, {sid}")
    p.lgq = []

def stamp_flush(p):
    if not common.STAMPS[0]: return
    lab = p.uid("sf")
    p(f"s_cmp_eq_u32 s{S_W}, 0")
    p(f"s_cbranch_scc0 {lab}")
    p("v_lshlrev_b32 v1, 2, v0")
    p("s_lshl_b32 s9, s2, 9")
    p("v_add_u32 v1, s9, v1")
    p("buffer_store_dword v252, v1, s[92:95], 0 offen")
    p("buffer_store_dword v253, v1, s[92:95], 0 offen offset:256")
    if 'dbgst' in EXP:
        wg = [x for x in EXP if x.startswith('wg')]
        wg = int(wg[0][2:]) if wg else 0
        l2 = p.uid("sf2")
        p(f"s_cmp_eq_u32 s2, {wg}")
        p(f"s_cbranch_scc0 {l2}")
        p.srd(SA, P_DBG, 0, 256)
        sel = [0, 2, 3, 5, 7, 9, 12, 13, 14, 17, 22, 23, 24, 40]
        p("s_nop 4")
        p("v_readlane_b32 s12, v252, 0")
        for i, sid in enumerate(sel):
            p(f"v_readlane_b32 s9, v252, {sid}")
            p("s_nop 3")
            p("s_sub_u32 s9, s9, s12")
            if i == 0: p("s_mov_b32 s9, s12")
            p(f"v_writelane_b32 v1, s9, {i}")
        p("v_and_b32 v2, 63, v0")
        p("v_lshlrev_b32 v2, 2, v2")
        p("v_add_u32 v2, 8, v2")
        p("s_mov_b32 exec_lo, 0x3fff"); p("s_mov_b32 exec_hi, 0")
        p(f"buffer_store_dword v1, v2, {sr(SA)}, 0 offen")
        p("s_mov_b64 exec, -1")
        p.label(l2)
    p.label(lab)

def flag_store(p, table, idx_sreg, layer_off=False, cluster=False):
    lab = p.uid("sig")
    p(f"s_cmp_eq_u32 s{S_W}, 0")
    p(f"s_cbranch_scc0 {lab}")
    p(f"s_lshl_b32 s{S_T}, s{idx_sreg}, 3")
    p(f"s_add_u32 s{S_T}, s{S_T}, {table}")
    if layer_off:
        p(f"s_lshl_b32 s{S_T+1}, s{S_LAY}, 12")
        p(f"s_add_u32 s{S_T}, s{S_T}, s{S_T+1}")
    p(f"v_mov_b32 v{VN}, s{S_N}")
    p(f"v_mov_b32 v{VN+1}, s{S_N+1}")
    p(f"v_mov_b32 v1, s{S_T}")
    p("s_mov_b64 exec, 1")
    if cluster:
        l2 = p.uid("sigslow"); l3 = p.uid("sigdone")
        p(f"s_cmp_eq_u32 s{S_FAST}, 1")
        p(f"s_cbranch_scc0 {l2}")
        p(f"buffer_store_dwordx2 {v(VN,2)}, v1, {sr(S_FL)}, 0 offen")
        p(f"s_branch {l3}")
        p.label(l2)
        p("buffer_wbl2 sc1")
        p("s_waitcnt vmcnt(0)")
        p(f"buffer_store_dwordx2 {v(VN,2)}, v1, {sr(S_FL)}, 0 offen sc1")
        p.label(l3)
    else:
        p(f"buffer_store_dwordx2 {v(VN,2)}, v1, {sr(S_FL)}, 0 offen sc1")
    p("s_mov_b64 exec, -1")
    p.label(lab)

def flag_store_rep(p, table, idx_sreg):
    lab = p.uid("sigr")
    p(f"s_cmp_eq_u32 s{S_W}, 0")
    p(f"s_cbranch_scc0 {lab}")
    p(f"s_lshl_b32 s{S_T}, s{idx_sreg}, 3")
    p(f"s_add_u32 s{S_T}, s{S_T}, {table}")
    p(f"v_mov_b32 v{VN}, s{S_N}")
    p(f"v_mov_b32 v{VN+1}, s{S_N+1}")
    p("v_lshlrev_b32 v1, 11, v0")
    p(f"v_add_u32 v1, s{S_T}, v1")
    p("s_mov_b64 exec, 0xff")
    p(f"buffer_store_dwordx2 {v(VN,2)}, v1, {sr(S_FL)}, 0 offen sc1")
    p("s_mov_b64 exec, -1")
    p.label(lab)

def signal(p, table, idx_sreg, layer_off=False, cluster=False, upto=None):
    if upto: p.wait_vm(upto)
    else: p.wait_vm()
    p("s_barrier")
    if table in (FL_S1R, FL_S2R): flag_store_rep(p, table, idx_sreg)
    else: flag_store(p, table, idx_sreg, layer_off, cluster)

def setexec(p, nl):
    m = (1 << nl) - 1
    lo, hi = m & 0xffffffff, m >> 32
    p(f"s_mov_b32 exec_lo, {hex(lo) if lo != 0xffffffff else -1}")
    p(f"s_mov_b32 exec_hi, {hex(hi) if hi != 0xffffffff else -1}")

def poll(p, offs, n_loads, masks, cluster=False, all_waves=False):
    lab = p.uid("poll"); done = p.uid("polld"); skip = p.uid("polls")
    if not all_waves:
        p(f"s_cmp_eq_u32 s{S_W}, 0")
        p(f"s_cbranch_scc0 {skip}")
    p(f"s_mov_b32 s{S_T}, 0")
    p.label(lab)
    for i in range(n_loads):
        setexec(p, masks[i])
        p(f"buffer_load_dwordx2 {v(2+2*i,2)}, v{offs[i]}, {sr(S_FL)}, 0 offen sc1")
    p("s_waitcnt vmcnt(0)")
    p("s_mov_b32 s9, 1")
    for i in range(n_loads):
        setexec(p, masks[i])
        p(f"v_cmp_eq_u64 vcc, {s(S_N,2)}, {v(2+2*i,2)}")
        p("s_nop 4")
        p("s_cmp_eq_u64 vcc, exec")
        p("s_cselect_b32 s9, s9, 0")
    p("s_mov_b64 exec, -1")
    p("s_cmp_eq_u32 s9, 1")
    p(f"s_cbranch_scc1 {done}")
    p(f"s_add_u32 s{S_T}, s{S_T}, 1")
    p(f"s_cmp_lt_u32 s{S_T}, 0x8000")
    p(f"s_cbranch_scc0 {done}")
    if not cluster or 'nosleep' not in EXP: p("s_sleep 1")
    p(f"s_branch {lab}")
    p.label(done)
    if cluster:
        l2 = p.uid("acq")
        p(f"s_cmp_eq_u32 s{S_FAST}, 1")
        p(f"s_cbranch_scc1 {l2}")
        p("buffer_inv sc1")
        p("s_waitcnt vmcnt(0)")
        p.label(l2)
    p.label(skip)
    p("s_barrier")
    p.vmq = []

def get_nonce(p):
    lab = p.uid("non"); done = p.uid("nond")
    p(f"s_mov_b32 s{S_T}, 0")
    p.label(lab)
    p("v_mov_b32 v1, 0")
    p(f"buffer_load_dwordx2 v[2:3], v1, {sr(SF_)}, 0 offen sc1")
    p("s_waitcnt vmcnt(0)")
    p(f"v_readfirstlane_b32 s{S_N}, v2")
    p(f"v_readfirstlane_b32 s{S_N+1}, v3")
    p("s_nop 3")
    p(f"s_or_b32 s9, s{S_N}, s{S_N+1}")
    p("s_cmp_lg_u32 s9, 0")
    p(f"s_cbranch_scc1 {done}")
    p(f"s_add_u32 s{S_T}, s{S_T}, 1")
    p(f"s_cmp_lt_u32 s{S_T}, 0x8000")
    p(f"s_cbranch_scc0 {done}")
    p("s_sleep 1")
    p(f"s_branch {lab}")
    p.label(done)
    p.vmq = []

def tlb_warm(p):
    if 'notlb' in EXP: return
    ent = [(P_K, None), (P_V, None), (P_SK, 0), (P_W1, 0), (P_W2, 0), (P_H, "h"), (P_Q, "q"), (P_DV, 0), (P_DBG, 0), (P_OUT, "q"),
           (P_WS, WS_KVT), (P_WS, WS_YB), (P_WS, WS_W1P), (P_WS, WS_W2P), (P_WS, WS_FLAGS), (P_WS, "pb0"), (P_WS, "pb1")]
    lab = p.uid("tw")
    p(f"s_cmp_eq_u32 s{S_W}, 0")
    p(f"s_cbranch_scc0 {lab}")
    p(f"v_mov_b32 v2, s{P_K}"); p(f"v_mov_b32 v3, s{P_K+1}")
    p(f"s_mul_i32 s9, s{S_RB}, {8*ROWB}")
    p("s_min_u32 s10, s2, 223"); p("s_lshl_b32 s10, s10, 13")
    p(f"s_mul_i32 s11, s{S_CL}, {8*64*ROWB}"); p(f"s_add_u32 s11, s11, {hex(WS_PB)}")
    for i, (ptr, off) in enumerate(ent):
        if off in (None, 0):
            lo, hi = ptr, ptr + 1
        else:
            if off == "q": src = "s9"
            elif off == "h": src = "s10"
            elif off == "pb0": src = "s11"
            elif off == "pb1":
                p(f"s_add_u32 s11, s11, {8*64*ROWB - 128}"); src = "s11"
            else: src = hex(off)
            p(f"s_add_u32 s12, s{ptr}, {src}"); p(f"s_addc_u32 s13, s{ptr+1}, 0")
            lo, hi = 12, 13
        p(f"v_writelane_b32 v2, s{lo}, {i}")
        p(f"v_writelane_b32 v3, s{hi}, {i}")
    setexec(p, len(ent))
    p("global_load_dword v254, v[2:3], off")
    p("s_mov_b64 exec, -1")
    p.label(lab)

def prep(p):
    S_RBK, S_CG = 12, 13
    SK_, SV_, SSK, SKVT, SSRC, SDST = SA, SB_, SC, SD, SE, S_W1
    T0 = 72
    p.div_const(S_RBK, 2, 7)
    p(f"s_mul_i32 s{S_CG}, s{S_RBK}, 7")
    p(f"s_sub_u32 s{S_CG}, s2, s{S_CG}")
    p.srd(SK_, P_K, 0, MAT); p.srd(SV_, P_V, 0, MAT); p.srd(SSK, P_SK, 0, D * 8); p.srd(SKVT, P_WS, WS_KVT, MAT)
    p("v_and_b32 v1, 15, v0")
    p("v_lshrrev_b32 v2, 4, v0")
    p(f"s_lshl_b32 s9, s{S_RBK}, 6")
    p("s_sub_u32 s9, s9, 3")
    p("v_lshl_add_u32 v3, v2, 2, s9")
    p(f"v_mul_i32_i24 v4, {ROWB}, v3")
    p(f"s_lshl_b32 s10, s{S_CG}, 7")
    p("v_lshl_add_u32 v5, v1, 3, s10")
    p("v_add_u32 v4, v4, v5")
    for i in range(1, 7):
        p(f"v_add_u32 v{5+i}, {ROWB*i}, v4")
    off = lambda i: "v4" if i == 0 else f"v{5+i}"
    p("v_lshlrev_b32 v12, 2, v5")
    for i in range(7):
        p.vm(f"buffer_load_dwordx2 {v(16+2*i,2)}, {off(i)}, {sr(SK_)}, 0 offen", "k")
    for i in range(4):
        p.vm(f"buffer_load_dwordx2 {v(30+2*i,2)}, {off(i+3)}, {sr(SV_)}, 0 offen", "k")
    p.vm(f"buffer_load_dwordx4 v[38:41], v12, {sr(SSK)}, 0 offen", "k")
    p.vm(f"buffer_load_dwordx4 v[42:45], v12, {sr(SSK)}, 0 offen offset:16", "k")
    if 'pp' in EXP: stamp(p, 34)
    S_J, S_R, S_ISW2, S_STR = T0, T0 + 1, T0 + 2, T0 + 3
    p("s_cmp_ge_u32 s2, 112")
    p(f"s_cselect_b32 s{S_ISW2}, 1, 0")
    p("s_cselect_b32 s9, 112, 0")
    p("s_sub_u32 s9, s2, s9")
    p.div_const(S_J, 9, 14)
    p(f"s_mul_i32 s10, s{S_J}, 14")
    p(f"s_sub_u32 s{S_R}, s9, s10")
    p(f"s_mul_i32 s10, s{S_R}, {32*3584}")
    p(f"s_mul_i32 s11, s{S_J}, 448")
    p("s_add_u32 s10, s10, s11")
    p(f"s_lshr_b32 s11, s{S_R}, 1")
    p(f"s_mul_i32 s11, s11, {32*896}")
    p(f"s_mul_i32 s14, s{S_J}, {224*896}")
    p("s_add_u32 s11, s11, s14")
    p(f"s_and_b32 s14, s{S_R}, 1")
    p("s_mul_i32 s14, s14, 448")
    p("s_add_u32 s11, s11, s14")
    p(f"s_cmp_eq_u32 s{S_ISW2}, 1")
    p("s_cselect_b32 s10, s11, s10")
    p.csel(S_STR, 896, 3584)
    p(f"s_cselect_b32 s{SSRC}, s{P_W2}, s{P_W1}")
    p(f"s_cselect_b32 s{SSRC+1}, s{P_W2+1}, s{P_W1+1}")
    p(f"s_mov_b32 s{SSRC+2}, {hex(D*F*2)}")
    p(f"s_mov_b32 s{SSRC+3}, 0x20000")
    for m in range(4):
        p(f"v_add_u32 v13, {256*m}, v0")
        p("v_mul_u32_u24 v14, 2341, v13")
        p("v_lshrrev_b32 v14, 16, v14")
        p("v_mul_u32_u24 v15, 28, v14")
        p("v_sub_u32 v15, v13, v15")
        p(f"v_mul_lo_u32 v14, v14, s{S_STR}")
        p("v_lshl_add_u32 v14, v15, 4, v14")
        p("v_add_u32 v14, s10, v14")
        if m == 3:
            p("v_cmp_gt_u32 vcc, 896, v13")
            p("v_cndmask_b32 v14, -1, v14, vcc")
        p.vm(f"buffer_load_dwordx4 {v(48+4*m,4)}, v14, {sr(SSRC)}, 0 offen", "w")
    if 'pp' in EXP: stamp(p, 35)
    p("v_and_b32 v46, 63, v0")
    p("v_lshrrev_b32 v47, 4, v46")
    p("v_bfe_u32 v14, v46, 2, 2")
    p("v_and_b32 v15, 3, v46")
    p("v_lshl_add_u32 v47, v47, 3, v14")
    p("v_mul_u32_u24 v47, 448, v47")
    p("v_lshlrev_b32 v46, 4, v46")
    p(f"s_cmp_eq_u32 s{S_ISW2}, 1")
    p.csel(9, hex(WS_W2P), hex(WS_W1P))
    p(f"s_add_u32 s{SDST}, s{P_WS}, s9")
    p(f"s_addc_u32 s{SDST+1}, s{P_WS+1}, 0")
    p(f"s_mov_b32 s{SDST+2}, {hex(W1P_BYTES)}")
    p(f"s_mov_b32 s{SDST+3}, 0x20000")
    t = [76, 77, 78, 79]
    for m in range(4):
        ST, DST = 14, 80 + m
        p(f"s_add_u32 s{ST}, s{S_W}, {4*m}")
        p(f"s_cmp_ge_u32 s{ST}, 7")
        p(f"s_cselect_b32 s{t[0]}, 1, 0")
        p(f"s_mul_i32 s{t[1]}, s{t[0]}, 7")
        p(f"s_sub_u32 s{t[1]}, s{ST}, s{t[1]}")
        p(f"s_mul_i32 s{DST}, s{S_J}, 7")
        p(f"s_add_u32 s{DST}, s{DST}, s{t[1]}")
        p(f"s_lshl_b32 s{DST}, s{DST}, 1")
        p(f"s_add_u32 s{DST}, s{DST}, s{t[0]}")
        p(f"s_mul_i32 s{DST}, s{DST}, 14")
        p(f"s_add_u32 s{DST}, s{DST}, s{S_R}")
        p(f"s_and_b32 s9, s{ST}, 1")
        p(f"s_lshr_b32 s10, s{ST}, 1")
        p(f"s_and_b32 s11, s{S_R}, 1")
        p("s_mul_i32 s11, s11, 7")
        p("s_add_u32 s11, s11, s10")
        p(f"s_lshr_b32 s15, s{S_R}, 1")
        p("s_mul_i32 s15, s15, 7")
        p(f"s_mul_i32 s{t[0]}, s{S_J}, 196")
        p(f"s_add_u32 s15, s15, s{t[0]}")
        p(f"s_and_b32 s{t[0]}, s11, 3")
        p(f"s_mul_i32 s{t[0]}, s{t[0]}, 49")
        p(f"s_lshr_b32 s{t[1]}, s11, 2")
        p(f"s_lshl_b32 s{t[1]}, s{t[1]}, 1")
        p(f"s_add_u32 s{t[1]}, s{t[1]}, s9")
        p(f"s_add_u32 s{t[0]}, s{t[0]}, s{t[1]}")
        p(f"s_lshl_b32 s10, s10, 6")
        p(f"s_lshl_b32 s{t[1]}, s9, 3")
        p(f"s_add_u32 s{t[1]}, s{t[1]}, s10")
        p(f"s_sub_u32 s{t[2]}, s11, 12")
        p(f"s_lshl_b32 s{t[2]}, s{t[2]}, 1")
        p(f"s_add_u32 s{t[2]}, s{t[2]}, s9")
        p(f"s_mul_i32 s{t[2]}, s{t[2]}, 49")
        p(f"s_add_u32 s{t[2]}, s{t[2]}, 6")
        p(f"s_lshl_b32 s{t[3]}, s9, 5")
        p(f"s_add_u32 s{t[3]}, s{t[3]}, s10")
        p("s_cmp_lt_u32 s11, 12")
        p(f"s_cselect_b32 s{t[0]}, s{t[0]}, s{t[2]}")
        p(f"s_cselect_b32 s{t[1]}, s{t[1]}, s{t[3]}")
        p(f"s_cselect_b32 s{t[2]}, 4, 3")
        p(f"s_add_u32 s{t[0]}, s{t[0]}, s15")
        p(f"s_lshl_b32 s{t[3]}, s{ST}, 5")
        p(f"s_cmp_eq_u32 s{S_ISW2}, 1")
        p(f"s_cselect_b32 s{DST}, s{t[0]}, s{DST}")
        p(f"s_cselect_b32 s{t[1]}, s{t[1]}, s{t[3]}")
        p(f"s_cselect_b32 s{t[2]}, s{t[2]}, 3")
        p(f"s_lshl_b32 s{DST}, s{DST}, 10")
        p(f"v_lshlrev_b32 v{144+m}, s{t[2]}, v15")
        p(f"v_add3_u32 v{144+m}, v{144+m}, v47, s{t[1]}")
    mlp_setup(p)
    if 'pp' in EXP: stamp(p, 30)
    p.wait_vm("w")
    if 'pp' in EXP: stamp(p, 31)
    early_loads(p)
    p("v_lshlrev_b32 v14, 4, v0")
    for m in range(3):
        p.lg(f"ds_write_b128 v14, {v(48+4*m,4)} offset:{LB+4096*m}")
    lab = p.uid("skip3")
    p(f"s_cmp_ge_u32 s{S_W}, 2")
    p(f"s_cbranch_scc1 {lab}")
    p(f"ds_write_b128 v14, {v(60,4)} offset:{LB+4096*3}")
    p.label(lab)
    p.wait_lg()
    p("s_barrier")
    for m in range(4):
        p.lg(f"ds_read_b64_tr_b16 {v(48+4*m,2)}, v{144+m} offset:{LB}", f"t{m}")
        p.lg(f"ds_read_b64_tr_b16 {v(48+4*m+2,2)}, v{144+m} offset:{LB+4*448}", f"t{m}")
    for m in range(3):
        p.wait_lg(f"t{m}")
        p.vm(f"buffer_store_dwordx4 {v(48+4*m,4)}, v46, {sr(SDST)}, s{80+m} offen sc1", "wst")
    lab = p.uid("pk")
    p.wait_lg()
    p(f"s_cmp_ge_u32 s{S_W}, 2")
    p(f"s_cbranch_scc1 {lab}")
    p(f"buffer_store_dwordx4 {v(60,4)}, v46, {sr(SDST)}, s83 offen sc1")
    p.label(lab)
    p.srd(SF_, P_DBG, 0, 256)
    p("v_mov_b32 v47, 0")
    p.vm(f"buffer_load_dwordx2 v[150:151], v47, {sr(SF_)}, 0 offen sc1", "nonce")
    if 'pp' in EXP: stamp(p, 32)
    KF, SF, VF, AC, OP = 64, 92, 108, 124, 140
    p("v_mov_b32 v15, 0xffff0000")
    for i in range(7):
        for d in range(2):
            p(f"v_lshlrev_b32 v{KF+4*i+2*d}, 16, v{16+2*i+d}")
            p(f"v_and_b32 v{KF+4*i+2*d+1}, v15, v{16+2*i+d}")
    for e in range(4):
        for j in range(4):
            src = 38 + 2*e + (j >> 1)
            if j & 1: p(f"v_and_b32 v{SF+4*j+e}, v15, v{src}")
            else: p(f"v_lshlrev_b32 v{SF+4*j+e}, 16, v{src}")
    for i in range(4):
        for d in range(2):
            p(f"v_lshlrev_b32 v{VF+4*i+2*d}, 16, v{30+2*i+d}")
            p(f"v_and_b32 v{VF+4*i+2*d+1}, v15, v{30+2*i+d}")
    for j in range(4):
        for r in range(4):
            for e in (0, 2):
                kf = v(KF+4*(r+3-j)+e, 2); sf = v(SF+4*j+e, 2); ac = v(AC+4*r+e, 2)
                if j == 0: p(f"v_pk_mul_f32 {ac}, {kf}, {sf}")
                else: p(f"v_pk_fma_f32 {ac}, {kf}, {sf}, {ac}")
    for r in range(4):
        for e in (0, 2):
            p(f"v_pk_mul_f32 {v(AC+4*r+e,2)}, {v(AC+4*r+e,2)}, {v(VF+4*r+e,2)}")
    for e in range(4):
        p(f"v_cvt_pk_bf16_f32 v{OP+2*e}, v{AC+e}, v{AC+4+e}")
        p(f"v_cvt_pk_bf16_f32 v{OP+2*e+1}, v{AC+8+e}, v{AC+12+e}")
    if 'pp' in EXP: stamp(p, 33)
    p("v_xor_b32 v13, v1, v2")
    p("v_lshlrev_b32 v13, 3, v13")
    p("v_lshl_add_u32 v13, v1, 9, v13")
    for e in range(4):
        p.lg(f"ds_write_b64 v13, {v(OP+2*e,2)} offset:{LA+128*e}")
    p.wait_lg()
    p("s_barrier")
    p("v_lshrrev_b32 v1, 3, v0")
    p("v_and_b32 v2, 7, v0")
    p("v_lshlrev_b32 v3, 1, v2")
    p(f"s_lshl_b32 s9, s{S_CG}, 6")
    p(f"s_lshl_b32 s10, s{S_RBK}, 7")
    for pi in range(2):
        p(f"v_add_u32 v4, {32*pi}, v1")
        p("v_lshrrev_b32 v5, 2, v4")
        p("v_xor_b32 v6, v3, v5")
        p("v_xor_b32 v7, 1, v6")
        p("v_lshlrev_b32 v8, 7, v4")
        p("v_lshl_add_u32 v6, v6, 3, v8")
        p("v_lshl_add_u32 v7, v7, 3, v8")
        p.lg(f"ds_read_b64 {v(16+4*pi,2)}, v6 offset:{LA}", f"a{pi}")
        p.lg(f"ds_read_b64 {v(18+4*pi,2)}, v7 offset:{LA}", f"a{pi}")
        p("v_add_u32 v8, s9, v4")
        p("v_lshlrev_b32 v8, 12, v8")
        p("v_lshl_add_u32 v8, v2, 4, v8")
        p(f"v_add_u32 v{24+pi}, s10, v8")
    for pi in range(2):
        p.wait_lg(f"a{pi}")
        p.vm(f"buffer_store_dwordx4 {v(16+4*pi,4)}, v{24+pi}, {sr(SKVT)}, 0 offen sc1", "kvst")

HW = 160
def code_prefetch(p):
    if 'nocode' in EXP: return
    p("s_getpc_b64 s[90:91]")
    lab = p.uid("K_pc")
    p.label(lab)
    p("v_lshlrev_b32 v180, 7, v0")
    p(f"v_cmp_gt_u32 vcc, (K_end - {lab}), v180")
    p("s_and_saveexec_b64 s[10:11], vcc")
    p.vm("global_load_dword v255, v180, s[90:91]", "code")
    p("s_mov_b64 exec, s[10:11]")

def q_loads(p):
    p.srd(SF_, P_Q, 0, MAT)
    p.vm(f"buffer_load_dwordx4 {v(XP,4)}, v{OFFA}, {sr(SF_)}, 0 offen", "q")
    p.vm(f"buffer_load_dwordx4 {v(XP+4,4)}, v{OFFB}, {sr(SF_)}, 0 offen", "q")

def early_loads(p):
    SH = SF_
    p("s_lshl_b32 s9, s2, 13")
    p(f"s_add_u32 s{SH}, s{P_H}, s9"); p(f"s_addc_u32 s{SH+1}, s{P_H+1}, 0")
    p(f"s_mov_b32 s{SH+2}, 8192"); p(f"s_mov_b32 s{SH+3}, 0x20000")
    p("v_sub_u32 v176, 255, v0")
    p("v_lshlrev_b32 v176, 4, v176")
    p("v_subrev_u32 v177, 16, v176")
    for ch in range(2):
        p(f"v_add_u32 v178, {4096*ch}, v177")
        p(f"v_add_u32 v179, {4096*ch}, v176")
        p.vm(f"buffer_load_dwordx4 {v(HW+8*ch,4)}, v178, {sr(SH)}, 0 offen", "h")
        p.vm(f"buffer_load_dwordx4 {v(HW+4+8*ch,4)}, v179, {sr(SH)}, 0 offen", "h")
    if 'qearly' in EXP: q_loads(p)

def hbuild(p):
    p("v_mov_b32 v5, 0xffff")
    p("v_cmp_ne_u32 vcc, 255, v0")
    p("v_lshlrev_b32 v6, 4, v0")
    E1, E2, O1, O2 = 32, 40, 46, 54
    for ch in range(2):
        W = HW + 8 * ch
        for d in range(4):
            p(f"v_cndmask_b32 v{W+d}, 0, v{W+d}, vcc")
        def o(dst, sidx):
            if sidx % 2 == 0:
                pz = (14 - sidx) // 2
                p(f"v_alignbit_b32 v{dst}, v{W+pz}, v{W+pz}, 16")
            else:
                p(f"v_bfi_b32 v{dst}, v5, v{W+(15-sidx)//2}, v{W+(13-sidx)//2}")
        for n in range(7): o(E1 + n, 2 * n)
        for n in range(6): o(E2 + n, 2 * n + 2)
        for n in range(7): o(O1 + n, 2 * n + 1)
        for n in range(6): o(O2 + n, 2 * n + 3)
        src = {0: E1, 4: E1 + 2, 2: E2, 6: E2 + 2, 1: O1, 5: O1 + 2, 3: O2, 7: O2 + 2}
        for c in range(8):
            p.lg(f"ds_write_b128 v6, {v(src[c],4)} offset:{ch*HC_CH + c*HC_COPY}")
        p("s_nop 1")
    for r in range(4): p(f"v_mov_b32 v{60+r}, 0")
    p("v_and_b32 v7, 15, v0")
    p(f"v_mul_u32_u24 v7, {HC_COPY}, v7")
    p("v_add_u32 v7, 4096, v7")
    p("v_and_b32 v8, 31, v0")
    p("v_lshlrev_b32 v8, 4, v8")
    p("v_bfe_u32 v9, v0, 5, 1")
    p(f"v_mul_u32_u24 v9, {U_CH}, v9")
    p(f"s_mov_b32 s9, {L_U}")
    p("v_add3_u32 v8, v8, v9, s9")
    p.lg(f"ds_write_b128 v7, {v(60,4)}")
    p.lg(f"ds_write_b128 v8, {v(60,4)}")

W20, W2A, W2B = 12, 49, 49
def w2_items(SW2):
    G = []
    for f in range(49):
        it = []
        base = f - f % 4
        if f % 4 == 0 or f in (W20, W2A, W2B): it.append((f"s_mov_b32 s15, {1024*base}", "", None))
        it.append((f"buffer_load_dwordx4 {a(4*f,4)}, v{V_L16}, {sr(SW2)}, s15 offen offset:{1024*(f%4)} {'sc1 nt' if 'wnt2' in EXP else 'sc1'}", "vm", "w2"))
        G.append(it)
    return G

def load_w2(p, SW2):
    for f in range(49):
        if f % 4 == 0: p(f"s_mov_b32 s9, {1024*f}")
        p.vm(f"buffer_load_dwordx4 {a(4*f,4)}, v{V_L16}, {sr(SW2)}, s9 offen offset:{1024*(f%4)} sc1", "w2")

def conv_main(p):
    ACC, FA, FB = 72, 96, 16
    fb = lambda buf, m: (16 + 28 * buf + 4 * m) if m < 7 else (160 + 4 * buf)
    p("v_and_b32 v1, 63, v0")
    p("v_and_b32 v2, 15, v1")
    p("v_lshrrev_b32 v3, 4, v1")
    p("v_and_b32 v4, 7, v2")
    p("v_sub_u32 v4, 7, v4")
    p(f"v_mul_u32_u24 v4, {HC_COPY}, v4")
    p("v_lshrrev_b32 v5, 3, v2")
    p("v_sub_u32 v5, v3, v5")
    p("v_add_u32 v5, 1, v5")
    p("v_lshl_add_u32 v4, v5, 4, v4")
    p(f"s_mul_i32 s9, s{S_B}, {HC_CH}")
    p("v_add_u32 v12, s9, v4")
    p(f"s_mul_i32 s9, s{S_B}, {U_CH}")
    p(f"s_add_u32 s9, s9, {L_U + 512 - 32 - 64*7}")
    p("v_lshlrev_b32 v5, 5, v2")
    p("v_lshl_add_u32 v5, v3, 4, v5")
    p("v_add_u32 v13, s9, v5")
    set1 = p.uid("cset1"); join = p.uid("cjoin")
    p(f"s_cmp_eq_u32 s{S_A}, 1")
    p(f"s_cbranch_scc1 {set1}")
    for st, tiles in ((0, (0, 3, 4, 7)), (1, (1, 2, 5, 6))):
        if st == 1: p.label(set1)
        mx = max(tiles)
        def reads(rho, buf):
            L = []
            for m in range(mx + 1):
                L.append((f"ds_read_b128 {v(FA+32*buf+4*m,4)}, v12 offset:{512*(7-m)+64*(7-rho)}", "lg", f"r{rho}_{m}"))
                L.append((f"ds_read_b128 {v(fb(buf,m),4)}, v13 offset:{512*m+64*(7-rho)}", "lg", f"r{rho}_{m}"))
            return L
        saved_vm = list(p.vmq)
        w2 = w2_items(SE)[W20:W2A] if 'now2' not in EXP else []
        for it in reads(0, 0): emit(p, it)
        first = set()
        for rho in range(8):
            buf = rho & 1
            nxt = reads(rho + 1, buf ^ 1) if rho < 7 else []
            mf = sorted([(max(mu, nt - mu), ti, nt, mu) for ti, nt in enumerate(tiles) for mu in range(nt + 1)])
            M = []; seen = -1
            for (mm, ti, nt, mu) in mf:
                c = v(ACC+4*ti,4) if ti in first else "0"
                first.add(ti)
                t = f"v_mfma_f32_16x16x32_bf16 {v(ACC+4*ti,4)}, {v(FA+32*buf+4*mu,4)}, {v(fb(buf,nt-mu),4)}, {c}"
                w = []
                if mm > seen: w.append((None, "wlg", f"r{rho}_{mm}")); seen = mm
                M.append((t, w))
            N = {}
            for i, it in enumerate(nxt): N.setdefault(i, []).append(it)
            slots = [3, 6, 9, 12, 15, 17]
            for q_ in range(6 if rho < 7 else 0):
                if w2: N.setdefault(slots[q_], []).extend(w2.pop(0))
            schedule(p, M, [], N)
        assert not w2
        p.vmq = saved_vm + ["w2"]
        p("s_barrier")
        p(f"s_mul_i32 s9, s{S_B}, {U_CH}")
        p(f"s_add_u32 s9, s9, {L_U + 512}")
        p("v_lshlrev_b32 v5, 5, v2")
        p("v_lshl_add_u32 v5, v3, 3, v5")
        p("v_add_u32 v6, s9, v5")
        p(f"s_mul_i32 s9, s{S_B}, {YS_CH}")
        p("v_add_u32 v7, s9, v5")
        for ti, nt in enumerate(tiles):
            p.lg(f"ds_read_b64 {v(FA+2*ti,2)}, v6 offset:{512*nt}", f"u{ti}")
        p("v_mov_b32 v8, 0xffff0000")
        for ti, nt in enumerate(tiles):
            p.wait_lg(f"u{ti}")
            u = FA + 2 * ti; t = 16 + 4 * ti
            p(f"v_lshlrev_b32 v{t}, 16, v{u}")
            p(f"v_and_b32 v{t+1}, v8, v{u}")
            p(f"v_lshlrev_b32 v{t+2}, 16, v{u+1}")
            p(f"v_and_b32 v{t+3}, v8, v{u+1}")
            for r in range(4):
                p(f"v_fma_f32 v{t+r}, v{t+r}, s14, v{ACC+4*ti+r}")
            p(f"v_cvt_pk_bf16_f32 v{t}, v{t}, v{t+1}")
            p(f"v_cvt_pk_bf16_f32 v{t+1}, v{t+2}, v{t+3}")
            p.lg(f"ds_write_b64 v7, {v(t,2)} offset:{512*nt}")
        p.wait_lg()
        if st == 0: p(f"s_branch {join}")
    p.label(join)
    p("s_barrier")

def conv_out(p, SY):
    p("v_and_b32 v1, 3, v0")
    p("v_lshrrev_b32 v2, 2, v0")
    p("v_lshrrev_b32 v3, 1, v1")
    p("v_and_b32 v4, 1, v1")
    p(f"v_mul_u32_u24 v3, {YS_CH}, v3")
    p("v_lshl_add_u32 v3, v4, 4, v3")
    p("v_lshl_add_u32 v3, v2, 5, v3")
    p.lg("ds_read_b128 v[16:19], v3", "y0")
    p.lg(f"ds_read_b128 v[20:23], v3 offset:{64*32}", "y1")
    p(f"v_mul_u32_u24 v5, {D*32}, v2")
    p("v_lshl_add_u32 v5, v1, 4, v5")
    p("s_lshl_b32 s9, s2, 6")
    p("v_add_u32 v5, s9, v5")
    p(f"v_add_u32 v6, {64*D*32}, v5")
    p.wait_lg("y0")
    p.vm(f"buffer_store_dwordx4 v[16:19], v5, {sr(SY)}, 0 offen sc1", "yst")
    p.wait_lg("y1")
    p.vm(f"buffer_store_dwordx4 v[20:23], v6, {sr(SY)}, 0 offen sc1", "yst")

X, T, PK, TMP = 16, 32, 64, 72
YT = 96
def row_setup(p):
    p("v_and_b32 v181, 31, v0")
    p("v_lshrrev_b32 v182, 5, v0")
    p(f"v_cmp_gt_u32 {ACT}, 28, v181")
    p(f"v_mul_u32_u24 v183, {ROWB}, v182")
    p("v_lshl_add_u32 v183, v181, 4, v183")
    p(f"s_mul_i32 s9, s{S_RB}, {8*ROWB}")
    p("v_add_u32 v183, s9, v183")
    p(f"v_cndmask_b32 v{OFFA}, -1, v183, {ACT}")
    p("v_add_u32 v183, 448, v183")
    p(f"v_cndmask_b32 v{OFFB}, -1, v183, {ACT}")

def unpack(p, dst, src, n):
    for i in range(n):
        p(f"v_lshlrev_b32 v{dst+2*i}, 16, v{src+i}")
        p(f"v_and_b32 v{dst+2*i+1}, v7, v{src+i}")
def pack(p, dst, src, n):
    for i in range(n):
        p(f"v_cvt_pk_bf16_f32 v{dst+i}, v{src+2*i}, v{src+2*i+1}")
def allreduce32(p, r, t):
    for m in ("quad_perm:[1,0,3,2]", "quad_perm:[2,3,0,1]", "row_half_mirror", "row_mirror"):
        p(f"v_add_f32_dpp v{r}, v{r}, v{r} {m} row_mask:0xf bank_mask:0xf")
    p(f"v_mov_b32 v{t}, v{r}")
    p(f"v_permlane16_swap_b32 v{r}, v{t}")
    p(f"v_add_f32 v{r}, v{r}, v{t}")
def sum16(p, dst, src):
    p(f"v_pk_add_f32 {v(TMP,2)}, {v(src,2)}, {v(src+2,2)}")
    p(f"v_pk_add_f32 {v(TMP+2,2)}, {v(src+4,2)}, {v(src+6,2)}")
    p(f"v_pk_add_f32 {v(TMP+4,2)}, {v(src+8,2)}, {v(src+10,2)}")
    p(f"v_pk_add_f32 {v(TMP+6,2)}, {v(src+12,2)}, {v(src+14,2)}")
    p(f"v_pk_add_f32 {v(TMP,2)}, {v(TMP,2)}, {v(TMP+2,2)}")
    p(f"v_pk_add_f32 {v(TMP+4,2)}, {v(TMP+4,2)}, {v(TMP+6,2)}")
    p(f"v_pk_add_f32 {v(TMP,2)}, {v(TMP,2)}, {v(TMP+4,2)}")
    p(f"v_add_f32 v{dst}, v{TMP}, v{TMP+1}")
    p(f"v_cndmask_b32 v{dst}, 0, v{dst}, {ACT}")
def layernorm(p, src, dst, scale=None):
    M, V_ = TMP + 8, TMP + 10
    sum16(p, M, src)
    allreduce32(p, M, TMP + 9)
    p(f"v_mul_f32 v{M}, {fbits(-1.0/D)}, v{M}")
    p(f"v_mov_b32 v{M+1}, v{M}")
    for i in range(0, 16, 2):
        p(f"v_pk_add_f32 {v(dst+i,2)}, {v(src+i,2)}, {v(M,2)}")
    p(f"v_pk_mul_f32 {v(TMP,2)}, {v(dst,2)}, {v(dst,2)}")
    p(f"v_pk_mul_f32 {v(TMP+2,2)}, {v(dst+2,2)}, {v(dst+2,2)}")
    for i in range(4, 16, 4):
        p(f"v_pk_fma_f32 {v(TMP,2)}, {v(dst+i,2)}, {v(dst+i,2)}, {v(TMP,2)}")
        p(f"v_pk_fma_f32 {v(TMP+2,2)}, {v(dst+i+2,2)}, {v(dst+i+2,2)}, {v(TMP+2,2)}")
    p(f"v_pk_add_f32 {v(TMP,2)}, {v(TMP,2)}, {v(TMP+2,2)}")
    p(f"v_add_f32 v{V_}, v{TMP}, v{TMP+1}")
    p(f"v_cndmask_b32 v{V_}, 0, v{V_}, {ACT}")
    allreduce32(p, V_, TMP + 11)
    p(f"v_mov_b32 v{V_+1}, {fbits(1e-5)}")
    p(f"v_fmac_f32 v{V_+1}, {fbits(1.0/D)}, v{V_}")
    p(f"v_rsq_f32 v{V_}, v{V_+1}")
    if scale is not None: p(f"v_mul_f32 v{V_}, {fbits(scale)}, v{V_}")
    else: p("s_nop 0")
    p(f"v_mov_b32 v{V_+1}, v{V_}")
    for i in range(0, 16, 2):
        p(f"v_pk_mul_f32 {v(dst+i,2)}, {v(dst+i,2)}, {v(V_,2)}")

def y_load(p, SY):
    p(f"s_lshr_b32 s9, s{S_RB}, 1")
    p(f"s_mul_i32 s9, s9, {D*32}")
    p(f"s_and_b32 s10, s{S_RB}, 1")
    p("s_lshl_b32 s10, s10, 4")
    p("s_add_u32 s9, s9, s10")
    p("v_lshlrev_b32 v3, 5, v0")
    p("v_add_u32 v3, s9, v3")
    p(f"v_add_u32 v4, {256*32}, v3")
    p("v_cmp_gt_u32 vcc, 192, v0")
    p("v_cndmask_b32 v4, -1, v4, vcc")
    p.vm(f"buffer_load_dwordx4 {v(YT,4)}, v3, {sr(SY)}, 0 offen sc1", "y")
    p.vm(f"buffer_load_dwordx4 {v(YT+4,4)}, v4, {sr(SY)}, 0 offen sc1", "y")

def y_transpose(p):
    p("v_lshlrev_b32 v3, 2, v0")
    p.wait_vm("y")
    for wq in range(4):
        p.lg(f"ds_write_b32 v3, v{YT+wq} offset:{LY+2048*wq}")
        p.lg(f"ds_write_b32 v3, v{YT+4+wq} offset:{LY+2048*wq+1024}")
    p.wait_lg()
    p("s_barrier")
    p("v_and_b32 v1, 31, v0")
    p("v_lshrrev_b32 v4, 6, v0")
    p("v_lshlrev_b32 v4, 11, v4")
    p("v_lshl_add_u32 v4, v1, 5, v4")
    for k in range(2):
        p.lg(f"ds_read_b128 {v(YT+8*k,4)}, v4 offset:{LY+896*k}")
        p.lg(f"ds_read_b128 {v(YT+8*k+4,4)}, v4 offset:{LY+896*k+16}")
    p("v_bfe_u32 v5, v0, 5, 1")
    p("v_mov_b32 v6, 0x01000c0c")
    p("v_mov_b32 v3, 0x03020c0c")
    p("v_cmp_eq_u32 vcc, 1, v5")
    p("v_cndmask_b32 v6, v6, v3, vcc")
    p.wait_lg()
    for i in range(16):
        p(f"v_perm_b32 v{YV+i}, v{YT+i}, v{YT+i}, v6")

def poll_s2(p):
    lab = p.uid("s2"); done = p.uid("s2d"); skip = p.uid("s2s")
    p("v_and_b32 v1, 63, v0")
    p("s_and_b32 s9, s2, 7"); p("s_lshl_b32 s9, s9, 11"); p(f"s_add_u32 s9, s9, {FL_S2R}")
    for i in range(4):
        p(f"v_lshl_add_u32 v{12+i}, v1, 3, s9")
        if i: p(f"v_add_u32 v{12+i}, {512*i}, v{12+i}")
    p("v_and_b32 v48, 7, v0")
    p(f"s_lshl_b32 s9, s{S_CL}, 6")
    p(f"s_add_u32 s9, s9, {FL_XCC}")
    p("v_lshl_add_u32 v48, v48, 3, s9")
    p(f"s_cmp_eq_u32 s{S_W}, 0")
    p(f"s_cbranch_scc0 {skip}")
    if 's2st' in EXP:
        p("s_waitcnt vmcnt(0)"); stamp(p, 41)
    p(f"s_mov_b32 s{S_T}, 0")
    p.label(lab)
    masks = [64, 64, 64, 32]
    for i in range(4):
        setexec(p, masks[i])
        p(f"buffer_load_dwordx2 {v(2+2*i,2)}, v{12+i}, {sr(S_FL)}, 0 offen sc1")
    p("s_mov_b64 exec, -1")
    p(f"buffer_load_dwordx2 v[10:11], v48, {sr(S_FL)}, 0 offen sc1")
    p("s_waitcnt vmcnt(0)")
    p(f"v_subrev_u32 v10, s{S_N}, v10")
    p(f"v_cmp_eq_u32 vcc, s{S_N+1}, v11")
    p("v_cmp_gt_u32 s[10:11], 16, v10")
    p("s_nop 4")
    p("s_and_b64 vcc, vcc, s[10:11]")
    p("s_cmp_eq_u64 vcc, exec")
    p("s_cselect_b32 s9, 1, 0")
    for i in range(4):
        setexec(p, masks[i])
        p(f"v_cmp_eq_u64 vcc, {s(S_N,2)}, {v(2+2*i,2)}")
        p("s_nop 4")
        p("s_cmp_eq_u64 vcc, exec")
        p("s_cselect_b32 s9, s9, 0")
    p("s_mov_b64 exec, -1")
    p("s_cmp_eq_u32 s9, 1")
    p(f"s_cbranch_scc1 {done}")
    p(f"s_add_u32 s{S_T}, s{S_T}, 1")
    p(f"s_cmp_lt_u32 s{S_T}, 0x8000")
    p(f"s_cbranch_scc0 {done}")
    p("s_sleep 1")
    p(f"s_branch {lab}")
    p.label(done)
    if 's2st' in EXP:
        p(f"v_writelane_b32 v253, s{S_T}, 42"); p(f"v_writelane_b32 v252, s{S_T}, 43"); p(f"v_writelane_b32 v253, s{S_T}, 43")
    p("s_getreg_b32 s9, hwreg(HW_REG_XCC_ID, 0, 4)")
    p("v_cmp_eq_u32 vcc, s9, v10")
    p("s_nop 4")
    p("s_cmp_eq_u64 vcc, exec")
    p("s_cselect_b32 s9, 1, 0")
    if FORCE_SLOW: p("s_mov_b32 s9, 0")
    p("v_mov_b32 v2, s9")
    p(f"v_mov_b32 v3, {L_FASTW}")
    p("ds_write_b32 v3, v2")
    p("s_waitcnt lgkmcnt(0)")
    p.label(skip)
    p("s_barrier")
    p.vmq = []; p.lgq = []
    p(f"v_mov_b32 v3, {L_FASTW}")
    p.lg("ds_read_b32 v49, v3", "fw")

def fast_get(p):
    p.wait_lg("fw")
    p(f"v_readfirstlane_b32 s{S_FAST}, v49")

PB_ = 96
def partials_prelude(p):
    p("v_and_b32 v1, 31, v0")
    p("v_lshrrev_b32 v2, 5, v0")
    p(f"s_mul_i32 s9, s{S_MEM}, {8*ROWB}")
    p(f"v_mul_u32_u24 v3, {ROWB}, v2")
    p("v_lshl_add_u32 v3, v1, 4, v3")
    p("v_add_u32 v3, s9, v3")
    p(f"v_cndmask_b32 v12, -1, v3, {ACT}")
    p("v_add_u32 v3, 448, v3")
    p(f"v_cndmask_b32 v13, -1, v3, {ACT}")

def add_partials(p):
    for j in range(8):
        if j % 4 == 0: p(f"s_mov_b32 s9, {j*64*ROWB}")
        else: p(f"s_add_u32 s9, s9, {64*ROWB}")
        p.vm(f"buffer_load_dwordx4 {v(PB_+8*j,4)}, v12, {sr(S_PR)}, s9 offen sc1", f"p{j}")
        p.vm(f"buffer_load_dwordx4 {v(PB_+8*j+4,4)}, v13, {sr(S_PR)}, s9 offen sc1", f"p{j}")
    lab = p.uid("pf2")
    p(f"s_cmp_eq_u32 s{S_LAY}, 0"); p(f"s_cbranch_scc0 {lab}")
    for g_ in dma_w1_items(2, "pf2"):
        for it in g_: p(it[0])
    p.label(lab)
    p("v_mov_b32 v7, 0xffff0000")
    p("v_mov_b32 v14, 0x00003f80")
    p("v_mov_b32 v15, 0x3f800000")
    unpack(p, X, XP, 8)
    for i in range(16): p(f"v_mov_b32 v{T+i}, 0")
    p(f"v_mov_b32 v{TMP}, {fbits(LN2)}"); p(f"v_mov_b32 v{TMP+1}, {fbits(LN2)}")
    for j in range(8):
        p.wait_vm(f"p{j}")
        for i in range(8):
            p(f"v_dot2c_f32_bf16 v{T+2*i}, v{PB_+8*j+i}, v14")
            p(f"v_dot2c_f32_bf16 v{T+2*i+1}, v{PB_+8*j+i}, v15")
    for i in range(0, 16, 2):
        p(f"v_pk_fma_f32 {v(X+i,2)}, {v(T+i,2)}, {v(TMP,2)}, {v(X+i,2)}")

def xh(phi):
    return a(196 + 4 * phi, 4) if phi < 15 else v(148 + 4 * (phi - 15), 4)

def mlp_setup(p):
    row_setup(p)
    p("v_and_b32 v181, 63, v0")
    p("v_and_b32 v182, 15, v181")
    p("v_lshrrev_b32 v183, 4, v181")
    p(f"s_mul_i32 s9, s{S_A}, 14336")
    p(f"s_add_u32 s9, s9, {L_RING}")
    p(f"v_lshl_add_u32 v{V_A}, v181, 4, s9")
    p(f"v_add_u32 v{V_A2}, {2*CHUNK}, v{V_A}")
    p(f"s_lshl_b32 s9, s{S_B}, 5")
    p("v_add_u32 v184, s9, v182")
    p(f"v_mul_u32_u24 v184, {SH_}, v184")
    p("v_bfe_u32 v185, v182, 1, 2")
    p("v_lshrrev_b32 v186, 1, v183")
    p("v_xor_b32 v186, v186, v185")
    p("v_lshl_add_u32 v184, v186, 4, v184")
    p("v_and_b32 v186, 1, v183")
    p("v_lshl_add_u32 v184, v186, 3, v184")
    p("v_xor_b32 v186, 32, v184")
    p(f"s_cmp_eq_u32 s{S_A}, 1")
    p("s_cselect_b64 vcc, -1, 0")
    p("v_add_u32 v187, 192, v186")
    p(f"v_cndmask_b32 v{V_HW}, v184, v187, vcc")
    p("v_add_u32 v187, 256, v184")
    p(f"v_cndmask_b32 v{V_HW1}, v186, v187, vcc")
    p(f"v_mul_u32_u24 v184, {SH_}, v182")
    p("v_xor_b32 v185, v185, v183")
    p(f"v_lshl_add_u32 v{V_HR}, v185, 4, v184")
    p(f"v_subrev_u32 v{V_A3}, {L_RING - CHUNK}, v{V_A}")
    p(f"v_lshlrev_b32 v{V_L16}, 4, v181")
    p(f"v_mul_u32_u24 v184, {ROWB}, v182")
    p(f"s_lshl_b32 s9, s{S_W}, 6")
    p("v_lshl_add_u32 v185, v183, 4, v184")
    p(f"v_add_u32 v{V_PO}, s9, v185")
    p(f"s_add_u32 s9, s{S_A}, 12")
    p("s_lshl_b32 s9, s9, 6")
    p(f"s_lshl_b32 s10, s{S_B}, 5")
    p("s_add_u32 s9, s9, s10")
    p("v_lshl_add_u32 v185, v183, 3, v184")
    p(f"v_add_u32 v{V_PO1}, s9, v185")
    x_dma_setup(p)

XD1 = [200, 201, 209, 210, 211, 212, 213, 214]
XD2 = [215, 216, 217, 220, 221, 222]
XR1, XR2 = 108, 112
L_X2 = L_X + 64 * 512
def x_dma_setup(p):
    p("v_and_b32 v181, 63, v0")
    p("v_lshrrev_b32 v182, 5, v181")
    p("v_and_b32 v183, 31, v181")
    for i in range(8):
        p(f"v_add_u32 v184, {2*i}, v182")
        p("v_xor_b32 v185, v183, v184")
        p(f"v_mul_u32_u24 v184, {ROWB}, v184")
        p(f"v_lshl_add_u32 v{XD1[i]}, v185, 4, v184")
    for i in range(6):
        p(f"v_add_u32 v184, {64*i}, v181")
        p("v_mul_u32_u24 v185, 2731, v184")
        p("v_lshrrev_b32 v185, 16, v185")
        p("v_mul_u32_u24 v186, 24, v185")
        p("v_sub_u32 v186, v184, v186")
        p("v_and_b32 v184, 6, v185")
        p("v_xor_b32 v186, v186, v184")
        p(f"v_mul_u32_u24 v185, {ROWB}, v185")
        p("v_lshl_add_u32 v185, v186, 4, v185")
        p(f"v_add_u32 v{XD2[i]}, 512, v185")

def x_read_setup(p):
    p("v_and_b32 v1, 63, v0")
    p("v_and_b32 v2, 15, v1")
    p("v_lshrrev_b32 v3, 4, v1")
    p(f"s_lshl_b32 s9, s{S_B}, 5")
    p("v_add_u32 v4, s9, v2")
    p("v_and_b32 v5, 3, v2")
    p("v_xor_b32 v5, v5, v3")
    p("v_lshlrev_b32 v5, 4, v5")
    p("v_lshl_add_u32 v5, v4, 9, v5")
    p("v_lshrrev_b32 v6, 2, v2")
    for r in range(4):
        p(f"v_xor_b32 v8, {r}, v6")
        p(f"v_lshl_add_u32 v{XR1+r}, v8, 6, v5")
    p("v_and_b32 v5, 2, v2")
    p("v_xor_b32 v5, v5, v3")
    p("v_lshlrev_b32 v5, 4, v5")
    p("v_mul_u32_u24 v4, 384, v4")
    p("v_add_u32 v5, v5, v4")
    p(f"v_add_u32 v5, {L_X2}, v5")
    p("v_and_b32 v6, 1, v6")
    p(f"v_lshl_add_u32 v{XR2}, v6, 6, v5")
    p("v_xor_b32 v6, 1, v6")
    p(f"v_lshl_add_u32 v{XR2+1}, v6, 6, v5")

def dma_x(p):
    p(f"s_lshl_b32 s9, s{S_W}, 13")
    p(f"s_mul_i32 s10, s{S_W}, {16*384}")
    for i in range(8):
        p(f"s_add_u32 m0, s9, {L_X + 1024*i}")
        p.vm(f"buffer_load_dwordx4 v{XD1[i]}, {sr(S_X)}, s{S_W14} offen sc1 lds", "x1")
    for i in range(6):
        p(f"s_add_u32 m0, s10, {L_X2 + 1024*i}")
        p.vm(f"buffer_load_dwordx4 v{XD2[i]}, {sr(S_X)}, s{S_W14} offen sc1 lds", "x2")

def dma_w1_items(chunk, tag, g=12):
    G = []
    for i in range(7):
        it = []
        if i in (0, 4):
            o = 4096 if i else 0
            it += [(f"s_add_u32 m0, s{S_W7}, {slot_base(chunk) + o}", "", None),
                   (f"s_add_u32 s{g}, s{S_W7}, {chunk * CHUNK + o}", "", None)]
        it.append((f"buffer_load_dwordx4 v{V_L16}, {sr(S_W1)}, s{g} offen offset:{1024*(i%4)} {'sc1 nt' if 'wnt1' in EXP else 'sc1'} lds", "vm", tag))
        G.append(it)
    return G

def dma_w1(p, chunk, tag):
    p(f"s_mul_i32 s9, s{S_W}, 7168")
    p(f"s_add_u32 s10, s9, {L_RING + (chunk % 3) * CHUNK}")
    p(f"s_add_u32 s9, s9, {chunk * CHUNK}")
    for grp, cnt in ((0, 4), (4, 3)):
        if grp:
            p("s_add_u32 s10, s10, 4096"); p("s_add_u32 s9, s9, 4096")
        p("s_mov_b32 m0, s10")
        for i in range(cnt):
            p.vm(f"buffer_load_dwordx4 v{V_L16}, {sr(S_W1)}, s9 offen offset:{1024*i} sc1 lds", tag)

def cost(t):
    op = t.split()[0]
    if op.startswith(("v_exp", "v_rcp", "v_rsq")): return 8
    if op.startswith("v_"): return 4
    return 0

def emit(p, item):
    t, kind, tag = item
    if kind == "lg": p.lg(t, tag)
    elif kind == "vm": p.vm(t, tag)
    elif kind == "wlg": p.wait_lg(tag)
    elif kind == "wvm": p.wait_vm(tag)
    else: p(t)

def schedule(p, M, V=(), N=None, vstart=0, vend=None):
    N = N or {}
    vend = len(M) if vend is None else vend
    total = sum(cost(x[0]) for x in V)
    done, cum = 0, 0
    for i, m in enumerate(M):
        if isinstance(m, tuple):
            for w in m[1]: emit(p, w)
            m = m[0]
        p(m)
        for it in N.get(i, []): emit(p, it)
        if i >= vstart and done < len(V):
            last = (i >= vend - 1)
            target = total * (i - vstart + 1) / max(1, vend - vstart)
            while done < len(V) and (last or cum + cost(V[done][0]) / 2 <= target):
                cum += cost(V[done][0]); emit(p, V[done]); done += 1
    while done < len(V):
        emit(p, V[done]); done += 1

def interleave(p, M, O, first=0):
    n = len(M) - first
    done = 0
    for i, m in enumerate(M):
        p(m)
        if i >= first:
            want = (len(O) * (i - first + 1) + n - 1) // n
            while done < want:
                t, kind, tag = O[done]; done += 1
                if kind == "lg": p.lg(t, tag)
                elif kind == "vm": p.vm(t, tag)
                else: p(t)

FA, AC1, ST_, HO = 16, 72, 96, 104
def silu_stages(T):
    z = AC1 + 8 * (T % 3); t = ST_
    E = [(f"v_exp_f32_e64 v{t+r}, -v{z+r}", "", None) for r in range(8)]
    A = [(f"v_add_f32 v{t+r}, 1.0, v{t+r}", "", None) for r in range(8)]
    C = [(f"v_rcp_f32 v{t+r}, v{t+r}", "", None) for r in range(8)]
    M = [(f"v_mul_f32 v{t+r}, v{z+r}, v{t+r}", "", None) for r in range(8)]
    V = []
    for nt in range(2):
        V.append((f"v_cvt_pk_bf16_f32 v{HO+2*nt}, v{t+4*nt}, v{t+4*nt+1}", "", None))
        V.append((f"v_cvt_pk_bf16_f32 v{HO+2*nt+1}, v{t+4*nt+2}, v{t+4*nt+3}", "", None))
    W = [(f"ds_write_b64 v{V_HW1 if T & 1 else V_HW}, {v(HO+2*nt,2)} offset:{L_X + nt*16*SH_ + 64*(T>>1)}", "lg", "hw") for nt in range(2)]
    return E, A, C, M, V, W

def gemm1(p):
    def areads(h):
        T, half, buf = h >> 1, h & 1, h & 1
        if T == 3: base, o = V_A3, 0
        else:
            sl = T if T < 3 else T - 4
            base, o = (V_A, sl * CHUNK) if sl < 2 else (V_A2, 0)
        return [(f"ds_read_b128 {v(FA+28*buf+4*i,4)}, v{base} offset:{o + 1024*(7*half+i)}", "lg", f"g{h}") for i in range(7)]
    p.wait_vm("x1")
    p("s_barrier")
    stamp(p, 12, True)
    def xread(k, nt):
        if k < 8: return (f"ds_read_b128 {xh(2*k+nt)}, v{XR1 + (k & 3)} offset:{L_X + 256*(k>>2) + nt*16*512}", "lg", f"x{k}")
        kk = k - 8
        return (f"ds_read_b128 {xh(2*k+nt)}, v{XR2 + (kk & 1)} offset:{128*(kk>>1) + nt*16*384}", "lg", f"x{k}")
    a0 = areads(0)
    for k in range(7):
        t, kind, _ = a0[k]
        emit(p, (t, kind, f"a0_{k}")); emit(p, xread(k, 0)); emit(p, xread(k, 1))
    silu = 'nosilu' not in EXP
    for h in range(14):
        T, half, buf = h >> 1, h & 1, h & 1
        nxt = areads(h + 1) if h < 13 else []
        pre = [[] for _ in range(14)]
        val = [[] for _ in range(14)]
        post = [[] for _ in range(14)]
        for i, it in enumerate(nxt): pre[i].append(it)
        if h == 0:
            pre[0].append(xread(7, 0)); pre[1].append(xread(7, 1))
            pre[2] += [(None, "wvm", "x2"), ("s_barrier", "", None)]
            extra = [xread(k, nt) for k in range(8, 14) for nt in range(2)]
            for i in range(12): pre[2 + i].append(extra[i])
        if 1 <= h <= 8 and 'nodma1' not in EXP:
            c = 3 + (h - 1) // 2
            grps = dma_w1_items(c, f"c{c}")
            grps = grps[:4] if h & 1 else grps[4:]
            at = [1, 4, 8, 11] if h & 1 else [2, 6, 10]
            for g_, grp in zip(at, grps):
                sal = [x for x in grp if x[1] == ""]; dm = [x for x in grp if x[1] == "vm"]
                pre[g_] = sal + pre[g_] + dm
        if 9 <= h <= 13 and 'noldwc' not in EXP:
            first = 3 * (h - 9)
            for g_, i in zip((1, 5, 9), range(first, min(first + 3, 14))):
                pre[g_] = [(f"s_add_u32 s12, s{S_W14}, {1024*i}", "", None)] + pre[g_] + [(f"buffer_load_dwordx4 v[124:127], v{V_L16}, {sr(S_PW)}, s12 offen", "vm", "pw")]
        if silu:
            if half == 0 and T >= 2:
                E, A, C, M, V, W = silu_stages(T - 2)
                seq = M + V
                order = [2, 2, 2, 2, 2, 1, 1]
                for g_, cnt in enumerate(order):
                    for _ in range(cnt): val[g_].append(seq.pop(0))
                pre[7].append(W[0]); pre[9].append(W[1])
            if half == 0 and T >= 1:
                E = silu_stages(T - 1)[0]
                for r in range(7): val[7 + r].append(E[r])
                val[13].append(E[7])
            if half == 1 and T >= 1:
                E, A, C, M, V, W = silu_stages(T - 1)
                for r in range(7): val[r].append(A[r])
                val[6].append(A[7])
                for r in range(7): val[7 + r].append(C[r])
                val[13].append(C[7])
        if h < 13:
            w = [(None, "wlg", f"g{h+1}")]
            if h == 0: w.append((None, "wlg", "x13"))
            if half == 0 and 3 <= T + 1 <= 6: w.append((None, "wvm", f"c{T+1}"))
            pre[13] = w + pre[13] if h != 0 else pre[13] + w
        for q_ in range(14):
            i, nt = q_ >> 1, q_ & 1
            k = 7 * half + i
            if h == 0 and nt == 0:
                p.wait_lg(f"a0_{i}"); p.wait_lg(f"x{k}")
            acc = v(AC1 + 8 * (T % 3) + 4 * nt, 4)
            p(f"v_mfma_f32_16x16x32_bf16 {acc}, {v(FA+28*buf+4*i,4)}, {xh(2*k+nt)}, {'0' if k == 0 else acc}")
            for it in pre[q_] + val[q_] + post[q_]: emit(p, it)
        if half == 0 and 'nobar1' not in EXP: p("s_barrier")
        if 'tt' in EXP: p(f"s_memtime s[{40+0}:{41}]" if False else f"s_memtime s[{34+2*(h+3)}:{35+2*(h+3)}]") if False else None
        if 'tt' in EXP and h < 12: p(f"s_memtime s[{40+2*h}:{41+2*h}]")
    if 'tt' in EXP:
        p("s_waitcnt lgkmcnt(0)"); p.lgq = []
        for h in range(12): p(f"v_mov_b32 v{108+h}, s{40+2*h}")
        p("s_lshl_b32 s9, s2, 6"); p(f"s_mul_i32 s10, s{S_LAY}, 16384"); p("s_add_u32 s9, s9, s10"); p(f"s_add_u32 s9, s9, {0x30000}")
        p("v_mov_b32 v120, s9")
        p("s_mov_b64 s[10:11], exec"); p("s_mov_b64 exec, 1")
        for q_ in range(3): p.vm(f"buffer_store_dwordx4 {v(108+4*q_,4)}, v120, s[92:95], 0 offen offset:{16*q_}")
        p("s_mov_b64 exec, s[10:11]")
    if silu:
        E, A, C, M, V, W = silu_stages(5)
        for it in M + V + W: emit(p, it)
        E, A, C, M, V, W = silu_stages(6)
        for it in E + A + C + M + V + W: emit(p, it)
    p.wait_lg()
    p("s_barrier")

AC2, CO = 72, 16
def gemm2(p):
    hread = lambda nt, k: (f"ds_read_b128 {xh(7*nt+k)}, v{V_HR} offset:{L_X + nt*16*SH_ + 64*k}", "lg", f"h{nt}_{k}")
    for k in range(7): emit(p, hread(0, k))
    pf = []
    units = [(3, nt) for nt in range(4)] + [(P, nt) for P in range(3) for nt in range(4)]
    def epi(u):
        P, nt = units[u]; ac = AC2 + 8 * (u & 1); o = CO + 4 * (u & 3)
        O = []
        O.append((f"v_cvt_pk_bf16_f32 v{o}, v{ac}, v{ac+1}", "", None))
        O.append((f"v_cvt_pk_bf16_f32 v{o+1}, v{ac+2}, v{ac+3}", "", None))
        if P < 3:
            O.append((f"v_cvt_pk_bf16_f32 v{o+2}, v{ac+4}, v{ac+5}", "", None))
            O.append((f"v_cvt_pk_bf16_f32 v{o+3}, v{ac+6}, v{ac+7}", "", None))
        st = [(f"s_mov_b32 s9, {nt*16*ROWB}", "", None)]
        sfl = "sc1" if 'psc1' in EXP else ("nt" if 'psnt' in EXP else ("sc0" if 'pssc0' in EXP else ""))
        if P < 3: st.append((f"buffer_store_dwordx4 {v(o,4)}, v{V_PO}, {sr(S_PW)}, s9 offen offset:{256*P} {sfl}", "vm", "ps"))
        elif 'nost6' in EXP: pass
        else: st.append((f"buffer_store_dwordx2 {v(o,2)}, v{V_PO1}, {sr(S_PW)}, s9 offen {sfl}", "vm", "ps"))
        return O, st
    for u, (P, nt) in enumerate(units):
        ac = AC2 + 8 * (u & 1)
        M = []
        for k in range(7):
            for sub in range(2 if P < 3 else 1):
                Tt = 2 * P + sub
                acc = v(ac + 4 * sub, 4)
                t = f"v_mfma_f32_16x16x32_bf16 {acc}, {a(4*(7*k+Tt),4)}, {xh(7*nt+k)}, {'0' if k == 0 else acc}"
                w = [(None, "wlg", f"h{nt}_{k}")] if (u < 4 and sub == 0) else []
                M.append((t, w))
        n = len(M)
        N = {}
        if u < 3:
            for k in range(7): N.setdefault(k, []).append(hread(u + 1, k))
        V, st = epi(u - 1) if u else ([], [])
        if st and 'nostore' not in EXP: N.setdefault(n - 1 if n == 7 else 10, []).extend(st)
        schedule(p, M, V, N, vstart=(4 if n == 7 else 5), vend=(6 if n == 7 else 9))
    assert not pf
    V, st = epi(len(units) - 1)
    for it in V + st: emit(p, it)

def prewarm_ld(p, stride=128):
    n = 57344 // stride
    for i in range((n + 255) // 256):
        p(f"v_add_u32 v2, {256*i}, v0")
        p(f"v_mul_u32_u24 v2, {stride}, v2")
        p.vm(f"buffer_load_dword v255, v2, {sr(S_PW)}, 0 offen", "pw")

def prewarm(p):
    if 'nowarm' in EXP: return
    fl = "sc1" if 'wsc1' in EXP else ("nt" if 'wnt' in EXP else "")
    stride = 64 if 'w64' in EXP else 128
    for i in range((57344 // stride + 255) // 256):
        p(f"v_add_u32 v2, {256*i}, v0")
        p(f"v_mul_u32_u24 v2, {stride}, v2")
        p(f"buffer_store_dword v0, v2, {sr(S_PW)}, 0 offen {fl}")
    p("v_lshlrev_b32 v1, 7, v0")
    p(f"s_mul_i32 s9, s{S_MEM}, {8*ROWB}")
    p("v_add_u32 v2, s9, v1")
    p(f"v_cmp_gt_u32 vcc, {8*ROWB}, v1")
    p("v_cndmask_b32 v2, -1, v2, vcc")
    p(f"buffer_store_dword v0, v2, {sr(S_X)}, 0 offen {fl}")

FORCE_SLOW = False
def build(stamps=False, force_slow=False):
    global FORCE_SLOW
    FORCE_SLOW = force_slow
    common.STAMPS[0] = stamps
    p = K()
    p("s_cmp_ge_u32 s2, 256")
    p("s_cbranch_scc1 K_end")
    p.load_ptrs()
    code_prefetch(p)
    p.wave_id(S_W, 1)
    p("s_and_b32 s4, s2, 7")
    p("s_lshr_b32 s5, s2, 3")
    p("s_lshl_b32 s4, s4, 5")
    p("s_add_u32 s4, s4, s5")
    p("s_lshr_b32 s5, s4, 3")
    p("s_and_b32 s6, s4, 7")
    p(f"s_lshr_b32 s{S_A}, s{S_W}, 1")
    p(f"s_and_b32 s{S_B}, s{S_W}, 1")
    p(f"s_mov_b32 s{S_LAY}, 0")
    p(f"s_mov_b32 s{S_FAST}, 0")
    p(f"s_mul_i32 s{S_W7}, s{S_W}, 7168")
    p(f"s_mul_i32 s{S_W14}, s{S_W}, 14336")
    p("s_waitcnt lgkmcnt(0)")
    if stamps:
        p.srd(92, P_WS, WS_FLAGS + 0x80000, 0x40000)
        p("v_mov_b32 v252, 0"); p("v_mov_b32 v253, 0")
    stamp(p, 0)
    lab = p.uid("nn")
    p("s_cmp_eq_u32 s2, 0")
    p(f"s_cbranch_scc0 {lab}")
    p(f"s_cmp_eq_u32 s{S_W}, 0")
    p(f"s_cbranch_scc0 {lab}")
    p.srd(SF_, P_DBG, 0, 256)
    p("s_memrealtime s[10:11]")
    p("s_waitcnt lgkmcnt(0)")
    p("s_lshl_b64 s[10:11], s[10:11], 4")
    p("s_or_b32 s11, s11, 0x40000000")
    p("v_mov_b32 v2, s10"); p("v_mov_b32 v3, s11"); p("v_mov_b32 v1, 0")
    p("s_mov_b64 exec, 1")
    p(f"buffer_store_dwordx2 v[2:3], v1, {sr(SF_)}, 0 offen sc1")
    p("s_mov_b64 exec, -1")
    p.label(lab)
    p.srd(S_FL, P_WS, WS_FLAGS, FLAGS_BYTES)
    p("s_cmp_ge_u32 s2, 224")
    p("s_cbranch_scc1 K_noprep")
    prep(p)
    stamp(p, 1)
    p.wait_vm("kvst")
    p(f"v_readfirstlane_b32 s{S_N}, v150")
    p(f"v_readfirstlane_b32 s{S_N+1}, v151")
    p("s_nop 3")
    p(f"s_or_b32 s9, s{S_N}, s{S_N+1}")
    p("s_cmp_lg_u32 s9, 0")
    lab = p.uid("haven")
    p(f"s_cbranch_scc1 {lab}")
    p.srd(SF_, P_DBG, 0, 256)
    get_nonce(p)
    p.label(lab)
    p("s_barrier")
    flag_store_rep(p, FL_S1R, 2)
    stamp(p, 2)
    p.wait_vm()
    hbuild(p)
    p("s_branch K_prepdone")
    p.label("K_noprep")
    mlp_setup(p)
    q_loads(p)
    p.srd(SF_, P_DBG, 0, 256)
    get_nonce(p)
    p("s_barrier")
    p.label("K_prepdone")
    p.vmq = []; p.lgq = []
    lab = p.uid("xp")
    p(f"s_cmp_eq_u32 s{S_W}, 0")
    p(f"s_cbranch_scc0 {lab}")
    p("s_getreg_b32 s9, hwreg(HW_REG_XCC_ID, 0, 4)")
    p(f"s_add_u32 s9, s9, s{S_N}")
    p("v_mov_b32 v2, s9"); p(f"v_mov_b32 v3, s{S_N+1}")
    p(f"s_lshl_b32 s9, s{S_RB}, 3"); p(f"s_add_u32 s9, s9, {FL_XCC}")
    p("v_mov_b32 v1, s9")
    p("s_mov_b64 exec, 1")
    p(f"buffer_store_dwordx2 v[2:3], v1, {sr(S_FL)}, 0 offen sc1")
    p("s_mov_b64 exec, -1")
    p.label(lab)
    p(f"s_mul_i32 s9, s{S_MEM}, {7*CHUNK}"); p(f"s_add_u32 s9, s9, {hex(WS_W1P)}")
    p(f"s_add_u32 s{S_W1}, s{P_WS}, s9"); p(f"s_addc_u32 s{S_W1+1}, s{P_WS+1}, 0")
    p(f"s_mov_b32 s{S_W1+2}, {7*CHUNK}"); p(f"s_mov_b32 s{S_W1+3}, 0x20000")
    p(f"s_mul_i32 s9, s{S_CL}, {64*ROWB}"); p(f"s_add_u32 s9, s9, {hex(WS_XP)}")
    p(f"s_add_u32 s{S_X}, s{P_WS}, s9"); p(f"s_addc_u32 s{S_X+1}, s{P_WS+1}, 0")
    p(f"s_mov_b32 s{S_X+2}, {64*ROWB}"); p(f"s_mov_b32 s{S_X+3}, 0x20000")
    p(f"s_mul_i32 s9, s{S_RB}, {64*ROWB}"); p(f"s_add_u32 s9, s9, {hex(WS_PB)}")
    p(f"s_add_u32 s{S_PW}, s{P_WS}, s9"); p(f"s_addc_u32 s{S_PW+1}, s{P_WS+1}, 0")
    p(f"s_mov_b32 s{S_PW+2}, {64*ROWB}"); p(f"s_mov_b32 s{S_PW+3}, 0x20000")
    p(f"s_mul_i32 s9, s{S_CL}, {8*64*ROWB}"); p(f"s_add_u32 s9, s9, {hex(WS_PB)}")
    p(f"s_add_u32 s{S_PR}, s{P_WS}, s9"); p(f"s_addc_u32 s{S_PR+1}, s{P_WS+1}, 0")
    p(f"s_mov_b32 s{S_PR+2}, {8*64*ROWB}"); p(f"s_mov_b32 s{S_PR+3}, 0x20000")
    if 'warm1' in EXP: prewarm(p)
    p("v_and_b32 v1, 63, v0")
    p("s_lshr_b32 s9, s2, 5")
    p("s_min_u32 s9, s9, 6")
    p("v_mul_u32_u24 v8, 7, v1")
    p("v_add_u32 v8, s9, v8")
    p(f"s_mul_i32 s9, s{S_MEM}, 14")
    p("v_subrev_u32 v9, 32, v1")
    p("v_add_u32 v9, s9, v9")
    p("v_add_u32 v10, 98, v9")
    p("v_cmp_gt_u32 vcc, 46, v1")
    p("v_cndmask_b32 v9, v10, v9, vcc")
    p("v_cmp_gt_u32 vcc, 32, v1")
    p("v_cndmask_b32 v8, v9, v8, vcc")
    p("v_lshlrev_b32 v8, 3, v8")
    p("s_and_b32 s9, s2, 7"); p("s_lshl_b32 s9, s9, 11"); p(f"s_add_u32 s9, s9, {FL_S1R}")
    p("v_add_u32 v8, s9, v8")
    p("s_waitcnt lgkmcnt(0)")
    poll(p, [8], 1, [60])
    stamp(p, 3)
    p(f"s_lshl_b32 s9, s{S_MEM}, 2"); p(f"s_add_u32 s9, s9, s{S_W}")
    p(f"s_mul_i32 s9, s9, {49*1024}"); p(f"s_add_u32 s9, s9, {hex(WS_W2P)}")
    p(f"s_add_u32 s{SE}, s{P_WS}, s9"); p(f"s_addc_u32 s{SE+1}, s{P_WS+1}, 0")
    p(f"s_mov_b32 s{SE+2}, {49*1024}"); p(f"s_mov_b32 s{SE+3}, 0x20000")
    p.srd(SD, P_WS, WS_YB, MAT)
    p("s_cmp_ge_u32 s2, 224")
    p("s_cbranch_scc1 K_noconv")
    p("s_lshl_b32 s9, s2, 13")
    p(f"s_add_u32 s{SA}, s{P_WS}, s9"); p(f"s_addc_u32 s{SA+1}, s{P_WS+1}, 0")
    p(f"s_mov_b32 s{SA+2}, 8192"); p(f"s_mov_b32 s{SA+3}, 0x20000")
    p("v_lshlrev_b32 v10, 4, v0")
    p.vm(f"buffer_load_dwordx4 v[64:67], v10, {sr(SA)}, 0 offen sc1", "u")
    p("v_add_u32 v11, 4096, v10")
    p.vm(f"buffer_load_dwordx4 v[68:71], v11, {sr(SA)}, 0 offen sc1", "u")
    if 'qearly' not in EXP: q_loads(p)
    p("s_lshl_b32 s9, s2, 2")
    p(f"s_load_dword s13, s[{P_DV}:{P_DV+1}], s9")
    for g_ in w2_items(SE)[:W20]:
        for it in g_: emit(p, it)
    p(f"v_add_u32 v10, {L_U+512}, v10")
    p.wait_vm("u")
    p.lg("ds_write_b128 v10, v[64:67]")
    p.lg(f"ds_write_b128 v10, v[68:71] offset:{U_CH}")
    p("s_waitcnt lgkmcnt(0)"); p.lgq = []
    p("s_lshl_b32 s12, s13, 16")
    p("s_and_b32 s14, s13, 0xffff0000")
    p(f"s_cmp_eq_u32 s{S_B}, 0")
    p("s_cselect_b32 s14, s12, s14")
    p("s_barrier")
    if 'warm2' in EXP: prewarm(p)
    stamp(p, 4)
    conv_main(p)
    stamp(p, 5)
    conv_out(p, SD)
    signal(p, FL_S2R, 2, upto="yst")
    stamp(p, 6)
    p("s_branch K_convdone")
    p.label("K_noconv")
    p.vmq = []
    for g_ in w2_items(SE)[:W2A]:
        for it in g_: emit(p, it)
    p.wait_vm()
    p.label("K_convdone")
    if 'warm3' in EXP: prewarm(p)
    if 'pws2' in EXP:
        lab = p.uid("pws")
        p(f"s_cmp_eq_u32 s{S_W}, 0"); p(f"s_cbranch_scc1 {lab}")
        p(f"s_sub_u32 s9, s{S_W}, 1"); p("s_mul_i32 s9, s9, 19456")
        for i in range(19):
            if i % 4 == 0: p(f"s_add_u32 s10, s9, {1024*i}")
            p(f"buffer_load_dwordx4 v[220:223], v{V_L16}, {sr(S_PW)}, s10 offen offset:{1024*(i%4)}")
        p.label(lab)
    p("s_waitcnt vmcnt(0)")
    p("v_mov_b32 v7, 0xffff0000")
    unpack(p, X, XP, 8)
    layernorm(p, X, T)
    poll_s2(p)
    stamp(p, 7)
    y_load(p, SD)
    fast_get(p)
    for g_ in dma_w1_items(2, "pf2"):
        for it in g_: emit(p, it)
    y_transpose(p)
    stamp(p, 8)
    p("v_mov_b32 v7, 0xffff0000")
    p("s_branch K_gate")
    p.label("K_layer")
    p.vmq = []; p.lgq = []
    layernorm(p, X, T)
    p.label("K_gate")
    p.vmq = []; p.lgq = []
    q = K()
    for i in range(0, 16, 2):
        q(f"v_pk_fma_f32 {v(X+i,2)}, {v(T+i,2)}, {v(YV+i,2)}, {v(X+i,2)}")
    layernorm(q, X, T, LOG2E)
    pack(q, PK, T, 8)
    body = [it.text for it in q.items]
    pf = [g for c in range(2) for g in dma_w1_items(c, "pf")]
    step = len(body) // (len(pf) + 1)
    for i, t in enumerate(body):
        p(t)
        if pf and i % step == step - 1:
            for it in pf.pop(0): emit(p, it)
    assert not pf
    p(f"s_mul_i32 s9, s{S_CL}, {64*ROWB}")
    p(f"v_subrev_u32 v3, s9, v{OFFA}")
    p(f"v_subrev_u32 v4, s9, v{OFFB}")
    p(f"v_cndmask_b32 v3, -1, v3, {ACT}")
    p(f"v_cndmask_b32 v4, -1, v4, {ACT}")
    p.vm(f"buffer_store_dwordx4 {v(PK,4)}, v3, {sr(S_X)}, 0 offen", "xs")
    p.vm(f"buffer_store_dwordx4 {v(PK+4,4)}, v4, {sr(S_X)}, 0 offen", "xs")
    pack(p, XP, X, 8)
    stamp(p, 9, True)
    signal(p, FL_A0, S_RB, layer_off=True, cluster=True, upto="xs")
    stamp(p, 10, True)
    def cluster_offs():
        p("v_and_b32 v1, 7, v0")
        p(f"s_lshl_b32 s9, s{S_CL}, 6")
        p(f"s_lshl_b32 s10, s{S_LAY}, 12")
        p("s_add_u32 s9, s9, s10")
    cluster_offs()
    p(f"s_add_u32 s9, s9, {FL_A0}")
    p("v_lshl_add_u32 v10, v1, 3, s9")
    poll(p, [10], 1, [8], cluster=True)
    stamp(p, 11, True)
    dma_x(p)
    x_read_setup(p)
    if 'ldw128' in EXP: prewarm_ld(p, 128)
    if 'ldw64' in EXP: prewarm_ld(p, 64)
    gemm1(p)
    stamp(p, 13, True)
    gemm2(p)
    stamp(p, 14, True)
    signal(p, FL_C0, S_RB, layer_off=True, cluster=True)
    if 'wb2' in EXP:
        lab = p.uid("wb2")
        p(f"s_cmp_eq_u32 s{S_LAY}, 1"); p(f"s_cbranch_scc0 {lab}")
        p(f"s_cmp_eq_u32 s{S_W}, 3"); p(f"s_cbranch_scc0 {lab}")
        p(f"s_and_b32 s9, s{S_RB}, 31"); p("s_cmp_eq_u32 s9, 0"); p(f"s_cbranch_scc0 {lab}")
        p("buffer_wbl2 sc1")
        p.label(lab)
    stamp(p, 15, True)
    partials_prelude(p)
    cluster_offs()
    p(f"s_add_u32 s9, s9, {FL_C0}")
    p("v_lshl_add_u32 v10, v1, 3, s9")
    poll(p, [10], 1, [8], cluster=True)
    if 'wb' in EXP:
        lab = p.uid("wb")
        p(f"s_cmp_eq_u32 s{S_LAY}, 1"); p(f"s_cbranch_scc0 {lab}")
        p(f"s_cmp_eq_u32 s{S_MEM}, 0"); p(f"s_cbranch_scc0 {lab}")
        p(f"s_cmp_eq_u32 s{S_W}, 3"); p(f"s_cbranch_scc0 {lab}")
        p("buffer_wbl2 sc1")
        p.label(lab)
    stamp(p, 16, True)
    add_partials(p)
    stamp(p, 17, True)
    p(f"s_cmp_eq_u32 s{S_LAY}, 1")
    p("s_cbranch_scc1 K_final")
    p(f"s_mov_b32 s{S_LAY}, 1")
    p("s_branch K_layer")
    p.label("K_final")
    pack(p, XP, X, 8)
    p.srd(SA, P_OUT, 0, MAT)
    ofl = "sc1" if 'osc1' in EXP else ("nt" if 'ont' in EXP else "")
    p(f"buffer_store_dwordx4 {v(XP,4)}, v{OFFA}, {sr(SA)}, 0 offen {ofl}")
    p(f"buffer_store_dwordx4 {v(XP+4,4)}, v{OFFB}, {sr(SA)}, 0 offen {ofl}")
    stamp(p, 40)
    stamp_flush(p)
    p.label("K_end")
    p("s_endpgm")
    txt, n = kernel_text(KNAME, p, 256, sgprs=102, agprs=256)
    print("nops inserted:", n, "instructions:", p.count(), file=sys.stderr)
    head = HEADER + f"; @launch grid=(256,1,1) block=(256,1,1) lds={LDS_BYTES}\n" + '.amdgcn_target "amdgcn-amd-amdhsa--gfx950"\n'
    return head + txt

if __name__ == "__main__":
    open(sys.argv[1], "w").write(build(stamps="st" in sys.argv[2:], force_slow="slow" in sys.argv[2:]))
```

```python
import sys
from common import *
import common
EXP = set(sys.argv[2:])

KNAME = "interleave_layers__ssm_conv_h3__dense_activation_silu__prompt_kernel"
HEADER = open("interleave_layers__ssm_conv_h3__dense_activation_silu__prompt.s.ref").read().split("; Override launch")[0]

S_W, S_RB, S_CL, S_MEM, S_A, S_B = 3, 4, 5, 6, 7, 8
SA, SB_, SC, SD, SE, SF_ = 40, 44, 48, 52, 56, 60
S_FL, S_W1, S_X, S_PW, S_PR = 64, 68, 72, 76, 80
S_N, S_FAST, S_LAY = 84, 86, 87
S_W7, S_W14 = 100, 101
ACT = "s[88:89]"
S_T = 90
V_XE, V_XO, V_A, V_A2, V_HW, V_HR, V_L16, V_PO, V_PO1 = 200, 201, 202, 203, 204, 205, 206, 207, 208
V_XD = 209
V_PWA, V_PWB = 216, 217
V_HW1, V_A3 = 218, 219
XP = 224
YV = 232
OFFA, OFFB = 248, 249
VN = 250
LA, LB = 0, 8192
HC_COPY = 4160; HC_CH = 8 * HC_COPY; L_U = 2 * HC_CH; U_CH = 512 + 4096; YS_CH = 4096 + 128
LY = 0
L_X = 0; SH_ = 448; L_RING = 57344; CHUNK = 28672
def slot_base(c):
    return CHUNK if c == 3 else L_RING + (c if c < 3 else c - 4) * CHUNK
LDS_BYTES = 163840
L_FASTW = 163836 - 60

def sr(r): return f"s[{r}:{r+3}]"

def stamp(p, sid, layered=False):
    if not common.STAMPS[0]: return
    p("s_memrealtime s[96:97]")
    p("s_memtime s[98:99]")
    p("s_waitcnt lgkmcnt(0)")
    if layered:
        p(f"s_mul_i32 s97, s{S_LAY}, 10")
        p(f"s_add_u32 m0, s97, {sid}")
        p("s_nop 3")
        p("v_writelane_b32 v252, s96, m0")
        p("v_writelane_b32 v253, s98, m0")
    else:
        p(f"v_writelane_b32 v252, s96, {sid}")
        p(f"v_writelane_b32 v253, s98, {sid}")
    p.lgq = []

def stamp_flush(p):
    if not common.STAMPS[0]: return
    lab = p.uid("sf")
    p(f"s_cmp_eq_u32 s{S_W}, 0")
    p(f"s_cbranch_scc0 {lab}")
    p("v_lshlrev_b32 v1, 2, v0")
    p("s_lshl_b32 s9, s2, 9")
    p("v_add_u32 v1, s9, v1")
    p("buffer_store_dword v252, v1, s[92:95], 0 offen")
    p("buffer_store_dword v253, v1, s[92:95], 0 offen offset:256")
    if 'dbgst' in EXP:
        wg = [x for x in EXP if x.startswith('wg')]
        wg = int(wg[0][2:]) if wg else 0
        l2 = p.uid("sf2")
        p(f"s_cmp_eq_u32 s2, {wg}")
        p(f"s_cbranch_scc0 {l2}")
        p.srd(SA, P_DBG, 0, 256)
        sel = [0, 2, 3, 5, 7, 9, 12, 13, 14, 17, 22, 23, 24, 40]
        p("s_nop 4")
        p("v_readlane_b32 s12, v252, 0")
        for i, sid in enumerate(sel):
            p(f"v_readlane_b32 s9, v252, {sid}")
            p("s_nop 3")
            p("s_sub_u32 s9, s9, s12")
            if i == 0: p("s_mov_b32 s9, s12")
            p(f"v_writelane_b32 v1, s9, {i}")
        p("v_and_b32 v2, 63, v0")
        p("v_lshlrev_b32 v2, 2, v2")
        p("v_add_u32 v2, 8, v2")
        p("s_mov_b32 exec_lo, 0x3fff"); p("s_mov_b32 exec_hi, 0")
        p(f"buffer_store_dword v1, v2, {sr(SA)}, 0 offen")
        p("s_mov_b64 exec, -1")
        p.label(l2)
    p.label(lab)

def flag_store(p, table, idx_sreg, layer_off=False, cluster=False):
    lab = p.uid("sig")
    p(f"s_cmp_eq_u32 s{S_W}, 0")
    p(f"s_cbranch_scc0 {lab}")
    p(f"s_lshl_b32 s{S_T}, s{idx_sreg}, 3")
    p(f"s_add_u32 s{S_T}, s{S_T}, {table}")
    if layer_off:
        p(f"s_lshl_b32 s{S_T+1}, s{S_LAY}, 12")
        p(f"s_add_u32 s{S_T}, s{S_T}, s{S_T+1}")
    p(f"v_mov_b32 v{VN}, s{S_N}")
    p(f"v_mov_b32 v{VN+1}, s{S_N+1}")
    p(f"v_mov_b32 v1, s{S_T}")
    p("s_mov_b64 exec, 1")
    if cluster:
        l2 = p.uid("sigslow"); l3 = p.uid("sigdone")
        p(f"s_cmp_eq_u32 s{S_FAST}, 1")
        p(f"s_cbranch_scc0 {l2}")
        p(f"buffer_store_dwordx2 {v(VN,2)}, v1, {sr(S_FL)}, 0 offen")
        p(f"s_branch {l3}")
        p.label(l2)
        p("buffer_wbl2 sc1")
        p("s_waitcnt vmcnt(0)")
        p(f"buffer_store_dwordx2 {v(VN,2)}, v1, {sr(S_FL)}, 0 offen sc1")
        p.label(l3)
    else:
        p(f"buffer_store_dwordx2 {v(VN,2)}, v1, {sr(S_FL)}, 0 offen sc1")
    p("s_mov_b64 exec, -1")
    p.label(lab)

def flag_store_rep(p, table, idx_sreg):
    lab = p.uid("sigr")
    p(f"s_cmp_eq_u32 s{S_W}, 0")
    p(f"s_cbranch_scc0 {lab}")
    p(f"s_lshl_b32 s{S_T}, s{idx_sreg}, 3")
    p(f"s_add_u32 s{S_T}, s{S_T}, {table}")
    p(f"v_mov_b32 v{VN}, s{S_N}")
    p(f"v_mov_b32 v{VN+1}, s{S_N+1}")
    p("v_lshlrev_b32 v1, 11, v0")
    p(f"v_add_u32 v1, s{S_T}, v1")
    p("s_mov_b64 exec, 0xff")
    p(f"buffer_store_dwordx2 {v(VN,2)}, v1, {sr(S_FL)}, 0 offen sc1")
    p("s_mov_b64 exec, -1")
    p.label(lab)

def signal(p, table, idx_sreg, layer_off=False, cluster=False, upto=None):
    if upto: p.wait_vm(upto)
    else: p.wait_vm()
    p("s_barrier")
    if table in (FL_S1R, FL_S2R): flag_store_rep(p, table, idx_sreg)
    else: flag_store(p, table, idx_sreg, layer_off, cluster)

def setexec(p, nl):
    m = (1 << nl) - 1
    lo, hi = m & 0xffffffff, m >> 32
    p(f"s_mov_b32 exec_lo, {hex(lo) if lo != 0xffffffff else -1}")
    p(f"s_mov_b32 exec_hi, {hex(hi) if hi != 0xffffffff else -1}")

def poll(p, offs, n_loads, masks, cluster=False, all_waves=False):
    lab = p.uid("poll"); done = p.uid("polld"); skip = p.uid("polls")
    if not all_waves:
        p(f"s_cmp_eq_u32 s{S_W}, 0")
        p(f"s_cbranch_scc0 {skip}")
    p(f"s_mov_b32 s{S_T}, 0")
    p.label(lab)
    for i in range(n_loads):
        setexec(p, masks[i])
        p(f"buffer_load_dwordx2 {v(2+2*i,2)}, v{offs[i]}, {sr(S_FL)}, 0 offen sc1")
    p("s_waitcnt vmcnt(0)")
    p("s_mov_b32 s9, 1")
    for i in range(n_loads):
        setexec(p, masks[i])
        p(f"v_cmp_eq_u64 vcc, {s(S_N,2)}, {v(2+2*i,2)}")
        p("s_nop 4")
        p("s_cmp_eq_u64 vcc, exec")
        p("s_cselect_b32 s9, s9, 0")
    p("s_mov_b64 exec, -1")
    p("s_cmp_eq_u32 s9, 1")
    p(f"s_cbranch_scc1 {done}")
    p(f"s_add_u32 s{S_T}, s{S_T}, 1")
    p(f"s_cmp_lt_u32 s{S_T}, 0x8000")
    p(f"s_cbranch_scc0 {done}")
    if not cluster or 'nosleep' not in EXP: p("s_sleep 1")
    p(f"s_branch {lab}")
    p.label(done)
    if cluster:
        l2 = p.uid("acq")
        p(f"s_cmp_eq_u32 s{S_FAST}, 1")
        p(f"s_cbranch_scc1 {l2}")
        p("buffer_inv sc1")
        p("s_waitcnt vmcnt(0)")
        p.label(l2)
    p.label(skip)
    p("s_barrier")
    p.vmq = []

def get_nonce(p):
    lab = p.uid("non"); done = p.uid("nond")
    p(f"s_mov_b32 s{S_T}, 0")
    p.label(lab)
    p("v_mov_b32 v1, 0")
    p(f"buffer_load_dwordx2 v[2:3], v1, {sr(SF_)}, 0 offen sc1")
    p("s_waitcnt vmcnt(0)")
    p(f"v_readfirstlane_b32 s{S_N}, v2")
    p(f"v_readfirstlane_b32 s{S_N+1}, v3")
    p("s_nop 3")
    p(f"s_or_b32 s9, s{S_N}, s{S_N+1}")
    p("s_cmp_lg_u32 s9, 0")
    p(f"s_cbranch_scc1 {done}")
    p(f"s_add_u32 s{S_T}, s{S_T}, 1")
    p(f"s_cmp_lt_u32 s{S_T}, 0x8000")
    p(f"s_cbranch_scc0 {done}")
    p("s_sleep 1")
    p(f"s_branch {lab}")
    p.label(done)
    p.vmq = []

def tlb_warm(p):
    if 'notlb' in EXP: return
    ent = [(P_K, None), (P_V, None), (P_SK, 0), (P_W1, 0), (P_W2, 0), (P_H, "h"), (P_Q, "q"), (P_DV, 0), (P_DBG, 0), (P_OUT, "q"),
           (P_WS, WS_KVT), (P_WS, WS_YB), (P_WS, WS_W1P), (P_WS, WS_W2P), (P_WS, WS_FLAGS), (P_WS, "pb0"), (P_WS, "pb1")]
    lab = p.uid("tw")
    p(f"s_cmp_eq_u32 s{S_W}, 0")
    p(f"s_cbranch_scc0 {lab}")
    p(f"v_mov_b32 v2, s{P_K}"); p(f"v_mov_b32 v3, s{P_K+1}")
    p(f"s_mul_i32 s9, s{S_RB}, {8*ROWB}")
    p("s_min_u32 s10, s2, 223"); p("s_lshl_b32 s10, s10, 13")
    p(f"s_mul_i32 s11, s{S_CL}, {8*64*ROWB}"); p(f"s_add_u32 s11, s11, {hex(WS_PB)}")
    for i, (ptr, off) in enumerate(ent):
        if off in (None, 0):
            lo, hi = ptr, ptr + 1
        else:
            if off == "q": src = "s9"
            elif off == "h": src = "s10"
            elif off == "pb0": src = "s11"
            elif off == "pb1":
                p(f"s_add_u32 s11, s11, {8*64*ROWB - 128}"); src = "s11"
            else: src = hex(off)
            p(f"s_add_u32 s12, s{ptr}, {src}"); p(f"s_addc_u32 s13, s{ptr+1}, 0")
            lo, hi = 12, 13
        p(f"v_writelane_b32 v2, s{lo}, {i}")
        p(f"v_writelane_b32 v3, s{hi}, {i}")
    setexec(p, len(ent))
    p("global_load_dword v254, v[2:3], off")
    p("s_mov_b64 exec, -1")
    p.label(lab)

def prep(p):
    S_RBK, S_CG = 12, 13
    SK_, SV_, SSK, SKVT, SSRC, SDST = SA, SB_, SC, SD, SE, S_W1
    T0 = 72
    p.div_const(S_RBK, 2, 7)
    p(f"s_mul_i32 s{S_CG}, s{S_RBK}, 7")
    p(f"s_sub_u32 s{S_CG}, s2, s{S_CG}")
    p.srd(SK_, P_K, 0, MAT); p.srd(SV_, P_V, 0, MAT); p.srd(SSK, P_SK, 0, D * 8); p.srd(SKVT, P_WS, WS_KVT, MAT)
    p("v_and_b32 v1, 15, v0")
    p("v_lshrrev_b32 v2, 4, v0")
    p(f"s_lshl_b32 s9, s{S_RBK}, 6")
    p("s_sub_u32 s9, s9, 3")
    p("v_lshl_add_u32 v3, v2, 2, s9")
    p(f"v_mul_i32_i24 v4, {ROWB}, v3")
    p(f"s_lshl_b32 s10, s{S_CG}, 7")
    p("v_lshl_add_u32 v5, v1, 3, s10")
    p("v_add_u32 v4, v4, v5")
    for i in range(1, 7):
        p(f"v_add_u32 v{5+i}, {ROWB*i}, v4")
    off = lambda i: "v4" if i == 0 else f"v{5+i}"
    p("v_lshlrev_b32 v12, 2, v5")
    for i in range(7):
        p.vm(f"buffer_load_dwordx2 {v(16+2*i,2)}, {off(i)}, {sr(SK_)}, 0 offen", "k")
    for i in range(4):
        p.vm(f"buffer_load_dwordx2 {v(30+2*i,2)}, {off(i+3)}, {sr(SV_)}, 0 offen", "k")
    p.vm(f"buffer_load_dwordx4 v[38:41], v12, {sr(SSK)}, 0 offen", "k")
    p.vm(f"buffer_load_dwordx4 v[42:45], v12, {sr(SSK)}, 0 offen offset:16", "k")
    if 'pp' in EXP: stamp(p, 34)
    S_J, S_R, S_ISW2, S_STR = T0, T0 + 1, T0 + 2, T0 + 3
    p("s_cmp_ge_u32 s2, 112")
    p(f"s_cselect_b32 s{S_ISW2}, 1, 0")
    p("s_cselect_b32 s9, 112, 0")
    p("s_sub_u32 s9, s2, s9")
    p.div_const(S_J, 9, 14)
    p(f"s_mul_i32 s10, s{S_J}, 14")
    p(f"s_sub_u32 s{S_R}, s9, s10")
    p(f"s_mul_i32 s10, s{S_R}, {32*3584}")
    p(f"s_mul_i32 s11, s{S_J}, 448")
    p("s_add_u32 s10, s10, s11")
    p(f"s_lshr_b32 s11, s{S_R}, 1")
    p(f"s_mul_i32 s11, s11, {32*896}")
    p(f"s_mul_i32 s14, s{S_J}, {224*896}")
    p("s_add_u32 s11, s11, s14")
    p(f"s_and_b32 s14, s{S_R}, 1")
    p("s_mul_i32 s14, s14, 448")
    p("s_add_u32 s11, s11, s14")
    p(f"s_cmp_eq_u32 s{S_ISW2}, 1")
    p("s_cselect_b32 s10, s11, s10")
    p.csel(S_STR, 896, 3584)
    p(f"s_cselect_b32 s{SSRC}, s{P_W2}, s{P_W1}")
    p(f"s_cselect_b32 s{SSRC+1}, s{P_W2+1}, s{P_W1+1}")
    p(f"s_mov_b32 s{SSRC+2}, {hex(D*F*2)}")
    p(f"s_mov_b32 s{SSRC+3}, 0x20000")
    for m in range(4):
        p(f"v_add_u32 v13, {256*m}, v0")
        p("v_mul_u32_u24 v14, 2341, v13")
        p("v_lshrrev_b32 v14, 16, v14")
        p("v_mul_u32_u24 v15, 28, v14")
        p("v_sub_u32 v15, v13, v15")
        p(f"v_mul_lo_u32 v14, v14, s{S_STR}")
        p("v_lshl_add_u32 v14, v15, 4, v14")
        p("v_add_u32 v14, s10, v14")
        if m == 3:
            p("v_cmp_gt_u32 vcc, 896, v13")
            p("v_cndmask_b32 v14, -1, v14, vcc")
        p.vm(f"buffer_load_dwordx4 {v(48+4*m,4)}, v14, {sr(SSRC)}, 0 offen", "w")
    if 'pp' in EXP: stamp(p, 35)
    p("v_and_b32 v46, 63, v0")
    p("v_lshrrev_b32 v47, 4, v46")
    p("v_bfe_u32 v14, v46, 2, 2")
    p("v_and_b32 v15, 3, v46")
    p("v_lshl_add_u32 v47, v47, 3, v14")
    p("v_mul_u32_u24 v47, 448, v47")
    p("v_lshlrev_b32 v46, 4, v46")
    p(f"s_cmp_eq_u32 s{S_ISW2}, 1")
    p.csel(9, hex(WS_W2P), hex(WS_W1P))
    p(f"s_add_u32 s{SDST}, s{P_WS}, s9")
    p(f"s_addc_u32 s{SDST+1}, s{P_WS+1}, 0")
    p(f"s_mov_b32 s{SDST+2}, {hex(W1P_BYTES)}")
    p(f"s_mov_b32 s{SDST+3}, 0x20000")
    t = [76, 77, 78, 79]
    for m in range(4):
        ST, DST = 14, 80 + m
        p(f"s_add_u32 s{ST}, s{S_W}, {4*m}")
        p(f"s_cmp_ge_u32 s{ST}, 7")
        p(f"s_cselect_b32 s{t[0]}, 1, 0")
        p(f"s_mul_i32 s{t[1]}, s{t[0]}, 7")
        p(f"s_sub_u32 s{t[1]}, s{ST}, s{t[1]}")
        p(f"s_mul_i32 s{DST}, s{S_J}, 7")
        p(f"s_add_u32 s{DST}, s{DST}, s{t[1]}")
        p(f"s_lshl_b32 s{DST}, s{DST}, 1")
        p(f"s_add_u32 s{DST}, s{DST}, s{t[0]}")
        p(f"s_mul_i32 s{DST}, s{DST}, 14")
        p(f"s_add_u32 s{DST}, s{DST}, s{S_R}")
        p(f"s_and_b32 s9, s{ST}, 1")
        p(f"s_lshr_b32 s10, s{ST}, 1")
        p(f"s_and_b32 s11, s{S_R}, 1")
        p("s_mul_i32 s11, s11, 7")
        p("s_add_u32 s11, s11, s10")
        p(f"s_lshr_b32 s15, s{S_R}, 1")
        p("s_mul_i32 s15, s15, 7")
        p(f"s_mul_i32 s{t[0]}, s{S_J}, 196")
        p(f"s_add_u32 s15, s15, s{t[0]}")
        p(f"s_and_b32 s{t[0]}, s11, 3")
        p(f"s_mul_i32 s{t[0]}, s{t[0]}, 49")
        p(f"s_lshr_b32 s{t[1]}, s11, 2")
        p(f"s_lshl_b32 s{t[1]}, s{t[1]}, 1")
        p(f"s_add_u32 s{t[1]}, s{t[1]}, s9")
        p(f"s_add_u32 s{t[0]}, s{t[0]}, s{t[1]}")
        p(f"s_lshl_b32 s10, s10, 6")
        p(f"s_lshl_b32 s{t[1]}, s9, 3")
        p(f"s_add_u32 s{t[1]}, s{t[1]}, s10")
        p(f"s_sub_u32 s{t[2]}, s11, 12")
        p(f"s_lshl_b32 s{t[2]}, s{t[2]}, 1")
        p(f"s_add_u32 s{t[2]}, s{t[2]}, s9")
        p(f"s_mul_i32 s{t[2]}, s{t[2]}, 49")
        p(f"s_add_u32 s{t[2]}, s{t[2]}, 6")
        p(f"s_lshl_b32 s{t[3]}, s9, 5")
        p(f"s_add_u32 s{t[3]}, s{t[3]}, s10")
        p("s_cmp_lt_u32 s11, 12")
        p(f"s_cselect_b32 s{t[0]}, s{t[0]}, s{t[2]}")
        p(f"s_cselect_b32 s{t[1]}, s{t[1]}, s{t[3]}")
        p(f"s_cselect_b32 s{t[2]}, 4, 3")
        p(f"s_add_u32 s{t[0]}, s{t[0]}, s15")
        p(f"s_lshl_b32 s{t[3]}, s{ST}, 5")
        p(f"s_cmp_eq_u32 s{S_ISW2}, 1")
        p(f"s_cselect_b32 s{DST}, s{t[0]}, s{DST}")
        p(f"s_cselect_b32 s{t[1]}, s{t[1]}, s{t[3]}")
        p(f"s_cselect_b32 s{t[2]}, s{t[2]}, 3")
        p(f"s_lshl_b32 s{DST}, s{DST}, 10")
        p(f"v_lshlrev_b32 v{144+m}, s{t[2]}, v15")
        p(f"v_add3_u32 v{144+m}, v{144+m}, v47, s{t[1]}")
    mlp_setup(p)
    if 'pp' in EXP: stamp(p, 30)
    p.wait_vm("w")
    if 'pp' in EXP: stamp(p, 31)
    early_loads(p)
    p("v_lshlrev_b32 v14, 4, v0")
    for m in range(3):
        p.lg(f"ds_write_b128 v14, {v(48+4*m,4)} offset:{LB+4096*m}")
    lab = p.uid("skip3")
    p(f"s_cmp_ge_u32 s{S_W}, 2")
    p(f"s_cbranch_scc1 {lab}")
    p(f"ds_write_b128 v14, {v(60,4)} offset:{LB+4096*3}")
    p.label(lab)
    p.wait_lg()
    p("s_barrier")
    for m in range(4):
        p.lg(f"ds_read_b64_tr_b16 {v(48+4*m,2)}, v{144+m} offset:{LB}", f"t{m}")
        p.lg(f"ds_read_b64_tr_b16 {v(48+4*m+2,2)}, v{144+m} offset:{LB+4*448}", f"t{m}")
    for m in range(3):
        p.wait_lg(f"t{m}")
        p.vm(f"buffer_store_dwordx4 {v(48+4*m,4)}, v46, {sr(SDST)}, s{80+m} offen sc1", "wst")
    lab = p.uid("pk")
    p.wait_lg()
    p(f"s_cmp_ge_u32 s{S_W}, 2")
    p(f"s_cbranch_scc1 {lab}")
    p(f"buffer_store_dwordx4 {v(60,4)}, v46, {sr(SDST)}, s83 offen sc1")
    p.label(lab)
    p.srd(SF_, P_DBG, 0, 256)
    p("v_mov_b32 v47, 0")
    p.vm(f"buffer_load_dwordx2 v[150:151], v47, {sr(SF_)}, 0 offen sc1", "nonce")
    if 'pp' in EXP: stamp(p, 32)
    KF, SF, VF, AC, OP = 64, 92, 108, 124, 140
    p("v_mov_b32 v15, 0xffff0000")
    for i in range(7):
        for d in range(2):
            p(f"v_lshlrev_b32 v{KF+4*i+2*d}, 16, v{16+2*i+d}")
            p(f"v_and_b32 v{KF+4*i+2*d+1}, v15, v{16+2*i+d}")
    for e in range(4):
        for j in range(4):
            src = 38 + 2*e + (j >> 1)
            if j & 1: p(f"v_and_b32 v{SF+4*j+e}, v15, v{src}")
            else: p(f"v_lshlrev_b32 v{SF+4*j+e}, 16, v{src}")
    for i in range(4):
        for d in range(2):
            p(f"v_lshlrev_b32 v{VF+4*i+2*d}, 16, v{30+2*i+d}")
            p(f"v_and_b32 v{VF+4*i+2*d+1}, v15, v{30+2*i+d}")
    for j in range(4):
        for r in range(4):
            for e in (0, 2):
                kf = v(KF+4*(r+3-j)+e, 2); sf = v(SF+4*j+e, 2); ac = v(AC+4*r+e, 2)
                if j == 0: p(f"v_pk_mul_f32 {ac}, {kf}, {sf}")
                else: p(f"v_pk_fma_f32 {ac}, {kf}, {sf}, {ac}")
    for r in range(4):
        for e in (0, 2):
            p(f"v_pk_mul_f32 {v(AC+4*r+e,2)}, {v(AC+4*r+e,2)}, {v(VF+4*r+e,2)}")
    for e in range(4):
        p(f"v_cvt_pk_bf16_f32 v{OP+2*e}, v{AC+e}, v{AC+4+e}")
        p(f"v_cvt_pk_bf16_f32 v{OP+2*e+1}, v{AC+8+e}, v{AC+12+e}")
    if 'pp' in EXP: stamp(p, 33)
    p("v_xor_b32 v13, v1, v2")
    p("v_lshlrev_b32 v13, 3, v13")
    p("v_lshl_add_u32 v13, v1, 9, v13")
    for e in range(4):
        p.lg(f"ds_write_b64 v13, {v(OP+2*e,2)} offset:{LA+128*e}")
    p.wait_lg()
    p("s_barrier")
    p("v_lshrrev_b32 v1, 3, v0")
    p("v_and_b32 v2, 7, v0")
    p("v_lshlrev_b32 v3, 1, v2")
    p(f"s_lshl_b32 s9, s{S_CG}, 6")
    p(f"s_lshl_b32 s10, s{S_RBK}, 7")
    for pi in range(2):
        p(f"v_add_u32 v4, {32*pi}, v1")
        p("v_lshrrev_b32 v5, 2, v4")
        p("v_xor_b32 v6, v3, v5")
        p("v_xor_b32 v7, 1, v6")
        p("v_lshlrev_b32 v8, 7, v4")
        p("v_lshl_add_u32 v6, v6, 3, v8")
        p("v_lshl_add_u32 v7, v7, 3, v8")
        p.lg(f"ds_read_b64 {v(16+4*pi,2)}, v6 offset:{LA}", f"a{pi}")
        p.lg(f"ds_read_b64 {v(18+4*pi,2)}, v7 offset:{LA}", f"a{pi}")
        p("v_add_u32 v8, s9, v4")
        p("v_lshlrev_b32 v8, 12, v8")
        p("v_lshl_add_u32 v8, v2, 4, v8")
        p(f"v_add_u32 v{24+pi}, s10, v8")
    for pi in range(2):
        p.wait_lg(f"a{pi}")
        p.vm(f"buffer_store_dwordx4 {v(16+4*pi,4)}, v{24+pi}, {sr(SKVT)}, 0 offen sc1", "kvst")

HW = 160
def code_prefetch(p):
    if 'nocode' in EXP: return
    p("s_getpc_b64 s[90:91]")
    lab = p.uid("K_pc")
    p.label(lab)
    p("v_lshlrev_b32 v180, 7, v0")
    p(f"v_cmp_gt_u32 vcc, (K_end - {lab}), v180")
    p("s_and_saveexec_b64 s[10:11], vcc")
    p.vm("global_load_dword v255, v180, s[90:91]", "code")
    p("s_mov_b64 exec, s[10:11]")

def q_loads(p):
    p.srd(SF_, P_Q, 0, MAT)
    p.vm(f"buffer_load_dwordx4 {v(XP,4)}, v{OFFA}, {sr(SF_)}, 0 offen", "q")
    p.vm(f"buffer_load_dwordx4 {v(XP+4,4)}, v{OFFB}, {sr(SF_)}, 0 offen", "q")

def early_loads(p):
    SH = SF_
    p("s_lshl_b32 s9, s2, 13")
    p(f"s_add_u32 s{SH}, s{P_H}, s9"); p(f"s_addc_u32 s{SH+1}, s{P_H+1}, 0")
    p(f"s_mov_b32 s{SH+2}, 8192"); p(f"s_mov_b32 s{SH+3}, 0x20000")
    p("v_sub_u32 v176, 255, v0")
    p("v_lshlrev_b32 v176, 4, v176")
    p("v_subrev_u32 v177, 16, v176")
    for ch in range(2):
        p(f"v_add_u32 v178, {4096*ch}, v177")
        p(f"v_add_u32 v179, {4096*ch}, v176")
        p.vm(f"buffer_load_dwordx4 {v(HW+8*ch,4)}, v178, {sr(SH)}, 0 offen", "h")
        p.vm(f"buffer_load_dwordx4 {v(HW+4+8*ch,4)}, v179, {sr(SH)}, 0 offen", "h")
    if 'qearly' in EXP: q_loads(p)

def hbuild(p):
    p("v_mov_b32 v5, 0xffff")
    p("v_cmp_ne_u32 vcc, 255, v0")
    p("v_lshlrev_b32 v6, 4, v0")
    E1, E2, O1, O2 = 32, 40, 46, 54
    for ch in range(2):
        W = HW + 8 * ch
        for d in range(4):
            p(f"v_cndmask_b32 v{W+d}, 0, v{W+d}, vcc")
        def o(dst, sidx):
            if sidx % 2 == 0:
                pz = (14 - sidx) // 2
                p(f"v_alignbit_b32 v{dst}, v{W+pz}, v{W+pz}, 16")
            else:
                p(f"v_bfi_b32 v{dst}, v5, v{W+(15-sidx)//2}, v{W+(13-sidx)//2}")
        for n in range(7): o(E1 + n, 2 * n)
        for n in range(6): o(E2 + n, 2 * n + 2)
        for n in range(7): o(O1 + n, 2 * n + 1)
        for n in range(6): o(O2 + n, 2 * n + 3)
        src = {0: E1, 4: E1 + 2, 2: E2, 6: E2 + 2, 1: O1, 5: O1 + 2, 3: O2, 7: O2 + 2}
        for c in range(8):
            p.lg(f"ds_write_b128 v6, {v(src[c],4)} offset:{ch*HC_CH + c*HC_COPY}")
        p("s_nop 1")
    for r in range(4): p(f"v_mov_b32 v{60+r}, 0")
    p("v_and_b32 v7, 15, v0")
    p(f"v_mul_u32_u24 v7, {HC_COPY}, v7")
    p("v_add_u32 v7, 4096, v7")
    p("v_and_b32 v8, 31, v0")
    p("v_lshlrev_b32 v8, 4, v8")
    p("v_bfe_u32 v9, v0, 5, 1")
    p(f"v_mul_u32_u24 v9, {U_CH}, v9")
    p(f"s_mov_b32 s9, {L_U}")
    p("v_add3_u32 v8, v8, v9, s9")
    p.lg(f"ds_write_b128 v7, {v(60,4)}")
    p.lg(f"ds_write_b128 v8, {v(60,4)}")

W20, W2A, W2B = 12, 49, 49
def w2_items(SW2):
    G = []
    for f in range(49):
        it = []
        base = f - f % 4
        if f % 4 == 0 or f in (W20, W2A, W2B): it.append((f"s_mov_b32 s15, {1024*base}", "", None))
        it.append((f"buffer_load_dwordx4 {a(4*f,4)}, v{V_L16}, {sr(SW2)}, s15 offen offset:{1024*(f%4)} {'sc1 nt' if 'wnt2' in EXP else 'sc1'}", "vm", "w2"))
        G.append(it)
    return G

def load_w2(p, SW2):
    for f in range(49):
        if f % 4 == 0: p(f"s_mov_b32 s9, {1024*f}")
        p.vm(f"buffer_load_dwordx4 {a(4*f,4)}, v{V_L16}, {sr(SW2)}, s9 offen offset:{1024*(f%4)} sc1", "w2")

def conv_main(p):
    ACC, FA, FB = 72, 96, 16
    fb = lambda buf, m: (16 + 28 * buf + 4 * m) if m < 7 else (160 + 4 * buf)
    p("v_and_b32 v1, 63, v0")
    p("v_and_b32 v2, 15, v1")
    p("v_lshrrev_b32 v3, 4, v1")
    p("v_and_b32 v4, 7, v2")
    p("v_sub_u32 v4, 7, v4")
    p(f"v_mul_u32_u24 v4, {HC_COPY}, v4")
    p("v_lshrrev_b32 v5, 3, v2")
    p("v_sub_u32 v5, v3, v5")
    p("v_add_u32 v5, 1, v5")
    p("v_lshl_add_u32 v4, v5, 4, v4")
    p(f"s_mul_i32 s9, s{S_B}, {HC_CH}")
    p("v_add_u32 v12, s9, v4")
    p(f"s_mul_i32 s9, s{S_B}, {U_CH}")
    p(f"s_add_u32 s9, s9, {L_U + 512 - 32 - 64*7}")
    p("v_lshlrev_b32 v5, 5, v2")
    p("v_lshl_add_u32 v5, v3, 4, v5")
    p("v_add_u32 v13, s9, v5")
    set1 = p.uid("cset1"); join = p.uid("cjoin")
    p(f"s_cmp_eq_u32 s{S_A}, 1")
    p(f"s_cbranch_scc1 {set1}")
    for st, tiles in ((0, (0, 3, 4, 7)), (1, (1, 2, 5, 6))):
        if st == 1: p.label(set1)
        mx = max(tiles)
        def reads(rho, buf):
            L = []
            for m in range(mx + 1):
                L.append((f"ds_read_b128 {v(FA+32*buf+4*m,4)}, v12 offset:{512*(7-m)+64*(7-rho)}", "lg", f"r{rho}_{m}"))
                L.append((f"ds_read_b128 {v(fb(buf,m),4)}, v13 offset:{512*m+64*(7-rho)}", "lg", f"r{rho}_{m}"))
            return L
        saved_vm = list(p.vmq)
        w2 = w2_items(SE)[W20:W2A] if 'now2' not in EXP else []
        for it in reads(0, 0): emit(p, it)
        first = set()
        for rho in range(8):
            buf = rho & 1
            nxt = reads(rho + 1, buf ^ 1) if rho < 7 else []
            mf = sorted([(max(mu, nt - mu), ti, nt, mu) for ti, nt in enumerate(tiles) for mu in range(nt + 1)])
            M = []; seen = -1
            for (mm, ti, nt, mu) in mf:
                c = v(ACC+4*ti,4) if ti in first else "0"
                first.add(ti)
                t = f"v_mfma_f32_16x16x32_bf16 {v(ACC+4*ti,4)}, {v(FA+32*buf+4*mu,4)}, {v(fb(buf,nt-mu),4)}, {c}"
                w = []
                if mm > seen: w.append((None, "wlg", f"r{rho}_{mm}")); seen = mm
                M.append((t, w))
            N = {}
            for i, it in enumerate(nxt): N.setdefault(i, []).append(it)
            slots = [3, 6, 9, 12, 15, 17]
            for q_ in range(6 if rho < 7 else 0):
                if w2: N.setdefault(slots[q_], []).extend(w2.pop(0))
            schedule(p, M, [], N)
        assert not w2
        p.vmq = saved_vm + ["w2"]
        p("s_barrier")
        p(f"s_mul_i32 s9, s{S_B}, {U_CH}")
        p(f"s_add_u32 s9, s9, {L_U + 512}")
        p("v_lshlrev_b32 v5, 5, v2")
        p("v_lshl_add_u32 v5, v3, 3, v5")
        p("v_add_u32 v6, s9, v5")
        p(f"s_mul_i32 s9, s{S_B}, {YS_CH}")
        p("v_add_u32 v7, s9, v5")
        for ti, nt in enumerate(tiles):
            p.lg(f"ds_read_b64 {v(FA+2*ti,2)}, v6 offset:{512*nt}", f"u{ti}")
        p("v_mov_b32 v8, 0xffff0000")
        for ti, nt in enumerate(tiles):
            p.wait_lg(f"u{ti}")
            u = FA + 2 * ti; t = 16 + 4 * ti
            p(f"v_lshlrev_b32 v{t}, 16, v{u}")
            p(f"v_and_b32 v{t+1}, v8, v{u}")
            p(f"v_lshlrev_b32 v{t+2}, 16, v{u+1}")
            p(f"v_and_b32 v{t+3}, v8, v{u+1}")
            for r in range(4):
                p(f"v_fma_f32 v{t+r}, v{t+r}, s14, v{ACC+4*ti+r}")
            p(f"v_cvt_pk_bf16_f32 v{t}, v{t}, v{t+1}")
            p(f"v_cvt_pk_bf16_f32 v{t+1}, v{t+2}, v{t+3}")
            p.lg(f"ds_write_b64 v7, {v(t,2)} offset:{512*nt}")
        p.wait_lg()
        if st == 0: p(f"s_branch {join}")
    p.label(join)
    p("s_barrier")

def conv_out(p, SY):
    p("v_and_b32 v1, 3, v0")
    p("v_lshrrev_b32 v2, 2, v0")
    p("v_lshrrev_b32 v3, 1, v1")
    p("v_and_b32 v4, 1, v1")
    p(f"v_mul_u32_u24 v3, {YS_CH}, v3")
    p("v_lshl_add_u32 v3, v4, 4, v3")
    p("v_lshl_add_u32 v3, v2, 5, v3")
    p.lg("ds_read_b128 v[16:19], v3", "y0")
    p.lg(f"ds_read_b128 v[20:23], v3 offset:{64*32}", "y1")
    p(f"v_mul_u32_u24 v5, {D*32}, v2")
    p("v_lshl_add_u32 v5, v1, 4, v5")
    p("s_lshl_b32 s9, s2, 6")
    p("v_add_u32 v5, s9, v5")
    p(f"v_add_u32 v6, {64*D*32}, v5")
    p.wait_lg("y0")
    p.vm(f"buffer_store_dwordx4 v[16:19], v5, {sr(SY)}, 0 offen sc1", "yst")
    p.wait_lg("y1")
    p.vm(f"buffer_store_dwordx4 v[20:23], v6, {sr(SY)}, 0 offen sc1", "yst")

X, T, PK, TMP = 16, 32, 64, 72
YT = 96
def row_setup(p):
    p("v_and_b32 v181, 31, v0")
    p("v_lshrrev_b32 v182, 5, v0")
    p(f"v_cmp_gt_u32 {ACT}, 28, v181")
    p(f"v_mul_u32_u24 v183, {ROWB}, v182")
    p("v_lshl_add_u32 v183, v181, 4, v183")
    p(f"s_mul_i32 s9, s{S_RB}, {8*ROWB}")
    p("v_add_u32 v183, s9, v183")
    p(f"v_cndmask_b32 v{OFFA}, -1, v183, {ACT}")
    p("v_add_u32 v183, 448, v183")
    p(f"v_cndmask_b32 v{OFFB}, -1, v183, {ACT}")

def unpack(p, dst, src, n):
    for i in range(n):
        p(f"v_lshlrev_b32 v{dst+2*i}, 16, v{src+i}")
        p(f"v_and_b32 v{dst+2*i+1}, v7, v{src+i}")
def pack(p, dst, src, n):
    for i in range(n):
        p(f"v_cvt_pk_bf16_f32 v{dst+i}, v{src+2*i}, v{src+2*i+1}")
def allreduce32(p, r, t):
    for m in ("quad_perm:[1,0,3,2]", "quad_perm:[2,3,0,1]", "row_half_mirror", "row_mirror"):
        p(f"v_add_f32_dpp v{r}, v{r}, v{r} {m} row_mask:0xf bank_mask:0xf")
    p(f"v_mov_b32 v{t}, v{r}")
    p(f"v_permlane16_swap_b32 v{r}, v{t}")
    p(f"v_add_f32 v{r}, v{r}, v{t}")
def sum16(p, dst, src):
    p(f"v_pk_add_f32 {v(TMP,2)}, {v(src,2)}, {v(src+2,2)}")
    p(f"v_pk_add_f32 {v(TMP+2,2)}, {v(src+4,2)}, {v(src+6,2)}")
    p(f"v_pk_add_f32 {v(TMP+4,2)}, {v(src+8,2)}, {v(src+10,2)}")
    p(f"v_pk_add_f32 {v(TMP+6,2)}, {v(src+12,2)}, {v(src+14,2)}")
    p(f"v_pk_add_f32 {v(TMP,2)}, {v(TMP,2)}, {v(TMP+2,2)}")
    p(f"v_pk_add_f32 {v(TMP+4,2)}, {v(TMP+4,2)}, {v(TMP+6,2)}")
    p(f"v_pk_add_f32 {v(TMP,2)}, {v(TMP,2)}, {v(TMP+4,2)}")
    p(f"v_add_f32 v{dst}, v{TMP}, v{TMP+1}")
    p(f"v_cndmask_b32 v{dst}, 0, v{dst}, {ACT}")
def layernorm(p, src, dst, scale=None):
    M, V_ = TMP + 8, TMP + 10
    sum16(p, M, src)
    allreduce32(p, M, TMP + 9)
    p(f"v_mul_f32 v{M}, {fbits(-1.0/D)}, v{M}")
    p(f"v_mov_b32 v{M+1}, v{M}")
    for i in range(0, 16, 2):
        p(f"v_pk_add_f32 {v(dst+i,2)}, {v(src+i,2)}, {v(M,2)}")
    p(f"v_pk_mul_f32 {v(TMP,2)}, {v(dst,2)}, {v(dst,2)}")
    p(f"v_pk_mul_f32 {v(TMP+2,2)}, {v(dst+2,2)}, {v(dst+2,2)}")
    for i in range(4, 16, 4):
        p(f"v_pk_fma_f32 {v(TMP,2)}, {v(dst+i,2)}, {v(dst+i,2)}, {v(TMP,2)}")
        p(f"v_pk_fma_f32 {v(TMP+2,2)}, {v(dst+i+2,2)}, {v(dst+i+2,2)}, {v(TMP+2,2)}")
    p(f"v_pk_add_f32 {v(TMP,2)}, {v(TMP,2)}, {v(TMP+2,2)}")
    p(f"v_add_f32 v{V_}, v{TMP}, v{TMP+1}")
    p(f"v_cndmask_b32 v{V_}, 0, v{V_}, {ACT}")
    allreduce32(p, V_, TMP + 11)
    p(f"v_mov_b32 v{V_+1}, {fbits(1e-5)}")
    p(f"v_fmac_f32 v{V_+1}, {fbits(1.0/D)}, v{V_}")
    p(f"v_rsq_f32 v{V_}, v{V_+1}")
    if scale is not None: p(f"v_mul_f32 v{V_}, {fbits(scale)}, v{V_}")
    else: p("s_nop 0")
    p(f"v_mov_b32 v{V_+1}, v{V_}")
    for i in range(0, 16, 2):
        p(f"v_pk_mul_f32 {v(dst+i,2)}, {v(dst+i,2)}, {v(V_,2)}")

def y_load(p, SY):
    p(f"s_lshr_b32 s9, s{S_RB}, 1")
    p(f"s_mul_i32 s9, s9, {D*32}")
    p(f"s_and_b32 s10, s{S_RB}, 1")
    p("s_lshl_b32 s10, s10, 4")
    p("s_add_u32 s9, s9, s10")
    p("v_lshlrev_b32 v3, 5, v0")
    p("v_add_u32 v3, s9, v3")
    p(f"v_add_u32 v4, {256*32}, v3")
    p("v_cmp_gt_u32 vcc, 192, v0")
    p("v_cndmask_b32 v4, -1, v4, vcc")
    p.vm(f"buffer_load_dwordx4 {v(YT,4)}, v3, {sr(SY)}, 0 offen sc1", "y")
    p.vm(f"buffer_load_dwordx4 {v(YT+4,4)}, v4, {sr(SY)}, 0 offen sc1", "y")

def y_transpose(p):
    p("v_lshlrev_b32 v3, 2, v0")
    p.wait_vm("y")
    for wq in range(4):
        p.lg(f"ds_write_b32 v3, v{YT+wq} offset:{LY+2048*wq}")
        p.lg(f"ds_write_b32 v3, v{YT+4+wq} offset:{LY+2048*wq+1024}")
    p.wait_lg()
    p("s_barrier")
    p("v_and_b32 v1, 31, v0")
    p("v_lshrrev_b32 v4, 6, v0")
    p("v_lshlrev_b32 v4, 11, v4")
    p("v_lshl_add_u32 v4, v1, 5, v4")
    for k in range(2):
        p.lg(f"ds_read_b128 {v(YT+8*k,4)}, v4 offset:{LY+896*k}")
        p.lg(f"ds_read_b128 {v(YT+8*k+4,4)}, v4 offset:{LY+896*k+16}")
    p("v_bfe_u32 v5, v0, 5, 1")
    p("v_mov_b32 v6, 0x01000c0c")
    p("v_mov_b32 v3, 0x03020c0c")
    p("v_cmp_eq_u32 vcc, 1, v5")
    p("v_cndmask_b32 v6, v6, v3, vcc")
    p.wait_lg()
    for i in range(16):
        p(f"v_perm_b32 v{YV+i}, v{YT+i}, v{YT+i}, v6")

def poll_s2(p):
    lab = p.uid("s2"); done = p.uid("s2d"); skip = p.uid("s2s")
    p("v_and_b32 v1, 63, v0")
    p("s_and_b32 s9, s2, 7"); p("s_lshl_b32 s9, s9, 11"); p(f"s_add_u32 s9, s9, {FL_S2R}")
    for i in range(4):
        p(f"v_lshl_add_u32 v{12+i}, v1, 3, s9")
        if i: p(f"v_add_u32 v{12+i}, {512*i}, v{12+i}")
    p("v_and_b32 v48, 7, v0")
    p(f"s_lshl_b32 s9, s{S_CL}, 6")
    p(f"s_add_u32 s9, s9, {FL_XCC}")
    p("v_lshl_add_u32 v48, v48, 3, s9")
    p(f"s_cmp_eq_u32 s{S_W}, 0")
    p(f"s_cbranch_scc0 {skip}")
    if 's2st' in EXP:
        p("s_waitcnt vmcnt(0)"); stamp(p, 41)
    p(f"s_mov_b32 s{S_T}, 0")
    p.label(lab)
    masks = [64, 64, 64, 32]
    for i in range(4):
        setexec(p, masks[i])
        p(f"buffer_load_dwordx2 {v(2+2*i,2)}, v{12+i}, {sr(S_FL)}, 0 offen sc1")
    p("s_mov_b64 exec, -1")
    p(f"buffer_load_dwordx2 v[10:11], v48, {sr(S_FL)}, 0 offen sc1")
    p("s_waitcnt vmcnt(0)")
    p(f"v_subrev_u32 v10, s{S_N}, v10")
    p(f"v_cmp_eq_u32 vcc, s{S_N+1}, v11")
    p("v_cmp_gt_u32 s[10:11], 16, v10")
    p("s_nop 4")
    p("s_and_b64 vcc, vcc, s[10:11]")
    p("s_cmp_eq_u64 vcc, exec")
    p("s_cselect_b32 s9, 1, 0")
    for i in range(4):
        setexec(p, masks[i])
        p(f"v_cmp_eq_u64 vcc, {s(S_N,2)}, {v(2+2*i,2)}")
        p("s_nop 4")
        p("s_cmp_eq_u64 vcc, exec")
        p("s_cselect_b32 s9, s9, 0")
    p("s_mov_b64 exec, -1")
    p("s_cmp_eq_u32 s9, 1")
    p(f"s_cbranch_scc1 {done}")
    p(f"s_add_u32 s{S_T}, s{S_T}, 1")
    p(f"s_cmp_lt_u32 s{S_T}, 0x8000")
    p(f"s_cbranch_scc0 {done}")
    p("s_sleep 1")
    p(f"s_branch {lab}")
    p.label(done)
    if 's2st' in EXP:
        p(f"v_writelane_b32 v253, s{S_T}, 42"); p(f"v_writelane_b32 v252, s{S_T}, 43"); p(f"v_writelane_b32 v253, s{S_T}, 43")
    p("s_getreg_b32 s9, hwreg(HW_REG_XCC_ID, 0, 4)")
    p("v_cmp_eq_u32 vcc, s9, v10")
    p("s_nop 4")
    p("s_cmp_eq_u64 vcc, exec")
    p("s_cselect_b32 s9, 1, 0")
    if FORCE_SLOW: p("s_mov_b32 s9, 0")
    p("v_mov_b32 v2, s9")
    p(f"v_mov_b32 v3, {L_FASTW}")
    p("ds_write_b32 v3, v2")
    p("s_waitcnt lgkmcnt(0)")
    p.label(skip)
    p("s_barrier")
    p.vmq = []; p.lgq = []
    p(f"v_mov_b32 v3, {L_FASTW}")
    p.lg("ds_read_b32 v49, v3", "fw")

def fast_get(p):
    p.wait_lg("fw")
    p(f"v_readfirstlane_b32 s{S_FAST}, v49")

PB_ = 96
def partials_prelude(p):
    p("v_and_b32 v1, 31, v0")
    p("v_lshrrev_b32 v2, 5, v0")
    p(f"s_mul_i32 s9, s{S_MEM}, {8*ROWB}")
    p(f"v_mul_u32_u24 v3, {ROWB}, v2")
    p("v_lshl_add_u32 v3, v1, 4, v3")
    p("v_add_u32 v3, s9, v3")
    p(f"v_cndmask_b32 v12, -1, v3, {ACT}")
    p("v_add_u32 v3, 448, v3")
    p(f"v_cndmask_b32 v13, -1, v3, {ACT}")

def add_partials(p):
    for j in range(8):
        if j % 4 == 0: p(f"s_mov_b32 s9, {j*64*ROWB}")
        else: p(f"s_add_u32 s9, s9, {64*ROWB}")
        p.vm(f"buffer_load_dwordx4 {v(PB_+8*j,4)}, v12, {sr(S_PR)}, s9 offen sc1", f"p{j}")
        p.vm(f"buffer_load_dwordx4 {v(PB_+8*j+4,4)}, v13, {sr(S_PR)}, s9 offen sc1", f"p{j}")
    lab = p.uid("pf2")
    p(f"s_cmp_eq_u32 s{S_LAY}, 0"); p(f"s_cbranch_scc0 {lab}")
    for g_ in dma_w1_items(2, "pf2"):
        for it in g_: p(it[0])
    p.label(lab)
    p("v_mov_b32 v7, 0xffff0000")
    p("v_mov_b32 v14, 0x00003f80")
    p("v_mov_b32 v15, 0x3f800000")
    unpack(p, X, XP, 8)
    for i in range(16): p(f"v_mov_b32 v{T+i}, 0")
    p(f"v_mov_b32 v{TMP}, {fbits(LN2)}"); p(f"v_mov_b32 v{TMP+1}, {fbits(LN2)}")
    for j in range(8):
        p.wait_vm(f"p{j}")
        for i in range(8):
            p(f"v_dot2c_f32_bf16 v{T+2*i}, v{PB_+8*j+i}, v14")
            p(f"v_dot2c_f32_bf16 v{T+2*i+1}, v{PB_+8*j+i}, v15")
    for i in range(0, 16, 2):
        p(f"v_pk_fma_f32 {v(X+i,2)}, {v(T+i,2)}, {v(TMP,2)}, {v(X+i,2)}")

def xh(phi):
    return a(196 + 4 * phi, 4) if phi < 15 else v(148 + 4 * (phi - 15), 4)

def mlp_setup(p):
    row_setup(p)
    p("v_and_b32 v181, 63, v0")
    p("v_and_b32 v182, 15, v181")
    p("v_lshrrev_b32 v183, 4, v181")
    p(f"s_mul_i32 s9, s{S_A}, 14336")
    p(f"s_add_u32 s9, s9, {L_RING}")
    p(f"v_lshl_add_u32 v{V_A}, v181, 4, s9")
    p(f"v_add_u32 v{V_A2}, {2*CHUNK}, v{V_A}")
    p(f"s_lshl_b32 s9, s{S_B}, 5")
    p("v_add_u32 v184, s9, v182")
    p(f"v_mul_u32_u24 v184, {SH_}, v184")
    p("v_bfe_u32 v185, v182, 1, 2")
    p("v_lshrrev_b32 v186, 1, v183")
    p("v_xor_b32 v186, v186, v185")
    p("v_lshl_add_u32 v184, v186, 4, v184")
    p("v_and_b32 v186, 1, v183")
    p("v_lshl_add_u32 v184, v186, 3, v184")
    p("v_xor_b32 v186, 32, v184")
    p(f"s_cmp_eq_u32 s{S_A}, 1")
    p("s_cselect_b64 vcc, -1, 0")
    p("v_add_u32 v187, 192, v186")
    p(f"v_cndmask_b32 v{V_HW}, v184, v187, vcc")
    p("v_add_u32 v187, 256, v184")
    p(f"v_cndmask_b32 v{V_HW1}, v186, v187, vcc")
    p(f"v_mul_u32_u24 v184, {SH_}, v182")
    p("v_xor_b32 v185, v185, v183")
    p(f"v_lshl_add_u32 v{V_HR}, v185, 4, v184")
    p(f"v_subrev_u32 v{V_A3}, {L_RING - CHUNK}, v{V_A}")
    p(f"v_lshlrev_b32 v{V_L16}, 4, v181")
    p(f"v_mul_u32_u24 v184, {ROWB}, v182")
    p(f"s_lshl_b32 s9, s{S_W}, 6")
    p("v_lshl_add_u32 v185, v183, 4, v184")
    p(f"v_add_u32 v{V_PO}, s9, v185")
    p(f"s_add_u32 s9, s{S_A}, 12")
    p("s_lshl_b32 s9, s9, 6")
    p(f"s_lshl_b32 s10, s{S_B}, 5")
    p("s_add_u32 s9, s9, s10")
    p("v_lshl_add_u32 v185, v183, 3, v184")
    p(f"v_add_u32 v{V_PO1}, s9, v185")
    x_dma_setup(p)

XD1 = [200, 201, 209, 210, 211, 212, 213, 214]
XD2 = [215, 216, 217, 220, 221, 222]
XR1, XR2 = 108, 112
L_X2 = L_X + 64 * 512
def x_dma_setup(p):
    p("v_and_b32 v181, 63, v0")
    p("v_lshrrev_b32 v182, 5, v181")
    p("v_and_b32 v183, 31, v181")
    for i in range(8):
        p(f"v_add_u32 v184, {2*i}, v182")
        p("v_xor_b32 v185, v183, v184")
        p(f"v_mul_u32_u24 v184, {ROWB}, v184")
        p(f"v_lshl_add_u32 v{XD1[i]}, v185, 4, v184")
    for i in range(6):
        p(f"v_add_u32 v184, {64*i}, v181")
        p("v_mul_u32_u24 v185, 2731, v184")
        p("v_lshrrev_b32 v185, 16, v185")
        p("v_mul_u32_u24 v186, 24, v185")
        p("v_sub_u32 v186, v184, v186")
        p("v_and_b32 v184, 6, v185")
        p("v_xor_b32 v186, v186, v184")
        p(f"v_mul_u32_u24 v185, {ROWB}, v185")
        p("v_lshl_add_u32 v185, v186, 4, v185")
        p(f"v_add_u32 v{XD2[i]}, 512, v185")

def x_read_setup(p):
    p("v_and_b32 v1, 63, v0")
    p("v_and_b32 v2, 15, v1")
    p("v_lshrrev_b32 v3, 4, v1")
    p(f"s_lshl_b32 s9, s{S_B}, 5")
    p("v_add_u32 v4, s9, v2")
    p("v_and_b32 v5, 3, v2")
    p("v_xor_b32 v5, v5, v3")
    p("v_lshlrev_b32 v5, 4, v5")
    p("v_lshl_add_u32 v5, v4, 9, v5")
    p("v_lshrrev_b32 v6, 2, v2")
    for r in range(4):
        p(f"v_xor_b32 v8, {r}, v6")
        p(f"v_lshl_add_u32 v{XR1+r}, v8, 6, v5")
    p("v_and_b32 v5, 2, v2")
    p("v_xor_b32 v5, v5, v3")
    p("v_lshlrev_b32 v5, 4, v5")
    p("v_mul_u32_u24 v4, 384, v4")
    p("v_add_u32 v5, v5, v4")
    p(f"v_add_u32 v5, {L_X2}, v5")
    p("v_and_b32 v6, 1, v6")
    p(f"v_lshl_add_u32 v{XR2}, v6, 6, v5")
    p("v_xor_b32 v6, 1, v6")
    p(f"v_lshl_add_u32 v{XR2+1}, v6, 6, v5")

def dma_x(p):
    p(f"s_lshl_b32 s9, s{S_W}, 13")
    p(f"s_mul_i32 s10, s{S_W}, {16*384}")
    for i in range(8):
        p(f"s_add_u32 m0, s9, {L_X + 1024*i}")
        p.vm(f"buffer_load_dwordx4 v{XD1[i]}, {sr(S_X)}, s{S_W14} offen sc1 lds", "x1")
    for i in range(6):
        p(f"s_add_u32 m0, s10, {L_X2 + 1024*i}")
        p.vm(f"buffer_load_dwordx4 v{XD2[i]}, {sr(S_X)}, s{S_W14} offen sc1 lds", "x2")

def dma_w1_items(chunk, tag, g=12):
    G = []
    for i in range(7):
        it = []
        if i in (0, 4):
            o = 4096 if i else 0
            it += [(f"s_add_u32 m0, s{S_W7}, {slot_base(chunk) + o}", "", None),
                   (f"s_add_u32 s{g}, s{S_W7}, {chunk * CHUNK + o}", "", None)]
        it.append((f"buffer_load_dwordx4 v{V_L16}, {sr(S_W1)}, s{g} offen offset:{1024*(i%4)} {'sc1 nt' if 'wnt1' in EXP else 'sc1'} lds", "vm", tag))
        G.append(it)
    return G

def dma_w1(p, chunk, tag):
    p(f"s_mul_i32 s9, s{S_W}, 7168")
    p(f"s_add_u32 s10, s9, {L_RING + (chunk % 3) * CHUNK}")
    p(f"s_add_u32 s9, s9, {chunk * CHUNK}")
    for grp, cnt in ((0, 4), (4, 3)):
        if grp:
            p("s_add_u32 s10, s10, 4096"); p("s_add_u32 s9, s9, 4096")
        p("s_mov_b32 m0, s10")
        for i in range(cnt):
            p.vm(f"buffer_load_dwordx4 v{V_L16}, {sr(S_W1)}, s9 offen offset:{1024*i} sc1 lds", tag)

def cost(t):
    op = t.split()[0]
    if op.startswith(("v_exp", "v_rcp", "v_rsq")): return 8
    if op.startswith("v_"): return 4
    return 0

def emit(p, item):
    t, kind, tag = item
    if kind == "lg": p.lg(t, tag)
    elif kind == "vm": p.vm(t, tag)
    elif kind == "wlg": p.wait_lg(tag)
    elif kind == "wvm": p.wait_vm(tag)
    else: p(t)

def schedule(p, M, V=(), N=None, vstart=0, vend=None):
    N = N or {}
    vend = len(M) if vend is None else vend
    total = sum(cost(x[0]) for x in V)
    done, cum = 0, 0
    for i, m in enumerate(M):
        if isinstance(m, tuple):
            for w in m[1]: emit(p, w)
            m = m[0]
        p(m)
        for it in N.get(i, []): emit(p, it)
        if i >= vstart and done < len(V):
            last = (i >= vend - 1)
            target = total * (i - vstart + 1) / max(1, vend - vstart)
            while done < len(V) and (last or cum + cost(V[done][0]) / 2 <= target):
                cum += cost(V[done][0]); emit(p, V[done]); done += 1
    while done < len(V):
        emit(p, V[done]); done += 1

def interleave(p, M, O, first=0):
    n = len(M) - first
    done = 0
    for i, m in enumerate(M):
        p(m)
        if i >= first:
            want = (len(O) * (i - first + 1) + n - 1) // n
            while done < want:
                t, kind, tag = O[done]; done += 1
                if kind == "lg": p.lg(t, tag)
                elif kind == "vm": p.vm(t, tag)
                else: p(t)

FA, AC1, ST_, HO = 16, 72, 96, 104
def silu_stages(T):
    z = AC1 + 8 * (T % 3); t = ST_
    E = [(f"v_exp_f32_e64 v{t+r}, -v{z+r}", "", None) for r in range(8)]
    A = [(f"v_add_f32 v{t+r}, 1.0, v{t+r}", "", None) for r in range(8)]
    C = [(f"v_rcp_f32 v{t+r}, v{t+r}", "", None) for r in range(8)]
    M = [(f"v_mul_f32 v{t+r}, v{z+r}, v{t+r}", "", None) for r in range(8)]
    V = []
    for nt in range(2):
        V.append((f"v_cvt_pk_bf16_f32 v{HO+2*nt}, v{t+4*nt}, v{t+4*nt+1}", "", None))
        V.append((f"v_cvt_pk_bf16_f32 v{HO+2*nt+1}, v{t+4*nt+2}, v{t+4*nt+3}", "", None))
    W = [(f"ds_write_b64 v{V_HW1 if T & 1 else V_HW}, {v(HO+2*nt,2)} offset:{L_X + nt*16*SH_ + 64*(T>>1)}", "lg", "hw") for nt in range(2)]
    return E, A, C, M, V, W

def gemm1(p):
    def areads(h):
        T, half, buf = h >> 1, h & 1, h & 1
        if T == 3: base, o = V_A3, 0
        else:
            sl = T if T < 3 else T - 4
            base, o = (V_A, sl * CHUNK) if sl < 2 else (V_A2, 0)
        return [(f"ds_read_b128 {v(FA+28*buf+4*i,4)}, v{base} offset:{o + 1024*(7*half+i)}", "lg", f"g{h}") for i in range(7)]
    p.wait_vm("x1")
    p("s_barrier")
    stamp(p, 12, True)
    def xread(k, nt):
        if k < 8: return (f"ds_read_b128 {xh(2*k+nt)}, v{XR1 + (k & 3)} offset:{L_X + 256*(k>>2) + nt*16*512}", "lg", f"x{k}")
        kk = k - 8
        return (f"ds_read_b128 {xh(2*k+nt)}, v{XR2 + (kk & 1)} offset:{128*(kk>>1) + nt*16*384}", "lg", f"x{k}")
    a0 = areads(0)
    for k in range(7):
        t, kind, _ = a0[k]
        emit(p, (t, kind, f"a0_{k}")); emit(p, xread(k, 0)); emit(p, xread(k, 1))
    silu = 'nosilu' not in EXP
    for h in range(14):
        T, half, buf = h >> 1, h & 1, h & 1
        nxt = areads(h + 1) if h < 13 else []
        pre = [[] for _ in range(14)]
        val = [[] for _ in range(14)]
        post = [[] for _ in range(14)]
        for i, it in enumerate(nxt): pre[i].append(it)
        if h == 0:
            pre[0].append(xread(7, 0)); pre[1].append(xread(7, 1))
            pre[2] += [(None, "wvm", "x2"), ("s_barrier", "", None)]
            extra = [xread(k, nt) for k in range(8, 14) for nt in range(2)]
            for i in range(12): pre[2 + i].append(extra[i])
        if 1 <= h <= 8 and 'nodma1' not in EXP:
            c = 3 + (h - 1) // 2
            grps = dma_w1_items(c, f"c{c}")
            grps = grps[:4] if h & 1 else grps[4:]
            at = [1, 4, 8, 11] if h & 1 else [2, 6, 10]
            for g_, grp in zip(at, grps):
                sal = [x for x in grp if x[1] == ""]; dm = [x for x in grp if x[1] == "vm"]
                pre[g_] = sal + pre[g_] + dm
        if 9 <= h <= 13 and 'noldwc' not in EXP:
            first = 3 * (h - 9)
            for g_, i in zip((1, 5, 9), range(first, min(first + 3, 14))):
                pre[g_] = [(f"s_add_u32 s12, s{S_W14}, {1024*i}", "", None)] + pre[g_] + [(f"buffer_load_dwordx4 v[124:127], v{V_L16}, {sr(S_PW)}, s12 offen", "vm", "pw")]
        if silu:
            if half == 0 and T >= 2:
                E, A, C, M, V, W = silu_stages(T - 2)
                seq = M + V
                order = [2, 2, 2, 2, 2, 1, 1]
                for g_, cnt in enumerate(order):
                    for _ in range(cnt): val[g_].append(seq.pop(0))
                pre[7].append(W[0]); pre[9].append(W[1])
            if half == 0 and T >= 1:
                E = silu_stages(T - 1)[0]
                for r in range(7): val[7 + r].append(E[r])
                val[13].append(E[7])
            if half == 1 and T >= 1:
                E, A, C, M, V, W = silu_stages(T - 1)
                for r in range(7): val[r].append(A[r])
                val[6].append(A[7])
                for r in range(7): val[7 + r].append(C[r])
                val[13].append(C[7])
        if h < 13:
            w = [(None, "wlg", f"g{h+1}")]
            if h == 0: w.append((None, "wlg", "x13"))
            if half == 0 and 3 <= T + 1 <= 6: w.append((None, "wvm", f"c{T+1}"))
            pre[13] = w + pre[13] if h != 0 else pre[13] + w
        for q_ in range(14):
            i, nt = q_ >> 1, q_ & 1
            k = 7 * half + i
            if h == 0 and nt == 0:
                p.wait_lg(f"a0_{i}"); p.wait_lg(f"x{k}")
            acc = v(AC1 + 8 * (T % 3) + 4 * nt, 4)
            p(f"v_mfma_f32_16x16x32_bf16 {acc}, {v(FA+28*buf+4*i,4)}, {xh(2*k+nt)}, {'0' if k == 0 else acc}")
            for it in pre[q_] + val[q_] + post[q_]: emit(p, it)
        if half == 0 and 'nobar1' not in EXP: p("s_barrier")
        if 'tt' in EXP: p(f"s_memtime s[{40+0}:{41}]" if False else f"s_memtime s[{34+2*(h+3)}:{35+2*(h+3)}]") if False else None
        if 'tt' in EXP and h < 12: p(f"s_memtime s[{40+2*h}:{41+2*h}]")
    if 'tt' in EXP:
        p("s_waitcnt lgkmcnt(0)"); p.lgq = []
        for h in range(12): p(f"v_mov_b32 v{108+h}, s{40+2*h}")
        p("s_lshl_b32 s9, s2, 6"); p(f"s_mul_i32 s10, s{S_LAY}, 16384"); p("s_add_u32 s9, s9, s10"); p(f"s_add_u32 s9, s9, {0x30000}")
        p("v_mov_b32 v120, s9")
        p("s_mov_b64 s[10:11], exec"); p("s_mov_b64 exec, 1")
        for q_ in range(3): p.vm(f"buffer_store_dwordx4 {v(108+4*q_,4)}, v120, s[92:95], 0 offen offset:{16*q_}")
        p("s_mov_b64 exec, s[10:11]")
    if silu:
        E, A, C, M, V, W = silu_stages(5)
        for it in M + V + W: emit(p, it)
        E, A, C, M, V, W = silu_stages(6)
        for it in E + A + C + M + V + W: emit(p, it)
    p.wait_lg()
    p("s_barrier")

AC2, CO = 72, 16
OUTLINE = []
def gemm2(p):
    if 'l1sc1' in EXP or 'l1nt' in EXP: p(f"s_cmp_eq_u32 s{S_LAY}, 1")
    hread = lambda nt, k: (f"ds_read_b128 {xh(7*nt+k)}, v{V_HR} offset:{L_X + nt*16*SH_ + 64*k}", "lg", f"h{nt}_{k}")
    for k in range(7): emit(p, hread(0, k))
    pf = []
    units = [(3, nt) for nt in range(4)] + [(P, nt) for P in range(3) for nt in range(4)]
    def epi(u):
        P, nt = units[u]; ac = AC2 + 8 * (u & 1); o = CO + 4 * (u & 3)
        O = []
        O.append((f"v_cvt_pk_bf16_f32 v{o}, v{ac}, v{ac+1}", "", None))
        O.append((f"v_cvt_pk_bf16_f32 v{o+1}, v{ac+2}, v{ac+3}", "", None))
        if P < 3:
            O.append((f"v_cvt_pk_bf16_f32 v{o+2}, v{ac+4}, v{ac+5}", "", None))
            O.append((f"v_cvt_pk_bf16_f32 v{o+3}, v{ac+6}, v{ac+7}", "", None))
        st = [(f"s_mov_b32 s9, {nt*16*ROWB}", "", None)]
        sfl = "sc1" if 'psc1' in EXP else ("nt" if 'psnt' in EXP else ("sc0" if 'pssc0' in EXP else ""))
        base = f"buffer_store_dwordx4 {v(o,4)}, v{V_PO}, {sr(S_PW)}, s9 offen offset:{256*P}" if P < 3 else f"buffer_store_dwordx2 {v(o,2)}, v{V_PO1}, {sr(S_PW)}, s9 offen"
        if 'l1sc1' in EXP or 'l1nt' in EXP:
            alt = "sc1" if 'l1sc1' in EXP else "nt"
            la, lb = p.uid("stA"), p.uid("stB")
            st.append((f"s_cbranch_scc1 {la}", "", None))
            st.append((f"{base} {sfl}", "vm", "ps"))
            st.append((f"{lb}:", "", None))
            OUTLINE.append((la, f"{base} {alt}", lb))
        else:
            st.append((f"{base} {sfl}", "vm", "ps"))
        return O, st
    for u, (P, nt) in enumerate(units):
        ac = AC2 + 8 * (u & 1)
        M = []
        for k in range(7):
            for sub in range(2 if P < 3 else 1):
                Tt = 2 * P + sub
                acc = v(ac + 4 * sub, 4)
                t = f"v_mfma_f32_16x16x32_bf16 {acc}, {a(4*(7*k+Tt),4)}, {xh(7*nt+k)}, {'0' if k == 0 else acc}"
                w = [(None, "wlg", f"h{nt}_{k}")] if (u < 4 and sub == 0) else []
                M.append((t, w))
        n = len(M)
        N = {}
        if u < 3:
            for k in range(7): N.setdefault(k, []).append(hread(u + 1, k))
        V, st = epi(u - 1) if u else ([], [])
        if st and 'nostore' not in EXP: N.setdefault(n - 1 if n == 7 else 10, []).extend(st)
        schedule(p, M, V, N, vstart=(4 if n == 7 else 5), vend=(6 if n == 7 else 9))
    assert not pf
    V, st = epi(len(units) - 1)
    for it in V + st: emit(p, it)

def prewarm_ld(p, stride=128):
    n = 57344 // stride
    for i in range((n + 255) // 256):
        p(f"v_add_u32 v2, {256*i}, v0")
        p(f"v_mul_u32_u24 v2, {stride}, v2")
        p.vm(f"buffer_load_dword v255, v2, {sr(S_PW)}, 0 offen", "pw")

def prewarm(p):
    if 'nowarm' in EXP: return
    fl = "sc1" if 'wsc1' in EXP else ("nt" if 'wnt' in EXP else "")
    stride = 64 if 'w64' in EXP else 128
    for i in range((57344 // stride + 255) // 256):
        p(f"v_add_u32 v2, {256*i}, v0")
        p(f"v_mul_u32_u24 v2, {stride}, v2")
        p(f"buffer_store_dword v0, v2, {sr(S_PW)}, 0 offen {fl}")
    p("v_lshlrev_b32 v1, 7, v0")
    p(f"s_mul_i32 s9, s{S_MEM}, {8*ROWB}")
    p("v_add_u32 v2, s9, v1")
    p(f"v_cmp_gt_u32 vcc, {8*ROWB}, v1")
    p("v_cndmask_b32 v2, -1, v2, vcc")
    p(f"buffer_store_dword v0, v2, {sr(S_X)}, 0 offen {fl}")

FORCE_SLOW = False
def build(stamps=False, force_slow=False):
    global FORCE_SLOW
    FORCE_SLOW = force_slow
    common.STAMPS[0] = stamps
    p = K()
    p("s_cmp_ge_u32 s2, 256")
    p("s_cbranch_scc1 K_end")
    p.load_ptrs()
    code_prefetch(p)
    p.wave_id(S_W, 1)
    p("s_and_b32 s4, s2, 7")
    p("s_lshr_b32 s5, s2, 3")
    p("s_lshl_b32 s4, s4, 5")
    p("s_add_u32 s4, s4, s5")
    p("s_lshr_b32 s5, s4, 3")
    p("s_and_b32 s6, s4, 7")
    p(f"s_lshr_b32 s{S_A}, s{S_W}, 1")
    p(f"s_and_b32 s{S_B}, s{S_W}, 1")
    p(f"s_mov_b32 s{S_LAY}, 0")
    p(f"s_mov_b32 s{S_FAST}, 0")
    p(f"s_mul_i32 s{S_W7}, s{S_W}, 7168")
    p(f"s_mul_i32 s{S_W14}, s{S_W}, 14336")
    p("s_waitcnt lgkmcnt(0)")
    if stamps:
        p.srd(92, P_WS, WS_FLAGS + 0x80000, 0x40000)
        p("v_mov_b32 v252, 0"); p("v_mov_b32 v253, 0")
    stamp(p, 0)
    lab = p.uid("nn")
    p("s_cmp_eq_u32 s2, 0")
    p(f"s_cbranch_scc0 {lab}")
    p(f"s_cmp_eq_u32 s{S_W}, 0")
    p(f"s_cbranch_scc0 {lab}")
    p.srd(SF_, P_DBG, 0, 256)
    p("s_memrealtime s[10:11]")
    p("s_waitcnt lgkmcnt(0)")
    p("s_lshl_b64 s[10:11], s[10:11], 4")
    p("s_or_b32 s11, s11, 0x40000000")
    p("v_mov_b32 v2, s10"); p("v_mov_b32 v3, s11"); p("v_mov_b32 v1, 0")
    p("s_mov_b64 exec, 1")
    p(f"buffer_store_dwordx2 v[2:3], v1, {sr(SF_)}, 0 offen sc1")
    p("s_mov_b64 exec, -1")
    p.label(lab)
    p.srd(S_FL, P_WS, WS_FLAGS, FLAGS_BYTES)
    p("s_cmp_ge_u32 s2, 224")
    p("s_cbranch_scc1 K_noprep")
    prep(p)
    stamp(p, 1)
    p.wait_vm("kvst")
    p(f"v_readfirstlane_b32 s{S_N}, v150")
    p(f"v_readfirstlane_b32 s{S_N+1}, v151")
    p("s_nop 3")
    p(f"s_or_b32 s9, s{S_N}, s{S_N+1}")
    p("s_cmp_lg_u32 s9, 0")
    lab = p.uid("haven")
    p(f"s_cbranch_scc1 {lab}")
    p.srd(SF_, P_DBG, 0, 256)
    get_nonce(p)
    p.label(lab)
    p("s_barrier")
    flag_store_rep(p, FL_S1R, 2)
    stamp(p, 2)
    p.wait_vm()
    hbuild(p)
    p("s_branch K_prepdone")
    p.label("K_noprep")
    mlp_setup(p)
    q_loads(p)
    p.srd(SF_, P_DBG, 0, 256)
    get_nonce(p)
    p("s_barrier")
    p.label("K_prepdone")
    p.vmq = []; p.lgq = []
    lab = p.uid("xp")
    p(f"s_cmp_eq_u32 s{S_W}, 0")
    p(f"s_cbranch_scc0 {lab}")
    p("s_getreg_b32 s9, hwreg(HW_REG_XCC_ID, 0, 4)")
    p(f"s_add_u32 s9, s9, s{S_N}")
    p("v_mov_b32 v2, s9"); p(f"v_mov_b32 v3, s{S_N+1}")
    p(f"s_lshl_b32 s9, s{S_RB}, 3"); p(f"s_add_u32 s9, s9, {FL_XCC}")
    p("v_mov_b32 v1, s9")
    p("s_mov_b64 exec, 1")
    p(f"buffer_store_dwordx2 v[2:3], v1, {sr(S_FL)}, 0 offen sc1")
    p("s_mov_b64 exec, -1")
    p.label(lab)
    p(f"s_mul_i32 s9, s{S_MEM}, {7*CHUNK}"); p(f"s_add_u32 s9, s9, {hex(WS_W1P)}")
    p(f"s_add_u32 s{S_W1}, s{P_WS}, s9"); p(f"s_addc_u32 s{S_W1+1}, s{P_WS+1}, 0")
    p(f"s_mov_b32 s{S_W1+2}, {7*CHUNK}"); p(f"s_mov_b32 s{S_W1+3}, 0x20000")
    p(f"s_mul_i32 s9, s{S_CL}, {64*ROWB}"); p(f"s_add_u32 s9, s9, {hex(WS_XP)}")
    p(f"s_add_u32 s{S_X}, s{P_WS}, s9"); p(f"s_addc_u32 s{S_X+1}, s{P_WS+1}, 0")
    p(f"s_mov_b32 s{S_X+2}, {64*ROWB}"); p(f"s_mov_b32 s{S_X+3}, 0x20000")
    p(f"s_mul_i32 s9, s{S_RB}, {64*ROWB}"); p(f"s_add_u32 s9, s9, {hex(WS_PB)}")
    p(f"s_add_u32 s{S_PW}, s{P_WS}, s9"); p(f"s_addc_u32 s{S_PW+1}, s{P_WS+1}, 0")
    p(f"s_mov_b32 s{S_PW+2}, {64*ROWB}"); p(f"s_mov_b32 s{S_PW+3}, 0x20000")
    p(f"s_mul_i32 s9, s{S_CL}, {8*64*ROWB}"); p(f"s_add_u32 s9, s9, {hex(WS_PB)}")
    p(f"s_add_u32 s{S_PR}, s{P_WS}, s9"); p(f"s_addc_u32 s{S_PR+1}, s{P_WS+1}, 0")
    p(f"s_mov_b32 s{S_PR+2}, {8*64*ROWB}"); p(f"s_mov_b32 s{S_PR+3}, 0x20000")
    if 'warm1' in EXP: prewarm(p)
    p("v_and_b32 v1, 63, v0")
    p("s_lshr_b32 s9, s2, 5")
    p("s_min_u32 s9, s9, 6")
    p("v_mul_u32_u24 v8, 7, v1")
    p("v_add_u32 v8, s9, v8")
    p(f"s_mul_i32 s9, s{S_MEM}, 14")
    p("v_subrev_u32 v9, 32, v1")
    p("v_add_u32 v9, s9, v9")
    p("v_add_u32 v10, 98, v9")
    p("v_cmp_gt_u32 vcc, 46, v1")
    p("v_cndmask_b32 v9, v10, v9, vcc")
    p("v_cmp_gt_u32 vcc, 32, v1")
    p("v_cndmask_b32 v8, v9, v8, vcc")
    p("v_lshlrev_b32 v8, 3, v8")
    p("s_and_b32 s9, s2, 7"); p("s_lshl_b32 s9, s9, 11"); p(f"s_add_u32 s9, s9, {FL_S1R}")
    p("v_add_u32 v8, s9, v8")
    p("s_waitcnt lgkmcnt(0)")
    poll(p, [8], 1, [60])
    stamp(p, 3)
    p(f"s_lshl_b32 s9, s{S_MEM}, 2"); p(f"s_add_u32 s9, s9, s{S_W}")
    p(f"s_mul_i32 s9, s9, {49*1024}"); p(f"s_add_u32 s9, s9, {hex(WS_W2P)}")
    p(f"s_add_u32 s{SE}, s{P_WS}, s9"); p(f"s_addc_u32 s{SE+1}, s{P_WS+1}, 0")
    p(f"s_mov_b32 s{SE+2}, {49*1024}"); p(f"s_mov_b32 s{SE+3}, 0x20000")
    p.srd(SD, P_WS, WS_YB, MAT)
    p("s_cmp_ge_u32 s2, 224")
    p("s_cbranch_scc1 K_noconv")
    p("s_lshl_b32 s9, s2, 13")
    p(f"s_add_u32 s{SA}, s{P_WS}, s9"); p(f"s_addc_u32 s{SA+1}, s{P_WS+1}, 0")
    p(f"s_mov_b32 s{SA+2}, 8192"); p(f"s_mov_b32 s{SA+3}, 0x20000")
    p("v_lshlrev_b32 v10, 4, v0")
    p.vm(f"buffer_load_dwordx4 v[64:67], v10, {sr(SA)}, 0 offen sc1", "u")
    p("v_add_u32 v11, 4096, v10")
    p.vm(f"buffer_load_dwordx4 v[68:71], v11, {sr(SA)}, 0 offen sc1", "u")
    if 'qearly' not in EXP: q_loads(p)
    p("s_lshl_b32 s9, s2, 2")
    p(f"s_load_dword s13, s[{P_DV}:{P_DV+1}], s9")
    for g_ in w2_items(SE)[:W20]:
        for it in g_: emit(p, it)
    p(f"v_add_u32 v10, {L_U+512}, v10")
    p.wait_vm("u")
    p.lg("ds_write_b128 v10, v[64:67]")
    p.lg(f"ds_write_b128 v10, v[68:71] offset:{U_CH}")
    p("s_waitcnt lgkmcnt(0)"); p.lgq = []
    p("s_lshl_b32 s12, s13, 16")
    p("s_and_b32 s14, s13, 0xffff0000")
    p(f"s_cmp_eq_u32 s{S_B}, 0")
    p("s_cselect_b32 s14, s12, s14")
    p("s_barrier")
    if 'warm2' in EXP: prewarm(p)
    stamp(p, 4)
    conv_main(p)
    stamp(p, 5)
    conv_out(p, SD)
    signal(p, FL_S2R, 2, upto="yst")
    stamp(p, 6)
    p("s_branch K_convdone")
    p.label("K_noconv")
    p.vmq = []
    for g_ in w2_items(SE)[:W2A]:
        for it in g_: emit(p, it)
    p.wait_vm()
    p.label("K_convdone")
    if 'warm3' in EXP: prewarm(p)
    if 'pws2' in EXP:
        lab = p.uid("pws")
        p(f"s_cmp_eq_u32 s{S_W}, 0"); p(f"s_cbranch_scc1 {lab}")
        p(f"s_sub_u32 s9, s{S_W}, 1"); p("s_mul_i32 s9, s9, 19456")
        for i in range(19):
            if i % 4 == 0: p(f"s_add_u32 s10, s9, {1024*i}")
            p(f"buffer_load_dwordx4 v[220:223], v{V_L16}, {sr(S_PW)}, s10 offen offset:{1024*(i%4)}")
        p.label(lab)
    p("s_waitcnt vmcnt(0)")
    p("v_mov_b32 v7, 0xffff0000")
    unpack(p, X, XP, 8)
    layernorm(p, X, T)
    poll_s2(p)
    stamp(p, 7)
    y_load(p, SD)
    fast_get(p)
    for g_ in dma_w1_items(2, "pf2"):
        for it in g_: emit(p, it)
    y_transpose(p)
    stamp(p, 8)
    p("v_mov_b32 v7, 0xffff0000")
    p("s_branch K_gate")
    p.label("K_layer")
    p.vmq = []; p.lgq = []
    layernorm(p, X, T)
    p.label("K_gate")
    p.vmq = []; p.lgq = []
    q = K()
    for i in range(0, 16, 2):
        q(f"v_pk_fma_f32 {v(X+i,2)}, {v(T+i,2)}, {v(YV+i,2)}, {v(X+i,2)}")
    layernorm(q, X, T, LOG2E)
    pack(q, PK, T, 8)
    body = [it.text for it in q.items]
    pf = [g for c in range(2) for g in dma_w1_items(c, "pf")]
    step = len(body) // (len(pf) + 1)
    for i, t in enumerate(body):
        p(t)
        if pf and i % step == step - 1:
            for it in pf.pop(0): emit(p, it)
    assert not pf
    p(f"s_mul_i32 s9, s{S_CL}, {64*ROWB}")
    p(f"v_subrev_u32 v3, s9, v{OFFA}")
    p(f"v_subrev_u32 v4, s9, v{OFFB}")
    p(f"v_cndmask_b32 v3, -1, v3, {ACT}")
    p(f"v_cndmask_b32 v4, -1, v4, {ACT}")
    p.vm(f"buffer_store_dwordx4 {v(PK,4)}, v3, {sr(S_X)}, 0 offen", "xs")
    p.vm(f"buffer_store_dwordx4 {v(PK+4,4)}, v4, {sr(S_X)}, 0 offen", "xs")
    pack(p, XP, X, 8)
    stamp(p, 9, True)
    signal(p, FL_A0, S_RB, layer_off=True, cluster=True, upto="xs")
    stamp(p, 10, True)
    def cluster_offs():
        p("v_and_b32 v1, 7, v0")
        p(f"s_lshl_b32 s9, s{S_CL}, 6")
        p(f"s_lshl_b32 s10, s{S_LAY}, 12")
        p("s_add_u32 s9, s9, s10")
    cluster_offs()
    p(f"s_add_u32 s9, s9, {FL_A0}")
    p("v_lshl_add_u32 v10, v1, 3, s9")
    poll(p, [10], 1, [8], cluster=True)
    stamp(p, 11, True)
    dma_x(p)
    x_read_setup(p)
    if 'ldw128' in EXP: prewarm_ld(p, 128)
    if 'ldw64' in EXP: prewarm_ld(p, 64)
    gemm1(p)
    stamp(p, 13, True)
    gemm2(p)
    stamp(p, 14, True)
    signal(p, FL_C0, S_RB, layer_off=True, cluster=True)
    if 'wb2' in EXP:
        lab = p.uid("wb2")
        p(f"s_cmp_eq_u32 s{S_LAY}, 1"); p(f"s_cbranch_scc0 {lab}")
        p(f"s_cmp_eq_u32 s{S_W}, 3"); p(f"s_cbranch_scc0 {lab}")
        p(f"s_and_b32 s9, s{S_RB}, 31"); p("s_cmp_eq_u32 s9, 0"); p(f"s_cbranch_scc0 {lab}")
        p("buffer_wbl2 sc1")
        p.label(lab)
    stamp(p, 15, True)
    partials_prelude(p)
    cluster_offs()
    p(f"s_add_u32 s9, s9, {FL_C0}")
    p("v_lshl_add_u32 v10, v1, 3, s9")
    poll(p, [10], 1, [8], cluster=True)
    if 'wb' in EXP:
        lab = p.uid("wb")
        p(f"s_cmp_eq_u32 s{S_LAY}, 1"); p(f"s_cbranch_scc0 {lab}")
        p(f"s_cmp_eq_u32 s{S_MEM}, 0"); p(f"s_cbranch_scc0 {lab}")
        p(f"s_cmp_eq_u32 s{S_W}, 3"); p(f"s_cbranch_scc0 {lab}")
        p("buffer_wbl2 sc1")
        p.label(lab)
    stamp(p, 16, True)
    add_partials(p)
    stamp(p, 17, True)
    p(f"s_cmp_eq_u32 s{S_LAY}, 1")
    p("s_cbranch_scc1 K_final")
    p(f"s_mov_b32 s{S_LAY}, 1")
    p("s_branch K_layer")
    p.label("K_final")
    pack(p, XP, X, 8)
    p.srd(SA, P_OUT, 0, MAT)
    ofl = "sc1" if 'osc1' in EXP else ("nt" if 'ont' in EXP else "")
    p(f"buffer_store_dwordx4 {v(XP,4)}, v{OFFA}, {sr(SA)}, 0 offen {ofl}")
    p(f"buffer_store_dwordx4 {v(XP+4,4)}, v{OFFB}, {sr(SA)}, 0 offen {ofl}")
    stamp(p, 40)
    stamp_flush(p)
    if OUTLINE:
        p("s_endpgm")
        for la, t, lb in OUTLINE:
            p.label(la); p(t); p(f"s_branch {lb}")
    p.label("K_end")
    p("s_endpgm")
    txt, n = kernel_text(KNAME, p, 256, sgprs=102, agprs=256)
    print("nops inserted:", n, "instructions:", p.count(), file=sys.stderr)
    head = HEADER + f"; @launch grid=(256,1,1) block=(256,1,1) lds={LDS_BYTES}\n" + '.amdgcn_target "amdgcn-amd-amdhsa--gfx950"\n'
    return head + txt

if __name__ == "__main__":
    open(sys.argv[1], "w").write(build(stamps="st" in sys.argv[2:], force_slow="slow" in sys.argv[2:]))
```

```python
import sys
from common import *
import common
EXP = set(sys.argv[2:])

KNAME = "interleave_layers__ssm_conv_h3__dense_activation_silu__prompt_kernel"
HEADER = open("interleave_layers__ssm_conv_h3__dense_activation_silu__prompt.s.ref").read().split("; Override launch")[0]

S_W, S_RB, S_CL, S_MEM, S_A, S_B = 3, 4, 5, 6, 7, 8
SA, SB_, SC, SD, SE, SF_ = 40, 44, 48, 52, 56, 60
S_FL, S_W1, S_X, S_PW, S_PR = 64, 68, 72, 76, 80
S_N, S_FAST, S_LAY = 84, 86, 87
S_W7, S_W14 = 100, 101
ACT = "s[88:89]"
S_T = 90
V_XE, V_XO, V_A, V_A2, V_HW, V_HR, V_L16, V_PO, V_PO1 = 200, 201, 202, 203, 204, 205, 206, 207, 208
V_XD = 209
V_PWA, V_PWB = 216, 217
V_HW1, V_A3 = 218, 219
XP = 224
YV = 232
OFFA, OFFB = 248, 249
VN = 250
LA, LB = 0, 8192
HC_COPY = 4160; HC_CH = 8 * HC_COPY; L_U = 2 * HC_CH; U_CH = 512 + 4096; YS_CH = 4096 + 128
LY = 0
L_X = 0; SH_ = 448; L_RING = 57344; CHUNK = 28672
def slot_base(c):
    return CHUNK if c == 3 else L_RING + (c if c < 3 else c - 4) * CHUNK
LDS_BYTES = 163840
L_FASTW = 163836 - 60

def sr(r): return f"s[{r}:{r+3}]"

def stamp(p, sid, layered=False):
    if not common.STAMPS[0]: return
    p("s_memrealtime s[96:97]")
    p("s_memtime s[98:99]")
    p("s_waitcnt lgkmcnt(0)")
    if layered:
        p(f"s_mul_i32 s97, s{S_LAY}, 10")
        p(f"s_add_u32 m0, s97, {sid}")
        p("s_nop 3")
        p("v_writelane_b32 v252, s96, m0")
        p("v_writelane_b32 v253, s98, m0")
    else:
        p(f"v_writelane_b32 v252, s96, {sid}")
        p(f"v_writelane_b32 v253, s98, {sid}")
    p.lgq = []

def stamp_flush(p):
    if not common.STAMPS[0]: return
    lab = p.uid("sf")
    p(f"s_cmp_eq_u32 s{S_W}, 0")
    p(f"s_cbranch_scc0 {lab}")
    p("v_lshlrev_b32 v1, 2, v0")
    p("s_lshl_b32 s9, s2, 9")
    p("v_add_u32 v1, s9, v1")
    p("buffer_store_dword v252, v1, s[92:95], 0 offen")
    p("buffer_store_dword v253, v1, s[92:95], 0 offen offset:256")
    if 'dbgst' in EXP:
        wg = [x for x in EXP if x.startswith('wg')]
        wg = int(wg[0][2:]) if wg else 0
        l2 = p.uid("sf2")
        p(f"s_cmp_eq_u32 s2, {wg}")
        p(f"s_cbranch_scc0 {l2}")
        p.srd(SA, P_DBG, 0, 256)
        sel = [0, 2, 3, 5, 7, 9, 12, 13, 14, 17, 22, 23, 24, 40]
        p("s_nop 4")
        p("v_readlane_b32 s12, v252, 0")
        for i, sid in enumerate(sel):
            p(f"v_readlane_b32 s9, v252, {sid}")
            p("s_nop 3")
            p("s_sub_u32 s9, s9, s12")
            if i == 0: p("s_mov_b32 s9, s12")
            p(f"v_writelane_b32 v1, s9, {i}")
        p("v_and_b32 v2, 63, v0")
        p("v_lshlrev_b32 v2, 2, v2")
        p("v_add_u32 v2, 8, v2")
        p("s_mov_b32 exec_lo, 0x3fff"); p("s_mov_b32 exec_hi, 0")
        p(f"buffer_store_dword v1, v2, {sr(SA)}, 0 offen")
        p("s_mov_b64 exec, -1")
        p.label(l2)
    p.label(lab)

def flag_store(p, table, idx_sreg, layer_off=False, cluster=False):
    lab = p.uid("sig")
    p(f"s_cmp_eq_u32 s{S_W}, 0")
    p(f"s_cbranch_scc0 {lab}")
    p(f"s_lshl_b32 s{S_T}, s{idx_sreg}, 3")
    p(f"s_add_u32 s{S_T}, s{S_T}, {table}")
    if layer_off:
        p(f"s_lshl_b32 s{S_T+1}, s{S_LAY}, 12")
        p(f"s_add_u32 s{S_T}, s{S_T}, s{S_T+1}")
    p(f"v_mov_b32 v{VN}, s{S_N}")
    p(f"v_mov_b32 v{VN+1}, s{S_N+1}")
    p(f"v_mov_b32 v1, s{S_T}")
    p("s_mov_b64 exec, 1")
    if cluster:
        l2 = p.uid("sigslow"); l3 = p.uid("sigdone")
        p(f"s_cmp_eq_u32 s{S_FAST}, 1")
        p(f"s_cbranch_scc0 {l2}")
        p(f"buffer_store_dwordx2 {v(VN,2)}, v1, {sr(S_FL)}, 0 offen")
        p(f"s_branch {l3}")
        p.label(l2)
        p("buffer_wbl2 sc1")
        p("s_waitcnt vmcnt(0)")
        p(f"buffer_store_dwordx2 {v(VN,2)}, v1, {sr(S_FL)}, 0 offen sc1")
        p.label(l3)
    else:
        p(f"buffer_store_dwordx2 {v(VN,2)}, v1, {sr(S_FL)}, 0 offen sc1")
    p("s_mov_b64 exec, -1")
    p.label(lab)

def flag_store_rep(p, table, idx_sreg):
    lab = p.uid("sigr")
    p(f"s_cmp_eq_u32 s{S_W}, 0")
    p(f"s_cbranch_scc0 {lab}")
    p(f"s_lshl_b32 s{S_T}, s{idx_sreg}, 3")
    p(f"s_add_u32 s{S_T}, s{S_T}, {table}")
    p(f"v_mov_b32 v{VN}, s{S_N}")
    p(f"v_mov_b32 v{VN+1}, s{S_N+1}")
    p("v_lshlrev_b32 v1, 11, v0")
    p(f"v_add_u32 v1, s{S_T}, v1")
    p("s_mov_b64 exec, 0xff")
    p(f"buffer_store_dwordx2 {v(VN,2)}, v1, {sr(S_FL)}, 0 offen sc1")
    p("s_mov_b64 exec, -1")
    p.label(lab)

def signal(p, table, idx_sreg, layer_off=False, cluster=False, upto=None):
    if upto: p.wait_vm(upto)
    else: p.wait_vm()
    p("s_barrier")
    if table in (FL_S1R, FL_S2R): flag_store_rep(p, table, idx_sreg)
    else: flag_store(p, table, idx_sreg, layer_off, cluster)

def setexec(p, nl):
    m = (1 << nl) - 1
    lo, hi = m & 0xffffffff, m >> 32
    p(f"s_mov_b32 exec_lo, {hex(lo) if lo != 0xffffffff else -1}")
    p(f"s_mov_b32 exec_hi, {hex(hi) if hi != 0xffffffff else -1}")

def poll(p, offs, n_loads, masks, cluster=False, all_waves=False):
    lab = p.uid("poll"); done = p.uid("polld"); skip = p.uid("polls")
    if not all_waves:
        p(f"s_cmp_eq_u32 s{S_W}, 0")
        p(f"s_cbranch_scc0 {skip}")
    p(f"s_mov_b32 s{S_T}, 0")
    p.label(lab)
    for i in range(n_loads):
        setexec(p, masks[i])
        p(f"buffer_load_dwordx2 {v(2+2*i,2)}, v{offs[i]}, {sr(S_FL)}, 0 offen sc1")
    p("s_waitcnt vmcnt(0)")
    p("s_mov_b32 s9, 1")
    for i in range(n_loads):
        setexec(p, masks[i])
        p(f"v_cmp_eq_u64 vcc, {s(S_N,2)}, {v(2+2*i,2)}")
        p("s_nop 4")
        p("s_cmp_eq_u64 vcc, exec")
        p("s_cselect_b32 s9, s9, 0")
    p("s_mov_b64 exec, -1")
    p("s_cmp_eq_u32 s9, 1")
    p(f"s_cbranch_scc1 {done}")
    p(f"s_add_u32 s{S_T}, s{S_T}, 1")
    p(f"s_cmp_lt_u32 s{S_T}, 0x8000")
    p(f"s_cbranch_scc0 {done}")
    if not cluster or 'nosleep' not in EXP: p("s_sleep 1")
    p(f"s_branch {lab}")
    p.label(done)
    if cluster:
        l2 = p.uid("acq")
        p(f"s_cmp_eq_u32 s{S_FAST}, 1")
        p(f"s_cbranch_scc1 {l2}")
        p("buffer_inv sc1")
        p("s_waitcnt vmcnt(0)")
        p.label(l2)
    p.label(skip)
    p("s_barrier")
    p.vmq = []

def get_nonce(p):
    lab = p.uid("non"); done = p.uid("nond")
    p(f"s_mov_b32 s{S_T}, 0")
    p.label(lab)
    p("v_mov_b32 v1, 0")
    p(f"buffer_load_dwordx2 v[2:3], v1, {sr(SF_)}, 0 offen sc1")
    p("s_waitcnt vmcnt(0)")
    p(f"v_readfirstlane_b32 s{S_N}, v2")
    p(f"v_readfirstlane_b32 s{S_N+1}, v3")
    p("s_nop 3")
    p(f"s_or_b32 s9, s{S_N}, s{S_N+1}")
    p("s_cmp_lg_u32 s9, 0")
    p(f"s_cbranch_scc1 {done}")
    p(f"s_add_u32 s{S_T}, s{S_T}, 1")
    p(f"s_cmp_lt_u32 s{S_T}, 0x8000")
    p(f"s_cbranch_scc0 {done}")
    p("s_sleep 1")
    p(f"s_branch {lab}")
    p.label(done)
    p.vmq = []

def tlb_warm(p):
    if 'notlb' in EXP: return
    ent = [(P_K, None), (P_V, None), (P_SK, 0), (P_W1, 0), (P_W2, 0), (P_H, "h"), (P_Q, "q"), (P_DV, 0), (P_DBG, 0), (P_OUT, "q"),
           (P_WS, WS_KVT), (P_WS, WS_YB), (P_WS, WS_W1P), (P_WS, WS_W2P), (P_WS, WS_FLAGS), (P_WS, "pb0"), (P_WS, "pb1")]
    lab = p.uid("tw")
    p(f"s_cmp_eq_u32 s{S_W}, 0")
    p(f"s_cbranch_scc0 {lab}")
    p(f"v_mov_b32 v2, s{P_K}"); p(f"v_mov_b32 v3, s{P_K+1}")
    p(f"s_mul_i32 s9, s{S_RB}, {8*ROWB}")
    p("s_min_u32 s10, s2, 223"); p("s_lshl_b32 s10, s10, 13")
    p(f"s_mul_i32 s11, s{S_CL}, {8*64*ROWB}"); p(f"s_add_u32 s11, s11, {hex(WS_PB)}")
    for i, (ptr, off) in enumerate(ent):
        if off in (None, 0):
            lo, hi = ptr, ptr + 1
        else:
            if off == "q": src = "s9"
            elif off == "h": src = "s10"
            elif off == "pb0": src = "s11"
            elif off == "pb1":
                p(f"s_add_u32 s11, s11, {8*64*ROWB - 128}"); src = "s11"
            else: src = hex(off)
            p(f"s_add_u32 s12, s{ptr}, {src}"); p(f"s_addc_u32 s13, s{ptr+1}, 0")
            lo, hi = 12, 13
        p(f"v_writelane_b32 v2, s{lo}, {i}")
        p(f"v_writelane_b32 v3, s{hi}, {i}")
    setexec(p, len(ent))
    p("global_load_dword v254, v[2:3], off")
    p("s_mov_b64 exec, -1")
    p.label(lab)

def nonce_publish(p):
    lab = p.uid("nn")
    p("s_cmp_eq_u32 s2, 0")
    p(f"s_cbranch_scc0 {lab}")
    p(f"s_cmp_eq_u32 s{S_W}, 0")
    p(f"s_cbranch_scc0 {lab}")
    p.srd(SF_, P_DBG, 0, 256)
    p("s_memrealtime s[10:11]")
    p("s_waitcnt lgkmcnt(0)")
    p("s_lshl_b64 s[10:11], s[10:11], 4")
    p("s_or_b32 s11, s11, 0x40000000")
    p("v_mov_b32 v46, s10"); p("v_mov_b32 v47, s11"); p("v_mov_b32 v13, 0")
    p("s_mov_b64 exec, 1")
    p(f"buffer_store_dwordx2 v[46:47], v13, {sr(SF_)}, 0 offen sc1")
    p("s_mov_b64 exec, -1")
    p.label(lab)

S_RBK, S_CG = 12, 13
def prep_addr(p):
    p("s_min_u32 s14, s2, 223")
    p.div_const(S_RBK, 14, 7)
    p(f"s_mul_i32 s{S_CG}, s{S_RBK}, 7")
    p(f"s_sub_u32 s{S_CG}, s14, s{S_CG}")
    p("v_and_b32 v1, 15, v0")
    p("v_lshrrev_b32 v2, 4, v0")
    p(f"s_lshl_b32 s9, s{S_RBK}, 6")
    p("s_sub_u32 s9, s9, 3")
    p("v_lshl_add_u32 v3, v2, 2, s9")
    p(f"v_mul_i32_i24 v4, {ROWB}, v3")
    p(f"s_lshl_b32 s10, s{S_CG}, 7")
    p("v_lshl_add_u32 v5, v1, 3, s10")
    p("v_add_u32 v4, v4, v5")
    for i in range(1, 7):
        p(f"v_add_u32 v{5+i}, {ROWB*i}, v4")
    p("v_lshlrev_b32 v12, 2, v5")

def prep(p):
    SK_, SV_, SSK, SKVT, SSRC, SDST = SA, SB_, SC, SD, SE, S_W1
    T0 = 72
    off = lambda i: "v4" if i == 0 else f"v{5+i}"
    p.srd(SK_, P_K, 0, MAT)
    for i in range(7):
        p.vm(f"buffer_load_dwordx2 {v(16+2*i,2)}, {off(i)}, {sr(SK_)}, 0 offen", "k")
    p.srd(SV_, P_V, 0, MAT)
    for i in range(4):
        p.vm(f"buffer_load_dwordx2 {v(30+2*i,2)}, {off(i+3)}, {sr(SV_)}, 0 offen", "k")
    p.srd(SSK, P_SK, 0, D * 8)
    p.vm(f"buffer_load_dwordx4 v[38:41], v12, {sr(SSK)}, 0 offen", "k")
    p.vm(f"buffer_load_dwordx4 v[42:45], v12, {sr(SSK)}, 0 offen offset:16", "k")
    nonce_publish(p)
    p.srd(SKVT, P_WS, WS_KVT, MAT)
    p.srd(S_FL, P_WS, WS_FLAGS, FLAGS_BYTES)
    if 'pp' in EXP: stamp(p, 34)
    S_J, S_R, S_ISW2, S_STR = T0, T0 + 1, T0 + 2, T0 + 3
    p("s_cmp_ge_u32 s2, 112")
    p(f"s_cselect_b32 s{S_ISW2}, 1, 0")
    p("s_cselect_b32 s9, 112, 0")
    p("s_sub_u32 s9, s2, s9")
    p.div_const(S_J, 9, 14)
    p(f"s_mul_i32 s10, s{S_J}, 14")
    p(f"s_sub_u32 s{S_R}, s9, s10")
    p(f"s_mul_i32 s10, s{S_R}, {32*3584}")
    p(f"s_mul_i32 s11, s{S_J}, 448")
    p("s_add_u32 s10, s10, s11")
    p(f"s_lshr_b32 s11, s{S_R}, 1")
    p(f"s_mul_i32 s11, s11, {32*896}")
    p(f"s_mul_i32 s14, s{S_J}, {224*896}")
    p("s_add_u32 s11, s11, s14")
    p(f"s_and_b32 s14, s{S_R}, 1")
    p("s_mul_i32 s14, s14, 448")
    p("s_add_u32 s11, s11, s14")
    p(f"s_cmp_eq_u32 s{S_ISW2}, 1")
    p("s_cselect_b32 s10, s11, s10")
    p.csel(S_STR, 896, 3584)
    p(f"s_cselect_b32 s{SSRC}, s{P_W2}, s{P_W1}")
    p(f"s_cselect_b32 s{SSRC+1}, s{P_W2+1}, s{P_W1+1}")
    p(f"s_mov_b32 s{SSRC+2}, {hex(D*F*2)}")
    p(f"s_mov_b32 s{SSRC+3}, 0x20000")
    for m in range(4):
        p(f"v_add_u32 v13, {256*m}, v0")
        p("v_mul_u32_u24 v14, 2341, v13")
        p("v_lshrrev_b32 v14, 16, v14")
        p("v_mul_u32_u24 v15, 28, v14")
        p("v_sub_u32 v15, v13, v15")
        p(f"v_mul_lo_u32 v14, v14, s{S_STR}")
        p("v_lshl_add_u32 v14, v15, 4, v14")
        p("v_add_u32 v14, s10, v14")
        if m == 3:
            p("v_cmp_gt_u32 vcc, 896, v13")
            p("v_cndmask_b32 v14, -1, v14, vcc")
        p.vm(f"buffer_load_dwordx4 {v(48+4*m,4)}, v14, {sr(SSRC)}, 0 offen", "w")
    if 'pp' in EXP: stamp(p, 35)
    p("v_and_b32 v46, 63, v0")
    p("v_lshrrev_b32 v47, 4, v46")
    p("v_bfe_u32 v14, v46, 2, 2")
    p("v_and_b32 v15, 3, v46")
    p("v_lshl_add_u32 v47, v47, 3, v14")
    p("v_mul_u32_u24 v47, 448, v47")
    p("v_lshlrev_b32 v46, 4, v46")
    p(f"s_cmp_eq_u32 s{S_ISW2}, 1")
    p.csel(9, hex(WS_W2P), hex(WS_W1P))
    p(f"s_add_u32 s{SDST}, s{P_WS}, s9")
    p(f"s_addc_u32 s{SDST+1}, s{P_WS+1}, 0")
    p(f"s_mov_b32 s{SDST+2}, {hex(W1P_BYTES)}")
    p(f"s_mov_b32 s{SDST+3}, 0x20000")
    t = [76, 77, 78, 79]
    for m in range(4):
        ST, DST = 14, 80 + m
        p(f"s_add_u32 s{ST}, s{S_W}, {4*m}")
        p(f"s_cmp_ge_u32 s{ST}, 7")
        p(f"s_cselect_b32 s{t[0]}, 1, 0")
        p(f"s_mul_i32 s{t[1]}, s{t[0]}, 7")
        p(f"s_sub_u32 s{t[1]}, s{ST}, s{t[1]}")
        p(f"s_mul_i32 s{DST}, s{S_J}, 7")
        p(f"s_add_u32 s{DST}, s{DST}, s{t[1]}")
        p(f"s_lshl_b32 s{DST}, s{DST}, 1")
        p(f"s_add_u32 s{DST}, s{DST}, s{t[0]}")
        p(f"s_mul_i32 s{DST}, s{DST}, 14")
        p(f"s_add_u32 s{DST}, s{DST}, s{S_R}")
        p(f"s_and_b32 s9, s{ST}, 1")
        p(f"s_lshr_b32 s10, s{ST}, 1")
        p(f"s_and_b32 s11, s{S_R}, 1")
        p("s_mul_i32 s11, s11, 7")
        p("s_add_u32 s11, s11, s10")
        p(f"s_lshr_b32 s15, s{S_R}, 1")
        p("s_mul_i32 s15, s15, 7")
        p(f"s_mul_i32 s{t[0]}, s{S_J}, 196")
        p(f"s_add_u32 s15, s15, s{t[0]}")
        p(f"s_and_b32 s{t[0]}, s11, 3")
        p(f"s_mul_i32 s{t[0]}, s{t[0]}, 49")
        p(f"s_lshr_b32 s{t[1]}, s11, 2")
        p(f"s_lshl_b32 s{t[1]}, s{t[1]}, 1")
        p(f"s_add_u32 s{t[1]}, s{t[1]}, s9")
        p(f"s_add_u32 s{t[0]}, s{t[0]}, s{t[1]}")
        p(f"s_lshl_b32 s10, s10, 6")
        p(f"s_lshl_b32 s{t[1]}, s9, 3")
        p(f"s_add_u32 s{t[1]}, s{t[1]}, s10")
        p(f"s_sub_u32 s{t[2]}, s11, 12")
        p(f"s_lshl_b32 s{t[2]}, s{t[2]}, 1")
        p(f"s_add_u32 s{t[2]}, s{t[2]}, s9")
        p(f"s_mul_i32 s{t[2]}, s{t[2]}, 49")
        p(f"s_add_u32 s{t[2]}, s{t[2]}, 6")
        p(f"s_lshl_b32 s{t[3]}, s9, 5")
        p(f"s_add_u32 s{t[3]}, s{t[3]}, s10")
        p("s_cmp_lt_u32 s11, 12")
        p(f"s_cselect_b32 s{t[0]}, s{t[0]}, s{t[2]}")
        p(f"s_cselect_b32 s{t[1]}, s{t[1]}, s{t[3]}")
        p(f"s_cselect_b32 s{t[2]}, 4, 3")
        p(f"s_add_u32 s{t[0]}, s{t[0]}, s15")
        p(f"s_lshl_b32 s{t[3]}, s{ST}, 5")
        p(f"s_cmp_eq_u32 s{S_ISW2}, 1")
        p(f"s_cselect_b32 s{DST}, s{t[0]}, s{DST}")
        p(f"s_cselect_b32 s{t[1]}, s{t[1]}, s{t[3]}")
        p(f"s_cselect_b32 s{t[2]}, s{t[2]}, 3")
        p(f"s_lshl_b32 s{DST}, s{DST}, 10")
        p(f"v_lshlrev_b32 v{144+m}, s{t[2]}, v15")
        p(f"v_add3_u32 v{144+m}, v{144+m}, v47, s{t[1]}")
    mlp_setup(p)
    if 'pp' in EXP: stamp(p, 30)
    p.wait_vm("w")
    if 'pp' in EXP: stamp(p, 31)
    early_loads(p)
    p("v_lshlrev_b32 v14, 4, v0")
    for m in range(3):
        p.lg(f"ds_write_b128 v14, {v(48+4*m,4)} offset:{LB+4096*m}")
    lab = p.uid("skip3")
    p(f"s_cmp_ge_u32 s{S_W}, 2")
    p(f"s_cbranch_scc1 {lab}")
    p(f"ds_write_b128 v14, {v(60,4)} offset:{LB+4096*3}")
    p.label(lab)
    p.wait_lg()
    p("s_barrier")
    for m in range(4):
        p.lg(f"ds_read_b64_tr_b16 {v(48+4*m,2)}, v{144+m} offset:{LB}", f"t{m}")
        p.lg(f"ds_read_b64_tr_b16 {v(48+4*m+2,2)}, v{144+m} offset:{LB+4*448}", f"t{m}")
    for m in range(3):
        p.wait_lg(f"t{m}")
        p.vm(f"buffer_store_dwordx4 {v(48+4*m,4)}, v46, {sr(SDST)}, s{80+m} offen sc1", "wst")
    lab = p.uid("pk")
    p.wait_lg()
    p(f"s_cmp_ge_u32 s{S_W}, 2")
    p(f"s_cbranch_scc1 {lab}")
    p(f"buffer_store_dwordx4 {v(60,4)}, v46, {sr(SDST)}, s83 offen sc1")
    p.label(lab)
    p.srd(SF_, P_DBG, 0, 256)
    p("v_mov_b32 v47, 0")
    p.vm(f"buffer_load_dwordx2 v[150:151], v47, {sr(SF_)}, 0 offen sc1", "nonce")
    if 'pp' in EXP: stamp(p, 32)
    KF, SF, VF, AC, OP = 64, 92, 108, 124, 140
    p("v_mov_b32 v15, 0xffff0000")
    for i in range(7):
        for d in range(2):
            p(f"v_lshlrev_b32 v{KF+4*i+2*d}, 16, v{16+2*i+d}")
            p(f"v_and_b32 v{KF+4*i+2*d+1}, v15, v{16+2*i+d}")
    for e in range(4):
        for j in range(4):
            src = 38 + 2*e + (j >> 1)
            if j & 1: p(f"v_and_b32 v{SF+4*j+e}, v15, v{src}")
            else: p(f"v_lshlrev_b32 v{SF+4*j+e}, 16, v{src}")
    for i in range(4):
        for d in range(2):
            p(f"v_lshlrev_b32 v{VF+4*i+2*d}, 16, v{30+2*i+d}")
            p(f"v_and_b32 v{VF+4*i+2*d+1}, v15, v{30+2*i+d}")
    for j in range(4):
        for r in range(4):
            for e in (0, 2):
                kf = v(KF+4*(r+3-j)+e, 2); sf = v(SF+4*j+e, 2); ac = v(AC+4*r+e, 2)
                if j == 0: p(f"v_pk_mul_f32 {ac}, {kf}, {sf}")
                else: p(f"v_pk_fma_f32 {ac}, {kf}, {sf}, {ac}")
    for r in range(4):
        for e in (0, 2):
            p(f"v_pk_mul_f32 {v(AC+4*r+e,2)}, {v(AC+4*r+e,2)}, {v(VF+4*r+e,2)}")
    for e in range(4):
        p(f"v_cvt_pk_bf16_f32 v{OP+2*e}, v{AC+e}, v{AC+4+e}")
        p(f"v_cvt_pk_bf16_f32 v{OP+2*e+1}, v{AC+8+e}, v{AC+12+e}")
    if 'pp' in EXP: stamp(p, 33)
    p("v_xor_b32 v13, v1, v2")
    p("v_lshlrev_b32 v13, 3, v13")
    p("v_lshl_add_u32 v13, v1, 9, v13")
    for e in range(4):
        p.lg(f"ds_write_b64 v13, {v(OP+2*e,2)} offset:{LA+128*e}")
    p.wait_lg()
    p("s_barrier")
    p("v_lshrrev_b32 v1, 3, v0")
    p("v_and_b32 v2, 7, v0")
    p("v_lshlrev_b32 v3, 1, v2")
    p(f"s_lshl_b32 s9, s{S_CG}, 6")
    p(f"s_lshl_b32 s10, s{S_RBK}, 7")
    for pi in range(2):
        p(f"v_add_u32 v4, {32*pi}, v1")
        p("v_lshrrev_b32 v5, 2, v4")
        p("v_xor_b32 v6, v3, v5")
        p("v_xor_b32 v7, 1, v6")
        p("v_lshlrev_b32 v8, 7, v4")
        p("v_lshl_add_u32 v6, v6, 3, v8")
        p("v_lshl_add_u32 v7, v7, 3, v8")
        p.lg(f"ds_read_b64 {v(16+4*pi,2)}, v6 offset:{LA}", f"a{pi}")
        p.lg(f"ds_read_b64 {v(18+4*pi,2)}, v7 offset:{LA}", f"a{pi}")
        p("v_add_u32 v8, s9, v4")
        p("v_lshlrev_b32 v8, 12, v8")
        p("v_lshl_add_u32 v8, v2, 4, v8")
        p(f"v_add_u32 v{24+pi}, s10, v8")
    for pi in range(2):
        p.wait_lg(f"a{pi}")
        p.vm(f"buffer_store_dwordx4 {v(16+4*pi,4)}, v{24+pi}, {sr(SKVT)}, 0 offen sc1", "kvst")

HW = 160
def code_prefetch(p):
    if 'nocode' in EXP: return
    p("s_getpc_b64 s[90:91]")
    lab = p.uid("K_pc")
    p.label(lab)
    p("v_lshlrev_b32 v180, 7, v0")
    p(f"v_cmp_gt_u32 vcc, (K_end - {lab}), v180")
    p("s_and_saveexec_b64 s[10:11], vcc")
    p.vm("global_load_dword v255, v180, s[90:91]", "code")
    p("s_mov_b64 exec, s[10:11]")

def q_loads(p):
    p.srd(SF_, P_Q, 0, MAT)
    p.vm(f"buffer_load_dwordx4 {v(XP,4)}, v{OFFA}, {sr(SF_)}, 0 offen", "q")
    p.vm(f"buffer_load_dwordx4 {v(XP+4,4)}, v{OFFB}, {sr(SF_)}, 0 offen", "q")

def early_loads(p):
    SH = SF_
    p("s_lshl_b32 s9, s2, 13")
    p(f"s_add_u32 s{SH}, s{P_H}, s9"); p(f"s_addc_u32 s{SH+1}, s{P_H+1}, 0")
    p(f"s_mov_b32 s{SH+2}, 8192"); p(f"s_mov_b32 s{SH+3}, 0x20000")
    p("v_sub_u32 v176, 255, v0")
    p("v_lshlrev_b32 v176, 4, v176")
    p("v_subrev_u32 v177, 16, v176")
    for ch in range(2):
        p(f"v_add_u32 v178, {4096*ch}, v177")
        p(f"v_add_u32 v179, {4096*ch}, v176")
        p.vm(f"buffer_load_dwordx4 {v(HW+8*ch,4)}, v178, {sr(SH)}, 0 offen", "h")
        p.vm(f"buffer_load_dwordx4 {v(HW+4+8*ch,4)}, v179, {sr(SH)}, 0 offen", "h")
    if 'qlate' not in EXP: q_loads(p)

def hbuild(p):
    p("v_mov_b32 v5, 0xffff")
    p("v_cmp_ne_u32 vcc, 255, v0")
    p("v_lshlrev_b32 v6, 4, v0")
    E1, E2, O1, O2 = 32, 40, 46, 54
    for ch in range(2):
        W = HW + 8 * ch
        for d in range(4):
            p(f"v_cndmask_b32 v{W+d}, 0, v{W+d}, vcc")
        def o(dst, sidx):
            if sidx % 2 == 0:
                pz = (14 - sidx) // 2
                p(f"v_alignbit_b32 v{dst}, v{W+pz}, v{W+pz}, 16")
            else:
                p(f"v_bfi_b32 v{dst}, v5, v{W+(15-sidx)//2}, v{W+(13-sidx)//2}")
        for n in range(7): o(E1 + n, 2 * n)
        for n in range(6): o(E2 + n, 2 * n + 2)
        for n in range(7): o(O1 + n, 2 * n + 1)
        for n in range(6): o(O2 + n, 2 * n + 3)
        src = {0: E1, 4: E1 + 2, 2: E2, 6: E2 + 2, 1: O1, 5: O1 + 2, 3: O2, 7: O2 + 2}
        for c in range(8):
            p.lg(f"ds_write_b128 v6, {v(src[c],4)} offset:{ch*HC_CH + c*HC_COPY}")
        p("s_nop 1")
    for r in range(4): p(f"v_mov_b32 v{60+r}, 0")
    p("v_and_b32 v7, 15, v0")
    p(f"v_mul_u32_u24 v7, {HC_COPY}, v7")
    p("v_add_u32 v7, 4096, v7")
    p("v_and_b32 v8, 31, v0")
    p("v_lshlrev_b32 v8, 4, v8")
    p("v_bfe_u32 v9, v0, 5, 1")
    p(f"v_mul_u32_u24 v9, {U_CH}, v9")
    p(f"s_mov_b32 s9, {L_U}")
    p("v_add3_u32 v8, v8, v9, s9")
    p.lg(f"ds_write_b128 v7, {v(60,4)}")
    p.lg(f"ds_write_b128 v8, {v(60,4)}")

W20, W2A, W2B = 12, 49, 49
def w2_items(SW2):
    G = []
    for f in range(49):
        it = []
        base = f - f % 4
        if f % 4 == 0 or f in (W20, W2A, W2B): it.append((f"s_mov_b32 s15, {1024*base}", "", None))
        it.append((f"buffer_load_dwordx4 {a(4*f,4)}, v{V_L16}, {sr(SW2)}, s15 offen offset:{1024*(f%4)} {'sc1 nt' if 'wnt2' in EXP else 'sc1'}", "vm", "w2"))
        G.append(it)
    return G

def load_w2(p, SW2):
    for f in range(49):
        if f % 4 == 0: p(f"s_mov_b32 s9, {1024*f}")
        p.vm(f"buffer_load_dwordx4 {a(4*f,4)}, v{V_L16}, {sr(SW2)}, s9 offen offset:{1024*(f%4)} sc1", "w2")

def conv_main(p):
    ACC, FA, FB = 72, 96, 16
    fb = lambda buf, m: (16 + 28 * buf + 4 * m) if m < 7 else (160 + 4 * buf)
    p("v_and_b32 v1, 63, v0")
    p("v_and_b32 v2, 15, v1")
    p("v_lshrrev_b32 v3, 4, v1")
    p("v_and_b32 v4, 7, v2")
    p("v_sub_u32 v4, 7, v4")
    p(f"v_mul_u32_u24 v4, {HC_COPY}, v4")
    p("v_lshrrev_b32 v5, 3, v2")
    p("v_sub_u32 v5, v3, v5")
    p("v_add_u32 v5, 1, v5")
    p("v_lshl_add_u32 v4, v5, 4, v4")
    p(f"s_mul_i32 s9, s{S_B}, {HC_CH}")
    p("v_add_u32 v12, s9, v4")
    p(f"s_mul_i32 s9, s{S_B}, {U_CH}")
    p(f"s_add_u32 s9, s9, {L_U + 512 - 32 - 64*7}")
    p("v_lshlrev_b32 v5, 5, v2")
    p("v_lshl_add_u32 v5, v3, 4, v5")
    p("v_add_u32 v13, s9, v5")
    set1 = p.uid("cset1"); join = p.uid("cjoin")
    p(f"s_cmp_eq_u32 s{S_A}, 1")
    p(f"s_cbranch_scc1 {set1}")
    for st, tiles in ((0, (0, 3, 4, 7)), (1, (1, 2, 5, 6))):
        if st == 1: p.label(set1)
        mx = max(tiles)
        def reads(rho, buf):
            L = []
            for m in range(mx + 1):
                L.append((f"ds_read_b128 {v(FA+32*buf+4*m,4)}, v12 offset:{512*(7-m)+64*(7-rho)}", "lg", f"r{rho}_{m}"))
                L.append((f"ds_read_b128 {v(fb(buf,m),4)}, v13 offset:{512*m+64*(7-rho)}", "lg", f"r{rho}_{m}"))
            return L
        saved_vm = list(p.vmq)
        w2 = w2_items(SE)[W20:W2A] if 'now2' not in EXP else []
        for it in reads(0, 0): emit(p, it)
        first = set()
        for rho in range(8):
            buf = rho & 1
            nxt = reads(rho + 1, buf ^ 1) if rho < 7 else []
            mf = sorted([(max(mu, nt - mu), ti, nt, mu) for ti, nt in enumerate(tiles) for mu in range(nt + 1)])
            M = []; seen = -1
            for (mm, ti, nt, mu) in mf:
                c = v(ACC+4*ti,4) if ti in first else "0"
                first.add(ti)
                t = f"v_mfma_f32_16x16x32_bf16 {v(ACC+4*ti,4)}, {v(FA+32*buf+4*mu,4)}, {v(fb(buf,nt-mu),4)}, {c}"
                w = []
                if mm > seen: w.append((None, "wlg", f"r{rho}_{mm}")); seen = mm
                M.append((t, w))
            N = {}
            for i, it in enumerate(nxt): N.setdefault(i, []).append(it)
            slots = [3, 6, 9, 12, 15, 17]
            for q_ in range(6 if rho < 7 else 0):
                if w2: N.setdefault(slots[q_], []).extend(w2.pop(0))
            schedule(p, M, [], N)
        assert not w2
        p.vmq = saved_vm + ["w2"]
        p("s_barrier")
        p(f"s_mul_i32 s9, s{S_B}, {U_CH}")
        p(f"s_add_u32 s9, s9, {L_U + 512}")
        p("v_lshlrev_b32 v5, 5, v2")
        p("v_lshl_add_u32 v5, v3, 3, v5")
        p("v_add_u32 v6, s9, v5")
        p(f"s_mul_i32 s9, s{S_B}, {YS_CH}")
        p("v_add_u32 v7, s9, v5")
        for ti, nt in enumerate(tiles):
            p.lg(f"ds_read_b64 {v(FA+2*ti,2)}, v6 offset:{512*nt}", f"u{ti}")
        p("v_mov_b32 v8, 0xffff0000")
        for ti, nt in enumerate(tiles):
            p.wait_lg(f"u{ti}")
            u = FA + 2 * ti; t = 16 + 4 * ti
            p(f"v_lshlrev_b32 v{t}, 16, v{u}")
            p(f"v_and_b32 v{t+1}, v8, v{u}")
            p(f"v_lshlrev_b32 v{t+2}, 16, v{u+1}")
            p(f"v_and_b32 v{t+3}, v8, v{u+1}")
            for r in range(4):
                p(f"v_fma_f32 v{t+r}, v{t+r}, s14, v{ACC+4*ti+r}")
            p(f"v_cvt_pk_bf16_f32 v{t}, v{t}, v{t+1}")
            p(f"v_cvt_pk_bf16_f32 v{t+1}, v{t+2}, v{t+3}")
            p.lg(f"ds_write_b64 v7, {v(t,2)} offset:{512*nt}")
        p.wait_lg()
        if st == 0: p(f"s_branch {join}")
    p.label(join)
    p("s_barrier")

def conv_out(p, SY):
    p("v_and_b32 v1, 3, v0")
    p("v_lshrrev_b32 v2, 2, v0")
    p("v_lshrrev_b32 v3, 1, v1")
    p("v_and_b32 v4, 1, v1")
    p(f"v_mul_u32_u24 v3, {YS_CH}, v3")
    p("v_lshl_add_u32 v3, v4, 4, v3")
    p("v_lshl_add_u32 v3, v2, 5, v3")
    p.lg("ds_read_b128 v[16:19], v3", "y0")
    p.lg(f"ds_read_b128 v[20:23], v3 offset:{64*32}", "y1")
    p(f"v_mul_u32_u24 v5, {D*32}, v2")
    p("v_lshl_add_u32 v5, v1, 4, v5")
    p("s_lshl_b32 s9, s2, 6")
    p("v_add_u32 v5, s9, v5")
    p(f"v_add_u32 v6, {64*D*32}, v5")
    p.wait_lg("y0")
    p.vm(f"buffer_store_dwordx4 v[16:19], v5, {sr(SY)}, 0 offen sc1", "yst")
    p.wait_lg("y1")
    p.vm(f"buffer_store_dwordx4 v[20:23], v6, {sr(SY)}, 0 offen sc1", "yst")

X, T, PK, TMP = 16, 32, 64, 72
YT = 96
def row_setup(p):
    p("v_and_b32 v181, 31, v0")
    p("v_lshrrev_b32 v182, 5, v0")
    p(f"v_cmp_gt_u32 {ACT}, 28, v181")
    p(f"v_mul_u32_u24 v183, {ROWB}, v182")
    p("v_lshl_add_u32 v183, v181, 4, v183")
    p(f"s_mul_i32 s9, s{S_RB}, {8*ROWB}")
    p("v_add_u32 v183, s9, v183")
    p(f"v_cndmask_b32 v{OFFA}, -1, v183, {ACT}")
    p("v_add_u32 v183, 448, v183")
    p(f"v_cndmask_b32 v{OFFB}, -1, v183, {ACT}")

def unpack(p, dst, src, n):
    for i in range(n):
        p(f"v_lshlrev_b32 v{dst+2*i}, 16, v{src+i}")
        p(f"v_and_b32 v{dst+2*i+1}, v7, v{src+i}")
def pack(p, dst, src, n):
    for i in range(n):
        p(f"v_cvt_pk_bf16_f32 v{dst+i}, v{src+2*i}, v{src+2*i+1}")
def allreduce32(p, r, t):
    for m in ("quad_perm:[1,0,3,2]", "quad_perm:[2,3,0,1]", "row_half_mirror", "row_mirror"):
        p(f"v_add_f32_dpp v{r}, v{r}, v{r} {m} row_mask:0xf bank_mask:0xf")
    p(f"v_mov_b32 v{t}, v{r}")
    p(f"v_permlane16_swap_b32 v{r}, v{t}")
    p(f"v_add_f32 v{r}, v{r}, v{t}")
def sum16(p, dst, src):
    p(f"v_pk_add_f32 {v(TMP,2)}, {v(src,2)}, {v(src+2,2)}")
    p(f"v_pk_add_f32 {v(TMP+2,2)}, {v(src+4,2)}, {v(src+6,2)}")
    p(f"v_pk_add_f32 {v(TMP+4,2)}, {v(src+8,2)}, {v(src+10,2)}")
    p(f"v_pk_add_f32 {v(TMP+6,2)}, {v(src+12,2)}, {v(src+14,2)}")
    p(f"v_pk_add_f32 {v(TMP,2)}, {v(TMP,2)}, {v(TMP+2,2)}")
    p(f"v_pk_add_f32 {v(TMP+4,2)}, {v(TMP+4,2)}, {v(TMP+6,2)}")
    p(f"v_pk_add_f32 {v(TMP,2)}, {v(TMP,2)}, {v(TMP+4,2)}")
    p(f"v_add_f32 v{dst}, v{TMP}, v{TMP+1}")
    p(f"v_cndmask_b32 v{dst}, 0, v{dst}, {ACT}")
def layernorm(p, src, dst, scale=None):
    M, V_ = TMP + 8, TMP + 10
    sum16(p, M, src)
    allreduce32(p, M, TMP + 9)
    p(f"v_mul_f32 v{M}, {fbits(-1.0/D)}, v{M}")
    p(f"v_mov_b32 v{M+1}, v{M}")
    for i in range(0, 16, 2):
        p(f"v_pk_add_f32 {v(dst+i,2)}, {v(src+i,2)}, {v(M,2)}")
    p(f"v_pk_mul_f32 {v(TMP,2)}, {v(dst,2)}, {v(dst,2)}")
    p(f"v_pk_mul_f32 {v(TMP+2,2)}, {v(dst+2,2)}, {v(dst+2,2)}")
    for i in range(4, 16, 4):
        p(f"v_pk_fma_f32 {v(TMP,2)}, {v(dst+i,2)}, {v(dst+i,2)}, {v(TMP,2)}")
        p(f"v_pk_fma_f32 {v(TMP+2,2)}, {v(dst+i+2,2)}, {v(dst+i+2,2)}, {v(TMP+2,2)}")
    p(f"v_pk_add_f32 {v(TMP,2)}, {v(TMP,2)}, {v(TMP+2,2)}")
    p(f"v_add_f32 v{V_}, v{TMP}, v{TMP+1}")
    p(f"v_cndmask_b32 v{V_}, 0, v{V_}, {ACT}")
    allreduce32(p, V_, TMP + 11)
    p(f"v_mov_b32 v{V_+1}, {fbits(1e-5)}")
    p(f"v_fmac_f32 v{V_+1}, {fbits(1.0/D)}, v{V_}")
    p(f"v_rsq_f32 v{V_}, v{V_+1}")
    if scale is not None: p(f"v_mul_f32 v{V_}, {fbits(scale)}, v{V_}")
    else: p("s_nop 0")
    p(f"v_mov_b32 v{V_+1}, v{V_}")
    for i in range(0, 16, 2):
        p(f"v_pk_mul_f32 {v(dst+i,2)}, {v(dst+i,2)}, {v(V_,2)}")

def y_load(p, SY):
    p(f"s_lshr_b32 s9, s{S_RB}, 1")
    p(f"s_mul_i32 s9, s9, {D*32}")
    p(f"s_and_b32 s10, s{S_RB}, 1")
    p("s_lshl_b32 s10, s10, 4")
    p("s_add_u32 s9, s9, s10")
    p("v_lshlrev_b32 v3, 5, v0")
    p("v_add_u32 v3, s9, v3")
    p(f"v_add_u32 v4, {256*32}, v3")
    p("v_cmp_gt_u32 vcc, 192, v0")
    p("v_cndmask_b32 v4, -1, v4, vcc")
    p.vm(f"buffer_load_dwordx4 {v(YT,4)}, v3, {sr(SY)}, 0 offen sc1", "y")
    p.vm(f"buffer_load_dwordx4 {v(YT+4,4)}, v4, {sr(SY)}, 0 offen sc1", "y")

def y_transpose(p):
    p("v_lshlrev_b32 v3, 2, v0")
    p.wait_vm("y")
    for wq in range(4):
        p.lg(f"ds_write_b32 v3, v{YT+wq} offset:{LY+2048*wq}")
        p.lg(f"ds_write_b32 v3, v{YT+4+wq} offset:{LY+2048*wq+1024}")
    p.wait_lg()
    p("s_barrier")
    p("v_and_b32 v1, 31, v0")
    p("v_lshrrev_b32 v4, 6, v0")
    p("v_lshlrev_b32 v4, 11, v4")
    p("v_lshl_add_u32 v4, v1, 5, v4")
    for k in range(2):
        p.lg(f"ds_read_b128 {v(YT+8*k,4)}, v4 offset:{LY+896*k}")
        p.lg(f"ds_read_b128 {v(YT+8*k+4,4)}, v4 offset:{LY+896*k+16}")
    p("v_bfe_u32 v5, v0, 5, 1")
    p("v_mov_b32 v6, 0x01000c0c")
    p("v_mov_b32 v3, 0x03020c0c")
    p("v_cmp_eq_u32 vcc, 1, v5")
    p("v_cndmask_b32 v6, v6, v3, vcc")
    p.wait_lg()
    for i in range(16):
        p(f"v_perm_b32 v{YV+i}, v{YT+i}, v{YT+i}, v6")

def poll_s2(p):
    lab = p.uid("s2"); done = p.uid("s2d"); skip = p.uid("s2s")
    p("v_and_b32 v1, 63, v0")
    p("s_and_b32 s9, s2, 7"); p("s_lshl_b32 s9, s9, 11"); p(f"s_add_u32 s9, s9, {FL_S2R}")
    for i in range(4):
        p(f"v_lshl_add_u32 v{12+i}, v1, 3, s9")
        if i: p(f"v_add_u32 v{12+i}, {512*i}, v{12+i}")
    p("v_and_b32 v48, 7, v0")
    p(f"s_lshl_b32 s9, s{S_CL}, 6")
    p(f"s_add_u32 s9, s9, {FL_XCC}")
    p("v_lshl_add_u32 v48, v48, 3, s9")
    p(f"s_cmp_eq_u32 s{S_W}, 0")
    p(f"s_cbranch_scc0 {skip}")
    if 's2st' in EXP:
        p("s_waitcnt vmcnt(0)"); stamp(p, 41)
    p(f"s_mov_b32 s{S_T}, 0")
    p.label(lab)
    masks = [64, 64, 64, 32]
    for i in range(4):
        setexec(p, masks[i])
        p(f"buffer_load_dwordx2 {v(2+2*i,2)}, v{12+i}, {sr(S_FL)}, 0 offen sc1")
    p("s_mov_b64 exec, -1")
    p(f"buffer_load_dwordx2 v[10:11], v48, {sr(S_FL)}, 0 offen sc1")
    p("s_waitcnt vmcnt(0)")
    p(f"v_subrev_u32 v10, s{S_N}, v10")
    p(f"v_cmp_eq_u32 vcc, s{S_N+1}, v11")
    p("v_cmp_gt_u32 s[10:11], 16, v10")
    p("s_nop 4")
    p("s_and_b64 vcc, vcc, s[10:11]")
    p("s_cmp_eq_u64 vcc, exec")
    p("s_cselect_b32 s9, 1, 0")
    for i in range(4):
        setexec(p, masks[i])
        p(f"v_cmp_eq_u64 vcc, {s(S_N,2)}, {v(2+2*i,2)}")
        p("s_nop 4")
        p("s_cmp_eq_u64 vcc, exec")
        p("s_cselect_b32 s9, s9, 0")
    p("s_mov_b64 exec, -1")
    p("s_cmp_eq_u32 s9, 1")
    p(f"s_cbranch_scc1 {done}")
    p(f"s_add_u32 s{S_T}, s{S_T}, 1")
    p(f"s_cmp_lt_u32 s{S_T}, 0x8000")
    p(f"s_cbranch_scc0 {done}")
    p("s_sleep 1")
    p(f"s_branch {lab}")
    p.label(done)
    if 's2st' in EXP:
        p(f"v_writelane_b32 v253, s{S_T}, 42"); p(f"v_writelane_b32 v252, s{S_T}, 43"); p(f"v_writelane_b32 v253, s{S_T}, 43")
    p("s_getreg_b32 s9, hwreg(HW_REG_XCC_ID, 0, 4)")
    p("v_cmp_eq_u32 vcc, s9, v10")
    p("s_nop 4")
    p("s_cmp_eq_u64 vcc, exec")
    p("s_cselect_b32 s9, 1, 0")
    if FORCE_SLOW: p("s_mov_b32 s9, 0")
    p("v_mov_b32 v2, s9")
    p(f"v_mov_b32 v3, {L_FASTW}")
    p("ds_write_b32 v3, v2")
    p("s_waitcnt lgkmcnt(0)")
    p.label(skip)
    p("s_barrier")
    p.vmq = []; p.lgq = []
    p(f"v_mov_b32 v3, {L_FASTW}")
    p.lg("ds_read_b32 v49, v3", "fw")

def fast_get(p):
    p.wait_lg("fw")
    p(f"v_readfirstlane_b32 s{S_FAST}, v49")

PB_ = 96
def partials_prelude(p):
    p("v_and_b32 v1, 31, v0")
    p("v_lshrrev_b32 v2, 5, v0")
    p(f"s_mul_i32 s9, s{S_MEM}, {8*ROWB}")
    p(f"v_mul_u32_u24 v3, {ROWB}, v2")
    p("v_lshl_add_u32 v3, v1, 4, v3")
    p("v_add_u32 v3, s9, v3")
    p(f"v_cndmask_b32 v12, -1, v3, {ACT}")
    p("v_add_u32 v3, 448, v3")
    p(f"v_cndmask_b32 v13, -1, v3, {ACT}")

def add_partials(p):
    for j in range(8):
        if j % 4 == 0: p(f"s_mov_b32 s9, {j*64*ROWB}")
        else: p(f"s_add_u32 s9, s9, {64*ROWB}")
        p.vm(f"buffer_load_dwordx4 {v(PB_+8*j,4)}, v12, {sr(S_PR)}, s9 offen sc1", f"p{j}")
        p.vm(f"buffer_load_dwordx4 {v(PB_+8*j+4,4)}, v13, {sr(S_PR)}, s9 offen sc1", f"p{j}")
    lab = p.uid("pf2")
    p(f"s_cmp_eq_u32 s{S_LAY}, 0"); p(f"s_cbranch_scc0 {lab}")
    for g_ in dma_w1_items(2, "pf2"):
        for it in g_: p(it[0])
    p.label(lab)
    p("v_mov_b32 v7, 0xffff0000")
    p("v_mov_b32 v14, 0x00003f80")
    p("v_mov_b32 v15, 0x3f800000")
    unpack(p, X, XP, 8)
    for i in range(16): p(f"v_mov_b32 v{T+i}, 0")
    p(f"v_mov_b32 v{TMP}, {fbits(LN2)}"); p(f"v_mov_b32 v{TMP+1}, {fbits(LN2)}")
    for j in range(8):
        p.wait_vm(f"p{j}")
        for i in range(8):
            p(f"v_dot2c_f32_bf16 v{T+2*i}, v{PB_+8*j+i}, v14")
            p(f"v_dot2c_f32_bf16 v{T+2*i+1}, v{PB_+8*j+i}, v15")
    for i in range(0, 16, 2):
        p(f"v_pk_fma_f32 {v(X+i,2)}, {v(T+i,2)}, {v(TMP,2)}, {v(X+i,2)}")

def xh(phi):
    return a(196 + 4 * phi, 4) if phi < 15 else v(148 + 4 * (phi - 15), 4)

def mlp_setup(p):
    row_setup(p)
    p("v_and_b32 v181, 63, v0")
    p("v_and_b32 v182, 15, v181")
    p("v_lshrrev_b32 v183, 4, v181")
    p(f"s_mul_i32 s9, s{S_A}, 14336")
    p(f"s_add_u32 s9, s9, {L_RING}")
    p(f"v_lshl_add_u32 v{V_A}, v181, 4, s9")
    p(f"v_add_u32 v{V_A2}, {2*CHUNK}, v{V_A}")
    p(f"s_lshl_b32 s9, s{S_B}, 5")
    p("v_add_u32 v184, s9, v182")
    p(f"v_mul_u32_u24 v184, {SH_}, v184")
    p("v_bfe_u32 v185, v182, 1, 2")
    p("v_lshrrev_b32 v186, 1, v183")
    p("v_xor_b32 v186, v186, v185")
    p("v_lshl_add_u32 v184, v186, 4, v184")
    p("v_and_b32 v186, 1, v183")
    p("v_lshl_add_u32 v184, v186, 3, v184")
    p("v_xor_b32 v186, 32, v184")
    p(f"s_cmp_eq_u32 s{S_A}, 1")
    p("s_cselect_b64 vcc, -1, 0")
    p("v_add_u32 v187, 192, v186")
    p(f"v_cndmask_b32 v{V_HW}, v184, v187, vcc")
    p("v_add_u32 v187, 256, v184")
    p(f"v_cndmask_b32 v{V_HW1}, v186, v187, vcc")
    p(f"v_mul_u32_u24 v184, {SH_}, v182")
    p("v_xor_b32 v185, v185, v183")
    p(f"v_lshl_add_u32 v{V_HR}, v185, 4, v184")
    p(f"v_subrev_u32 v{V_A3}, {L_RING - CHUNK}, v{V_A}")
    p(f"v_lshlrev_b32 v{V_L16}, 4, v181")
    p(f"v_mul_u32_u24 v184, {ROWB}, v182")
    p(f"s_lshl_b32 s9, s{S_W}, 6")
    p("v_lshl_add_u32 v185, v183, 4, v184")
    p(f"v_add_u32 v{V_PO}, s9, v185")
    p(f"s_add_u32 s9, s{S_A}, 12")
    p("s_lshl_b32 s9, s9, 6")
    p(f"s_lshl_b32 s10, s{S_B}, 5")
    p("s_add_u32 s9, s9, s10")
    p("v_lshl_add_u32 v185, v183, 3, v184")
    p(f"v_add_u32 v{V_PO1}, s9, v185")
    x_dma_setup(p)

XD1 = [200, 201, 209, 210, 211, 212, 213, 214]
XD2 = [215, 216, 217, 220, 221, 222]
XR1, XR2 = 108, 112
L_X2 = L_X + 64 * 512
def x_dma_setup(p):
    p("v_and_b32 v181, 63, v0")
    p("v_lshrrev_b32 v182, 5, v181")
    p("v_and_b32 v183, 31, v181")
    for i in range(8):
        p(f"v_add_u32 v184, {2*i}, v182")
        p("v_xor_b32 v185, v183, v184")
        p(f"v_mul_u32_u24 v184, {ROWB}, v184")
        p(f"v_lshl_add_u32 v{XD1[i]}, v185, 4, v184")
    for i in range(6):
        p(f"v_add_u32 v184, {64*i}, v181")
        p("v_mul_u32_u24 v185, 2731, v184")
        p("v_lshrrev_b32 v185, 16, v185")
        p("v_mul_u32_u24 v186, 24, v185")
        p("v_sub_u32 v186, v184, v186")
        p("v_and_b32 v184, 6, v185")
        p("v_xor_b32 v186, v186, v184")
        p(f"v_mul_u32_u24 v185, {ROWB}, v185")
        p("v_lshl_add_u32 v185, v186, 4, v185")
        p(f"v_add_u32 v{XD2[i]}, 512, v185")

def x_read_setup(p):
    p("v_and_b32 v1, 63, v0")
    p("v_and_b32 v2, 15, v1")
    p("v_lshrrev_b32 v3, 4, v1")
    p(f"s_lshl_b32 s9, s{S_B}, 5")
    p("v_add_u32 v4, s9, v2")
    p("v_and_b32 v5, 3, v2")
    p("v_xor_b32 v5, v5, v3")
    p("v_lshlrev_b32 v5, 4, v5")
    p("v_lshl_add_u32 v5, v4, 9, v5")
    p("v_lshrrev_b32 v6, 2, v2")
    for r in range(4):
        p(f"v_xor_b32 v8, {r}, v6")
        p(f"v_lshl_add_u32 v{XR1+r}, v8, 6, v5")
    p("v_and_b32 v5, 2, v2")
    p("v_xor_b32 v5, v5, v3")
    p("v_lshlrev_b32 v5, 4, v5")
    p("v_mul_u32_u24 v4, 384, v4")
    p("v_add_u32 v5, v5, v4")
    p(f"v_add_u32 v5, {L_X2}, v5")
    p("v_and_b32 v6, 1, v6")
    p(f"v_lshl_add_u32 v{XR2}, v6, 6, v5")
    p("v_xor_b32 v6, 1, v6")
    p(f"v_lshl_add_u32 v{XR2+1}, v6, 6, v5")

def dma_x(p):
    p(f"s_lshl_b32 s9, s{S_W}, 13")
    p(f"s_mul_i32 s10, s{S_W}, {16*384}")
    for i in range(8):
        p(f"s_add_u32 m0, s9, {L_X + 1024*i}")
        p.vm(f"buffer_load_dwordx4 v{XD1[i]}, {sr(S_X)}, s{S_W14} offen sc1 lds", "x1")
    for i in range(6):
        p(f"s_add_u32 m0, s10, {L_X2 + 1024*i}")
        p.vm(f"buffer_load_dwordx4 v{XD2[i]}, {sr(S_X)}, s{S_W14} offen sc1 lds", "x2")

def dma_w1_items(chunk, tag, g=12):
    G = []
    for i in range(7):
        it = []
        if i in (0, 4):
            o = 4096 if i else 0
            it += [(f"s_add_u32 m0, s{S_W7}, {slot_base(chunk) + o}", "", None),
                   (f"s_add_u32 s{g}, s{S_W7}, {chunk * CHUNK + o}", "", None)]
        it.append((f"buffer_load_dwordx4 v{V_L16}, {sr(S_W1)}, s{g} offen offset:{1024*(i%4)} {'sc1 nt' if 'wnt1' in EXP else 'sc1'} lds", "vm", tag))
        G.append(it)
    return G

def dma_w1(p, chunk, tag):
    p(f"s_mul_i32 s9, s{S_W}, 7168")
    p(f"s_add_u32 s10, s9, {L_RING + (chunk % 3) * CHUNK}")
    p(f"s_add_u32 s9, s9, {chunk * CHUNK}")
    for grp, cnt in ((0, 4), (4, 3)):
        if grp:
            p("s_add_u32 s10, s10, 4096"); p("s_add_u32 s9, s9, 4096")
        p("s_mov_b32 m0, s10")
        for i in range(cnt):
            p.vm(f"buffer_load_dwordx4 v{V_L16}, {sr(S_W1)}, s9 offen offset:{1024*i} sc1 lds", tag)

def cost(t):
    op = t.split()[0]
    if op.startswith(("v_exp", "v_rcp", "v_rsq")): return 8
    if op.startswith("v_"): return 4
    return 0

def emit(p, item):
    t, kind, tag = item
    if kind == "lg": p.lg(t, tag)
    elif kind == "vm": p.vm(t, tag)
    elif kind == "wlg": p.wait_lg(tag)
    elif kind == "wvm": p.wait_vm(tag)
    else: p(t)

def schedule(p, M, V=(), N=None, vstart=0, vend=None):
    N = N or {}
    vend = len(M) if vend is None else vend
    total = sum(cost(x[0]) for x in V)
    done, cum = 0, 0
    for i, m in enumerate(M):
        if isinstance(m, tuple):
            for w in m[1]: emit(p, w)
            m = m[0]
        p(m)
        for it in N.get(i, []): emit(p, it)
        if i >= vstart and done < len(V):
            last = (i >= vend - 1)
            target = total * (i - vstart + 1) / max(1, vend - vstart)
            while done < len(V) and (last or cum + cost(V[done][0]) / 2 <= target):
                cum += cost(V[done][0]); emit(p, V[done]); done += 1
    while done < len(V):
        emit(p, V[done]); done += 1

def interleave(p, M, O, first=0):
    n = len(M) - first
    done = 0
    for i, m in enumerate(M):
        p(m)
        if i >= first:
            want = (len(O) * (i - first + 1) + n - 1) // n
            while done < want:
                t, kind, tag = O[done]; done += 1
                if kind == "lg": p.lg(t, tag)
                elif kind == "vm": p.vm(t, tag)
                else: p(t)

FA, AC1, ST_, HO = 16, 72, 96, 104
def silu_stages(T):
    z = AC1 + 8 * (T % 3); t = ST_
    E = [(f"v_exp_f32_e64 v{t+r}, -v{z+r}", "", None) for r in range(8)]
    A = [(f"v_add_f32 v{t+r}, 1.0, v{t+r}", "", None) for r in range(8)]
    C = [(f"v_rcp_f32 v{t+r}, v{t+r}", "", None) for r in range(8)]
    M = [(f"v_mul_f32 v{t+r}, v{z+r}, v{t+r}", "", None) for r in range(8)]
    V = []
    for nt in range(2):
        V.append((f"v_cvt_pk_bf16_f32 v{HO+2*nt}, v{t+4*nt}, v{t+4*nt+1}", "", None))
        V.append((f"v_cvt_pk_bf16_f32 v{HO+2*nt+1}, v{t+4*nt+2}, v{t+4*nt+3}", "", None))
    W = [(f"ds_write_b64 v{V_HW1 if T & 1 else V_HW}, {v(HO+2*nt,2)} offset:{L_X + nt*16*SH_ + 64*(T>>1)}", "lg", "hw") for nt in range(2)]
    return E, A, C, M, V, W

def gemm1(p):
    def areads(h):
        T, half, buf = h >> 1, h & 1, h & 1
        if T == 3: base, o = V_A3, 0
        else:
            sl = T if T < 3 else T - 4
            base, o = (V_A, sl * CHUNK) if sl < 2 else (V_A2, 0)
        return [(f"ds_read_b128 {v(FA+28*buf+4*i,4)}, v{base} offset:{o + 1024*(7*half+i)}", "lg", f"g{h}") for i in range(7)]
    p.wait_vm("x1")
    p("s_barrier")
    stamp(p, 12, True)
    def xread(k, nt):
        if k < 8: return (f"ds_read_b128 {xh(2*k+nt)}, v{XR1 + (k & 3)} offset:{L_X + 256*(k>>2) + nt*16*512}", "lg", f"x{k}")
        kk = k - 8
        return (f"ds_read_b128 {xh(2*k+nt)}, v{XR2 + (kk & 1)} offset:{128*(kk>>1) + nt*16*384}", "lg", f"x{k}")
    a0 = areads(0)
    for k in range(7):
        t, kind, _ = a0[k]
        emit(p, (t, kind, f"a0_{k}")); emit(p, xread(k, 0)); emit(p, xread(k, 1))
    silu = 'nosilu' not in EXP
    for h in range(14):
        T, half, buf = h >> 1, h & 1, h & 1
        nxt = areads(h + 1) if h < 13 else []
        pre = [[] for _ in range(14)]
        val = [[] for _ in range(14)]
        post = [[] for _ in range(14)]
        for i, it in enumerate(nxt): pre[i].append(it)
        if h == 0:
            pre[0].append(xread(7, 0)); pre[1].append(xread(7, 1))
            pre[2] += [(None, "wvm", "x2"), ("s_barrier", "", None)]
            extra = [xread(k, nt) for k in range(8, 14) for nt in range(2)]
            for i in range(12): pre[2 + i].append(extra[i])
        if 1 <= h <= 8 and 'nodma1' not in EXP:
            c = 3 + (h - 1) // 2
            grps = dma_w1_items(c, f"c{c}")
            grps = grps[:4] if h & 1 else grps[4:]
            at = [1, 4, 8, 11] if h & 1 else [2, 6, 10]
            for g_, grp in zip(at, grps):
                sal = [x for x in grp if x[1] == ""]; dm = [x for x in grp if x[1] == "vm"]
                pre[g_] = sal + pre[g_] + dm
        if 9 <= h <= 13 and 'noldwc' not in EXP:
            first = 3 * (h - 9)
            for g_, i in zip((1, 5, 9), range(first, min(first + 3, 14))):
                pre[g_] = [(f"s_add_u32 s12, s{S_W14}, {1024*i}", "", None)] + pre[g_] + [(f"buffer_load_dwordx4 v[124:127], v{V_L16}, {sr(S_PW)}, s12 offen", "vm", "pw")]
        if silu:
            if half == 0 and T >= 2:
                E, A, C, M, V, W = silu_stages(T - 2)
                seq = M + V
                order = [2, 2, 2, 2, 2, 1, 1]
                for g_, cnt in enumerate(order):
                    for _ in range(cnt): val[g_].append(seq.pop(0))
                pre[7].append(W[0]); pre[9].append(W[1])
            if half == 0 and T >= 1:
                E = silu_stages(T - 1)[0]
                for r in range(7): val[7 + r].append(E[r])
                val[13].append(E[7])
            if half == 1 and T >= 1:
                E, A, C, M, V, W = silu_stages(T - 1)
                for r in range(7): val[r].append(A[r])
                val[6].append(A[7])
                for r in range(7): val[7 + r].append(C[r])
                val[13].append(C[7])
        if h < 13:
            w = [(None, "wlg", f"g{h+1}")]
            if h == 0: w.append((None, "wlg", "x13"))
            if half == 0 and 3 <= T + 1 <= 6: w.append((None, "wvm", f"c{T+1}"))
            pre[13] = w + pre[13] if h != 0 else pre[13] + w
        for q_ in range(14):
            i, nt = q_ >> 1, q_ & 1
            k = 7 * half + i
            if h == 0 and nt == 0:
                p.wait_lg(f"a0_{i}"); p.wait_lg(f"x{k}")
            acc = v(AC1 + 8 * (T % 3) + 4 * nt, 4)
            p(f"v_mfma_f32_16x16x32_bf16 {acc}, {v(FA+28*buf+4*i,4)}, {xh(2*k+nt)}, {'0' if k == 0 else acc}")
            for it in pre[q_] + val[q_] + post[q_]: emit(p, it)
        if half == 0 and 'nobar1' not in EXP: p("s_barrier")
        if 'tt' in EXP: p(f"s_memtime s[{40+0}:{41}]" if False else f"s_memtime s[{34+2*(h+3)}:{35+2*(h+3)}]") if False else None
        if 'tt' in EXP and h < 12: p(f"s_memtime s[{40+2*h}:{41+2*h}]")
    if 'tt' in EXP:
        p("s_waitcnt lgkmcnt(0)"); p.lgq = []
        for h in range(12): p(f"v_mov_b32 v{108+h}, s{40+2*h}")
        p("s_lshl_b32 s9, s2, 6"); p(f"s_mul_i32 s10, s{S_LAY}, 16384"); p("s_add_u32 s9, s9, s10"); p(f"s_add_u32 s9, s9, {0x30000}")
        p("v_mov_b32 v120, s9")
        p("s_mov_b64 s[10:11], exec"); p("s_mov_b64 exec, 1")
        for q_ in range(3): p.vm(f"buffer_store_dwordx4 {v(108+4*q_,4)}, v120, s[92:95], 0 offen offset:{16*q_}")
        p("s_mov_b64 exec, s[10:11]")
    if silu:
        E, A, C, M, V, W = silu_stages(5)
        for it in M + V + W: emit(p, it)
        E, A, C, M, V, W = silu_stages(6)
        for it in E + A + C + M + V + W: emit(p, it)
    p.wait_lg()
    p("s_barrier")

AC2, CO = 72, 16
OUTLINE = []
def gemm2(p):
    if 'l1sc1' in EXP or 'l1nt' in EXP: p(f"s_cmp_eq_u32 s{S_LAY}, 1")
    hread = lambda nt, k: (f"ds_read_b128 {xh(7*nt+k)}, v{V_HR} offset:{L_X + nt*16*SH_ + 64*k}", "lg", f"h{nt}_{k}")
    for k in range(7): emit(p, hread(0, k))
    pf = []
    units = [(3, nt) for nt in range(4)] + [(P, nt) for P in range(3) for nt in range(4)]
    def epi(u):
        P, nt = units[u]; ac = AC2 + 8 * (u & 1); o = CO + 4 * (u & 3)
        O = []
        O.append((f"v_cvt_pk_bf16_f32 v{o}, v{ac}, v{ac+1}", "", None))
        O.append((f"v_cvt_pk_bf16_f32 v{o+1}, v{ac+2}, v{ac+3}", "", None))
        if P < 3:
            O.append((f"v_cvt_pk_bf16_f32 v{o+2}, v{ac+4}, v{ac+5}", "", None))
            O.append((f"v_cvt_pk_bf16_f32 v{o+3}, v{ac+6}, v{ac+7}", "", None))
        st = [(f"s_mov_b32 s9, {nt*16*ROWB}", "", None)]
        sfl = "sc1" if 'psc1' in EXP else ("nt" if 'psnt' in EXP else ("sc0" if 'pssc0' in EXP else ""))
        base = f"buffer_store_dwordx4 {v(o,4)}, v{V_PO}, {sr(S_PW)}, s9 offen offset:{256*P}" if P < 3 else f"buffer_store_dwordx2 {v(o,2)}, v{V_PO1}, {sr(S_PW)}, s9 offen"
        if 'l1sc1' in EXP or 'l1nt' in EXP:
            alt = "sc1" if 'l1sc1' in EXP else "nt"
            la, lb = p.uid("stA"), p.uid("stB")
            st.append((f"s_cbranch_scc1 {la}", "", None))
            st.append((f"{base} {sfl}", "vm", "ps"))
            st.append((f"{lb}:", "", None))
            OUTLINE.append((la, f"{base} {alt}", lb))
        else:
            st.append((f"{base} {sfl}", "vm", "ps"))
        return O, st
    for u, (P, nt) in enumerate(units):
        ac = AC2 + 8 * (u & 1)
        M = []
        for k in range(7):
            for sub in range(2 if P < 3 else 1):
                Tt = 2 * P + sub
                acc = v(ac + 4 * sub, 4)
                t = f"v_mfma_f32_16x16x32_bf16 {acc}, {a(4*(7*k+Tt),4)}, {xh(7*nt+k)}, {'0' if k == 0 else acc}"
                w = [(None, "wlg", f"h{nt}_{k}")] if (u < 4 and sub == 0) else []
                M.append((t, w))
        n = len(M)
        N = {}
        if u < 3:
            for k in range(7): N.setdefault(k, []).append(hread(u + 1, k))
        V, st = epi(u - 1) if u else ([], [])
        if st and 'nostore' not in EXP: N.setdefault(n - 1 if n == 7 else 10, []).extend(st)
        schedule(p, M, V, N, vstart=(4 if n == 7 else 5), vend=(6 if n == 7 else 9))
    assert not pf
    V, st = epi(len(units) - 1)
    for it in V + st: emit(p, it)

def prewarm_ld(p, stride=128):
    n = 57344 // stride
    for i in range((n + 255) // 256):
        p(f"v_add_u32 v2, {256*i}, v0")
        p(f"v_mul_u32_u24 v2, {stride}, v2")
        p.vm(f"buffer_load_dword v255, v2, {sr(S_PW)}, 0 offen", "pw")

def prewarm(p):
    if 'nowarm' in EXP: return
    fl = "sc1" if 'wsc1' in EXP else ("nt" if 'wnt' in EXP else "")
    stride = 64 if 'w64' in EXP else 128
    for i in range((57344 // stride + 255) // 256):
        p(f"v_add_u32 v2, {256*i}, v0")
        p(f"v_mul_u32_u24 v2, {stride}, v2")
        p(f"buffer_store_dword v0, v2, {sr(S_PW)}, 0 offen {fl}")
    p("v_lshlrev_b32 v1, 7, v0")
    p(f"s_mul_i32 s9, s{S_MEM}, {8*ROWB}")
    p("v_add_u32 v2, s9, v1")
    p(f"v_cmp_gt_u32 vcc, {8*ROWB}, v1")
    p("v_cndmask_b32 v2, -1, v2, vcc")
    p(f"buffer_store_dword v0, v2, {sr(S_X)}, 0 offen {fl}")

FORCE_SLOW = False
def build(stamps=False, force_slow=False):
    global FORCE_SLOW
    FORCE_SLOW = force_slow
    common.STAMPS[0] = stamps
    p = K()
    p("s_cmp_ge_u32 s2, 256")
    p("s_cbranch_scc1 K_end")
    p.load_ptrs()
    code_prefetch(p)
    p.wave_id(S_W, 1)
    p("s_and_b32 s4, s2, 7")
    p("s_lshr_b32 s5, s2, 3")
    p("s_lshl_b32 s4, s4, 5")
    p("s_add_u32 s4, s4, s5")
    p("s_lshr_b32 s5, s4, 3")
    p("s_and_b32 s6, s4, 7")
    p(f"s_lshr_b32 s{S_A}, s{S_W}, 1")
    p(f"s_and_b32 s{S_B}, s{S_W}, 1")
    p(f"s_mov_b32 s{S_LAY}, 0")
    p(f"s_mov_b32 s{S_FAST}, 0")
    p(f"s_mul_i32 s{S_W7}, s{S_W}, 7168")
    p(f"s_mul_i32 s{S_W14}, s{S_W}, 14336")
    prep_addr(p)
    p("s_waitcnt lgkmcnt(0)")
    if stamps:
        p.srd(92, P_WS, WS_FLAGS + 0x80000, 0x40000)
        p("v_mov_b32 v252, 0"); p("v_mov_b32 v253, 0")
    stamp(p, 0)
    p("s_cmp_ge_u32 s2, 224")
    p("s_cbranch_scc1 K_noprep")
    prep(p)
    stamp(p, 1)
    p.wait_vm("kvst")
    p(f"v_readfirstlane_b32 s{S_N}, v150")
    p(f"v_readfirstlane_b32 s{S_N+1}, v151")
    p("s_nop 3")
    p(f"s_or_b32 s9, s{S_N}, s{S_N+1}")
    p("s_cmp_lg_u32 s9, 0")
    lab = p.uid("haven")
    p(f"s_cbranch_scc1 {lab}")
    p.srd(SF_, P_DBG, 0, 256)
    get_nonce(p)
    p.label(lab)
    p("s_barrier")
    flag_store_rep(p, FL_S1R, 2)
    stamp(p, 2)
    p.wait_vm()
    hbuild(p)
    p("s_branch K_prepdone")
    p.label("K_noprep")
    p.srd(S_FL, P_WS, WS_FLAGS, FLAGS_BYTES)
    mlp_setup(p)
    q_loads(p)
    p.srd(SF_, P_DBG, 0, 256)
    get_nonce(p)
    p("s_barrier")
    p.label("K_prepdone")
    p.vmq = []; p.lgq = []
    lab = p.uid("xp")
    p(f"s_cmp_eq_u32 s{S_W}, 0")
    p(f"s_cbranch_scc0 {lab}")
    p("s_getreg_b32 s9, hwreg(HW_REG_XCC_ID, 0, 4)")
    p(f"s_add_u32 s9, s9, s{S_N}")
    p("v_mov_b32 v2, s9"); p(f"v_mov_b32 v3, s{S_N+1}")
    p(f"s_lshl_b32 s9, s{S_RB}, 3"); p(f"s_add_u32 s9, s9, {FL_XCC}")
    p("v_mov_b32 v1, s9")
    p("s_mov_b64 exec, 1")
    p(f"buffer_store_dwordx2 v[2:3], v1, {sr(S_FL)}, 0 offen sc1")
    p("s_mov_b64 exec, -1")
    p.label(lab)
    p(f"s_mul_i32 s9, s{S_MEM}, {7*CHUNK}"); p(f"s_add_u32 s9, s9, {hex(WS_W1P)}")
    p(f"s_add_u32 s{S_W1}, s{P_WS}, s9"); p(f"s_addc_u32 s{S_W1+1}, s{P_WS+1}, 0")
    p(f"s_mov_b32 s{S_W1+2}, {7*CHUNK}"); p(f"s_mov_b32 s{S_W1+3}, 0x20000")
    p(f"s_mul_i32 s9, s{S_CL}, {64*ROWB}"); p(f"s_add_u32 s9, s9, {hex(WS_XP)}")
    p(f"s_add_u32 s{S_X}, s{P_WS}, s9"); p(f"s_addc_u32 s{S_X+1}, s{P_WS+1}, 0")
    p(f"s_mov_b32 s{S_X+2}, {64*ROWB}"); p(f"s_mov_b32 s{S_X+3}, 0x20000")
    p(f"s_mul_i32 s9, s{S_RB}, {64*ROWB}"); p(f"s_add_u32 s9, s9, {hex(WS_PB)}")
    p(f"s_add_u32 s{S_PW}, s{P_WS}, s9"); p(f"s_addc_u32 s{S_PW+1}, s{P_WS+1}, 0")
    p(f"s_mov_b32 s{S_PW+2}, {64*ROWB}"); p(f"s_mov_b32 s{S_PW+3}, 0x20000")
    p(f"s_mul_i32 s9, s{S_CL}, {8*64*ROWB}"); p(f"s_add_u32 s9, s9, {hex(WS_PB)}")
    p(f"s_add_u32 s{S_PR}, s{P_WS}, s9"); p(f"s_addc_u32 s{S_PR+1}, s{P_WS+1}, 0")
    p(f"s_mov_b32 s{S_PR+2}, {8*64*ROWB}"); p(f"s_mov_b32 s{S_PR+3}, 0x20000")
    if 'warm1' in EXP: prewarm(p)
    p("v_and_b32 v1, 63, v0")
    p("s_lshr_b32 s9, s2, 5")
    p("s_min_u32 s9, s9, 6")
    p("v_mul_u32_u24 v8, 7, v1")
    p("v_add_u32 v8, s9, v8")
    p(f"s_mul_i32 s9, s{S_MEM}, 14")
    p("v_subrev_u32 v9, 32, v1")
    p("v_add_u32 v9, s9, v9")
    p("v_add_u32 v10, 98, v9")
    p("v_cmp_gt_u32 vcc, 46, v1")
    p("v_cndmask_b32 v9, v10, v9, vcc")
    p("v_cmp_gt_u32 vcc, 32, v1")
    p("v_cndmask_b32 v8, v9, v8, vcc")
    p("v_lshlrev_b32 v8, 3, v8")
    p("s_and_b32 s9, s2, 7"); p("s_lshl_b32 s9, s9, 11"); p(f"s_add_u32 s9, s9, {FL_S1R}")
    p("v_add_u32 v8, s9, v8")
    p("s_waitcnt lgkmcnt(0)")
    poll(p, [8], 1, [60])
    stamp(p, 3)
    p(f"s_lshl_b32 s9, s{S_MEM}, 2"); p(f"s_add_u32 s9, s9, s{S_W}")
    p(f"s_mul_i32 s9, s9, {49*1024}"); p(f"s_add_u32 s9, s9, {hex(WS_W2P)}")
    p(f"s_add_u32 s{SE}, s{P_WS}, s9"); p(f"s_addc_u32 s{SE+1}, s{P_WS+1}, 0")
    p(f"s_mov_b32 s{SE+2}, {49*1024}"); p(f"s_mov_b32 s{SE+3}, 0x20000")
    p.srd(SD, P_WS, WS_YB, MAT)
    p("s_cmp_ge_u32 s2, 224")
    p("s_cbranch_scc1 K_noconv")
    p("s_lshl_b32 s9, s2, 13")
    p(f"s_add_u32 s{SA}, s{P_WS}, s9"); p(f"s_addc_u32 s{SA+1}, s{P_WS+1}, 0")
    p(f"s_mov_b32 s{SA+2}, 8192"); p(f"s_mov_b32 s{SA+3}, 0x20000")
    p("v_lshlrev_b32 v10, 4, v0")
    p.vm(f"buffer_load_dwordx4 v[64:67], v10, {sr(SA)}, 0 offen sc1", "u")
    p("v_add_u32 v11, 4096, v10")
    p.vm(f"buffer_load_dwordx4 v[68:71], v11, {sr(SA)}, 0 offen sc1", "u")
    if 'qlate' in EXP: q_loads(p)
    p("s_lshl_b32 s9, s2, 2")
    p(f"s_load_dword s13, s[{P_DV}:{P_DV+1}], s9")
    for g_ in w2_items(SE)[:W20]:
        for it in g_: emit(p, it)
    p(f"v_add_u32 v10, {L_U+512}, v10")
    p.wait_vm("u")
    p.lg("ds_write_b128 v10, v[64:67]")
    p.lg(f"ds_write_b128 v10, v[68:71] offset:{U_CH}")
    p("s_waitcnt lgkmcnt(0)"); p.lgq = []
    p("s_lshl_b32 s12, s13, 16")
    p("s_and_b32 s14, s13, 0xffff0000")
    p(f"s_cmp_eq_u32 s{S_B}, 0")
    p("s_cselect_b32 s14, s12, s14")
    p("s_barrier")
    if 'warm2' in EXP: prewarm(p)
    stamp(p, 4)
    conv_main(p)
    stamp(p, 5)
    conv_out(p, SD)
    signal(p, FL_S2R, 2, upto="yst")
    stamp(p, 6)
    p("s_branch K_convdone")
    p.label("K_noconv")
    p.vmq = []
    for g_ in w2_items(SE)[:W2A]:
        for it in g_: emit(p, it)
    p.wait_vm()
    p.label("K_convdone")
    if 'warm3' in EXP: prewarm(p)
    if 'pws2' in EXP:
        lab = p.uid("pws")
        p(f"s_cmp_eq_u32 s{S_W}, 0"); p(f"s_cbranch_scc1 {lab}")
        p(f"s_sub_u32 s9, s{S_W}, 1"); p("s_mul_i32 s9, s9, 19456")
        for i in range(19):
            if i % 4 == 0: p(f"s_add_u32 s10, s9, {1024*i}")
            p(f"buffer_load_dwordx4 v[220:223], v{V_L16}, {sr(S_PW)}, s10 offen offset:{1024*(i%4)}")
        p.label(lab)
    p("s_waitcnt vmcnt(0)")
    p("v_mov_b32 v7, 0xffff0000")
    unpack(p, X, XP, 8)
    layernorm(p, X, T)
    poll_s2(p)
    stamp(p, 7)
    y_load(p, SD)
    fast_get(p)
    for g_ in dma_w1_items(2, "pf2"):
        for it in g_: emit(p, it)
    y_transpose(p)
    stamp(p, 8)
    p("v_mov_b32 v7, 0xffff0000")
    p("s_branch K_gate")
    p.label("K_layer")
    p.vmq = []; p.lgq = []
    layernorm(p, X, T)
    p.label("K_gate")
    p.vmq = []; p.lgq = []
    q = K()
    for i in range(0, 16, 2):
        q(f"v_pk_fma_f32 {v(X+i,2)}, {v(T+i,2)}, {v(YV+i,2)}, {v(X+i,2)}")
    layernorm(q, X, T, LOG2E)
    pack(q, PK, T, 8)
    body = [it.text for it in q.items]
    pf = [g for c in range(2) for g in dma_w1_items(c, "pf")]
    step = len(body) // (len(pf) + 1)
    for i, t in enumerate(body):
        p(t)
        if pf and i % step == step - 1:
            for it in pf.pop(0): emit(p, it)
    assert not pf
    p(f"s_mul_i32 s9, s{S_CL}, {64*ROWB}")
    p(f"v_subrev_u32 v3, s9, v{OFFA}")
    p(f"v_subrev_u32 v4, s9, v{OFFB}")
    p(f"v_cndmask_b32 v3, -1, v3, {ACT}")
    p(f"v_cndmask_b32 v4, -1, v4, {ACT}")
    p.vm(f"buffer_store_dwordx4 {v(PK,4)}, v3, {sr(S_X)}, 0 offen", "xs")
    p.vm(f"buffer_store_dwordx4 {v(PK+4,4)}, v4, {sr(S_X)}, 0 offen", "xs")
    pack(p, XP, X, 8)
    stamp(p, 9, True)
    signal(p, FL_A0, S_RB, layer_off=True, cluster=True, upto="xs")
    stamp(p, 10, True)
    def cluster_offs():
        p("v_and_b32 v1, 7, v0")
        p(f"s_lshl_b32 s9, s{S_CL}, 6")
        p(f"s_lshl_b32 s10, s{S_LAY}, 12")
        p("s_add_u32 s9, s9, s10")
    cluster_offs()
    p(f"s_add_u32 s9, s9, {FL_A0}")
    p("v_lshl_add_u32 v10, v1, 3, s9")
    poll(p, [10], 1, [8], cluster=True)
    stamp(p, 11, True)
    dma_x(p)
    x_read_setup(p)
    if 'ldw128' in EXP: prewarm_ld(p, 128)
    if 'ldw64' in EXP: prewarm_ld(p, 64)
    gemm1(p)
    stamp(p, 13, True)
    gemm2(p)
    stamp(p, 14, True)
    signal(p, FL_C0, S_RB, layer_off=True, cluster=True)
    if 'wb2' in EXP:
        lab = p.uid("wb2")
        p(f"s_cmp_eq_u32 s{S_LAY}, 1"); p(f"s_cbranch_scc0 {lab}")
        p(f"s_cmp_eq_u32 s{S_W}, 3"); p(f"s_cbranch_scc0 {lab}")
        p(f"s_and_b32 s9, s{S_RB}, 31"); p("s_cmp_eq_u32 s9, 0"); p(f"s_cbranch_scc0 {lab}")
        p("buffer_wbl2 sc1")
        p.label(lab)
    stamp(p, 15, True)
    partials_prelude(p)
    cluster_offs()
    p(f"s_add_u32 s9, s9, {FL_C0}")
    p("v_lshl_add_u32 v10, v1, 3, s9")
    poll(p, [10], 1, [8], cluster=True)
    if 'wb' in EXP:
        lab = p.uid("wb")
        p(f"s_cmp_eq_u32 s{S_LAY}, 1"); p(f"s_cbranch_scc0 {lab}")
        p(f"s_cmp_eq_u32 s{S_MEM}, 0"); p(f"s_cbranch_scc0 {lab}")
        p(f"s_cmp_eq_u32 s{S_W}, 3"); p(f"s_cbranch_scc0 {lab}")
        p("buffer_wbl2 sc1")
        p.label(lab)
    stamp(p, 16, True)
    add_partials(p)
    stamp(p, 17, True)
    p(f"s_cmp_eq_u32 s{S_LAY}, 1")
    p("s_cbranch_scc1 K_final")
    p(f"s_mov_b32 s{S_LAY}, 1")
    p("s_branch K_layer")
    p.label("K_final")
    pack(p, XP, X, 8)
    p.srd(SA, P_OUT, 0, MAT)
    ofl = "sc1" if 'osc1' in EXP else ("nt" if 'ont' in EXP else "")
    p(f"buffer_store_dwordx4 {v(XP,4)}, v{OFFA}, {sr(SA)}, 0 offen {ofl}")
    p(f"buffer_store_dwordx4 {v(XP+4,4)}, v{OFFB}, {sr(SA)}, 0 offen {ofl}")
    stamp(p, 40)
    stamp_flush(p)
    if OUTLINE:
        p("s_endpgm")
        for la, t, lb in OUTLINE:
            p.label(la); p(t); p(f"s_branch {lb}")
    p.label("K_end")
    p("s_endpgm")
    txt, n = kernel_text(KNAME, p, 256, sgprs=102, agprs=256)
    print("nops inserted:", n, "instructions:", p.count(), file=sys.stderr)
    head = HEADER + f"; @launch grid=(256,1,1) block=(256,1,1) lds={LDS_BYTES}\n" + '.amdgcn_target "amdgcn-amd-amdhsa--gfx950"\n'
    return head + txt

if __name__ == "__main__":
    open(sys.argv[1], "w").write(build(stamps="st" in sys.argv[2:], force_slow="slow" in sys.argv[2:]))
```

```python
import sys
from common import *
import common
EXP = set(sys.argv[2:])

KNAME = "interleave_layers__ssm_conv_h3__dense_activation_silu__prompt_kernel"
HEADER = open("interleave_layers__ssm_conv_h3__dense_activation_silu__prompt.s.ref").read().split("; Override launch")[0]

S_W, S_RB, S_CL, S_MEM, S_A, S_B = 3, 4, 5, 6, 7, 8
SA, SB_, SC, SD, SE, SF_ = 40, 44, 48, 52, 56, 60
S_FL, S_W1, S_X, S_PW, S_PR = 64, 68, 72, 76, 80
S_N, S_FAST, S_LAY = 84, 86, 87
S_W7, S_W14 = 100, 101
ACT = "s[88:89]"
S_T = 90
V_XE, V_XO, V_A, V_A2, V_HW, V_HR, V_L16, V_PO, V_PO1 = 200, 201, 202, 203, 204, 205, 206, 207, 208
V_XD = 209
V_PWA, V_PWB = 216, 217
V_HW1, V_A3 = 218, 219
XP = 224
YV = 232
OFFA, OFFB = 248, 249
VN = 250
LA, LB = 0, 8192
HC_COPY = 4160; HC_CH = 8 * HC_COPY; L_U = 2 * HC_CH; U_CH = 512 + 4096; YS_CH = 4096 + 128
LY = 0
L_X = 0; SH_ = 448; L_RING = 57344; CHUNK = 28672
def slot_base(c):
    return CHUNK if c == 3 else L_RING + (c if c < 3 else c - 4) * CHUNK
SPIN_MAX = 0x100000
LDS_BYTES = 163840
L_FASTW = 163836 - 60

def sr(r): return f"s[{r}:{r+3}]"

def stamp(p, sid, layered=False):
    if not common.STAMPS[0]: return
    p("s_memrealtime s[96:97]")
    p("s_memtime s[98:99]")
    p("s_waitcnt lgkmcnt(0)")
    if layered:
        p(f"s_mul_i32 s97, s{S_LAY}, 10")
        p(f"s_add_u32 m0, s97, {sid}")
        p("s_nop 3")
        p("v_writelane_b32 v252, s96, m0")
        p("v_writelane_b32 v253, s98, m0")
    else:
        p(f"v_writelane_b32 v252, s96, {sid}")
        p(f"v_writelane_b32 v253, s98, {sid}")
    p.lgq = []

def stamp_flush(p):
    if not common.STAMPS[0]: return
    lab = p.uid("sf")
    p(f"s_cmp_eq_u32 s{S_W}, 0")
    p(f"s_cbranch_scc0 {lab}")
    p("v_lshlrev_b32 v1, 2, v0")
    p("s_lshl_b32 s9, s2, 9")
    p("v_add_u32 v1, s9, v1")
    p("buffer_store_dword v252, v1, s[92:95], 0 offen")
    p("buffer_store_dword v253, v1, s[92:95], 0 offen offset:256")
    if 'dbgst' in EXP:
        wg = [x for x in EXP if x.startswith('wg')]
        wg = int(wg[0][2:]) if wg else 0
        l2 = p.uid("sf2")
        p(f"s_cmp_eq_u32 s2, {wg}")
        p(f"s_cbranch_scc0 {l2}")
        p.srd(SA, P_DBG, 0, 256)
        sel = [0, 2, 3, 5, 7, 9, 12, 13, 14, 17, 22, 23, 24, 40]
        p("s_nop 4")
        p("v_readlane_b32 s12, v252, 0")
        for i, sid in enumerate(sel):
            p(f"v_readlane_b32 s9, v252, {sid}")
            p("s_nop 3")
            p("s_sub_u32 s9, s9, s12")
            if i == 0: p("s_mov_b32 s9, s12")
            p(f"v_writelane_b32 v1, s9, {i}")
        p("v_and_b32 v2, 63, v0")
        p("v_lshlrev_b32 v2, 2, v2")
        p("v_add_u32 v2, 8, v2")
        p("s_mov_b32 exec_lo, 0x3fff"); p("s_mov_b32 exec_hi, 0")
        p(f"buffer_store_dword v1, v2, {sr(SA)}, 0 offen")
        p("s_mov_b64 exec, -1")
        p.label(l2)
    p.label(lab)

def flag_store(p, table, idx_sreg, layer_off=False, cluster=False):
    lab = p.uid("sig")
    p(f"s_cmp_eq_u32 s{S_W}, 0")
    p(f"s_cbranch_scc0 {lab}")
    p(f"s_lshl_b32 s{S_T}, s{S_CL}, 7")
    p(f"s_lshl_b32 s{S_T+1}, s{S_MEM}, 3")
    p(f"s_add_u32 s{S_T}, s{S_T}, s{S_T+1}")
    p(f"s_add_u32 s{S_T}, s{S_T}, {table}")
    p(f"s_lshl_b32 s{S_T+1}, s{S_LAY}, 13")
    p(f"s_add_u32 s{S_T}, s{S_T}, s{S_T+1}")
    p(f"v_mov_b32 v{VN}, s{S_N}")
    p(f"v_mov_b32 v{VN+1}, s{S_N+1}")
    p(f"v_mov_b32 v1, s{S_T}")
    p("s_mov_b64 exec, 1")
    if cluster:
        l2 = p.uid("sigslow"); l3 = p.uid("sigdone")
        p(f"s_cmp_eq_u32 s{S_FAST}, 1")
        p(f"s_cbranch_scc0 {l2}")
        p(f"buffer_store_dwordx2 {v(VN,2)}, v1, {sr(S_FL)}, 0 offen")
        p(f"s_branch {l3}")
        p.label(l2)
        p("buffer_wbl2 sc1")
        p("s_waitcnt vmcnt(0)")
        p(f"buffer_store_dwordx2 {v(VN,2)}, v1, {sr(S_FL)}, 0 offen sc1")
        p.label(l3)
    else:
        p(f"buffer_store_dwordx2 {v(VN,2)}, v1, {sr(S_FL)}, 0 offen sc1")
    p("s_mov_b64 exec, -1")
    p.label(lab)

def flag_store_rep(p, table, idx_sreg):
    lab = p.uid("sigr")
    p(f"s_cmp_eq_u32 s{S_W}, 0")
    p(f"s_cbranch_scc0 {lab}")
    p(f"s_lshl_b32 s{S_T}, s{idx_sreg}, 3")
    p(f"s_add_u32 s{S_T}, s{S_T}, {table}")
    p(f"v_mov_b32 v{VN}, s{S_N}")
    p(f"v_mov_b32 v{VN+1}, s{S_N+1}")
    p("v_lshlrev_b32 v1, 11, v0")
    p(f"v_add_u32 v1, s{S_T}, v1")
    p("s_mov_b64 exec, 0xff")
    p(f"buffer_store_dwordx2 {v(VN,2)}, v1, {sr(S_FL)}, 0 offen sc1")
    p("s_mov_b64 exec, -1")
    p.label(lab)

def signal(p, table, idx_sreg, layer_off=False, cluster=False, upto=None):
    if upto: p.wait_vm(upto)
    else: p.wait_vm()
    p("s_barrier")
    if table in (FL_S1R, FL_S2R): flag_store_rep(p, table, idx_sreg)
    else: flag_store(p, table, idx_sreg, layer_off, cluster)

def setexec(p, nl):
    m = (1 << nl) - 1
    lo, hi = m & 0xffffffff, m >> 32
    p(f"s_mov_b32 exec_lo, {hex(lo) if lo != 0xffffffff else -1}")
    p(f"s_mov_b32 exec_hi, {hex(hi) if hi != 0xffffffff else -1}")

def poll(p, offs, n_loads, masks, cluster=False, all_waves=False):
    lab = p.uid("poll"); done = p.uid("polld"); skip = p.uid("polls")
    if not all_waves:
        p(f"s_cmp_eq_u32 s{S_W}, 0")
        p(f"s_cbranch_scc0 {skip}")
    p(f"s_mov_b32 s{S_T}, 0")
    p.label(lab)
    for i in range(n_loads):
        setexec(p, masks[i])
        p(f"buffer_load_dwordx2 {v(2+2*i,2)}, v{offs[i]}, {sr(S_FL)}, 0 offen sc1")
    p("s_waitcnt vmcnt(0)")
    p("s_mov_b32 s9, 1")
    for i in range(n_loads):
        setexec(p, masks[i])
        p(f"v_cmp_eq_u64 vcc, {s(S_N,2)}, {v(2+2*i,2)}")
        p("s_nop 4")
        p("s_cmp_eq_u64 vcc, exec")
        p("s_cselect_b32 s9, s9, 0")
    p("s_mov_b64 exec, -1")
    p("s_cmp_eq_u32 s9, 1")
    p(f"s_cbranch_scc1 {done}")
    p(f"s_add_u32 s{S_T}, s{S_T}, 1")
    p(f"s_cmp_lt_u32 s{S_T}, {hex(SPIN_MAX)}")
    p(f"s_cbranch_scc0 {done}")
    if not cluster or 'nosleep' not in EXP: p("s_sleep 1")
    p(f"s_branch {lab}")
    p.label(done)
    if cluster:
        l2 = p.uid("acq")
        p(f"s_cmp_eq_u32 s{S_FAST}, 1")
        p(f"s_cbranch_scc1 {l2}")
        p("buffer_inv sc1")
        p("s_waitcnt vmcnt(0)")
        p.label(l2)
    p.label(skip)
    p("s_barrier")
    p.vmq = []

def get_nonce(p):
    lab = p.uid("non"); done = p.uid("nond")
    p(f"s_mov_b32 s{S_T}, 0")
    p.label(lab)
    p("v_mov_b32 v1, 0")
    p(f"buffer_load_dwordx2 v[2:3], v1, {sr(SF_)}, 0 offen sc1")
    p("s_waitcnt vmcnt(0)")
    p(f"v_readfirstlane_b32 s{S_N}, v2")
    p(f"v_readfirstlane_b32 s{S_N+1}, v3")
    p("s_nop 3")
    p(f"s_or_b32 s9, s{S_N}, s{S_N+1}")
    p("s_cmp_lg_u32 s9, 0")
    p(f"s_cbranch_scc1 {done}")
    p(f"s_add_u32 s{S_T}, s{S_T}, 1")
    p(f"s_cmp_lt_u32 s{S_T}, {hex(SPIN_MAX)}")
    p(f"s_cbranch_scc0 {done}")
    p("s_sleep 1")
    p(f"s_branch {lab}")
    p.label(done)
    p.vmq = []

def tlb_warm(p):
    if 'notlb' in EXP: return
    ent = [(P_K, None), (P_V, None), (P_SK, 0), (P_W1, 0), (P_W2, 0), (P_H, "h"), (P_Q, "q"), (P_DV, 0), (P_DBG, 0), (P_OUT, "q"),
           (P_WS, WS_KVT), (P_WS, WS_YB), (P_WS, WS_W1P), (P_WS, WS_W2P), (P_WS, WS_FLAGS), (P_WS, "pb0"), (P_WS, "pb1")]
    lab = p.uid("tw")
    p(f"s_cmp_eq_u32 s{S_W}, 0")
    p(f"s_cbranch_scc0 {lab}")
    p(f"v_mov_b32 v2, s{P_K}"); p(f"v_mov_b32 v3, s{P_K+1}")
    p(f"s_mul_i32 s9, s{S_RB}, {8*ROWB}")
    p("s_min_u32 s10, s2, 223"); p("s_lshl_b32 s10, s10, 13")
    p(f"s_mul_i32 s11, s{S_CL}, {8*64*ROWB}"); p(f"s_add_u32 s11, s11, {hex(WS_PB)}")
    for i, (ptr, off) in enumerate(ent):
        if off in (None, 0):
            lo, hi = ptr, ptr + 1
        else:
            if off == "q": src = "s9"
            elif off == "h": src = "s10"
            elif off == "pb0": src = "s11"
            elif off == "pb1":
                p(f"s_add_u32 s11, s11, {8*64*ROWB - 128}"); src = "s11"
            else: src = hex(off)
            p(f"s_add_u32 s12, s{ptr}, {src}"); p(f"s_addc_u32 s13, s{ptr+1}, 0")
            lo, hi = 12, 13
        p(f"v_writelane_b32 v2, s{lo}, {i}")
        p(f"v_writelane_b32 v3, s{hi}, {i}")
    setexec(p, len(ent))
    p("global_load_dword v254, v[2:3], off")
    p("s_mov_b64 exec, -1")
    p.label(lab)

def nonce_publish(p):
    lab = p.uid("nn")
    p("s_cmp_eq_u32 s2, 0")
    p(f"s_cbranch_scc0 {lab}")
    p(f"s_cmp_eq_u32 s{S_W}, 0")
    p(f"s_cbranch_scc0 {lab}")
    p.srd(SF_, P_DBG, 0, 256)
    p("s_memrealtime s[10:11]")
    p("s_waitcnt lgkmcnt(0)")
    p("s_lshl_b64 s[10:11], s[10:11], 4")
    p("s_or_b32 s11, s11, 0x40000000")
    p("v_mov_b32 v46, s10"); p("v_mov_b32 v47, s11"); p("v_mov_b32 v13, 0")
    p("s_mov_b64 exec, 1")
    p(f"buffer_store_dwordx2 v[46:47], v13, {sr(SF_)}, 0 offen sc1")
    p("s_mov_b64 exec, -1")
    p.label(lab)

S_RBK, S_CG = 12, 13
def prep_addr(p):
    p("s_min_u32 s14, s2, 223")
    p.div_const(S_RBK, 14, 7)
    p(f"s_mul_i32 s{S_CG}, s{S_RBK}, 7")
    p(f"s_sub_u32 s{S_CG}, s14, s{S_CG}")
    p("v_and_b32 v1, 15, v0")
    p("v_lshrrev_b32 v2, 4, v0")
    p(f"s_lshl_b32 s9, s{S_RBK}, 6")
    p("s_sub_u32 s9, s9, 3")
    p("v_lshl_add_u32 v3, v2, 2, s9")
    p(f"v_mul_i32_i24 v4, {ROWB}, v3")
    p(f"s_lshl_b32 s10, s{S_CG}, 7")
    p("v_lshl_add_u32 v5, v1, 3, s10")
    p("v_add_u32 v4, v4, v5")
    for i in range(1, 7):
        p(f"v_add_u32 v{5+i}, {ROWB*i}, v4")
    p("v_lshlrev_b32 v12, 2, v5")

def prep(p):
    SK_, SV_, SSK, SKVT, SSRC, SDST = SA, SB_, SC, SD, SE, S_W1
    T0 = 72
    off = lambda i: "v4" if i == 0 else f"v{5+i}"
    p.srd(SK_, P_K, 0, MAT)
    for i in range(7):
        p.vm(f"buffer_load_dwordx2 {v(16+2*i,2)}, {off(i)}, {sr(SK_)}, 0 offen", "k")
    p.srd(SV_, P_V, 0, MAT)
    for i in range(4):
        p.vm(f"buffer_load_dwordx2 {v(30+2*i,2)}, {off(i+3)}, {sr(SV_)}, 0 offen", "k")
    p.srd(SSK, P_SK, 0, D * 8)
    p.vm(f"buffer_load_dwordx4 v[38:41], v12, {sr(SSK)}, 0 offen", "k")
    p.vm(f"buffer_load_dwordx4 v[42:45], v12, {sr(SSK)}, 0 offen offset:16", "k")
    nonce_publish(p)
    p.srd(SKVT, P_WS, WS_KVT, MAT)
    p.srd(S_FL, P_WS, WS_FLAGS, FLAGS_BYTES)
    if 'pp' in EXP: stamp(p, 34)
    S_J, S_R, S_ISW2, S_STR = T0, T0 + 1, T0 + 2, T0 + 3
    p("s_cmp_ge_u32 s2, 112")
    p(f"s_cselect_b32 s{S_ISW2}, 1, 0")
    p("s_cselect_b32 s9, 112, 0")
    p("s_sub_u32 s9, s2, s9")
    p.div_const(S_J, 9, 14)
    p(f"s_mul_i32 s10, s{S_J}, 14")
    p(f"s_sub_u32 s{S_R}, s9, s10")
    p(f"s_mul_i32 s10, s{S_R}, {32*3584}")
    p(f"s_mul_i32 s11, s{S_J}, 448")
    p("s_add_u32 s10, s10, s11")
    p(f"s_lshr_b32 s11, s{S_R}, 1")
    p(f"s_mul_i32 s11, s11, {32*896}")
    p(f"s_mul_i32 s14, s{S_J}, {224*896}")
    p("s_add_u32 s11, s11, s14")
    p(f"s_and_b32 s14, s{S_R}, 1")
    p("s_mul_i32 s14, s14, 448")
    p("s_add_u32 s11, s11, s14")
    p(f"s_cmp_eq_u32 s{S_ISW2}, 1")
    p("s_cselect_b32 s10, s11, s10")
    p.csel(S_STR, 896, 3584)
    p(f"s_cselect_b32 s{SSRC}, s{P_W2}, s{P_W1}")
    p(f"s_cselect_b32 s{SSRC+1}, s{P_W2+1}, s{P_W1+1}")
    p(f"s_mov_b32 s{SSRC+2}, {hex(D*F*2)}")
    p(f"s_mov_b32 s{SSRC+3}, 0x20000")
    for m in range(4):
        p(f"v_add_u32 v13, {256*m}, v0")
        p("v_mul_u32_u24 v14, 2341, v13")
        p("v_lshrrev_b32 v14, 16, v14")
        p("v_mul_u32_u24 v15, 28, v14")
        p("v_sub_u32 v15, v13, v15")
        p(f"v_mul_lo_u32 v14, v14, s{S_STR}")
        p("v_lshl_add_u32 v14, v15, 4, v14")
        p("v_add_u32 v14, s10, v14")
        if m == 3:
            p("v_cmp_gt_u32 vcc, 896, v13")
            p("v_cndmask_b32 v14, -1, v14, vcc")
        p.vm(f"buffer_load_dwordx4 {v(48+4*m,4)}, v14, {sr(SSRC)}, 0 offen", "w")
    if 'pp' in EXP: stamp(p, 35)
    p("v_and_b32 v46, 63, v0")
    p("v_lshrrev_b32 v47, 4, v46")
    p("v_bfe_u32 v14, v46, 2, 2")
    p("v_and_b32 v15, 3, v46")
    p("v_lshl_add_u32 v47, v47, 3, v14")
    p("v_mul_u32_u24 v47, 448, v47")
    p("v_lshlrev_b32 v46, 4, v46")
    p(f"s_cmp_eq_u32 s{S_ISW2}, 1")
    p.csel(9, hex(WS_W2P), hex(WS_W1P))
    p(f"s_add_u32 s{SDST}, s{P_WS}, s9")
    p(f"s_addc_u32 s{SDST+1}, s{P_WS+1}, 0")
    p(f"s_mov_b32 s{SDST+2}, {hex(W1P_BYTES)}")
    p(f"s_mov_b32 s{SDST+3}, 0x20000")
    t = [76, 77, 78, 79]
    for m in range(4):
        ST, DST = 14, 80 + m
        p(f"s_add_u32 s{ST}, s{S_W}, {4*m}")
        p(f"s_cmp_ge_u32 s{ST}, 7")
        p(f"s_cselect_b32 s{t[0]}, 1, 0")
        p(f"s_mul_i32 s{t[1]}, s{t[0]}, 7")
        p(f"s_sub_u32 s{t[1]}, s{ST}, s{t[1]}")
        p(f"s_mul_i32 s{DST}, s{S_J}, 7")
        p(f"s_add_u32 s{DST}, s{DST}, s{t[1]}")
        p(f"s_lshl_b32 s{DST}, s{DST}, 1")
        p(f"s_add_u32 s{DST}, s{DST}, s{t[0]}")
        p(f"s_mul_i32 s{DST}, s{DST}, 14")
        p(f"s_add_u32 s{DST}, s{DST}, s{S_R}")
        p(f"s_and_b32 s9, s{ST}, 1")
        p(f"s_lshr_b32 s10, s{ST}, 1")
        p(f"s_and_b32 s11, s{S_R}, 1")
        p("s_mul_i32 s11, s11, 7")
        p("s_add_u32 s11, s11, s10")
        p(f"s_lshr_b32 s15, s{S_R}, 1")
        p("s_mul_i32 s15, s15, 7")
        p(f"s_mul_i32 s{t[0]}, s{S_J}, 196")
        p(f"s_add_u32 s15, s15, s{t[0]}")
        p(f"s_and_b32 s{t[0]}, s11, 3")
        p(f"s_mul_i32 s{t[0]}, s{t[0]}, 49")
        p(f"s_lshr_b32 s{t[1]}, s11, 2")
        p(f"s_lshl_b32 s{t[1]}, s{t[1]}, 1")
        p(f"s_add_u32 s{t[1]}, s{t[1]}, s9")
        p(f"s_add_u32 s{t[0]}, s{t[0]}, s{t[1]}")
        p(f"s_lshl_b32 s10, s10, 6")
        p(f"s_lshl_b32 s{t[1]}, s9, 3")
        p(f"s_add_u32 s{t[1]}, s{t[1]}, s10")
        p(f"s_sub_u32 s{t[2]}, s11, 12")
        p(f"s_lshl_b32 s{t[2]}, s{t[2]}, 1")
        p(f"s_add_u32 s{t[2]}, s{t[2]}, s9")
        p(f"s_mul_i32 s{t[2]}, s{t[2]}, 49")
        p(f"s_add_u32 s{t[2]}, s{t[2]}, 6")
        p(f"s_lshl_b32 s{t[3]}, s9, 5")
        p(f"s_add_u32 s{t[3]}, s{t[3]}, s10")
        p("s_cmp_lt_u32 s11, 12")
        p(f"s_cselect_b32 s{t[0]}, s{t[0]}, s{t[2]}")
        p(f"s_cselect_b32 s{t[1]}, s{t[1]}, s{t[3]}")
        p(f"s_cselect_b32 s{t[2]}, 4, 3")
        p(f"s_add_u32 s{t[0]}, s{t[0]}, s15")
        p(f"s_lshl_b32 s{t[3]}, s{ST}, 5")
        p(f"s_cmp_eq_u32 s{S_ISW2}, 1")
        p(f"s_cselect_b32 s{DST}, s{t[0]}, s{DST}")
        p(f"s_cselect_b32 s{t[1]}, s{t[1]}, s{t[3]}")
        p(f"s_cselect_b32 s{t[2]}, s{t[2]}, 3")
        p(f"s_lshl_b32 s{DST}, s{DST}, 10")
        p(f"v_lshlrev_b32 v{144+m}, s{t[2]}, v15")
        p(f"v_add3_u32 v{144+m}, v{144+m}, v47, s{t[1]}")
    mlp_setup(p)
    if 'pp' in EXP: stamp(p, 30)
    p.wait_vm("w")
    if 'pp' in EXP: stamp(p, 31)
    early_loads(p)
    p("v_lshlrev_b32 v14, 4, v0")
    for m in range(3):
        p.lg(f"ds_write_b128 v14, {v(48+4*m,4)} offset:{LB+4096*m}")
    lab = p.uid("skip3")
    p(f"s_cmp_ge_u32 s{S_W}, 2")
    p(f"s_cbranch_scc1 {lab}")
    p(f"ds_write_b128 v14, {v(60,4)} offset:{LB+4096*3}")
    p.label(lab)
    p.wait_lg()
    p("s_barrier")
    for m in range(4):
        p.lg(f"ds_read_b64_tr_b16 {v(48+4*m,2)}, v{144+m} offset:{LB}", f"t{m}")
        p.lg(f"ds_read_b64_tr_b16 {v(48+4*m+2,2)}, v{144+m} offset:{LB+4*448}", f"t{m}")
    for m in range(3):
        p.wait_lg(f"t{m}")
        p.vm(f"buffer_store_dwordx4 {v(48+4*m,4)}, v46, {sr(SDST)}, s{80+m} offen sc1", "wst")
    lab = p.uid("pk")
    p.wait_lg()
    p(f"s_cmp_ge_u32 s{S_W}, 2")
    p(f"s_cbranch_scc1 {lab}")
    p(f"buffer_store_dwordx4 {v(60,4)}, v46, {sr(SDST)}, s83 offen sc1")
    p.label(lab)
    p.srd(SF_, P_DBG, 0, 256)
    p("v_mov_b32 v47, 0")
    p.vm(f"buffer_load_dwordx2 v[150:151], v47, {sr(SF_)}, 0 offen sc1", "nonce")
    if 'pp' in EXP: stamp(p, 32)
    KF, SF, VF, AC, OP = 64, 92, 108, 124, 140
    p("v_mov_b32 v15, 0xffff0000")
    for i in range(7):
        for d in range(2):
            p(f"v_lshlrev_b32 v{KF+4*i+2*d}, 16, v{16+2*i+d}")
            p(f"v_and_b32 v{KF+4*i+2*d+1}, v15, v{16+2*i+d}")
    for e in range(4):
        for j in range(4):
            src = 38 + 2*e + (j >> 1)
            if j & 1: p(f"v_and_b32 v{SF+4*j+e}, v15, v{src}")
            else: p(f"v_lshlrev_b32 v{SF+4*j+e}, 16, v{src}")
    for i in range(4):
        for d in range(2):
            p(f"v_lshlrev_b32 v{VF+4*i+2*d}, 16, v{30+2*i+d}")
            p(f"v_and_b32 v{VF+4*i+2*d+1}, v15, v{30+2*i+d}")
    for j in range(4):
        for r in range(4):
            for e in (0, 2):
                kf = v(KF+4*(r+3-j)+e, 2); sf = v(SF+4*j+e, 2); ac = v(AC+4*r+e, 2)
                if j == 0: p(f"v_pk_mul_f32 {ac}, {kf}, {sf}")
                else: p(f"v_pk_fma_f32 {ac}, {kf}, {sf}, {ac}")
    for r in range(4):
        for e in (0, 2):
            p(f"v_pk_mul_f32 {v(AC+4*r+e,2)}, {v(AC+4*r+e,2)}, {v(VF+4*r+e,2)}")
    for e in range(4):
        p(f"v_cvt_pk_bf16_f32 v{OP+2*e}, v{AC+e}, v{AC+4+e}")
        p(f"v_cvt_pk_bf16_f32 v{OP+2*e+1}, v{AC+8+e}, v{AC+12+e}")
    if 'pp' in EXP: stamp(p, 33)
    p("v_xor_b32 v13, v1, v2")
    p("v_lshlrev_b32 v13, 3, v13")
    p("v_lshl_add_u32 v13, v1, 9, v13")
    for e in range(4):
        p.lg(f"ds_write_b64 v13, {v(OP+2*e,2)} offset:{LA+128*e}")
    p.wait_lg()
    p("s_barrier")
    p("v_lshrrev_b32 v1, 3, v0")
    p("v_and_b32 v2, 7, v0")
    p("v_lshlrev_b32 v3, 1, v2")
    p(f"s_lshl_b32 s9, s{S_CG}, 6")
    p(f"s_lshl_b32 s10, s{S_RBK}, 7")
    for pi in range(2):
        p(f"v_add_u32 v4, {32*pi}, v1")
        p("v_lshrrev_b32 v5, 2, v4")
        p("v_xor_b32 v6, v3, v5")
        p("v_xor_b32 v7, 1, v6")
        p("v_lshlrev_b32 v8, 7, v4")
        p("v_lshl_add_u32 v6, v6, 3, v8")
        p("v_lshl_add_u32 v7, v7, 3, v8")
        p.lg(f"ds_read_b64 {v(16+4*pi,2)}, v6 offset:{LA}", f"a{pi}")
        p.lg(f"ds_read_b64 {v(18+4*pi,2)}, v7 offset:{LA}", f"a{pi}")
        p("v_add_u32 v8, s9, v4")
        p("v_lshlrev_b32 v8, 12, v8")
        p("v_lshl_add_u32 v8, v2, 4, v8")
        p(f"v_add_u32 v{24+pi}, s10, v8")
    for pi in range(2):
        p.wait_lg(f"a{pi}")
        p.vm(f"buffer_store_dwordx4 {v(16+4*pi,4)}, v{24+pi}, {sr(SKVT)}, 0 offen sc1", "kvst")

HW = 160
def code_prefetch(p):
    if 'nocode' in EXP: return
    p("s_getpc_b64 s[90:91]")
    lab = p.uid("K_pc")
    p.label(lab)
    p("v_lshlrev_b32 v180, 7, v0")
    p(f"v_cmp_gt_u32 vcc, (K_end - {lab}), v180")
    p("s_and_saveexec_b64 s[10:11], vcc")
    p.vm("global_load_dword v255, v180, s[90:91]", "code")
    p("s_mov_b64 exec, s[10:11]")

def q_loads(p):
    p.srd(SF_, P_Q, 0, MAT)
    p.vm(f"buffer_load_dwordx4 {v(XP,4)}, v{OFFA}, {sr(SF_)}, 0 offen", "q")
    p.vm(f"buffer_load_dwordx4 {v(XP+4,4)}, v{OFFB}, {sr(SF_)}, 0 offen", "q")

def early_loads(p):
    SH = SF_
    p("s_lshl_b32 s9, s2, 13")
    p(f"s_add_u32 s{SH}, s{P_H}, s9"); p(f"s_addc_u32 s{SH+1}, s{P_H+1}, 0")
    p(f"s_mov_b32 s{SH+2}, 8192"); p(f"s_mov_b32 s{SH+3}, 0x20000")
    p("v_sub_u32 v176, 255, v0")
    p("v_lshlrev_b32 v176, 4, v176")
    p("v_subrev_u32 v177, 16, v176")
    for ch in range(2):
        p(f"v_add_u32 v178, {4096*ch}, v177")
        p(f"v_add_u32 v179, {4096*ch}, v176")
        p.vm(f"buffer_load_dwordx4 {v(HW+8*ch,4)}, v178, {sr(SH)}, 0 offen", "h")
        p.vm(f"buffer_load_dwordx4 {v(HW+4+8*ch,4)}, v179, {sr(SH)}, 0 offen", "h")
    if 'qlate' not in EXP: q_loads(p)

def hbuild(p):
    p("v_mov_b32 v5, 0xffff")
    p("v_cmp_ne_u32 vcc, 255, v0")
    p("v_lshlrev_b32 v6, 4, v0")
    E1, E2, O1, O2 = 32, 40, 46, 54
    for ch in range(2):
        W = HW + 8 * ch
        for d in range(4):
            p(f"v_cndmask_b32 v{W+d}, 0, v{W+d}, vcc")
        def o(dst, sidx):
            if sidx % 2 == 0:
                pz = (14 - sidx) // 2
                p(f"v_alignbit_b32 v{dst}, v{W+pz}, v{W+pz}, 16")
            else:
                p(f"v_bfi_b32 v{dst}, v5, v{W+(15-sidx)//2}, v{W+(13-sidx)//2}")
        for n in range(7): o(E1 + n, 2 * n)
        for n in range(6): o(E2 + n, 2 * n + 2)
        for n in range(7): o(O1 + n, 2 * n + 1)
        for n in range(6): o(O2 + n, 2 * n + 3)
        src = {0: E1, 4: E1 + 2, 2: E2, 6: E2 + 2, 1: O1, 5: O1 + 2, 3: O2, 7: O2 + 2}
        for c in range(8):
            p.lg(f"ds_write_b128 v6, {v(src[c],4)} offset:{ch*HC_CH + c*HC_COPY}")
        p("s_nop 1")
    for r in range(4): p(f"v_mov_b32 v{60+r}, 0")
    p("v_and_b32 v7, 15, v0")
    p(f"v_mul_u32_u24 v7, {HC_COPY}, v7")
    p("v_add_u32 v7, 4096, v7")
    p("v_and_b32 v8, 31, v0")
    p("v_lshlrev_b32 v8, 4, v8")
    p("v_bfe_u32 v9, v0, 5, 1")
    p(f"v_mul_u32_u24 v9, {U_CH}, v9")
    p(f"s_mov_b32 s9, {L_U}")
    p("v_add3_u32 v8, v8, v9, s9")
    p.lg(f"ds_write_b128 v7, {v(60,4)}")
    p.lg(f"ds_write_b128 v8, {v(60,4)}")

W20, W2A, W2B = 12, 49, 49
def w2_items(SW2):
    G = []
    for f in range(49):
        it = []
        base = f - f % 4
        if f % 4 == 0 or f in (W20, W2A, W2B): it.append((f"s_mov_b32 s15, {1024*base}", "", None))
        it.append((f"buffer_load_dwordx4 {a(4*f,4)}, v{V_L16}, {sr(SW2)}, s15 offen offset:{1024*(f%4)} {'sc1 nt' if 'wnt2' in EXP else 'sc1'}", "vm", "w2"))
        G.append(it)
    return G

def load_w2(p, SW2):
    for f in range(49):
        if f % 4 == 0: p(f"s_mov_b32 s9, {1024*f}")
        p.vm(f"buffer_load_dwordx4 {a(4*f,4)}, v{V_L16}, {sr(SW2)}, s9 offen offset:{1024*(f%4)} sc1", "w2")

def conv_main(p):
    ACC, FA, FB = 72, 96, 16
    fb = lambda buf, m: (16 + 28 * buf + 4 * m) if m < 7 else (160 + 4 * buf)
    p("v_and_b32 v1, 63, v0")
    p("v_and_b32 v2, 15, v1")
    p("v_lshrrev_b32 v3, 4, v1")
    p("v_and_b32 v4, 7, v2")
    p("v_sub_u32 v4, 7, v4")
    p(f"v_mul_u32_u24 v4, {HC_COPY}, v4")
    p("v_lshrrev_b32 v5, 3, v2")
    p("v_sub_u32 v5, v3, v5")
    p("v_add_u32 v5, 1, v5")
    p("v_lshl_add_u32 v4, v5, 4, v4")
    p(f"s_mul_i32 s9, s{S_B}, {HC_CH}")
    p("v_add_u32 v12, s9, v4")
    p(f"s_mul_i32 s9, s{S_B}, {U_CH}")
    p(f"s_add_u32 s9, s9, {L_U + 512 - 32 - 64*7}")
    p("v_lshlrev_b32 v5, 5, v2")
    p("v_lshl_add_u32 v5, v3, 4, v5")
    p("v_add_u32 v13, s9, v5")
    set1 = p.uid("cset1"); join = p.uid("cjoin")
    p(f"s_cmp_eq_u32 s{S_A}, 1")
    p(f"s_cbranch_scc1 {set1}")
    for st, tiles in ((0, (0, 3, 4, 7)), (1, (1, 2, 5, 6))):
        if st == 1: p.label(set1)
        mx = max(tiles)
        def reads(rho, buf):
            L = []
            for m in range(mx + 1):
                L.append((f"ds_read_b128 {v(FA+32*buf+4*m,4)}, v12 offset:{512*(7-m)+64*(7-rho)}", "lg", f"r{rho}_{m}"))
                L.append((f"ds_read_b128 {v(fb(buf,m),4)}, v13 offset:{512*m+64*(7-rho)}", "lg", f"r{rho}_{m}"))
            return L
        saved_vm = list(p.vmq)
        w2 = w2_items(SE)[W20:W2A] if 'now2' not in EXP else []
        for it in reads(0, 0): emit(p, it)
        first = set()
        for rho in range(8):
            buf = rho & 1
            nxt = reads(rho + 1, buf ^ 1) if rho < 7 else []
            mf = sorted([(max(mu, nt - mu), ti, nt, mu) for ti, nt in enumerate(tiles) for mu in range(nt + 1)])
            M = []; seen = -1
            for (mm, ti, nt, mu) in mf:
                c = v(ACC+4*ti,4) if ti in first else "0"
                first.add(ti)
                t = f"v_mfma_f32_16x16x32_bf16 {v(ACC+4*ti,4)}, {v(FA+32*buf+4*mu,4)}, {v(fb(buf,nt-mu),4)}, {c}"
                w = []
                if mm > seen: w.append((None, "wlg", f"r{rho}_{mm}")); seen = mm
                M.append((t, w))
            N = {}
            for i, it in enumerate(nxt): N.setdefault(i, []).append(it)
            slots = [3, 6, 9, 12, 15, 17]
            for q_ in range(6 if rho < 7 else 0):
                if w2: N.setdefault(slots[q_], []).extend(w2.pop(0))
            schedule(p, M, [], N)
        assert not w2
        p.vmq = saved_vm + ["w2"]
        p("s_barrier")
        p(f"s_mul_i32 s9, s{S_B}, {U_CH}")
        p(f"s_add_u32 s9, s9, {L_U + 512}")
        p("v_lshlrev_b32 v5, 5, v2")
        p("v_lshl_add_u32 v5, v3, 3, v5")
        p("v_add_u32 v6, s9, v5")
        p(f"s_mul_i32 s9, s{S_B}, {YS_CH}")
        p("v_add_u32 v7, s9, v5")
        for ti, nt in enumerate(tiles):
            p.lg(f"ds_read_b64 {v(FA+2*ti,2)}, v6 offset:{512*nt}", f"u{ti}")
        p("v_mov_b32 v8, 0xffff0000")
        for ti, nt in enumerate(tiles):
            p.wait_lg(f"u{ti}")
            u = FA + 2 * ti; t = 16 + 4 * ti
            p(f"v_lshlrev_b32 v{t}, 16, v{u}")
            p(f"v_and_b32 v{t+1}, v8, v{u}")
            p(f"v_lshlrev_b32 v{t+2}, 16, v{u+1}")
            p(f"v_and_b32 v{t+3}, v8, v{u+1}")
            for r in range(4):
                p(f"v_fma_f32 v{t+r}, v{t+r}, s14, v{ACC+4*ti+r}")
            p(f"v_cvt_pk_bf16_f32 v{t}, v{t}, v{t+1}")
            p(f"v_cvt_pk_bf16_f32 v{t+1}, v{t+2}, v{t+3}")
            p.lg(f"ds_write_b64 v7, {v(t,2)} offset:{512*nt}")
        p.wait_lg()
        if st == 0: p(f"s_branch {join}")
    p.label(join)
    p("s_barrier")

def conv_out(p, SY):
    p("v_and_b32 v1, 3, v0")
    p("v_lshrrev_b32 v2, 2, v0")
    p("v_lshrrev_b32 v3, 1, v1")
    p("v_and_b32 v4, 1, v1")
    p(f"v_mul_u32_u24 v3, {YS_CH}, v3")
    p("v_lshl_add_u32 v3, v4, 4, v3")
    p("v_lshl_add_u32 v3, v2, 5, v3")
    p.lg("ds_read_b128 v[16:19], v3", "y0")
    p.lg(f"ds_read_b128 v[20:23], v3 offset:{64*32}", "y1")
    p(f"v_mul_u32_u24 v5, {D*32}, v2")
    p("v_lshl_add_u32 v5, v1, 4, v5")
    p("s_lshl_b32 s9, s2, 6")
    p("v_add_u32 v5, s9, v5")
    p(f"v_add_u32 v6, {64*D*32}, v5")
    p.wait_lg("y0")
    p.vm(f"buffer_store_dwordx4 v[16:19], v5, {sr(SY)}, 0 offen sc1", "yst")
    p.wait_lg("y1")
    p.vm(f"buffer_store_dwordx4 v[20:23], v6, {sr(SY)}, 0 offen sc1", "yst")

X, T, PK, TMP = 16, 32, 64, 72
YT = 96
def row_setup(p):
    p("v_and_b32 v181, 31, v0")
    p("v_lshrrev_b32 v182, 5, v0")
    p(f"v_cmp_gt_u32 {ACT}, 28, v181")
    p(f"v_mul_u32_u24 v183, {ROWB}, v182")
    p("v_lshl_add_u32 v183, v181, 4, v183")
    p(f"s_mul_i32 s9, s{S_RB}, {8*ROWB}")
    p("v_add_u32 v183, s9, v183")
    p(f"v_cndmask_b32 v{OFFA}, -1, v183, {ACT}")
    p("v_add_u32 v183, 448, v183")
    p(f"v_cndmask_b32 v{OFFB}, -1, v183, {ACT}")

def unpack(p, dst, src, n):
    for i in range(n):
        p(f"v_lshlrev_b32 v{dst+2*i}, 16, v{src+i}")
        p(f"v_and_b32 v{dst+2*i+1}, v7, v{src+i}")
def pack(p, dst, src, n):
    for i in range(n):
        p(f"v_cvt_pk_bf16_f32 v{dst+i}, v{src+2*i}, v{src+2*i+1}")
def allreduce32(p, r, t):
    for m in ("quad_perm:[1,0,3,2]", "quad_perm:[2,3,0,1]", "row_half_mirror", "row_mirror"):
        p(f"v_add_f32_dpp v{r}, v{r}, v{r} {m} row_mask:0xf bank_mask:0xf")
    p(f"v_mov_b32 v{t}, v{r}")
    p(f"v_permlane16_swap_b32 v{r}, v{t}")
    p(f"v_add_f32 v{r}, v{r}, v{t}")
def sum16(p, dst, src):
    p(f"v_pk_add_f32 {v(TMP,2)}, {v(src,2)}, {v(src+2,2)}")
    p(f"v_pk_add_f32 {v(TMP+2,2)}, {v(src+4,2)}, {v(src+6,2)}")
    p(f"v_pk_add_f32 {v(TMP+4,2)}, {v(src+8,2)}, {v(src+10,2)}")
    p(f"v_pk_add_f32 {v(TMP+6,2)}, {v(src+12,2)}, {v(src+14,2)}")
    p(f"v_pk_add_f32 {v(TMP,2)}, {v(TMP,2)}, {v(TMP+2,2)}")
    p(f"v_pk_add_f32 {v(TMP+4,2)}, {v(TMP+4,2)}, {v(TMP+6,2)}")
    p(f"v_pk_add_f32 {v(TMP,2)}, {v(TMP,2)}, {v(TMP+4,2)}")
    p(f"v_add_f32 v{dst}, v{TMP}, v{TMP+1}")
    p(f"v_cndmask_b32 v{dst}, 0, v{dst}, {ACT}")
def layernorm(p, src, dst, scale=None):
    M, V_ = TMP + 8, TMP + 10
    sum16(p, M, src)
    allreduce32(p, M, TMP + 9)
    p(f"v_mul_f32 v{M}, {fbits(-1.0/D)}, v{M}")
    p(f"v_mov_b32 v{M+1}, v{M}")
    for i in range(0, 16, 2):
        p(f"v_pk_add_f32 {v(dst+i,2)}, {v(src+i,2)}, {v(M,2)}")
    p(f"v_pk_mul_f32 {v(TMP,2)}, {v(dst,2)}, {v(dst,2)}")
    p(f"v_pk_mul_f32 {v(TMP+2,2)}, {v(dst+2,2)}, {v(dst+2,2)}")
    for i in range(4, 16, 4):
        p(f"v_pk_fma_f32 {v(TMP,2)}, {v(dst+i,2)}, {v(dst+i,2)}, {v(TMP,2)}")
        p(f"v_pk_fma_f32 {v(TMP+2,2)}, {v(dst+i+2,2)}, {v(dst+i+2,2)}, {v(TMP+2,2)}")
    p(f"v_pk_add_f32 {v(TMP,2)}, {v(TMP,2)}, {v(TMP+2,2)}")
    p(f"v_add_f32 v{V_}, v{TMP}, v{TMP+1}")
    p(f"v_cndmask_b32 v{V_}, 0, v{V_}, {ACT}")
    allreduce32(p, V_, TMP + 11)
    p(f"v_mov_b32 v{V_+1}, {fbits(1e-5)}")
    p(f"v_fmac_f32 v{V_+1}, {fbits(1.0/D)}, v{V_}")
    p(f"v_rsq_f32 v{V_}, v{V_+1}")
    if scale is not None: p(f"v_mul_f32 v{V_}, {fbits(scale)}, v{V_}")
    else: p("s_nop 0")
    p(f"v_mov_b32 v{V_+1}, v{V_}")
    for i in range(0, 16, 2):
        p(f"v_pk_mul_f32 {v(dst+i,2)}, {v(dst+i,2)}, {v(V_,2)}")

def y_load(p, SY):
    p(f"s_lshr_b32 s9, s{S_RB}, 1")
    p(f"s_mul_i32 s9, s9, {D*32}")
    p(f"s_and_b32 s10, s{S_RB}, 1")
    p("s_lshl_b32 s10, s10, 4")
    p("s_add_u32 s9, s9, s10")
    p("v_lshlrev_b32 v3, 5, v0")
    p("v_add_u32 v3, s9, v3")
    p(f"v_add_u32 v4, {256*32}, v3")
    p("v_cmp_gt_u32 vcc, 192, v0")
    p("v_cndmask_b32 v4, -1, v4, vcc")
    p.vm(f"buffer_load_dwordx4 {v(YT,4)}, v3, {sr(SY)}, 0 offen sc1", "y")
    p.vm(f"buffer_load_dwordx4 {v(YT+4,4)}, v4, {sr(SY)}, 0 offen sc1", "y")

def y_transpose(p):
    p("v_lshlrev_b32 v3, 2, v0")
    p.wait_vm("y")
    for wq in range(4):
        p.lg(f"ds_write_b32 v3, v{YT+wq} offset:{LY+2048*wq}")
        p.lg(f"ds_write_b32 v3, v{YT+4+wq} offset:{LY+2048*wq+1024}")
    p.wait_lg()
    p("s_barrier")
    p("v_and_b32 v1, 31, v0")
    p("v_lshrrev_b32 v4, 6, v0")
    p("v_lshlrev_b32 v4, 11, v4")
    p("v_lshl_add_u32 v4, v1, 5, v4")
    for k in range(2):
        p.lg(f"ds_read_b128 {v(YT+8*k,4)}, v4 offset:{LY+896*k}")
        p.lg(f"ds_read_b128 {v(YT+8*k+4,4)}, v4 offset:{LY+896*k+16}")
    p("v_bfe_u32 v5, v0, 5, 1")
    p("v_mov_b32 v6, 0x01000c0c")
    p("v_mov_b32 v3, 0x03020c0c")
    p("v_cmp_eq_u32 vcc, 1, v5")
    p("v_cndmask_b32 v6, v6, v3, vcc")
    p.wait_lg()
    for i in range(16):
        p(f"v_perm_b32 v{YV+i}, v{YT+i}, v{YT+i}, v6")

def poll_s2(p):
    lab = p.uid("s2"); done = p.uid("s2d"); skip = p.uid("s2s")
    p("v_and_b32 v1, 63, v0")
    p("s_and_b32 s9, s2, 7"); p("s_lshl_b32 s9, s9, 11"); p(f"s_add_u32 s9, s9, {FL_S2R}")
    for i in range(4):
        p(f"v_lshl_add_u32 v{12+i}, v1, 3, s9")
        if i: p(f"v_add_u32 v{12+i}, {512*i}, v{12+i}")
    p("v_and_b32 v48, 7, v0")
    p(f"s_lshl_b32 s9, s{S_CL}, 6")
    p(f"s_add_u32 s9, s9, {FL_XCC}")
    p("v_lshl_add_u32 v48, v48, 3, s9")
    p(f"s_cmp_eq_u32 s{S_W}, 0")
    p(f"s_cbranch_scc0 {skip}")
    if 's2st' in EXP:
        p("s_waitcnt vmcnt(0)"); stamp(p, 41)
    p(f"s_mov_b32 s{S_T}, 0")
    p.label(lab)
    masks = [64, 64, 64, 32]
    for i in range(4):
        setexec(p, masks[i])
        p(f"buffer_load_dwordx2 {v(2+2*i,2)}, v{12+i}, {sr(S_FL)}, 0 offen sc1")
    p("s_mov_b64 exec, -1")
    p(f"buffer_load_dwordx2 v[10:11], v48, {sr(S_FL)}, 0 offen sc1")
    p("s_waitcnt vmcnt(0)")
    p(f"v_subrev_u32 v10, s{S_N}, v10")
    p(f"v_cmp_eq_u32 vcc, s{S_N+1}, v11")
    p("v_cmp_gt_u32 s[10:11], 16, v10")
    p("s_nop 4")
    p("s_and_b64 vcc, vcc, s[10:11]")
    p("s_cmp_eq_u64 vcc, exec")
    p("s_cselect_b32 s9, 1, 0")
    for i in range(4):
        setexec(p, masks[i])
        p(f"v_cmp_eq_u64 vcc, {s(S_N,2)}, {v(2+2*i,2)}")
        p("s_nop 4")
        p("s_cmp_eq_u64 vcc, exec")
        p("s_cselect_b32 s9, s9, 0")
    p("s_mov_b64 exec, -1")
    p("s_cmp_eq_u32 s9, 1")
    p(f"s_cbranch_scc1 {done}")
    p(f"s_add_u32 s{S_T}, s{S_T}, 1")
    p(f"s_cmp_lt_u32 s{S_T}, {hex(SPIN_MAX)}")
    p(f"s_cbranch_scc0 {done}")
    p("s_sleep 1")
    p(f"s_branch {lab}")
    p.label(done)
    if 's2st' in EXP:
        p(f"v_writelane_b32 v253, s{S_T}, 42"); p(f"v_writelane_b32 v252, s{S_T}, 43"); p(f"v_writelane_b32 v253, s{S_T}, 43")
    p("s_getreg_b32 s9, hwreg(HW_REG_XCC_ID, 0, 4)")
    p("v_cmp_eq_u32 vcc, s9, v10")
    p("s_nop 4")
    p("s_cmp_eq_u64 vcc, exec")
    p("s_cselect_b32 s9, 1, 0")
    if FORCE_SLOW: p("s_mov_b32 s9, 0")
    p("v_mov_b32 v2, s9")
    p(f"v_mov_b32 v3, {L_FASTW}")
    p("ds_write_b32 v3, v2")
    p("s_waitcnt lgkmcnt(0)")
    p.label(skip)
    p("s_barrier")
    p.vmq = []; p.lgq = []
    p(f"v_mov_b32 v3, {L_FASTW}")
    p.lg("ds_read_b32 v49, v3", "fw")

def fast_get(p):
    p.wait_lg("fw")
    p(f"v_readfirstlane_b32 s{S_FAST}, v49")

PB_ = 96
def partials_prelude(p):
    p("v_and_b32 v1, 31, v0")
    p("v_lshrrev_b32 v2, 5, v0")
    p(f"s_mul_i32 s9, s{S_MEM}, {8*ROWB}")
    p(f"v_mul_u32_u24 v3, {ROWB}, v2")
    p("v_lshl_add_u32 v3, v1, 4, v3")
    p("v_add_u32 v3, s9, v3")
    p(f"v_cndmask_b32 v12, -1, v3, {ACT}")
    p("v_add_u32 v3, 448, v3")
    p(f"v_cndmask_b32 v13, -1, v3, {ACT}")

def add_partials(p):
    for j in range(8):
        if j % 4 == 0: p(f"s_mov_b32 s9, {j*64*ROWB}")
        else: p(f"s_add_u32 s9, s9, {64*ROWB}")
        p.vm(f"buffer_load_dwordx4 {v(PB_+8*j,4)}, v12, {sr(S_PR)}, s9 offen sc1", f"p{j}")
        p.vm(f"buffer_load_dwordx4 {v(PB_+8*j+4,4)}, v13, {sr(S_PR)}, s9 offen sc1", f"p{j}")
    lab = p.uid("pf2")
    p(f"s_cmp_eq_u32 s{S_LAY}, 0"); p(f"s_cbranch_scc0 {lab}")
    for g_ in dma_w1_items(2, "pf2"):
        for it in g_: p(it[0])
    p.label(lab)
    p("v_mov_b32 v7, 0xffff0000")
    p("v_mov_b32 v14, 0x00003f80")
    p("v_mov_b32 v15, 0x3f800000")
    unpack(p, X, XP, 8)
    for i in range(16): p(f"v_mov_b32 v{T+i}, 0")
    p(f"v_mov_b32 v{TMP}, {fbits(LN2)}"); p(f"v_mov_b32 v{TMP+1}, {fbits(LN2)}")
    for j in range(8):
        p.wait_vm(f"p{j}")
        for i in range(8):
            p(f"v_dot2c_f32_bf16 v{T+2*i}, v{PB_+8*j+i}, v14")
            p(f"v_dot2c_f32_bf16 v{T+2*i+1}, v{PB_+8*j+i}, v15")
    for i in range(0, 16, 2):
        p(f"v_pk_fma_f32 {v(X+i,2)}, {v(T+i,2)}, {v(TMP,2)}, {v(X+i,2)}")

def xh(phi):
    return a(196 + 4 * phi, 4) if phi < 15 else v(148 + 4 * (phi - 15), 4)

def mlp_setup(p):
    row_setup(p)
    p("v_and_b32 v181, 63, v0")
    p("v_and_b32 v182, 15, v181")
    p("v_lshrrev_b32 v183, 4, v181")
    p(f"s_mul_i32 s9, s{S_A}, 14336")
    p(f"s_add_u32 s9, s9, {L_RING}")
    p(f"v_lshl_add_u32 v{V_A}, v181, 4, s9")
    p(f"v_add_u32 v{V_A2}, {2*CHUNK}, v{V_A}")
    p(f"s_lshl_b32 s9, s{S_B}, 5")
    p("v_add_u32 v184, s9, v182")
    p(f"v_mul_u32_u24 v184, {SH_}, v184")
    p("v_bfe_u32 v185, v182, 1, 2")
    p("v_lshrrev_b32 v186, 1, v183")
    p("v_xor_b32 v186, v186, v185")
    p("v_lshl_add_u32 v184, v186, 4, v184")
    p("v_and_b32 v186, 1, v183")
    p("v_lshl_add_u32 v184, v186, 3, v184")
    p("v_xor_b32 v186, 32, v184")
    p(f"s_cmp_eq_u32 s{S_A}, 1")
    p("s_cselect_b64 vcc, -1, 0")
    p("v_add_u32 v187, 192, v186")
    p(f"v_cndmask_b32 v{V_HW}, v184, v187, vcc")
    p("v_add_u32 v187, 256, v184")
    p(f"v_cndmask_b32 v{V_HW1}, v186, v187, vcc")
    p(f"v_mul_u32_u24 v184, {SH_}, v182")
    p("v_xor_b32 v185, v185, v183")
    p(f"v_lshl_add_u32 v{V_HR}, v185, 4, v184")
    p(f"v_subrev_u32 v{V_A3}, {L_RING - CHUNK}, v{V_A}")
    p(f"v_lshlrev_b32 v{V_L16}, 4, v181")
    p(f"v_mul_u32_u24 v184, {ROWB}, v182")
    p(f"s_lshl_b32 s9, s{S_W}, 6")
    p("v_lshl_add_u32 v185, v183, 4, v184")
    p(f"v_add_u32 v{V_PO}, s9, v185")
    p(f"s_add_u32 s9, s{S_A}, 12")
    p("s_lshl_b32 s9, s9, 6")
    p(f"s_lshl_b32 s10, s{S_B}, 5")
    p("s_add_u32 s9, s9, s10")
    p("v_lshl_add_u32 v185, v183, 3, v184")
    p(f"v_add_u32 v{V_PO1}, s9, v185")
    x_dma_setup(p)

XD1 = [200, 201, 209, 210, 211, 212, 213, 214]
XD2 = [215, 216, 217, 220, 221, 222]
XR1, XR2 = 108, 112
L_X2 = L_X + 64 * 512
def x_dma_setup(p):
    p("v_and_b32 v181, 63, v0")
    p("v_lshrrev_b32 v182, 5, v181")
    p("v_and_b32 v183, 31, v181")
    for i in range(8):
        p(f"v_add_u32 v184, {2*i}, v182")
        p("v_xor_b32 v185, v183, v184")
        p(f"v_mul_u32_u24 v184, {ROWB}, v184")
        p(f"v_lshl_add_u32 v{XD1[i]}, v185, 4, v184")
    for i in range(6):
        p(f"v_add_u32 v184, {64*i}, v181")
        p("v_mul_u32_u24 v185, 2731, v184")
        p("v_lshrrev_b32 v185, 16, v185")
        p("v_mul_u32_u24 v186, 24, v185")
        p("v_sub_u32 v186, v184, v186")
        p("v_and_b32 v184, 6, v185")
        p("v_xor_b32 v186, v186, v184")
        p(f"v_mul_u32_u24 v185, {ROWB}, v185")
        p("v_lshl_add_u32 v185, v186, 4, v185")
        p(f"v_add_u32 v{XD2[i]}, 512, v185")

def x_read_setup(p):
    p("v_and_b32 v1, 63, v0")
    p("v_and_b32 v2, 15, v1")
    p("v_lshrrev_b32 v3, 4, v1")
    p(f"s_lshl_b32 s9, s{S_B}, 5")
    p("v_add_u32 v4, s9, v2")
    p("v_and_b32 v5, 3, v2")
    p("v_xor_b32 v5, v5, v3")
    p("v_lshlrev_b32 v5, 4, v5")
    p("v_lshl_add_u32 v5, v4, 9, v5")
    p("v_lshrrev_b32 v6, 2, v2")
    for r in range(4):
        p(f"v_xor_b32 v8, {r}, v6")
        p(f"v_lshl_add_u32 v{XR1+r}, v8, 6, v5")
    p("v_and_b32 v5, 2, v2")
    p("v_xor_b32 v5, v5, v3")
    p("v_lshlrev_b32 v5, 4, v5")
    p("v_mul_u32_u24 v4, 384, v4")
    p("v_add_u32 v5, v5, v4")
    p(f"v_add_u32 v5, {L_X2}, v5")
    p("v_and_b32 v6, 1, v6")
    p(f"v_lshl_add_u32 v{XR2}, v6, 6, v5")
    p("v_xor_b32 v6, 1, v6")
    p(f"v_lshl_add_u32 v{XR2+1}, v6, 6, v5")

def dma_x(p):
    p(f"s_lshl_b32 s9, s{S_W}, 13")
    p(f"s_mul_i32 s10, s{S_W}, {16*384}")
    for i in range(8):
        p(f"s_add_u32 m0, s9, {L_X + 1024*i}")
        p.vm(f"buffer_load_dwordx4 v{XD1[i]}, {sr(S_X)}, s{S_W14} offen sc1 lds", "x1")
    for i in range(6):
        p(f"s_add_u32 m0, s10, {L_X2 + 1024*i}")
        p.vm(f"buffer_load_dwordx4 v{XD2[i]}, {sr(S_X)}, s{S_W14} offen sc1 lds", "x2")

def dma_w1_items(chunk, tag, g=12):
    G = []
    for i in range(7):
        it = []
        if i in (0, 4):
            o = 4096 if i else 0
            it += [(f"s_add_u32 m0, s{S_W7}, {slot_base(chunk) + o}", "", None),
                   (f"s_add_u32 s{g}, s{S_W7}, {chunk * CHUNK + o}", "", None)]
        it.append((f"buffer_load_dwordx4 v{V_L16}, {sr(S_W1)}, s{g} offen offset:{1024*(i%4)} {'sc1 nt' if 'wnt1' in EXP else 'sc1'} lds", "vm", tag))
        G.append(it)
    return G

def dma_w1(p, chunk, tag):
    p(f"s_mul_i32 s9, s{S_W}, 7168")
    p(f"s_add_u32 s10, s9, {L_RING + (chunk % 3) * CHUNK}")
    p(f"s_add_u32 s9, s9, {chunk * CHUNK}")
    for grp, cnt in ((0, 4), (4, 3)):
        if grp:
            p("s_add_u32 s10, s10, 4096"); p("s_add_u32 s9, s9, 4096")
        p("s_mov_b32 m0, s10")
        for i in range(cnt):
            p.vm(f"buffer_load_dwordx4 v{V_L16}, {sr(S_W1)}, s9 offen offset:{1024*i} sc1 lds", tag)

def cost(t):
    op = t.split()[0]
    if op.startswith(("v_exp", "v_rcp", "v_rsq")): return 8
    if op.startswith("v_"): return 4
    return 0

def emit(p, item):
    t, kind, tag = item
    if kind == "lg": p.lg(t, tag)
    elif kind == "vm": p.vm(t, tag)
    elif kind == "wlg": p.wait_lg(tag)
    elif kind == "wvm": p.wait_vm(tag)
    else: p(t)

def schedule(p, M, V=(), N=None, vstart=0, vend=None):
    N = N or {}
    vend = len(M) if vend is None else vend
    total = sum(cost(x[0]) for x in V)
    done, cum = 0, 0
    for i, m in enumerate(M):
        if isinstance(m, tuple):
            for w in m[1]: emit(p, w)
            m = m[0]
        p(m)
        for it in N.get(i, []): emit(p, it)
        if i >= vstart and done < len(V):
            last = (i >= vend - 1)
            target = total * (i - vstart + 1) / max(1, vend - vstart)
            while done < len(V) and (last or cum + cost(V[done][0]) / 2 <= target):
                cum += cost(V[done][0]); emit(p, V[done]); done += 1
    while done < len(V):
        emit(p, V[done]); done += 1

def interleave(p, M, O, first=0):
    n = len(M) - first
    done = 0
    for i, m in enumerate(M):
        p(m)
        if i >= first:
            want = (len(O) * (i - first + 1) + n - 1) // n
            while done < want:
                t, kind, tag = O[done]; done += 1
                if kind == "lg": p.lg(t, tag)
                elif kind == "vm": p.vm(t, tag)
                else: p(t)

FA, AC1, ST_, HO = 16, 72, 96, 104
def silu_stages(T):
    z = AC1 + 8 * (T % 3); t = ST_
    E = [(f"v_exp_f32_e64 v{t+r}, -v{z+r}", "", None) for r in range(8)]
    A = [(f"v_add_f32 v{t+r}, 1.0, v{t+r}", "", None) for r in range(8)]
    C = [(f"v_rcp_f32 v{t+r}, v{t+r}", "", None) for r in range(8)]
    M = [(f"v_mul_f32 v{t+r}, v{z+r}, v{t+r}", "", None) for r in range(8)]
    V = []
    for nt in range(2):
        V.append((f"v_cvt_pk_bf16_f32 v{HO+2*nt}, v{t+4*nt}, v{t+4*nt+1}", "", None))
        V.append((f"v_cvt_pk_bf16_f32 v{HO+2*nt+1}, v{t+4*nt+2}, v{t+4*nt+3}", "", None))
    W = [(f"ds_write_b64 v{V_HW1 if T & 1 else V_HW}, {v(HO+2*nt,2)} offset:{L_X + nt*16*SH_ + 64*(T>>1)}", "lg", "hw") for nt in range(2)]
    return E, A, C, M, V, W

def gemm1(p):
    def areads(h):
        T, half, buf = h >> 1, h & 1, h & 1
        if T == 3: base, o = V_A3, 0
        else:
            sl = T if T < 3 else T - 4
            base, o = (V_A, sl * CHUNK) if sl < 2 else (V_A2, 0)
        return [(f"ds_read_b128 {v(FA+28*buf+4*i,4)}, v{base} offset:{o + 1024*(7*half+i)}", "lg", f"g{h}") for i in range(7)]
    p.wait_vm("x1")
    p("s_barrier")
    stamp(p, 12, True)
    def xread(k, nt):
        if k < 8: return (f"ds_read_b128 {xh(2*k+nt)}, v{XR1 + (k & 3)} offset:{L_X + 256*(k>>2) + nt*16*512}", "lg", f"x{k}")
        kk = k - 8
        return (f"ds_read_b128 {xh(2*k+nt)}, v{XR2 + (kk & 1)} offset:{128*(kk>>1) + nt*16*384}", "lg", f"x{k}")
    a0 = areads(0)
    for k in range(7):
        t, kind, _ = a0[k]
        emit(p, (t, kind, f"a0_{k}")); emit(p, xread(k, 0)); emit(p, xread(k, 1))
    silu = 'nosilu' not in EXP
    for h in range(14):
        T, half, buf = h >> 1, h & 1, h & 1
        nxt = areads(h + 1) if h < 13 else []
        pre = [[] for _ in range(14)]
        val = [[] for _ in range(14)]
        post = [[] for _ in range(14)]
        for i, it in enumerate(nxt): pre[i].append(it)
        if h == 0:
            pre[0].append(xread(7, 0)); pre[1].append(xread(7, 1))
            pre[2] += [(None, "wvm", "x2"), ("s_barrier", "", None)]
            extra = [xread(k, nt) for k in range(8, 14) for nt in range(2)]
            for i in range(12): pre[2 + i].append(extra[i])
        if 1 <= h <= 8 and 'nodma1' not in EXP:
            c = 3 + (h - 1) // 2
            grps = dma_w1_items(c, f"c{c}")
            grps = grps[:4] if h & 1 else grps[4:]
            at = [1, 4, 8, 11] if h & 1 else [2, 6, 10]
            for g_, grp in zip(at, grps):
                sal = [x for x in grp if x[1] == ""]; dm = [x for x in grp if x[1] == "vm"]
                pre[g_] = sal + pre[g_] + dm
        if 9 <= h <= 13 and 'noldwc' not in EXP:
            first = 3 * (h - 9)
            for g_, i in zip((1, 5, 9), range(first, min(first + 3, 14))):
                pre[g_] = [(f"s_add_u32 s12, s{S_W14}, {1024*i}", "", None)] + pre[g_] + [(f"buffer_load_dwordx4 v[124:127], v{V_L16}, {sr(S_PW)}, s12 offen", "vm", "pw")]
        if silu:
            if half == 0 and T >= 2:
                E, A, C, M, V, W = silu_stages(T - 2)
                seq = M + V
                order = [2, 2, 2, 2, 2, 1, 1]
                for g_, cnt in enumerate(order):
                    for _ in range(cnt): val[g_].append(seq.pop(0))
                pre[7].append(W[0]); pre[9].append(W[1])
            if half == 0 and T >= 1:
                E = silu_stages(T - 1)[0]
                for r in range(7): val[7 + r].append(E[r])
                val[13].append(E[7])
            if half == 1 and T >= 1:
                E, A, C, M, V, W = silu_stages(T - 1)
                for r in range(7): val[r].append(A[r])
                val[6].append(A[7])
                for r in range(7): val[7 + r].append(C[r])
                val[13].append(C[7])
        if h < 13:
            w = [(None, "wlg", f"g{h+1}")]
            if h == 0: w.append((None, "wlg", "x13"))
            if half == 0 and 3 <= T + 1 <= 6: w.append((None, "wvm", f"c{T+1}"))
            pre[13] = w + pre[13] if h != 0 else pre[13] + w
        for q_ in range(14):
            i, nt = q_ >> 1, q_ & 1
            k = 7 * half + i
            if h == 0 and nt == 0:
                p.wait_lg(f"a0_{i}"); p.wait_lg(f"x{k}")
            acc = v(AC1 + 8 * (T % 3) + 4 * nt, 4)
            p(f"v_mfma_f32_16x16x32_bf16 {acc}, {v(FA+28*buf+4*i,4)}, {xh(2*k+nt)}, {'0' if k == 0 else acc}")
            for it in pre[q_] + val[q_] + post[q_]: emit(p, it)
        if half == 0 and 'nobar1' not in EXP: p("s_barrier")
        if 'tt' in EXP: p(f"s_memtime s[{40+0}:{41}]" if False else f"s_memtime s[{34+2*(h+3)}:{35+2*(h+3)}]") if False else None
        if 'tt' in EXP and h < 12: p(f"s_memtime s[{40+2*h}:{41+2*h}]")
    if 'tt' in EXP:
        p("s_waitcnt lgkmcnt(0)"); p.lgq = []
        for h in range(12): p(f"v_mov_b32 v{108+h}, s{40+2*h}")
        p("s_lshl_b32 s9, s2, 6"); p(f"s_mul_i32 s10, s{S_LAY}, 16384"); p("s_add_u32 s9, s9, s10"); p(f"s_add_u32 s9, s9, {0x30000}")
        p("v_mov_b32 v120, s9")
        p("s_mov_b64 s[10:11], exec"); p("s_mov_b64 exec, 1")
        for q_ in range(3): p.vm(f"buffer_store_dwordx4 {v(108+4*q_,4)}, v120, s[92:95], 0 offen offset:{16*q_}")
        p("s_mov_b64 exec, s[10:11]")
    if silu:
        E, A, C, M, V, W = silu_stages(5)
        for it in M + V + W: emit(p, it)
        E, A, C, M, V, W = silu_stages(6)
        for it in E + A + C + M + V + W: emit(p, it)
    p.wait_lg()
    p("s_barrier")

AC2, CO = 72, 16
OUTLINE = []
def gemm2(p):
    if 'l1sc1' in EXP or 'l1nt' in EXP: p(f"s_cmp_eq_u32 s{S_LAY}, 1")
    hread = lambda nt, k: (f"ds_read_b128 {xh(7*nt+k)}, v{V_HR} offset:{L_X + nt*16*SH_ + 64*k}", "lg", f"h{nt}_{k}")
    for k in range(7): emit(p, hread(0, k))
    pf = []
    units = [(3, nt) for nt in range(4)] + [(P, nt) for P in range(3) for nt in range(4)]
    def epi(u):
        P, nt = units[u]; ac = AC2 + 8 * (u & 1); o = CO + 4 * (u & 3)
        O = []
        O.append((f"v_cvt_pk_bf16_f32 v{o}, v{ac}, v{ac+1}", "", None))
        O.append((f"v_cvt_pk_bf16_f32 v{o+1}, v{ac+2}, v{ac+3}", "", None))
        if P < 3:
            O.append((f"v_cvt_pk_bf16_f32 v{o+2}, v{ac+4}, v{ac+5}", "", None))
            O.append((f"v_cvt_pk_bf16_f32 v{o+3}, v{ac+6}, v{ac+7}", "", None))
        st = [(f"s_mov_b32 s9, {nt*16*ROWB}", "", None)]
        sfl = "sc1" if 'psc1' in EXP else ("nt" if 'psnt' in EXP else ("sc0" if 'pssc0' in EXP else ""))
        base = f"buffer_store_dwordx4 {v(o,4)}, v{V_PO}, {sr(S_PW)}, s9 offen offset:{256*P}" if P < 3 else f"buffer_store_dwordx2 {v(o,2)}, v{V_PO1}, {sr(S_PW)}, s9 offen"
        if 'l1sc1' in EXP or 'l1nt' in EXP:
            alt = "sc1" if 'l1sc1' in EXP else "nt"
            la, lb = p.uid("stA"), p.uid("stB")
            st.append((f"s_cbranch_scc1 {la}", "", None))
            st.append((f"{base} {sfl}", "vm", "ps"))
            st.append((f"{lb}:", "", None))
            OUTLINE.append((la, f"{base} {alt}", lb))
        else:
            st.append((f"{base} {sfl}", "vm", "ps"))
        return O, st
    for u, (P, nt) in enumerate(units):
        ac = AC2 + 8 * (u & 1)
        M = []
        for k in range(7):
            for sub in range(2 if P < 3 else 1):
                Tt = 2 * P + sub
                acc = v(ac + 4 * sub, 4)
                t = f"v_mfma_f32_16x16x32_bf16 {acc}, {a(4*(7*k+Tt),4)}, {xh(7*nt+k)}, {'0' if k == 0 else acc}"
                w = [(None, "wlg", f"h{nt}_{k}")] if (u < 4 and sub == 0) else []
                M.append((t, w))
        n = len(M)
        N = {}
        if u < 3:
            for k in range(7): N.setdefault(k, []).append(hread(u + 1, k))
        V, st = epi(u - 1) if u else ([], [])
        if st and 'nostore' not in EXP: N.setdefault(n - 1 if n == 7 else 10, []).extend(st)
        schedule(p, M, V, N, vstart=(4 if n == 7 else 5), vend=(6 if n == 7 else 9))
    assert not pf
    V, st = epi(len(units) - 1)
    for it in V + st: emit(p, it)

def prewarm_ld(p, stride=128):
    n = 57344 // stride
    for i in range((n + 255) // 256):
        p(f"v_add_u32 v2, {256*i}, v0")
        p(f"v_mul_u32_u24 v2, {stride}, v2")
        p.vm(f"buffer_load_dword v255, v2, {sr(S_PW)}, 0 offen", "pw")

def prewarm(p):
    if 'nowarm' in EXP: return
    fl = "sc1" if 'wsc1' in EXP else ("nt" if 'wnt' in EXP else "")
    stride = 64 if 'w64' in EXP else 128
    for i in range((57344 // stride + 255) // 256):
        p(f"v_add_u32 v2, {256*i}, v0")
        p(f"v_mul_u32_u24 v2, {stride}, v2")
        p(f"buffer_store_dword v0, v2, {sr(S_PW)}, 0 offen {fl}")
    p("v_lshlrev_b32 v1, 7, v0")
    p(f"s_mul_i32 s9, s{S_MEM}, {8*ROWB}")
    p("v_add_u32 v2, s9, v1")
    p(f"v_cmp_gt_u32 vcc, {8*ROWB}, v1")
    p("v_cndmask_b32 v2, -1, v2, vcc")
    p(f"buffer_store_dword v0, v2, {sr(S_X)}, 0 offen {fl}")

FORCE_SLOW = False
def build(stamps=False, force_slow=False):
    global FORCE_SLOW
    FORCE_SLOW = force_slow
    common.STAMPS[0] = stamps
    p = K()
    p("s_cmp_ge_u32 s2, 256")
    p("s_cbranch_scc1 K_end")
    p.load_ptrs()
    code_prefetch(p)
    p.wave_id(S_W, 1)
    p("s_and_b32 s4, s2, 7")
    p("s_lshr_b32 s5, s2, 3")
    p("s_lshl_b32 s4, s4, 5")
    p("s_add_u32 s4, s4, s5")
    p("s_lshr_b32 s5, s4, 3")
    p("s_and_b32 s6, s4, 7")
    p(f"s_lshr_b32 s{S_A}, s{S_W}, 1")
    p(f"s_and_b32 s{S_B}, s{S_W}, 1")
    p(f"s_mov_b32 s{S_LAY}, 0")
    p(f"s_mov_b32 s{S_FAST}, 0")
    p(f"s_mul_i32 s{S_W7}, s{S_W}, 7168")
    p(f"s_mul_i32 s{S_W14}, s{S_W}, 14336")
    prep_addr(p)
    p("s_waitcnt lgkmcnt(0)")
    if stamps:
        p.srd(92, P_WS, WS_FLAGS + 0x80000, 0x40000)
        p("v_mov_b32 v252, 0"); p("v_mov_b32 v253, 0")
    stamp(p, 0)
    p("s_cmp_ge_u32 s2, 224")
    p("s_cbranch_scc1 K_noprep")
    prep(p)
    stamp(p, 1)
    p.wait_vm("kvst")
    p(f"v_readfirstlane_b32 s{S_N}, v150")
    p(f"v_readfirstlane_b32 s{S_N+1}, v151")
    p("s_nop 3")
    p(f"s_or_b32 s9, s{S_N}, s{S_N+1}")
    p("s_cmp_lg_u32 s9, 0")
    lab = p.uid("haven")
    p(f"s_cbranch_scc1 {lab}")
    p.srd(SF_, P_DBG, 0, 256)
    get_nonce(p)
    p.label(lab)
    p("s_barrier")
    flag_store_rep(p, FL_S1R, 2)
    stamp(p, 2)
    p.wait_vm()
    hbuild(p)
    p("s_branch K_prepdone")
    p.label("K_noprep")
    p.srd(S_FL, P_WS, WS_FLAGS, FLAGS_BYTES)
    mlp_setup(p)
    q_loads(p)
    p.srd(SF_, P_DBG, 0, 256)
    get_nonce(p)
    p("s_barrier")
    p.label("K_prepdone")
    p.vmq = []; p.lgq = []
    lab = p.uid("xp")
    p(f"s_cmp_eq_u32 s{S_W}, 0")
    p(f"s_cbranch_scc0 {lab}")
    p("s_getreg_b32 s9, hwreg(HW_REG_XCC_ID, 0, 4)")
    p(f"s_add_u32 s9, s9, s{S_N}")
    p("v_mov_b32 v2, s9"); p(f"v_mov_b32 v3, s{S_N+1}")
    p(f"s_lshl_b32 s9, s{S_RB}, 3"); p(f"s_add_u32 s9, s9, {FL_XCC}")
    p("v_mov_b32 v1, s9")
    p("s_mov_b64 exec, 1")
    p(f"buffer_store_dwordx2 v[2:3], v1, {sr(S_FL)}, 0 offen sc1")
    p("s_mov_b64 exec, -1")
    p.label(lab)
    p(f"s_mul_i32 s9, s{S_MEM}, {7*CHUNK}"); p(f"s_add_u32 s9, s9, {hex(WS_W1P)}")
    p(f"s_add_u32 s{S_W1}, s{P_WS}, s9"); p(f"s_addc_u32 s{S_W1+1}, s{P_WS+1}, 0")
    p(f"s_mov_b32 s{S_W1+2}, {7*CHUNK}"); p(f"s_mov_b32 s{S_W1+3}, 0x20000")
    p(f"s_mul_i32 s9, s{S_CL}, {64*ROWB}"); p(f"s_add_u32 s9, s9, {hex(WS_XP)}")
    p(f"s_add_u32 s{S_X}, s{P_WS}, s9"); p(f"s_addc_u32 s{S_X+1}, s{P_WS+1}, 0")
    p(f"s_mov_b32 s{S_X+2}, {64*ROWB}"); p(f"s_mov_b32 s{S_X+3}, 0x20000")
    p(f"s_mul_i32 s9, s{S_RB}, {64*ROWB}"); p(f"s_add_u32 s9, s9, {hex(WS_PB)}")
    p(f"s_add_u32 s{S_PW}, s{P_WS}, s9"); p(f"s_addc_u32 s{S_PW+1}, s{P_WS+1}, 0")
    p(f"s_mov_b32 s{S_PW+2}, {64*ROWB}"); p(f"s_mov_b32 s{S_PW+3}, 0x20000")
    p(f"s_mul_i32 s9, s{S_CL}, {8*64*ROWB}"); p(f"s_add_u32 s9, s9, {hex(WS_PB)}")
    p(f"s_add_u32 s{S_PR}, s{P_WS}, s9"); p(f"s_addc_u32 s{S_PR+1}, s{P_WS+1}, 0")
    p(f"s_mov_b32 s{S_PR+2}, {8*64*ROWB}"); p(f"s_mov_b32 s{S_PR+3}, 0x20000")
    if 'warm1' in EXP: prewarm(p)
    p("v_and_b32 v1, 63, v0")
    p("s_lshr_b32 s9, s2, 5")
    p("s_min_u32 s9, s9, 6")
    p("v_mul_u32_u24 v8, 7, v1")
    p("v_add_u32 v8, s9, v8")
    p(f"s_mul_i32 s9, s{S_MEM}, 14")
    p("v_subrev_u32 v9, 32, v1")
    p("v_add_u32 v9, s9, v9")
    p("v_add_u32 v10, 98, v9")
    p("v_cmp_gt_u32 vcc, 46, v1")
    p("v_cndmask_b32 v9, v10, v9, vcc")
    p("v_cmp_gt_u32 vcc, 32, v1")
    p("v_cndmask_b32 v8, v9, v8, vcc")
    p("v_lshlrev_b32 v8, 3, v8")
    p("s_and_b32 s9, s2, 7"); p("s_lshl_b32 s9, s9, 11"); p(f"s_add_u32 s9, s9, {FL_S1R}")
    p("v_add_u32 v8, s9, v8")
    p("s_waitcnt lgkmcnt(0)")
    poll(p, [8], 1, [60])
    stamp(p, 3)
    p(f"s_lshl_b32 s9, s{S_MEM}, 2"); p(f"s_add_u32 s9, s9, s{S_W}")
    p(f"s_mul_i32 s9, s9, {49*1024}"); p(f"s_add_u32 s9, s9, {hex(WS_W2P)}")
    p(f"s_add_u32 s{SE}, s{P_WS}, s9"); p(f"s_addc_u32 s{SE+1}, s{P_WS+1}, 0")
    p(f"s_mov_b32 s{SE+2}, {49*1024}"); p(f"s_mov_b32 s{SE+3}, 0x20000")
    p.srd(SD, P_WS, WS_YB, MAT)
    p("s_cmp_ge_u32 s2, 224")
    p("s_cbranch_scc1 K_noconv")
    p("s_lshl_b32 s9, s2, 13")
    p(f"s_add_u32 s{SA}, s{P_WS}, s9"); p(f"s_addc_u32 s{SA+1}, s{P_WS+1}, 0")
    p(f"s_mov_b32 s{SA+2}, 8192"); p(f"s_mov_b32 s{SA+3}, 0x20000")
    p("v_lshlrev_b32 v10, 4, v0")
    p.vm(f"buffer_load_dwordx4 v[64:67], v10, {sr(SA)}, 0 offen sc1", "u")
    p("v_add_u32 v11, 4096, v10")
    p.vm(f"buffer_load_dwordx4 v[68:71], v11, {sr(SA)}, 0 offen sc1", "u")
    if 'qlate' in EXP: q_loads(p)
    p("s_lshl_b32 s9, s2, 2")
    p(f"s_load_dword s13, s[{P_DV}:{P_DV+1}], s9")
    for g_ in w2_items(SE)[:W20]:
        for it in g_: emit(p, it)
    p(f"v_add_u32 v10, {L_U+512}, v10")
    p.wait_vm("u")
    p.lg("ds_write_b128 v10, v[64:67]")
    p.lg(f"ds_write_b128 v10, v[68:71] offset:{U_CH}")
    p("s_waitcnt lgkmcnt(0)"); p.lgq = []
    p("s_lshl_b32 s12, s13, 16")
    p("s_and_b32 s14, s13, 0xffff0000")
    p(f"s_cmp_eq_u32 s{S_B}, 0")
    p("s_cselect_b32 s14, s12, s14")
    p("s_barrier")
    if 'warm2' in EXP: prewarm(p)
    stamp(p, 4)
    conv_main(p)
    stamp(p, 5)
    conv_out(p, SD)
    signal(p, FL_S2R, 2, upto="yst")
    stamp(p, 6)
    p("s_branch K_convdone")
    p.label("K_noconv")
    p.vmq = []
    for g_ in w2_items(SE)[:W2A]:
        for it in g_: emit(p, it)
    p.wait_vm()
    p.label("K_convdone")
    if 'warm3' in EXP: prewarm(p)
    if 'pws2' in EXP:
        lab = p.uid("pws")
        p(f"s_cmp_eq_u32 s{S_W}, 0"); p(f"s_cbranch_scc1 {lab}")
        p(f"s_sub_u32 s9, s{S_W}, 1"); p("s_mul_i32 s9, s9, 19456")
        for i in range(19):
            if i % 4 == 0: p(f"s_add_u32 s10, s9, {1024*i}")
            p(f"buffer_load_dwordx4 v[220:223], v{V_L16}, {sr(S_PW)}, s10 offen offset:{1024*(i%4)}")
        p.label(lab)
    p("s_waitcnt vmcnt(0)")
    p("v_mov_b32 v7, 0xffff0000")
    unpack(p, X, XP, 8)
    layernorm(p, X, T)
    poll_s2(p)
    stamp(p, 7)
    y_load(p, SD)
    fast_get(p)
    for g_ in dma_w1_items(2, "pf2"):
        for it in g_: emit(p, it)
    y_transpose(p)
    stamp(p, 8)
    p("v_mov_b32 v7, 0xffff0000")
    p("s_branch K_gate")
    p.label("K_layer")
    p.vmq = []; p.lgq = []
    layernorm(p, X, T)
    p.label("K_gate")
    p.vmq = []; p.lgq = []
    q = K()
    for i in range(0, 16, 2):
        q(f"v_pk_fma_f32 {v(X+i,2)}, {v(T+i,2)}, {v(YV+i,2)}, {v(X+i,2)}")
    layernorm(q, X, T, LOG2E)
    pack(q, PK, T, 8)
    body = [it.text for it in q.items]
    pf = [g for c in range(2) for g in dma_w1_items(c, "pf")]
    step = len(body) // (len(pf) + 1)
    for i, t in enumerate(body):
        p(t)
        if pf and i % step == step - 1:
            for it in pf.pop(0): emit(p, it)
    assert not pf
    p(f"s_mul_i32 s9, s{S_CL}, {64*ROWB}")
    p(f"v_subrev_u32 v3, s9, v{OFFA}")
    p(f"v_subrev_u32 v4, s9, v{OFFB}")
    p(f"v_cndmask_b32 v3, -1, v3, {ACT}")
    p(f"v_cndmask_b32 v4, -1, v4, {ACT}")
    p.vm(f"buffer_store_dwordx4 {v(PK,4)}, v3, {sr(S_X)}, 0 offen", "xs")
    p.vm(f"buffer_store_dwordx4 {v(PK+4,4)}, v4, {sr(S_X)}, 0 offen", "xs")
    pack(p, XP, X, 8)
    stamp(p, 9, True)
    signal(p, FL_CA, S_RB, layer_off=True, cluster=True, upto="xs")
    stamp(p, 10, True)
    def cluster_offs():
        p("v_and_b32 v1, 7, v0")
        p(f"s_lshl_b32 s9, s{S_CL}, 7")
        p(f"s_lshl_b32 s10, s{S_LAY}, 13")
        p("s_add_u32 s9, s9, s10")
    cluster_offs()
    p(f"s_add_u32 s9, s9, {FL_CA}")
    p("v_lshl_add_u32 v10, v1, 3, s9")
    poll(p, [10], 1, [8], cluster=True)
    stamp(p, 11, True)
    dma_x(p)
    x_read_setup(p)
    if 'ldw128' in EXP: prewarm_ld(p, 128)
    if 'ldw64' in EXP: prewarm_ld(p, 64)
    gemm1(p)
    stamp(p, 13, True)
    gemm2(p)
    stamp(p, 14, True)
    signal(p, FL_CC, S_RB, layer_off=True, cluster=True)
    if 'wb2' in EXP:
        lab = p.uid("wb2")
        p(f"s_cmp_eq_u32 s{S_LAY}, 1"); p(f"s_cbranch_scc0 {lab}")
        p(f"s_cmp_eq_u32 s{S_W}, 3"); p(f"s_cbranch_scc0 {lab}")
        p(f"s_and_b32 s9, s{S_RB}, 31"); p("s_cmp_eq_u32 s9, 0"); p(f"s_cbranch_scc0 {lab}")
        p("buffer_wbl2 sc1")
        p.label(lab)
    stamp(p, 15, True)
    partials_prelude(p)
    cluster_offs()
    p(f"s_add_u32 s9, s9, {FL_CC}")
    p("v_lshl_add_u32 v10, v1, 3, s9")
    poll(p, [10], 1, [8], cluster=True)
    if 'wb' in EXP:
        lab = p.uid("wb")
        p(f"s_cmp_eq_u32 s{S_LAY}, 1"); p(f"s_cbranch_scc0 {lab}")
        p(f"s_cmp_eq_u32 s{S_MEM}, 0"); p(f"s_cbranch_scc0 {lab}")
        p(f"s_cmp_eq_u32 s{S_W}, 3"); p(f"s_cbranch_scc0 {lab}")
        p("buffer_wbl2 sc1")
        p.label(lab)
    stamp(p, 16, True)
    add_partials(p)
    stamp(p, 17, True)
    p(f"s_cmp_eq_u32 s{S_LAY}, 1")
    p("s_cbranch_scc1 K_final")
    p(f"s_mov_b32 s{S_LAY}, 1")
    p("s_branch K_layer")
    p.label("K_final")
    pack(p, XP, X, 8)
    p.srd(SA, P_OUT, 0, MAT)
    ofl = "sc1" if 'osc1' in EXP else ("nt" if 'ont' in EXP else "")
    p(f"buffer_store_dwordx4 {v(XP,4)}, v{OFFA}, {sr(SA)}, 0 offen {ofl}")
    p(f"buffer_store_dwordx4 {v(XP+4,4)}, v{OFFB}, {sr(SA)}, 0 offen {ofl}")
    stamp(p, 40)
    stamp_flush(p)
    if OUTLINE:
        p("s_endpgm")
        for la, t, lb in OUTLINE:
            p.label(la); p(t); p(f"s_branch {lb}")
    p.label("K_end")
    p("s_endpgm")
    txt, n = kernel_text(KNAME, p, 256, sgprs=102, agprs=256)
    print("nops inserted:", n, "instructions:", p.count(), file=sys.stderr)
    head = HEADER + f"; @launch grid=(256,1,1) block=(256,1,1) lds={LDS_BYTES}\n" + '.amdgcn_target "amdgcn-amd-amdhsa--gfx950"\n'
    return head + txt

if __name__ == "__main__":
    open(sys.argv[1], "w").write(build(stamps="st" in sys.argv[2:], force_slow="slow" in sys.argv[2:]))
```

```python
import sys
from common import *
import common
EXP = set(sys.argv[2:])
if 'pfa' not in EXP: EXP.add('pfb')

KNAME = "interleave_layers__ssm_conv_h3__dense_activation_silu__prompt_kernel"
HEADER = open("interleave_layers__ssm_conv_h3__dense_activation_silu__prompt.s.ref").read().split("; Override launch")[0]

S_W, S_RB, S_CL, S_MEM, S_A, S_B = 3, 4, 5, 6, 7, 8
SA, SB_, SC, SD, SE, SF_ = 40, 44, 48, 52, 56, 60
S_FL, S_W1, S_X, S_PW, S_PR = 64, 68, 72, 76, 80
S_N, S_FAST, S_LAY = 84, 86, 87
S_W7, S_W14 = 100, 101
ACT = "s[88:89]"
S_T = 90
V_XE, V_XO, V_A, V_A2, V_HW, V_HR, V_L16, V_PO, V_PO1 = 200, 201, 202, 203, 204, 205, 206, 207, 208
V_XD = 209
V_PWA, V_PWB = 216, 217
V_HW1, V_A3 = 218, 219
XP = 224
YV = 232
OFFA, OFFB = 248, 249
VN = 250
LA, LB = 0, 8192
HC_COPY = 4160; HC_CH = 8 * HC_COPY; L_U = 2 * HC_CH; U_CH = 512 + 4096; YS_CH = 4096 + 128
LY = 0
L_X = 0; SH_ = 448; L_RING = 57344; CHUNK = 28672
def slot_base(c):
    return CHUNK if c == 3 else L_RING + (c if c < 3 else c - 4) * CHUNK
SPIN_MAX = 0x100000
LDS_BYTES = 163840
L_FASTW = 163836 - 60

def sr(r): return f"s[{r}:{r+3}]"

def stamp(p, sid, layered=False):
    if not common.STAMPS[0]: return
    p("s_memrealtime s[96:97]")
    p("s_memtime s[98:99]")
    p("s_waitcnt lgkmcnt(0)")
    if layered:
        p(f"s_mul_i32 s97, s{S_LAY}, 10")
        p(f"s_add_u32 m0, s97, {sid}")
        p("s_nop 3")
        p("v_writelane_b32 v252, s96, m0")
        p("v_writelane_b32 v253, s98, m0")
    else:
        p(f"v_writelane_b32 v252, s96, {sid}")
        p(f"v_writelane_b32 v253, s98, {sid}")
    p.lgq = []

def stamp_flush(p):
    if not common.STAMPS[0]: return
    lab = p.uid("sf")
    p(f"s_cmp_eq_u32 s{S_W}, 0")
    p(f"s_cbranch_scc0 {lab}")
    p("v_lshlrev_b32 v1, 2, v0")
    p("s_lshl_b32 s9, s2, 9")
    p("v_add_u32 v1, s9, v1")
    p("buffer_store_dword v252, v1, s[92:95], 0 offen")
    p("buffer_store_dword v253, v1, s[92:95], 0 offen offset:256")
    if 'dbgst' in EXP:
        wg = [x for x in EXP if x.startswith('wg')]
        wg = int(wg[0][2:]) if wg else 0
        l2 = p.uid("sf2")
        p(f"s_cmp_eq_u32 s2, {wg}")
        p(f"s_cbranch_scc0 {l2}")
        p.srd(SA, P_DBG, 0, 256)
        sel = [0, 2, 3, 5, 7, 9, 12, 13, 14, 17, 22, 23, 24, 40]
        p("s_nop 4")
        p("v_readlane_b32 s12, v252, 0")
        for i, sid in enumerate(sel):
            p(f"v_readlane_b32 s9, v252, {sid}")
            p("s_nop 3")
            p("s_sub_u32 s9, s9, s12")
            if i == 0: p("s_mov_b32 s9, s12")
            p(f"v_writelane_b32 v1, s9, {i}")
        p("v_and_b32 v2, 63, v0")
        p("v_lshlrev_b32 v2, 2, v2")
        p("v_add_u32 v2, 8, v2")
        p("s_mov_b32 exec_lo, 0x3fff"); p("s_mov_b32 exec_hi, 0")
        p(f"buffer_store_dword v1, v2, {sr(SA)}, 0 offen")
        p("s_mov_b64 exec, -1")
        p.label(l2)
    p.label(lab)

def flag_store(p, table, idx_sreg, layer_off=False, cluster=False):
    lab = p.uid("sig")
    p(f"s_cmp_eq_u32 s{S_W}, 0")
    p(f"s_cbranch_scc0 {lab}")
    p(f"s_lshl_b32 s{S_T}, s{S_CL}, 7")
    p(f"s_lshl_b32 s{S_T+1}, s{S_MEM}, 3")
    p(f"s_add_u32 s{S_T}, s{S_T}, s{S_T+1}")
    p(f"s_add_u32 s{S_T}, s{S_T}, {table}")
    p(f"s_lshl_b32 s{S_T+1}, s{S_LAY}, 13")
    p(f"s_add_u32 s{S_T}, s{S_T}, s{S_T+1}")
    p(f"v_mov_b32 v{VN}, s{S_N}")
    p(f"v_mov_b32 v{VN+1}, s{S_N+1}")
    p(f"v_mov_b32 v1, s{S_T}")
    p("s_mov_b64 exec, 1")
    if cluster:
        l2 = p.uid("sigslow"); l3 = p.uid("sigdone")
        p(f"s_cmp_eq_u32 s{S_FAST}, 1")
        p(f"s_cbranch_scc0 {l2}")
        p(f"buffer_store_dwordx2 {v(VN,2)}, v1, {sr(S_FL)}, 0 offen")
        p(f"s_branch {l3}")
        p.label(l2)
        p("buffer_wbl2 sc1")
        p("s_waitcnt vmcnt(0)")
        p(f"buffer_store_dwordx2 {v(VN,2)}, v1, {sr(S_FL)}, 0 offen sc1")
        p.label(l3)
    else:
        p(f"buffer_store_dwordx2 {v(VN,2)}, v1, {sr(S_FL)}, 0 offen sc1")
    p("s_mov_b64 exec, -1")
    p.label(lab)

def flag_store_rep(p, table, idx_sreg):
    lab = p.uid("sigr")
    p(f"s_cmp_eq_u32 s{S_W}, 0")
    p(f"s_cbranch_scc0 {lab}")
    p(f"s_lshl_b32 s{S_T}, s{idx_sreg}, 3")
    p(f"s_add_u32 s{S_T}, s{S_T}, {table}")
    p(f"v_mov_b32 v{VN}, s{S_N}")
    p(f"v_mov_b32 v{VN+1}, s{S_N+1}")
    p("v_lshlrev_b32 v1, 11, v0")
    p(f"v_add_u32 v1, s{S_T}, v1")
    p("s_mov_b64 exec, 0xff")
    p(f"buffer_store_dwordx2 {v(VN,2)}, v1, {sr(S_FL)}, 0 offen sc1")
    p("s_mov_b64 exec, -1")
    p.label(lab)

def signal(p, table, idx_sreg, layer_off=False, cluster=False, upto=None):
    if upto: p.wait_vm(upto)
    else: p.wait_vm()
    p("s_barrier")
    if table in (FL_S1R, FL_S2R): flag_store_rep(p, table, idx_sreg)
    else: flag_store(p, table, idx_sreg, layer_off, cluster)

def cluster_sync(p, table, upto=None, before=None, sid=None):
    p("v_and_b32 v10, 7, v0")
    p(f"s_lshl_b32 s9, s{S_CL}, 7")
    p(f"s_lshl_b32 s10, s{S_LAY}, 13")
    p("s_add_u32 s9, s9, s10")
    p(f"s_add_u32 s9, s9, {table}")
    p("v_lshl_add_u32 v10, v10, 3, s9")
    p(f"s_lshl_b32 s10, s{S_MEM}, 3")
    p("s_add_u32 s9, s9, s10")
    p("v_mov_b32 v9, s9")
    p(f"v_mov_b32 v{VN}, s{S_N}")
    p(f"v_mov_b32 v{VN+1}, s{S_N+1}")
    if before: before()
    if upto: p.wait_vm(upto)
    else: p.wait_vm()
    p("s_barrier")
    skip = p.uid("css"); slow = p.uid("csl"); go = p.uid("csg"); lab = p.uid("csp"); done = p.uid("csd"); acq = p.uid("csa")
    p(f"s_cmp_eq_u32 s{S_W}, 0")
    p(f"s_cbranch_scc0 {skip}")
    p("s_mov_b64 exec, 1")
    p(f"s_cmp_eq_u32 s{S_FAST}, 1")
    p(f"s_cbranch_scc0 {slow}")
    p(f"buffer_store_dwordx2 {v(VN,2)}, v9, {sr(S_FL)}, 0 offen")
    p.label(go)
    if sid is not None: stamp(p, sid, True)
    p("s_mov_b64 exec, 0xff")
    p(f"s_mov_b32 s{S_T}, 0")
    p.label(lab)
    p(f"buffer_load_dwordx2 v[2:3], v10, {sr(S_FL)}, 0 offen sc1")
    p("s_waitcnt vmcnt(0)")
    p(f"v_cmp_eq_u64 vcc, {s(S_N,2)}, v[2:3]")
    p(f"s_add_u32 s{S_T}, s{S_T}, 1")
    p("s_nop 3")
    p("s_cmp_eq_u64 vcc, exec")
    p(f"s_cbranch_scc1 {done}")
    p(f"s_cmp_lt_u32 s{S_T}, {hex(SPIN_MAX)}")
    p(f"s_cbranch_scc1 {lab}")
    p.label(done)
    p("s_mov_b64 exec, -1")
    p(f"s_cmp_eq_u32 s{S_FAST}, 1")
    p(f"s_cbranch_scc1 {skip}")
    p("buffer_inv sc1")
    p("s_waitcnt vmcnt(0)")
    p.label(skip)
    p("s_barrier")
    p.vmq = []
    SLOWPATHS.append((slow, go))

SLOWPATHS = []
def emit_slowpaths(p):
    for slow, go in SLOWPATHS:
        p.label(slow)
        p("buffer_wbl2 sc1")
        p("s_waitcnt vmcnt(0)")
        p(f"buffer_store_dwordx2 {v(VN,2)}, v9, {sr(S_FL)}, 0 offen sc1")
        p(f"s_branch {go}")

def setexec(p, nl):
    m = (1 << nl) - 1
    lo, hi = m & 0xffffffff, m >> 32
    p(f"s_mov_b32 exec_lo, {hex(lo) if lo != 0xffffffff else -1}")
    p(f"s_mov_b32 exec_hi, {hex(hi) if hi != 0xffffffff else -1}")

def poll(p, offs, n_loads, masks, cluster=False, all_waves=False):
    lab = p.uid("poll"); done = p.uid("polld"); skip = p.uid("polls")
    if not all_waves:
        p(f"s_cmp_eq_u32 s{S_W}, 0")
        p(f"s_cbranch_scc0 {skip}")
    p(f"s_mov_b32 s{S_T}, 0")
    p.label(lab)
    for i in range(n_loads):
        setexec(p, masks[i])
        p(f"buffer_load_dwordx2 {v(2+2*i,2)}, v{offs[i]}, {sr(S_FL)}, 0 offen sc1")
    p("s_waitcnt vmcnt(0)")
    p("s_mov_b32 s9, 1")
    for i in range(n_loads):
        setexec(p, masks[i])
        p(f"v_cmp_eq_u64 vcc, {s(S_N,2)}, {v(2+2*i,2)}")
        p("s_nop 4")
        p("s_cmp_eq_u64 vcc, exec")
        p("s_cselect_b32 s9, s9, 0")
    p("s_mov_b64 exec, -1")
    p("s_cmp_eq_u32 s9, 1")
    p(f"s_cbranch_scc1 {done}")
    p(f"s_add_u32 s{S_T}, s{S_T}, 1")
    p(f"s_cmp_lt_u32 s{S_T}, {hex(SPIN_MAX)}")
    p(f"s_cbranch_scc0 {done}")
    if not cluster or 'nosleep' not in EXP: p("s_sleep 1")
    p(f"s_branch {lab}")
    p.label(done)
    if cluster:
        l2 = p.uid("acq")
        p(f"s_cmp_eq_u32 s{S_FAST}, 1")
        p(f"s_cbranch_scc1 {l2}")
        p("buffer_inv sc1")
        p("s_waitcnt vmcnt(0)")
        p.label(l2)
    p.label(skip)
    p("s_barrier")
    p.vmq = []

def get_nonce(p):
    lab = p.uid("non"); done = p.uid("nond")
    p(f"s_mov_b32 s{S_T}, 0")
    p.label(lab)
    p("v_mov_b32 v1, 0")
    p(f"buffer_load_dwordx2 v[2:3], v1, {sr(SF_)}, 0 offen sc1")
    p("s_waitcnt vmcnt(0)")
    p(f"v_readfirstlane_b32 s{S_N}, v2")
    p(f"v_readfirstlane_b32 s{S_N+1}, v3")
    p("s_nop 3")
    p(f"s_or_b32 s9, s{S_N}, s{S_N+1}")
    p("s_cmp_lg_u32 s9, 0")
    p(f"s_cbranch_scc1 {done}")
    p(f"s_add_u32 s{S_T}, s{S_T}, 1")
    p(f"s_cmp_lt_u32 s{S_T}, {hex(SPIN_MAX)}")
    p(f"s_cbranch_scc0 {done}")
    p("s_sleep 1")
    p(f"s_branch {lab}")
    p.label(done)
    p.vmq = []

def tlb_warm(p):
    if 'notlb' in EXP: return
    ent = [(P_K, None), (P_V, None), (P_SK, 0), (P_W1, 0), (P_W2, 0), (P_H, "h"), (P_Q, "q"), (P_DV, 0), (P_DBG, 0), (P_OUT, "q"),
           (P_WS, WS_KVT), (P_WS, WS_YB), (P_WS, WS_W1P), (P_WS, WS_W2P), (P_WS, WS_FLAGS), (P_WS, "pb0"), (P_WS, "pb1")]
    lab = p.uid("tw")
    p(f"s_cmp_eq_u32 s{S_W}, 0")
    p(f"s_cbranch_scc0 {lab}")
    p(f"v_mov_b32 v2, s{P_K}"); p(f"v_mov_b32 v3, s{P_K+1}")
    p(f"s_mul_i32 s9, s{S_RB}, {8*ROWB}")
    p("s_min_u32 s10, s2, 223"); p("s_lshl_b32 s10, s10, 13")
    p(f"s_mul_i32 s11, s{S_CL}, {8*64*ROWB}"); p(f"s_add_u32 s11, s11, {hex(WS_PB)}")
    for i, (ptr, off) in enumerate(ent):
        if off in (None, 0):
            lo, hi = ptr, ptr + 1
        else:
            if off == "q": src = "s9"
            elif off == "h": src = "s10"
            elif off == "pb0": src = "s11"
            elif off == "pb1":
                p(f"s_add_u32 s11, s11, {8*64*ROWB - 128}"); src = "s11"
            else: src = hex(off)
            p(f"s_add_u32 s12, s{ptr}, {src}"); p(f"s_addc_u32 s13, s{ptr+1}, 0")
            lo, hi = 12, 13
        p(f"v_writelane_b32 v2, s{lo}, {i}")
        p(f"v_writelane_b32 v3, s{hi}, {i}")
    setexec(p, len(ent))
    p("global_load_dword v254, v[2:3], off")
    p("s_mov_b64 exec, -1")
    p.label(lab)

def nonce_publish(p):
    lab = p.uid("nn")
    p("s_cmp_eq_u32 s2, 0")
    p(f"s_cbranch_scc0 {lab}")
    p(f"s_cmp_eq_u32 s{S_W}, 0")
    p(f"s_cbranch_scc0 {lab}")
    p.srd(SF_, P_DBG, 0, 256)
    p("s_memrealtime s[10:11]")
    p("s_waitcnt lgkmcnt(0)")
    p("s_lshl_b64 s[10:11], s[10:11], 4")
    p("s_or_b32 s11, s11, 0x40000000")
    p("v_mov_b32 v46, s10"); p("v_mov_b32 v47, s11"); p("v_mov_b32 v13, 0")
    p("s_mov_b64 exec, 1")
    p(f"buffer_store_dwordx2 v[46:47], v13, {sr(SF_)}, 0 offen sc1")
    p("s_mov_b64 exec, -1")
    p.label(lab)

S_RBK, S_CG = 12, 13
def prep_addr(p):
    p("s_min_u32 s14, s2, 223")
    p.div_const(S_RBK, 14, 7)
    p(f"s_mul_i32 s{S_CG}, s{S_RBK}, 7")
    p(f"s_sub_u32 s{S_CG}, s14, s{S_CG}")
    p("v_and_b32 v1, 15, v0")
    p("v_lshrrev_b32 v2, 4, v0")
    p(f"s_lshl_b32 s9, s{S_RBK}, 6")
    p("s_sub_u32 s9, s9, 3")
    p("v_lshl_add_u32 v3, v2, 2, s9")
    p(f"v_mul_i32_i24 v4, {ROWB}, v3")
    p(f"s_lshl_b32 s10, s{S_CG}, 7")
    p("v_lshl_add_u32 v5, v1, 3, s10")
    p("v_add_u32 v4, v4, v5")
    for i in range(1, 7):
        p(f"v_add_u32 v{5+i}, {ROWB*i}, v4")
    p("v_lshlrev_b32 v12, 2, v5")

def prep(p):
    SK_, SV_, SSK, SKVT, SSRC, SDST = SA, SB_, SC, SD, SE, S_W1
    T0 = 72
    off = lambda i: "v4" if i == 0 else f"v{5+i}"
    p.srd(SK_, P_K, 0, MAT)
    for i in range(7):
        p.vm(f"buffer_load_dwordx2 {v(16+2*i,2)}, {off(i)}, {sr(SK_)}, 0 offen", "k")
    p.srd(SV_, P_V, 0, MAT)
    for i in range(4):
        p.vm(f"buffer_load_dwordx2 {v(30+2*i,2)}, {off(i+3)}, {sr(SV_)}, 0 offen", "k")
    p.srd(SSK, P_SK, 0, D * 8)
    p.vm(f"buffer_load_dwordx4 v[38:41], v12, {sr(SSK)}, 0 offen", "k")
    p.vm(f"buffer_load_dwordx4 v[42:45], v12, {sr(SSK)}, 0 offen offset:16", "k")
    nonce_publish(p)
    p.srd(SKVT, P_WS, WS_KVT, MAT)
    p.srd(S_FL, P_WS, WS_FLAGS, FLAGS_BYTES)
    if 'pp' in EXP: stamp(p, 34)
    S_J, S_R, S_ISW2, S_STR = T0, T0 + 1, T0 + 2, T0 + 3
    p("s_cmp_ge_u32 s2, 112")
    p(f"s_cselect_b32 s{S_ISW2}, 1, 0")
    p("s_cselect_b32 s9, 112, 0")
    p("s_sub_u32 s9, s2, s9")
    p.div_const(S_J, 9, 14)
    p(f"s_mul_i32 s10, s{S_J}, 14")
    p(f"s_sub_u32 s{S_R}, s9, s10")
    p(f"s_mul_i32 s10, s{S_R}, {32*3584}")
    p(f"s_mul_i32 s11, s{S_J}, 448")
    p("s_add_u32 s10, s10, s11")
    p(f"s_lshr_b32 s11, s{S_R}, 1")
    p(f"s_mul_i32 s11, s11, {32*896}")
    p(f"s_mul_i32 s14, s{S_J}, {224*896}")
    p("s_add_u32 s11, s11, s14")
    p(f"s_and_b32 s14, s{S_R}, 1")
    p("s_mul_i32 s14, s14, 448")
    p("s_add_u32 s11, s11, s14")
    p(f"s_cmp_eq_u32 s{S_ISW2}, 1")
    p("s_cselect_b32 s10, s11, s10")
    p.csel(S_STR, 896, 3584)
    p(f"s_cselect_b32 s{SSRC}, s{P_W2}, s{P_W1}")
    p(f"s_cselect_b32 s{SSRC+1}, s{P_W2+1}, s{P_W1+1}")
    p(f"s_mov_b32 s{SSRC+2}, {hex(D*F*2)}")
    p(f"s_mov_b32 s{SSRC+3}, 0x20000")
    for m in range(4):
        p(f"v_add_u32 v13, {256*m}, v0")
        p("v_mul_u32_u24 v14, 2341, v13")
        p("v_lshrrev_b32 v14, 16, v14")
        p("v_mul_u32_u24 v15, 28, v14")
        p("v_sub_u32 v15, v13, v15")
        p(f"v_mul_lo_u32 v14, v14, s{S_STR}")
        p("v_lshl_add_u32 v14, v15, 4, v14")
        p("v_add_u32 v14, s10, v14")
        if m == 3:
            p("v_cmp_gt_u32 vcc, 896, v13")
            p("v_cndmask_b32 v14, -1, v14, vcc")
        p.vm(f"buffer_load_dwordx4 {v(48+4*m,4)}, v14, {sr(SSRC)}, 0 offen", "w")
    if 'pp' in EXP: stamp(p, 35)
    p("v_and_b32 v46, 63, v0")
    p("v_lshrrev_b32 v47, 4, v46")
    p("v_bfe_u32 v14, v46, 2, 2")
    p("v_and_b32 v15, 3, v46")
    p("v_lshl_add_u32 v47, v47, 3, v14")
    p("v_mul_u32_u24 v47, 448, v47")
    p("v_lshlrev_b32 v46, 4, v46")
    p(f"s_cmp_eq_u32 s{S_ISW2}, 1")
    p.csel(9, hex(WS_W2P), hex(WS_W1P))
    p(f"s_add_u32 s{SDST}, s{P_WS}, s9")
    p(f"s_addc_u32 s{SDST+1}, s{P_WS+1}, 0")
    p(f"s_mov_b32 s{SDST+2}, {hex(W1P_BYTES)}")
    p(f"s_mov_b32 s{SDST+3}, 0x20000")
    t = [76, 77, 78, 79]
    for m in range(4):
        ST, DST = 14, 80 + m
        p(f"s_add_u32 s{ST}, s{S_W}, {4*m}")
        p(f"s_cmp_ge_u32 s{ST}, 7")
        p(f"s_cselect_b32 s{t[0]}, 1, 0")
        p(f"s_mul_i32 s{t[1]}, s{t[0]}, 7")
        p(f"s_sub_u32 s{t[1]}, s{ST}, s{t[1]}")
        p(f"s_mul_i32 s{DST}, s{S_J}, 7")
        p(f"s_add_u32 s{DST}, s{DST}, s{t[1]}")
        p(f"s_lshl_b32 s{DST}, s{DST}, 1")
        p(f"s_add_u32 s{DST}, s{DST}, s{t[0]}")
        p(f"s_mul_i32 s{DST}, s{DST}, 14")
        p(f"s_add_u32 s{DST}, s{DST}, s{S_R}")
        p(f"s_and_b32 s9, s{ST}, 1")
        p(f"s_lshr_b32 s10, s{ST}, 1")
        p(f"s_and_b32 s11, s{S_R}, 1")
        p("s_mul_i32 s11, s11, 7")
        p("s_add_u32 s11, s11, s10")
        p(f"s_lshr_b32 s15, s{S_R}, 1")
        p("s_mul_i32 s15, s15, 7")
        p(f"s_mul_i32 s{t[0]}, s{S_J}, 196")
        p(f"s_add_u32 s15, s15, s{t[0]}")
        p(f"s_and_b32 s{t[0]}, s11, 3")
        p(f"s_mul_i32 s{t[0]}, s{t[0]}, 49")
        p(f"s_lshr_b32 s{t[1]}, s11, 2")
        p(f"s_lshl_b32 s{t[1]}, s{t[1]}, 1")
        p(f"s_add_u32 s{t[1]}, s{t[1]}, s9")
        p(f"s_add_u32 s{t[0]}, s{t[0]}, s{t[1]}")
        p(f"s_lshl_b32 s10, s10, 6")
        p(f"s_lshl_b32 s{t[1]}, s9, 3")
        p(f"s_add_u32 s{t[1]}, s{t[1]}, s10")
        p(f"s_sub_u32 s{t[2]}, s11, 12")
        p(f"s_lshl_b32 s{t[2]}, s{t[2]}, 1")
        p(f"s_add_u32 s{t[2]}, s{t[2]}, s9")
        p(f"s_mul_i32 s{t[2]}, s{t[2]}, 49")
        p(f"s_add_u32 s{t[2]}, s{t[2]}, 6")
        p(f"s_lshl_b32 s{t[3]}, s9, 5")
        p(f"s_add_u32 s{t[3]}, s{t[3]}, s10")
        p("s_cmp_lt_u32 s11, 12")
        p(f"s_cselect_b32 s{t[0]}, s{t[0]}, s{t[2]}")
        p(f"s_cselect_b32 s{t[1]}, s{t[1]}, s{t[3]}")
        p(f"s_cselect_b32 s{t[2]}, 4, 3")
        p(f"s_add_u32 s{t[0]}, s{t[0]}, s15")
        p(f"s_lshl_b32 s{t[3]}, s{ST}, 5")
        p(f"s_cmp_eq_u32 s{S_ISW2}, 1")
        p(f"s_cselect_b32 s{DST}, s{t[0]}, s{DST}")
        p(f"s_cselect_b32 s{t[1]}, s{t[1]}, s{t[3]}")
        p(f"s_cselect_b32 s{t[2]}, s{t[2]}, 3")
        p(f"s_lshl_b32 s{DST}, s{DST}, 10")
        p(f"v_lshlrev_b32 v{144+m}, s{t[2]}, v15")
        p(f"v_add3_u32 v{144+m}, v{144+m}, v47, s{t[1]}")
    mlp_setup(p)
    if 'pp' in EXP: stamp(p, 30)
    p.wait_vm("w")
    if 'pp' in EXP: stamp(p, 31)
    early_loads(p)
    p("v_lshlrev_b32 v14, 4, v0")
    for m in range(3):
        p.lg(f"ds_write_b128 v14, {v(48+4*m,4)} offset:{LB+4096*m}")
    lab = p.uid("skip3")
    p(f"s_cmp_ge_u32 s{S_W}, 2")
    p(f"s_cbranch_scc1 {lab}")
    p(f"ds_write_b128 v14, {v(60,4)} offset:{LB+4096*3}")
    p.label(lab)
    p.wait_lg()
    p("s_barrier")
    for m in range(4):
        p.lg(f"ds_read_b64_tr_b16 {v(48+4*m,2)}, v{144+m} offset:{LB}", f"t{m}")
        p.lg(f"ds_read_b64_tr_b16 {v(48+4*m+2,2)}, v{144+m} offset:{LB+4*448}", f"t{m}")
    for m in range(3):
        p.wait_lg(f"t{m}")
        p.vm(f"buffer_store_dwordx4 {v(48+4*m,4)}, v46, {sr(SDST)}, s{80+m} offen sc1", "wst")
    lab = p.uid("pk")
    p.wait_lg()
    p(f"s_cmp_ge_u32 s{S_W}, 2")
    p(f"s_cbranch_scc1 {lab}")
    p(f"buffer_store_dwordx4 {v(60,4)}, v46, {sr(SDST)}, s83 offen sc1")
    p.label(lab)
    p.srd(SF_, P_DBG, 0, 256)
    p("v_mov_b32 v47, 0")
    p.vm(f"buffer_load_dwordx2 v[150:151], v47, {sr(SF_)}, 0 offen sc1", "nonce")
    if 'pp' in EXP: stamp(p, 32)
    KF, SF, VF, AC, OP = 64, 92, 108, 124, 140
    p("v_mov_b32 v15, 0xffff0000")
    for i in range(7):
        for d in range(2):
            p(f"v_lshlrev_b32 v{KF+4*i+2*d}, 16, v{16+2*i+d}")
            p(f"v_and_b32 v{KF+4*i+2*d+1}, v15, v{16+2*i+d}")
    for e in range(4):
        for j in range(4):
            src = 38 + 2*e + (j >> 1)
            if j & 1: p(f"v_and_b32 v{SF+4*j+e}, v15, v{src}")
            else: p(f"v_lshlrev_b32 v{SF+4*j+e}, 16, v{src}")
    for i in range(4):
        for d in range(2):
            p(f"v_lshlrev_b32 v{VF+4*i+2*d}, 16, v{30+2*i+d}")
            p(f"v_and_b32 v{VF+4*i+2*d+1}, v15, v{30+2*i+d}")
    for j in range(4):
        for r in range(4):
            for e in (0, 2):
                kf = v(KF+4*(r+3-j)+e, 2); sf = v(SF+4*j+e, 2); ac = v(AC+4*r+e, 2)
                if j == 0: p(f"v_pk_mul_f32 {ac}, {kf}, {sf}")
                else: p(f"v_pk_fma_f32 {ac}, {kf}, {sf}, {ac}")
    for r in range(4):
        for e in (0, 2):
            p(f"v_pk_mul_f32 {v(AC+4*r+e,2)}, {v(AC+4*r+e,2)}, {v(VF+4*r+e,2)}")
    for e in range(4):
        p(f"v_cvt_pk_bf16_f32 v{OP+2*e}, v{AC+e}, v{AC+4+e}")
        p(f"v_cvt_pk_bf16_f32 v{OP+2*e+1}, v{AC+8+e}, v{AC+12+e}")
    if 'pp' in EXP: stamp(p, 33)
    p("v_xor_b32 v13, v1, v2")
    p("v_lshlrev_b32 v13, 3, v13")
    p("v_lshl_add_u32 v13, v1, 9, v13")
    for e in range(4):
        p.lg(f"ds_write_b64 v13, {v(OP+2*e,2)} offset:{LA+128*e}")
    p.wait_lg()
    p("s_barrier")
    p("v_lshrrev_b32 v1, 3, v0")
    p("v_and_b32 v2, 7, v0")
    p("v_lshlrev_b32 v3, 1, v2")
    p(f"s_lshl_b32 s9, s{S_CG}, 6")
    p(f"s_lshl_b32 s10, s{S_RBK}, 7")
    for pi in range(2):
        p(f"v_add_u32 v4, {32*pi}, v1")
        p("v_lshrrev_b32 v5, 2, v4")
        p("v_xor_b32 v6, v3, v5")
        p("v_xor_b32 v7, 1, v6")
        p("v_lshlrev_b32 v8, 7, v4")
        p("v_lshl_add_u32 v6, v6, 3, v8")
        p("v_lshl_add_u32 v7, v7, 3, v8")
        p.lg(f"ds_read_b64 {v(16+4*pi,2)}, v6 offset:{LA}", f"a{pi}")
        p.lg(f"ds_read_b64 {v(18+4*pi,2)}, v7 offset:{LA}", f"a{pi}")
        p("v_add_u32 v8, s9, v4")
        p("v_lshlrev_b32 v8, 12, v8")
        p("v_lshl_add_u32 v8, v2, 4, v8")
        p(f"v_add_u32 v{24+pi}, s10, v8")
    for pi in range(2):
        p.wait_lg(f"a{pi}")
        p.vm(f"buffer_store_dwordx4 {v(16+4*pi,4)}, v{24+pi}, {sr(SKVT)}, 0 offen sc1", "kvst")

HW = 160
def code_prefetch(p):
    if 'nocode' in EXP: return
    p("s_getpc_b64 s[90:91]")
    lab = p.uid("K_pc")
    p.label(lab)
    p("v_lshlrev_b32 v180, 7, v0")
    p(f"v_cmp_gt_u32 vcc, (K_end - {lab}), v180")
    p("s_and_saveexec_b64 s[10:11], vcc")
    p.vm("global_load_dword v255, v180, s[90:91]", "code")
    p("s_mov_b64 exec, s[10:11]")

def q_loads(p):
    p.srd(SF_, P_Q, 0, MAT)
    p.vm(f"buffer_load_dwordx4 {v(XP,4)}, v{OFFA}, {sr(SF_)}, 0 offen", "q")
    p.vm(f"buffer_load_dwordx4 {v(XP+4,4)}, v{OFFB}, {sr(SF_)}, 0 offen", "q")

def early_loads(p):
    SH = SF_
    p("s_lshl_b32 s9, s2, 13")
    p(f"s_add_u32 s{SH}, s{P_H}, s9"); p(f"s_addc_u32 s{SH+1}, s{P_H+1}, 0")
    p(f"s_mov_b32 s{SH+2}, 8192"); p(f"s_mov_b32 s{SH+3}, 0x20000")
    p("v_sub_u32 v176, 255, v0")
    p("v_lshlrev_b32 v176, 4, v176")
    p("v_subrev_u32 v177, 16, v176")
    for ch in range(2):
        p(f"v_add_u32 v178, {4096*ch}, v177")
        p(f"v_add_u32 v179, {4096*ch}, v176")
        p.vm(f"buffer_load_dwordx4 {v(HW+8*ch,4)}, v178, {sr(SH)}, 0 offen", "h")
        p.vm(f"buffer_load_dwordx4 {v(HW+4+8*ch,4)}, v179, {sr(SH)}, 0 offen", "h")
    if 'qlate' not in EXP: q_loads(p)

def hbuild(p):
    p("v_mov_b32 v5, 0xffff")
    p("v_cmp_ne_u32 vcc, 255, v0")
    p("v_lshlrev_b32 v6, 4, v0")
    E1, E2, O1, O2 = 32, 40, 46, 54
    for ch in range(2):
        W = HW + 8 * ch
        for d in range(4):
            p(f"v_cndmask_b32 v{W+d}, 0, v{W+d}, vcc")
        def o(dst, sidx):
            if sidx % 2 == 0:
                pz = (14 - sidx) // 2
                p(f"v_alignbit_b32 v{dst}, v{W+pz}, v{W+pz}, 16")
            else:
                p(f"v_bfi_b32 v{dst}, v5, v{W+(15-sidx)//2}, v{W+(13-sidx)//2}")
        for n in range(7): o(E1 + n, 2 * n)
        for n in range(6): o(E2 + n, 2 * n + 2)
        for n in range(7): o(O1 + n, 2 * n + 1)
        for n in range(6): o(O2 + n, 2 * n + 3)
        src = {0: E1, 4: E1 + 2, 2: E2, 6: E2 + 2, 1: O1, 5: O1 + 2, 3: O2, 7: O2 + 2}
        for c in range(8):
            p.lg(f"ds_write_b128 v6, {v(src[c],4)} offset:{ch*HC_CH + c*HC_COPY}")
        p("s_nop 1")
    for r in range(4): p(f"v_mov_b32 v{60+r}, 0")
    p("v_and_b32 v7, 15, v0")
    p(f"v_mul_u32_u24 v7, {HC_COPY}, v7")
    p("v_add_u32 v7, 4096, v7")
    p("v_and_b32 v8, 31, v0")
    p("v_lshlrev_b32 v8, 4, v8")
    p("v_bfe_u32 v9, v0, 5, 1")
    p(f"v_mul_u32_u24 v9, {U_CH}, v9")
    p(f"s_mov_b32 s9, {L_U}")
    p("v_add3_u32 v8, v8, v9, s9")
    p.lg(f"ds_write_b128 v7, {v(60,4)}")
    p.lg(f"ds_write_b128 v8, {v(60,4)}")

_w2 = [x for x in EXP if x.startswith('w2_')]
W20, W2A = (int(_w2[0].split('_')[1]), int(_w2[0].split('_')[2])) if _w2 else (12, 49)
W2B = 49
def w2_items(SW2):
    G = []
    for f in range(49):
        it = []
        base = f - f % 4
        if f % 4 == 0 or f in (W20, W2A, W2B): it.append((f"s_mov_b32 s15, {1024*base}", "", None))
        it.append((f"buffer_load_dwordx4 {a(4*f,4)}, v{V_L16}, {sr(SW2)}, s15 offen offset:{1024*(f%4)} {'sc1 nt' if 'wnt2' in EXP else 'sc1'}", "vm", "w2"))
        G.append(it)
    return G

def load_w2(p, SW2):
    for f in range(49):
        if f % 4 == 0: p(f"s_mov_b32 s9, {1024*f}")
        p.vm(f"buffer_load_dwordx4 {a(4*f,4)}, v{V_L16}, {sr(SW2)}, s9 offen offset:{1024*(f%4)} sc1", "w2")

def conv_main(p):
    ACC, FA, FB = 72, 96, 16
    fb = lambda buf, m: (16 + 28 * buf + 4 * m) if m < 7 else (160 + 4 * buf)
    p("v_and_b32 v1, 63, v0")
    p("v_and_b32 v2, 15, v1")
    p("v_lshrrev_b32 v3, 4, v1")
    p("v_and_b32 v4, 7, v2")
    p("v_sub_u32 v4, 7, v4")
    p(f"v_mul_u32_u24 v4, {HC_COPY}, v4")
    p("v_lshrrev_b32 v5, 3, v2")
    p("v_sub_u32 v5, v3, v5")
    p("v_add_u32 v5, 1, v5")
    p("v_lshl_add_u32 v4, v5, 4, v4")
    p(f"s_mul_i32 s9, s{S_B}, {HC_CH}")
    p("v_add_u32 v12, s9, v4")
    p(f"s_mul_i32 s9, s{S_B}, {U_CH}")
    p(f"s_add_u32 s9, s9, {L_U + 512 - 32 - 64*7}")
    p("v_lshlrev_b32 v5, 5, v2")
    p("v_lshl_add_u32 v5, v3, 4, v5")
    p("v_add_u32 v13, s9, v5")
    set1 = p.uid("cset1"); join = p.uid("cjoin")
    p(f"s_cmp_eq_u32 s{S_A}, 1")
    p(f"s_cbranch_scc1 {set1}")
    for st, tiles in ((0, (0, 3, 4, 7)), (1, (1, 2, 5, 6))):
        if st == 1: p.label(set1)
        mx = max(tiles)
        def reads(rho, buf):
            L = []
            for m in range(mx + 1):
                L.append((f"ds_read_b128 {v(FA+32*buf+4*m,4)}, v12 offset:{512*(7-m)+64*(7-rho)}", "lg", f"r{rho}_{m}"))
                L.append((f"ds_read_b128 {v(fb(buf,m),4)}, v13 offset:{512*m+64*(7-rho)}", "lg", f"r{rho}_{m}"))
            return L
        saved_vm = list(p.vmq)
        w2 = w2_items(SE)[W20:W2A] if 'now2' not in EXP else []
        for it in reads(0, 0): emit(p, it)
        first = set()
        for rho in range(8):
            buf = rho & 1
            nxt = reads(rho + 1, buf ^ 1) if rho < 7 else []
            mf = sorted([(max(mu, nt - mu), ti, nt, mu) for ti, nt in enumerate(tiles) for mu in range(nt + 1)])
            M = []; seen = -1
            for (mm, ti, nt, mu) in mf:
                c = v(ACC+4*ti,4) if ti in first else "0"
                first.add(ti)
                t = f"v_mfma_f32_16x16x32_bf16 {v(ACC+4*ti,4)}, {v(FA+32*buf+4*mu,4)}, {v(fb(buf,nt-mu),4)}, {c}"
                w = []
                if mm > seen: w.append((None, "wlg", f"r{rho}_{mm}")); seen = mm
                M.append((t, w))
            N = {}
            for i, it in enumerate(nxt): N.setdefault(i, []).append(it)
            slots = [3, 6, 9, 12, 15, 17]
            per = -(-(W2A - W20) // 7) if 'w2early' not in EXP else 6
            slots = {6: slots, 5: [3, 7, 10, 13, 16], 4: [4, 8, 12, 16], 3: [5, 10, 15], 2: [6, 13], 1: [9]}[per]
            for q_ in range(per if rho < 7 else 0):
                if w2: N.setdefault(slots[q_], []).extend(w2.pop(0))
            schedule(p, M, [], N)
        assert not w2
        p.vmq = saved_vm + ["w2"]
        p("s_barrier")
        p(f"s_mul_i32 s9, s{S_B}, {U_CH}")
        p(f"s_add_u32 s9, s9, {L_U + 512}")
        p("v_lshlrev_b32 v5, 5, v2")
        p("v_lshl_add_u32 v5, v3, 3, v5")
        p("v_add_u32 v6, s9, v5")
        p(f"s_mul_i32 s9, s{S_B}, {YS_CH}")
        p("v_add_u32 v7, s9, v5")
        for ti, nt in enumerate(tiles):
            p.lg(f"ds_read_b64 {v(FA+2*ti,2)}, v6 offset:{512*nt}", f"u{ti}")
        p("v_mov_b32 v8, 0xffff0000")
        for ti, nt in enumerate(tiles):
            p.wait_lg(f"u{ti}")
            u = FA + 2 * ti; t = 16 + 4 * ti
            p(f"v_lshlrev_b32 v{t}, 16, v{u}")
            p(f"v_and_b32 v{t+1}, v8, v{u}")
            p(f"v_lshlrev_b32 v{t+2}, 16, v{u+1}")
            p(f"v_and_b32 v{t+3}, v8, v{u+1}")
            for r in range(4):
                p(f"v_fma_f32 v{t+r}, v{t+r}, s14, v{ACC+4*ti+r}")
            p(f"v_cvt_pk_bf16_f32 v{t}, v{t}, v{t+1}")
            p(f"v_cvt_pk_bf16_f32 v{t+1}, v{t+2}, v{t+3}")
            p.lg(f"ds_write_b64 v7, {v(t,2)} offset:{512*nt}")
        p.wait_lg()
        if st == 0: p(f"s_branch {join}")
    p.label(join)
    p("s_barrier")

def conv_out(p, SY):
    p("v_and_b32 v1, 3, v0")
    p("v_lshrrev_b32 v2, 2, v0")
    p("v_lshrrev_b32 v3, 1, v1")
    p("v_and_b32 v4, 1, v1")
    p(f"v_mul_u32_u24 v3, {YS_CH}, v3")
    p("v_lshl_add_u32 v3, v4, 4, v3")
    p("v_lshl_add_u32 v3, v2, 5, v3")
    p.lg("ds_read_b128 v[16:19], v3", "y0")
    p.lg(f"ds_read_b128 v[20:23], v3 offset:{64*32}", "y1")
    p(f"v_mul_u32_u24 v5, {D*32}, v2")
    p("v_lshl_add_u32 v5, v1, 4, v5")
    p("s_lshl_b32 s9, s2, 6")
    p("v_add_u32 v5, s9, v5")
    p(f"v_add_u32 v6, {64*D*32}, v5")
    p.wait_lg("y0")
    p.vm(f"buffer_store_dwordx4 v[16:19], v5, {sr(SY)}, 0 offen sc1", "yst")
    p.wait_lg("y1")
    p.vm(f"buffer_store_dwordx4 v[20:23], v6, {sr(SY)}, 0 offen sc1", "yst")

X, T, PK, TMP = 16, 32, 64, 72
YT = 96
def row_setup(p):
    p("v_and_b32 v181, 31, v0")
    p("v_lshrrev_b32 v182, 5, v0")
    p(f"v_cmp_gt_u32 {ACT}, 28, v181")
    p(f"v_mul_u32_u24 v183, {ROWB}, v182")
    p("v_lshl_add_u32 v183, v181, 4, v183")
    p(f"s_mul_i32 s9, s{S_RB}, {8*ROWB}")
    p("v_add_u32 v183, s9, v183")
    p(f"v_cndmask_b32 v{OFFA}, -1, v183, {ACT}")
    p("v_add_u32 v183, 448, v183")
    p(f"v_cndmask_b32 v{OFFB}, -1, v183, {ACT}")

def unpack(p, dst, src, n):
    for i in range(n):
        p(f"v_lshlrev_b32 v{dst+2*i}, 16, v{src+i}")
        p(f"v_and_b32 v{dst+2*i+1}, v7, v{src+i}")
def pack(p, dst, src, n):
    for i in range(n):
        p(f"v_cvt_pk_bf16_f32 v{dst+i}, v{src+2*i}, v{src+2*i+1}")
def allreduce32(p, r, t):
    for m in ("quad_perm:[1,0,3,2]", "quad_perm:[2,3,0,1]", "row_half_mirror", "row_mirror"):
        p(f"v_add_f32_dpp v{r}, v{r}, v{r} {m} row_mask:0xf bank_mask:0xf")
    p(f"v_mov_b32 v{t}, v{r}")
    p(f"v_permlane16_swap_b32 v{r}, v{t}")
    p(f"v_add_f32 v{r}, v{r}, v{t}")
def sum16(p, dst, src):
    p(f"v_pk_add_f32 {v(TMP,2)}, {v(src,2)}, {v(src+2,2)}")
    p(f"v_pk_add_f32 {v(TMP+2,2)}, {v(src+4,2)}, {v(src+6,2)}")
    p(f"v_pk_add_f32 {v(TMP+4,2)}, {v(src+8,2)}, {v(src+10,2)}")
    p(f"v_pk_add_f32 {v(TMP+6,2)}, {v(src+12,2)}, {v(src+14,2)}")
    p(f"v_pk_add_f32 {v(TMP,2)}, {v(TMP,2)}, {v(TMP+2,2)}")
    p(f"v_pk_add_f32 {v(TMP+4,2)}, {v(TMP+4,2)}, {v(TMP+6,2)}")
    p(f"v_pk_add_f32 {v(TMP,2)}, {v(TMP,2)}, {v(TMP+4,2)}")
    p(f"v_add_f32 v{dst}, v{TMP}, v{TMP+1}")
    p(f"v_cndmask_b32 v{dst}, 0, v{dst}, {ACT}")
def layernorm(p, src, dst, scale=None):
    M, V_ = TMP + 8, TMP + 10
    sum16(p, M, src)
    allreduce32(p, M, TMP + 9)
    p(f"v_mul_f32 v{M}, {fbits(-1.0/D)}, v{M}")
    p(f"v_mov_b32 v{M+1}, v{M}")
    for i in range(0, 16, 2):
        p(f"v_pk_add_f32 {v(dst+i,2)}, {v(src+i,2)}, {v(M,2)}")
    p(f"v_pk_mul_f32 {v(TMP,2)}, {v(dst,2)}, {v(dst,2)}")
    p(f"v_pk_mul_f32 {v(TMP+2,2)}, {v(dst+2,2)}, {v(dst+2,2)}")
    for i in range(4, 16, 4):
        p(f"v_pk_fma_f32 {v(TMP,2)}, {v(dst+i,2)}, {v(dst+i,2)}, {v(TMP,2)}")
        p(f"v_pk_fma_f32 {v(TMP+2,2)}, {v(dst+i+2,2)}, {v(dst+i+2,2)}, {v(TMP+2,2)}")
    p(f"v_pk_add_f32 {v(TMP,2)}, {v(TMP,2)}, {v(TMP+2,2)}")
    p(f"v_add_f32 v{V_}, v{TMP}, v{TMP+1}")
    p(f"v_cndmask_b32 v{V_}, 0, v{V_}, {ACT}")
    allreduce32(p, V_, TMP + 11)
    p(f"v_mov_b32 v{V_+1}, {fbits(1e-5)}")
    p(f"v_fmac_f32 v{V_+1}, {fbits(1.0/D)}, v{V_}")
    p(f"v_rsq_f32 v{V_}, v{V_+1}")
    if scale is not None: p(f"v_mul_f32 v{V_}, {fbits(scale)}, v{V_}")
    else: p("s_nop 0")
    p(f"v_mov_b32 v{V_+1}, v{V_}")
    for i in range(0, 16, 2):
        p(f"v_pk_mul_f32 {v(dst+i,2)}, {v(dst+i,2)}, {v(V_,2)}")

def y_load(p, SY):
    p(f"s_lshr_b32 s9, s{S_RB}, 1")
    p(f"s_mul_i32 s9, s9, {D*32}")
    p(f"s_and_b32 s10, s{S_RB}, 1")
    p("s_lshl_b32 s10, s10, 4")
    p("s_add_u32 s9, s9, s10")
    p("v_lshlrev_b32 v3, 5, v0")
    p("v_add_u32 v3, s9, v3")
    p(f"v_add_u32 v4, {256*32}, v3")
    p("v_cmp_gt_u32 vcc, 192, v0")
    p("v_cndmask_b32 v4, -1, v4, vcc")
    p.vm(f"buffer_load_dwordx4 {v(YT,4)}, v3, {sr(SY)}, 0 offen sc1", "y")
    p.vm(f"buffer_load_dwordx4 {v(YT+4,4)}, v4, {sr(SY)}, 0 offen sc1", "y")

def y_transpose(p):
    p("v_lshlrev_b32 v3, 2, v0")
    p.wait_vm("y")
    for wq in range(4):
        p.lg(f"ds_write_b32 v3, v{YT+wq} offset:{LY+2048*wq}")
        p.lg(f"ds_write_b32 v3, v{YT+4+wq} offset:{LY+2048*wq+1024}")
    p.wait_lg()
    p("s_barrier")
    p("v_and_b32 v1, 31, v0")
    p("v_lshrrev_b32 v4, 6, v0")
    p("v_lshlrev_b32 v4, 11, v4")
    p("v_lshl_add_u32 v4, v1, 5, v4")
    for k in range(2):
        p.lg(f"ds_read_b128 {v(YT+8*k,4)}, v4 offset:{LY+896*k}")
        p.lg(f"ds_read_b128 {v(YT+8*k+4,4)}, v4 offset:{LY+896*k+16}")
    p("v_bfe_u32 v5, v0, 5, 1")
    p("v_mov_b32 v6, 0x01000c0c")
    p("v_mov_b32 v3, 0x03020c0c")
    p("v_cmp_eq_u32 vcc, 1, v5")
    p("v_cndmask_b32 v6, v6, v3, vcc")
    p.wait_lg()
    for i in range(16):
        p(f"v_perm_b32 v{YV+i}, v{YT+i}, v{YT+i}, v6")

def poll_s2(p):
    lab = p.uid("s2"); done = p.uid("s2d"); skip = p.uid("s2s")
    p("v_and_b32 v1, 63, v0")
    p("s_and_b32 s9, s2, 7"); p("s_lshl_b32 s9, s9, 11"); p(f"s_add_u32 s9, s9, {FL_S2R}")
    for i in range(4):
        p(f"v_lshl_add_u32 v{12+i}, v1, 3, s9")
        if i: p(f"v_add_u32 v{12+i}, {512*i}, v{12+i}")
    p("v_and_b32 v48, 7, v0")
    p(f"s_lshl_b32 s9, s{S_CL}, 6")
    p(f"s_add_u32 s9, s9, {FL_XCC}")
    p("v_lshl_add_u32 v48, v48, 3, s9")
    p(f"s_cmp_eq_u32 s{S_W}, 0")
    p(f"s_cbranch_scc0 {skip}")
    if 's2st' in EXP:
        p("s_waitcnt vmcnt(0)"); stamp(p, 41)
    p(f"s_mov_b32 s{S_T}, 0")
    p.label(lab)
    masks = [64, 64, 64, 32]
    for i in range(4):
        setexec(p, masks[i])
        p(f"buffer_load_dwordx2 {v(2+2*i,2)}, v{12+i}, {sr(S_FL)}, 0 offen sc1")
    p("s_mov_b64 exec, -1")
    p(f"buffer_load_dwordx2 v[10:11], v48, {sr(S_FL)}, 0 offen sc1")
    p("s_waitcnt vmcnt(0)")
    p(f"v_subrev_u32 v10, s{S_N}, v10")
    p(f"v_cmp_eq_u32 vcc, s{S_N+1}, v11")
    p("v_cmp_gt_u32 s[10:11], 16, v10")
    p("s_nop 4")
    p("s_and_b64 vcc, vcc, s[10:11]")
    p("s_cmp_eq_u64 vcc, exec")
    p("s_cselect_b32 s9, 1, 0")
    for i in range(4):
        setexec(p, masks[i])
        p(f"v_cmp_eq_u64 vcc, {s(S_N,2)}, {v(2+2*i,2)}")
        p("s_nop 4")
        p("s_cmp_eq_u64 vcc, exec")
        p("s_cselect_b32 s9, s9, 0")
    p("s_mov_b64 exec, -1")
    p("s_cmp_eq_u32 s9, 1")
    p(f"s_cbranch_scc1 {done}")
    p(f"s_add_u32 s{S_T}, s{S_T}, 1")
    p(f"s_cmp_lt_u32 s{S_T}, {hex(SPIN_MAX)}")
    p(f"s_cbranch_scc0 {done}")
    p("s_sleep 1")
    p(f"s_branch {lab}")
    p.label(done)
    if 's2st' in EXP:
        p(f"v_writelane_b32 v253, s{S_T}, 42"); p(f"v_writelane_b32 v252, s{S_T}, 43"); p(f"v_writelane_b32 v253, s{S_T}, 43")
    p("s_getreg_b32 s9, hwreg(HW_REG_XCC_ID, 0, 4)")
    p("v_cmp_eq_u32 vcc, s9, v10")
    p("s_nop 4")
    p("s_cmp_eq_u64 vcc, exec")
    p("s_cselect_b32 s9, 1, 0")
    if FORCE_SLOW: p("s_mov_b32 s9, 0")
    p("v_mov_b32 v2, s9")
    p(f"v_mov_b32 v3, {L_FASTW}")
    p("ds_write_b32 v3, v2")
    p("s_waitcnt lgkmcnt(0)")
    p.label(skip)
    p("s_barrier")
    p.vmq = []; p.lgq = []
    p(f"v_mov_b32 v3, {L_FASTW}")
    p.lg("ds_read_b32 v49, v3", "fw")

def fast_get(p):
    p.wait_lg("fw")
    p(f"v_readfirstlane_b32 s{S_FAST}, v49")

PB_ = 96
def partials_prelude(p):
    p("v_and_b32 v1, 31, v0")
    p("v_lshrrev_b32 v2, 5, v0")
    p(f"s_mul_i32 s9, s{S_MEM}, {8*ROWB}")
    p(f"v_mul_u32_u24 v3, {ROWB}, v2")
    p("v_lshl_add_u32 v3, v1, 4, v3")
    p("v_add_u32 v3, s9, v3")
    p(f"v_cndmask_b32 v12, -1, v3, {ACT}")
    p("v_add_u32 v3, 448, v3")
    p(f"v_cndmask_b32 v13, -1, v3, {ACT}")

def add_partials(p):
    for j in range(8):
        if j % 4 == 0: p(f"s_mov_b32 s9, {j*64*ROWB}")
        else: p(f"s_add_u32 s9, s9, {64*ROWB}")
        p.vm(f"buffer_load_dwordx4 {v(PB_+8*j,4)}, v12, {sr(S_PR)}, s9 offen sc1", f"p{j}")
        p.vm(f"buffer_load_dwordx4 {v(PB_+8*j+4,4)}, v13, {sr(S_PR)}, s9 offen sc1", f"p{j}")
    lab = p.uid("pf2")
    p(f"s_cmp_eq_u32 s{S_LAY}, 0"); p(f"s_cbranch_scc0 {lab}")
    for g_ in dma_w1_items(0 if 'pfb' in EXP else 2, "pf2"):
        for it in g_: p(it[0])
    p.label(lab)
    p("v_mov_b32 v7, 0xffff0000")
    p("v_mov_b32 v14, 0x00003f80")
    p("v_mov_b32 v15, 0x3f800000")
    unpack(p, X, XP, 8)
    for i in range(16): p(f"v_mov_b32 v{T+i}, 0")
    p(f"v_mov_b32 v{TMP}, {fbits(LN2)}"); p(f"v_mov_b32 v{TMP+1}, {fbits(LN2)}")
    for j in range(8):
        p.wait_vm(f"p{j}")
        for i in range(8):
            p(f"v_dot2c_f32_bf16 v{T+2*i}, v{PB_+8*j+i}, v14")
            p(f"v_dot2c_f32_bf16 v{T+2*i+1}, v{PB_+8*j+i}, v15")
    for i in range(0, 16, 2):
        p(f"v_pk_fma_f32 {v(X+i,2)}, {v(T+i,2)}, {v(TMP,2)}, {v(X+i,2)}")

def xh(phi):
    return a(196 + 4 * phi, 4) if phi < 15 else v(148 + 4 * (phi - 15), 4)

def mlp_setup(p):
    row_setup(p)
    p("v_and_b32 v181, 63, v0")
    p("v_and_b32 v182, 15, v181")
    p("v_lshrrev_b32 v183, 4, v181")
    p(f"s_mul_i32 s9, s{S_A}, 14336")
    p(f"s_add_u32 s9, s9, {L_RING}")
    p(f"v_lshl_add_u32 v{V_A}, v181, 4, s9")
    p(f"v_add_u32 v{V_A2}, {2*CHUNK}, v{V_A}")
    p(f"s_lshl_b32 s9, s{S_B}, 5")
    p("v_add_u32 v184, s9, v182")
    p(f"v_mul_u32_u24 v184, {SH_}, v184")
    p("v_bfe_u32 v185, v182, 1, 2")
    p("v_lshrrev_b32 v186, 1, v183")
    p("v_xor_b32 v186, v186, v185")
    p("v_lshl_add_u32 v184, v186, 4, v184")
    p("v_and_b32 v186, 1, v183")
    p("v_lshl_add_u32 v184, v186, 3, v184")
    p("v_xor_b32 v186, 32, v184")
    p(f"s_cmp_eq_u32 s{S_A}, 1")
    p("s_cselect_b64 vcc, -1, 0")
    p("v_add_u32 v187, 192, v186")
    p(f"v_cndmask_b32 v{V_HW}, v184, v187, vcc")
    p("v_add_u32 v187, 256, v184")
    p(f"v_cndmask_b32 v{V_HW1}, v186, v187, vcc")
    p(f"v_mul_u32_u24 v184, {SH_}, v182")
    p("v_xor_b32 v185, v185, v183")
    p(f"v_lshl_add_u32 v{V_HR}, v185, 4, v184")
    p(f"v_subrev_u32 v{V_A3}, {L_RING - CHUNK}, v{V_A}")
    p(f"v_lshlrev_b32 v{V_L16}, 4, v181")
    p(f"v_mul_u32_u24 v184, {ROWB}, v182")
    p(f"s_lshl_b32 s9, s{S_W}, 6")
    p("v_lshl_add_u32 v185, v183, 4, v184")
    p(f"v_add_u32 v{V_PO}, s9, v185")
    p(f"s_add_u32 s9, s{S_A}, 12")
    p("s_lshl_b32 s9, s9, 6")
    p(f"s_lshl_b32 s10, s{S_B}, 5")
    p("s_add_u32 s9, s9, s10")
    p("v_lshl_add_u32 v185, v183, 3, v184")
    p(f"v_add_u32 v{V_PO1}, s9, v185")
    x_dma_setup(p)

XD1 = [200, 201, 209, 210, 211, 212, 213, 214]
XD2 = [215, 216, 217, 220, 221, 222]
XR1, XR2 = 108, 112
L_X2 = L_X + 64 * 512
def x_dma_setup(p):
    p("v_and_b32 v181, 63, v0")
    p("v_lshrrev_b32 v182, 5, v181")
    p("v_and_b32 v183, 31, v181")
    for i in range(8):
        p(f"v_add_u32 v184, {2*i}, v182")
        p("v_xor_b32 v185, v183, v184")
        p(f"v_mul_u32_u24 v184, {ROWB}, v184")
        p(f"v_lshl_add_u32 v{XD1[i]}, v185, 4, v184")
    for i in range(6):
        p(f"v_add_u32 v184, {64*i}, v181")
        p("v_mul_u32_u24 v185, 2731, v184")
        p("v_lshrrev_b32 v185, 16, v185")
        p("v_mul_u32_u24 v186, 24, v185")
        p("v_sub_u32 v186, v184, v186")
        p("v_and_b32 v184, 6, v185")
        p("v_xor_b32 v186, v186, v184")
        p(f"v_mul_u32_u24 v185, {ROWB}, v185")
        p("v_lshl_add_u32 v185, v186, 4, v185")
        p(f"v_add_u32 v{XD2[i]}, 512, v185")

def x_read_setup(p):
    p("v_and_b32 v1, 63, v0")
    p("v_and_b32 v2, 15, v1")
    p("v_lshrrev_b32 v3, 4, v1")
    p(f"s_lshl_b32 s9, s{S_B}, 5")
    p("v_add_u32 v4, s9, v2")
    p("v_and_b32 v5, 3, v2")
    p("v_xor_b32 v5, v5, v3")
    p("v_lshlrev_b32 v5, 4, v5")
    p("v_lshl_add_u32 v5, v4, 9, v5")
    p("v_lshrrev_b32 v6, 2, v2")
    for r in range(4):
        p(f"v_xor_b32 v8, {r}, v6")
        p(f"v_lshl_add_u32 v{XR1+r}, v8, 6, v5")
    p("v_and_b32 v5, 2, v2")
    p("v_xor_b32 v5, v5, v3")
    p("v_lshlrev_b32 v5, 4, v5")
    p("v_mul_u32_u24 v4, 384, v4")
    p("v_add_u32 v5, v5, v4")
    p(f"v_add_u32 v5, {L_X2}, v5")
    p("v_and_b32 v6, 1, v6")
    p(f"v_lshl_add_u32 v{XR2}, v6, 6, v5")
    p("v_xor_b32 v6, 1, v6")
    p(f"v_lshl_add_u32 v{XR2+1}, v6, 6, v5")

def dma_x(p):
    p(f"s_lshl_b32 s9, s{S_W}, 13")
    p(f"s_mul_i32 s10, s{S_W}, {16*384}")
    for i in range(8):
        p(f"s_add_u32 m0, s9, {L_X + 1024*i}")
        p.vm(f"buffer_load_dwordx4 v{XD1[i]}, {sr(S_X)}, s{S_W14} offen sc1 lds", "x1")
    for i in range(6):
        p(f"s_add_u32 m0, s10, {L_X2 + 1024*i}")
        p.vm(f"buffer_load_dwordx4 v{XD2[i]}, {sr(S_X)}, s{S_W14} offen sc1 lds", "x2")

def dma_w1_items(chunk, tag, g=12):
    G = []
    for i in range(7):
        it = []
        if i in (0, 4):
            o = 4096 if i else 0
            it += [(f"s_add_u32 m0, s{S_W7}, {slot_base(chunk) + o}", "", None),
                   (f"s_add_u32 s{g}, s{S_W7}, {chunk * CHUNK + o}", "", None)]
        it.append((f"buffer_load_dwordx4 v{V_L16}, {sr(S_W1)}, s{g} offen offset:{1024*(i%4)} {'sc1 nt' if 'wnt1' in EXP else 'sc1'} lds", "vm", tag))
        G.append(it)
    return G

def dma_w1(p, chunk, tag):
    p(f"s_mul_i32 s9, s{S_W}, 7168")
    p(f"s_add_u32 s10, s9, {L_RING + (chunk % 3) * CHUNK}")
    p(f"s_add_u32 s9, s9, {chunk * CHUNK}")
    for grp, cnt in ((0, 4), (4, 3)):
        if grp:
            p("s_add_u32 s10, s10, 4096"); p("s_add_u32 s9, s9, 4096")
        p("s_mov_b32 m0, s10")
        for i in range(cnt):
            p.vm(f"buffer_load_dwordx4 v{V_L16}, {sr(S_W1)}, s9 offen offset:{1024*i} sc1 lds", tag)

def cost(t):
    op = t.split()[0]
    if op.startswith(("v_exp", "v_rcp", "v_rsq")): return 8
    if op.startswith("v_"): return 4
    return 0

def emit(p, item):
    t, kind, tag = item
    if kind == "lg": p.lg(t, tag)
    elif kind == "vm": p.vm(t, tag)
    elif kind == "wlg": p.wait_lg(tag)
    elif kind == "wvm": p.wait_vm(tag)
    else: p(t)

def schedule(p, M, V=(), N=None, vstart=0, vend=None):
    N = N or {}
    vend = len(M) if vend is None else vend
    total = sum(cost(x[0]) for x in V)
    done, cum = 0, 0
    for i, m in enumerate(M):
        if isinstance(m, tuple):
            for w in m[1]: emit(p, w)
            m = m[0]
        p(m)
        for it in N.get(i, []): emit(p, it)
        if i >= vstart and done < len(V):
            last = (i >= vend - 1)
            target = total * (i - vstart + 1) / max(1, vend - vstart)
            while done < len(V) and (last or cum + cost(V[done][0]) / 2 <= target):
                cum += cost(V[done][0]); emit(p, V[done]); done += 1
    while done < len(V):
        emit(p, V[done]); done += 1

def interleave(p, M, O, first=0):
    n = len(M) - first
    done = 0
    for i, m in enumerate(M):
        p(m)
        if i >= first:
            want = (len(O) * (i - first + 1) + n - 1) // n
            while done < want:
                t, kind, tag = O[done]; done += 1
                if kind == "lg": p.lg(t, tag)
                elif kind == "vm": p.vm(t, tag)
                else: p(t)

FA, AC1, ST_, HO = 16, 72, 96, 104
def silu_stages(T):
    z = AC1 + 8 * (T % 3); t = ST_
    E = [(f"v_exp_f32_e64 v{t+r}, -v{z+r}", "", None) for r in range(8)]
    A = [(f"v_add_f32 v{t+r}, 1.0, v{t+r}", "", None) for r in range(8)]
    C = [(f"v_rcp_f32 v{t+r}, v{t+r}", "", None) for r in range(8)]
    M = [(f"v_mul_f32 v{t+r}, v{z+r}, v{t+r}", "", None) for r in range(8)]
    V = []
    for nt in range(2):
        V.append((f"v_cvt_pk_bf16_f32 v{HO+2*nt}, v{t+4*nt}, v{t+4*nt+1}", "", None))
        V.append((f"v_cvt_pk_bf16_f32 v{HO+2*nt+1}, v{t+4*nt+2}, v{t+4*nt+3}", "", None))
    W = [(f"ds_write_b64 v{V_HW1 if T & 1 else V_HW}, {v(HO+2*nt,2)} offset:{L_X + nt*16*SH_ + 64*(T>>1)}", "lg", "hw") for nt in range(2)]
    return E, A, C, M, V, W

def gemm1(p):
    def areads(h):
        T, half, buf = h >> 1, h & 1, h & 1
        if T == 3: base, o = V_A3, 0
        else:
            sl = T if T < 3 else T - 4
            base, o = (V_A, sl * CHUNK) if sl < 2 else (V_A2, 0)
        return [(f"ds_read_b128 {v(FA+28*buf+4*i,4)}, v{base} offset:{o + 1024*(7*half+i)}", "lg", f"g{h}") for i in range(7)]
    p.wait_vm("x1")
    p("s_barrier")
    stamp(p, 12, True)
    def xread(k, nt):
        if k < 8: return (f"ds_read_b128 {xh(2*k+nt)}, v{XR1 + (k & 3)} offset:{L_X + 256*(k>>2) + nt*16*512}", "lg", f"x{k}")
        kk = k - 8
        return (f"ds_read_b128 {xh(2*k+nt)}, v{XR2 + (kk & 1)} offset:{128*(kk>>1) + nt*16*384}", "lg", f"x{k}")
    a0 = areads(0)
    for k in range(7):
        t, kind, _ = a0[k]
        emit(p, (t, kind, f"a0_{k}")); emit(p, xread(k, 0)); emit(p, xread(k, 1))
    silu = 'nosilu' not in EXP
    for h in range(14):
        T, half, buf = h >> 1, h & 1, h & 1
        nxt = areads(h + 1) if h < 13 else []
        pre = [[] for _ in range(14)]
        val = [[] for _ in range(14)]
        post = [[] for _ in range(14)]
        for i, it in enumerate(nxt): pre[i].append(it)
        if h == 0:
            pre[0].append(xread(7, 0)); pre[1].append(xread(7, 1))
            pre[2] += [(None, "wvm", "x2"), ("s_barrier", "", None)]
            extra = [xread(k, nt) for k in range(8, 14) for nt in range(2)]
            for i in range(12): pre[2 + i].append(extra[i])
            if 'pfb' in EXP:
                for g_, grp in zip((3, 5, 6, 8, 9, 11, 12), dma_w1_items(2, "c2")):
                    sal = [x for x in grp if x[1] == ""]; dm = [x for x in grp if x[1] == "vm"]
                    pre[g_] = sal + pre[g_] + dm
            if 'pwX' in EXP or 'pwH' in EXP:
                lab = p.uid("pwx")
                grp = [(f"s_cmp_eq_u32 s{S_LAY}, 0", "", None), (f"s_cbranch_scc0 {lab}", "", None)]
                for i in range(14):
                    if i % 4 == 0: grp.append((f"s_add_u32 s12, s{S_W14}, {1024*i}", "", None))
                    grp.append((f"buffer_load_dwordx4 v[124:127], v{V_L16}, {sr(S_PW)}, s12 offen offset:{1024*(i%4)}", "", None))
                grp.append((f"{lab}:", "", None))
                pre[3] = pre[3] + grp
        if 1 <= h <= 8 and 'nodma1' not in EXP:
            c = 3 + (h - 1) // 2
            grps = dma_w1_items(c, f"c{c}")
            grps = grps[:4] if h & 1 else grps[4:]
            at = [1, 4, 8, 11] if h & 1 else [2, 6, 10]
            for g_, grp in zip(at, grps):
                sal = [x for x in grp if x[1] == ""]; dm = [x for x in grp if x[1] == "vm"]
                pre[g_] = sal + pre[g_] + dm
        if 9 <= h <= 13 and 'noldwc' not in EXP and not any(x in ('pwX', 'pwY') for x in EXP) and 'pw7' not in EXP:
            first = 3 * (h - 9)
            for g_, i in zip((1, 5, 9), range(first, min(first + 3, 14))):
                pre[g_] = [(f"s_add_u32 s12, s{S_W14}, {1024*i}", "", None)] + pre[g_] + [(f"buffer_load_dwordx4 v[124:127], v{V_L16}, {sr(S_PW)}, s12 offen {'sc1' if 'pwsc1' in EXP else ('nt' if 'pwnt' in EXP else '')}", "vm", "pw")]
        if 7 <= h <= 13 and 'pw7' in EXP:
            first = 2 * (h - 7)
            for g_, i in zip((3, 9), range(first, min(first + 2, 14))):
                pre[g_] = [(f"s_add_u32 s13, s{S_W14}, {1024*i}", "", None)] + pre[g_] + [(f"buffer_load_dwordx4 v[124:127], v{V_L16}, {sr(S_PW)}, s13 offen", "vm", "pw")]
        if silu:
            if half == 0 and T >= 2:
                E, A, C, M, V, W = silu_stages(T - 2)
                seq = M + V
                order = [2, 2, 2, 2, 2, 1, 1]
                for g_, cnt in enumerate(order):
                    for _ in range(cnt): val[g_].append(seq.pop(0))
                pre[7].append(W[0]); pre[9].append(W[1])
            if half == 0 and T >= 1:
                E = silu_stages(T - 1)[0]
                for r in range(7): val[7 + r].append(E[r])
                val[13].append(E[7])
            if half == 1 and T >= 1:
                E, A, C, M, V, W = silu_stages(T - 1)
                for r in range(7): val[r].append(A[r])
                val[6].append(A[7])
                for r in range(7): val[7 + r].append(C[r])
                val[13].append(C[7])
        if h < 13:
            w = [(None, "wlg", f"g{h+1}")]
            if h == 0: w.append((None, "wlg", "x13"))
            if half == 0 and (2 if 'pfb' in EXP else 3) <= T + 1 <= 6: w.append((None, "wvm", f"c{T+1}"))
            pre[13] = w + pre[13] if h != 0 else pre[13] + w
        for q_ in range(14):
            i, nt = q_ >> 1, q_ & 1
            k = 7 * half + i
            if h == 0 and nt == 0:
                p.wait_lg(f"a0_{i}"); p.wait_lg(f"x{k}")
            acc = v(AC1 + 8 * (T % 3) + 4 * nt, 4)
            p(f"v_mfma_f32_16x16x32_bf16 {acc}, {v(FA+28*buf+4*i,4)}, {xh(2*k+nt)}, {'0' if k == 0 else acc}")
            for it in pre[q_] + val[q_] + post[q_]: emit(p, it)
        if half == 0 and 'nobar1' not in EXP: p("s_barrier")
        if 'tt' in EXP: p(f"s_memtime s[{40+0}:{41}]" if False else f"s_memtime s[{34+2*(h+3)}:{35+2*(h+3)}]") if False else None
        if 'tt' in EXP and h < 12: p(f"s_memtime s[{40+2*h}:{41+2*h}]")
    if 'tt' in EXP:
        p("s_waitcnt lgkmcnt(0)"); p.lgq = []
        for h in range(12): p(f"v_mov_b32 v{108+h}, s{40+2*h}")
        p("s_lshl_b32 s9, s2, 6"); p(f"s_mul_i32 s10, s{S_LAY}, 16384"); p("s_add_u32 s9, s9, s10"); p(f"s_add_u32 s9, s9, {0x30000}")
        p("v_mov_b32 v120, s9")
        p("s_mov_b64 s[10:11], exec"); p("s_mov_b64 exec, 1")
        for q_ in range(3): p.vm(f"buffer_store_dwordx4 {v(108+4*q_,4)}, v120, s[92:95], 0 offen offset:{16*q_}")
        p("s_mov_b64 exec, s[10:11]")
    if silu:
        E, A, C, M, V, W = silu_stages(5)
        for it in M + V + W: emit(p, it)
        E, A, C, M, V, W = silu_stages(6)
        for it in E + A + C + M + V + W: emit(p, it)
    p.wait_lg()
    p("s_barrier")

AC2, CO = 72, 16
OUTLINE = []
def gemm2(p):
    if 'l1sc1' in EXP or 'l1nt' in EXP: p(f"s_cmp_eq_u32 s{S_LAY}, 1")
    if 'l0sc1' in EXP: p(f"s_cmp_eq_u32 s{S_LAY}, 0")
    hread = lambda nt, k: (f"ds_read_b128 {xh(7*nt+k)}, v{V_HR} offset:{L_X + nt*16*SH_ + 64*k}", "lg", f"h{nt}_{k}")
    for k in range(7): emit(p, hread(0, k))
    pf = []
    units = [(3, nt) for nt in range(4)] + [(P, nt) for P in range(3) for nt in range(4)]
    def epi(u):
        P, nt = units[u]; ac = AC2 + 8 * (u & 1); o = CO + 4 * (u & 3)
        O = []
        O.append((f"v_cvt_pk_bf16_f32 v{o}, v{ac}, v{ac+1}", "", None))
        O.append((f"v_cvt_pk_bf16_f32 v{o+1}, v{ac+2}, v{ac+3}", "", None))
        if P < 3:
            O.append((f"v_cvt_pk_bf16_f32 v{o+2}, v{ac+4}, v{ac+5}", "", None))
            O.append((f"v_cvt_pk_bf16_f32 v{o+3}, v{ac+6}, v{ac+7}", "", None))
        st = [(f"s_mov_b32 s9, {nt*16*ROWB}", "", None)]
        sfl = "sc1" if 'psc1' in EXP else ("nt" if 'psnt' in EXP else ("sc0" if 'pssc0' in EXP else ""))
        base = f"buffer_store_dwordx4 {v(o,4)}, v{V_PO}, {sr(S_PW)}, s9 offen offset:{256*P}" if P < 3 else f"buffer_store_dwordx2 {v(o,2)}, v{V_PO1}, {sr(S_PW)}, s9 offen"
        if 'l1sc1' in EXP or 'l1nt' in EXP or 'l0sc1' in EXP:
            alt = "nt" if 'l1nt' in EXP else "sc1"
            la, lb = p.uid("stA"), p.uid("stB")
            st.append((f"s_cbranch_scc1 {la}", "", None))
            st.append((f"{base} {sfl}", "vm", "ps"))
            st.append((f"{lb}:", "", None))
            OUTLINE.append((la, f"{base} {alt}", lb))
        else:
            st.append((f"{base} {sfl}", "vm", "ps"))
        return O, st
    for u, (P, nt) in enumerate(units):
        ac = AC2 + 8 * (u & 1)
        M = []
        for k in range(7):
            for sub in range(2 if P < 3 else 1):
                Tt = 2 * P + sub
                acc = v(ac + 4 * sub, 4)
                t = f"v_mfma_f32_16x16x32_bf16 {acc}, {a(4*(7*k+Tt),4)}, {xh(7*nt+k)}, {'0' if k == 0 else acc}"
                w = [(None, "wlg", f"h{nt}_{k}")] if (u < 4 and sub == 0) else []
                M.append((t, w))
        n = len(M)
        N = {}
        if u < 3:
            for k in range(7): N.setdefault(k, []).append(hread(u + 1, k))
        V, st = epi(u - 1) if u else ([], [])
        if st and 'nostore' not in EXP: N.setdefault(n - 1 if n == 7 else 10, []).extend(st)
        schedule(p, M, V, N, vstart=(4 if n == 7 else 5), vend=(6 if n == 7 else 9))
    assert not pf
    V, st = epi(len(units) - 1)
    for it in V + st: emit(p, it)

def prewarm_burst(p, layer0_only=True):
    lab = p.uid("pwb")
    if layer0_only:
        p(f"s_cmp_eq_u32 s{S_LAY}, 0"); p(f"s_cbranch_scc0 {lab}")
    for i in range(14):
        if i % 4 == 0: p(f"s_add_u32 s12, s{S_W14}, {1024*i}")
        t = f"buffer_load_dwordx4 v[124:127], v{V_L16}, {sr(S_PW)}, s12 offen offset:{1024*(i%4)}"
        if layer0_only: p(t)
        else: p.vm(t, "pw")
    p.label(lab)

def prewarm_ld(p, stride=128):
    n = 57344 // stride
    for i in range((n + 255) // 256):
        p(f"v_add_u32 v2, {256*i}, v0")
        p(f"v_mul_u32_u24 v2, {stride}, v2")
        p.vm(f"buffer_load_dword v255, v2, {sr(S_PW)}, 0 offen", "pw")

def prewarm(p):
    if 'nowarm' in EXP: return
    fl = "sc1" if 'wsc1' in EXP else ("nt" if 'wnt' in EXP else "")
    stride = 64 if 'w64' in EXP else 128
    for i in range((57344 // stride + 255) // 256):
        p(f"v_add_u32 v2, {256*i}, v0")
        p(f"v_mul_u32_u24 v2, {stride}, v2")
        p(f"buffer_store_dword v0, v2, {sr(S_PW)}, 0 offen {fl}")
    p("v_lshlrev_b32 v1, 7, v0")
    p(f"s_mul_i32 s9, s{S_MEM}, {8*ROWB}")
    p("v_add_u32 v2, s9, v1")
    p(f"v_cmp_gt_u32 vcc, {8*ROWB}, v1")
    p("v_cndmask_b32 v2, -1, v2, vcc")
    p(f"buffer_store_dword v0, v2, {sr(S_X)}, 0 offen {fl}")

FORCE_SLOW = False
def build(stamps=False, force_slow=False):
    global FORCE_SLOW
    FORCE_SLOW = force_slow
    common.STAMPS[0] = stamps
    p = K()
    p("s_cmp_ge_u32 s2, 256")
    p("s_cbranch_scc1 K_end")
    p.load_ptrs()
    code_prefetch(p)
    p.wave_id(S_W, 1)
    p("s_and_b32 s4, s2, 7")
    p("s_lshr_b32 s5, s2, 3")
    p("s_lshl_b32 s4, s4, 5")
    p("s_add_u32 s4, s4, s5")
    p("s_lshr_b32 s5, s4, 3")
    p("s_and_b32 s6, s4, 7")
    p(f"s_lshr_b32 s{S_A}, s{S_W}, 1")
    p(f"s_and_b32 s{S_B}, s{S_W}, 1")
    p(f"s_mov_b32 s{S_LAY}, 0")
    p(f"s_mov_b32 s{S_FAST}, 0")
    p(f"s_mul_i32 s{S_W7}, s{S_W}, 7168")
    p(f"s_mul_i32 s{S_W14}, s{S_W}, 14336")
    prep_addr(p)
    p("s_waitcnt lgkmcnt(0)")
    if stamps:
        p.srd(92, P_WS, WS_FLAGS + 0x80000, 0x40000)
        p("v_mov_b32 v252, 0"); p("v_mov_b32 v253, 0")
    stamp(p, 0)
    p("s_cmp_ge_u32 s2, 224")
    p("s_cbranch_scc1 K_noprep")
    prep(p)
    stamp(p, 1)
    p.wait_vm("kvst")
    p(f"v_readfirstlane_b32 s{S_N}, v150")
    p(f"v_readfirstlane_b32 s{S_N+1}, v151")
    p("s_nop 3")
    p(f"s_or_b32 s9, s{S_N}, s{S_N+1}")
    p("s_cmp_lg_u32 s9, 0")
    lab = p.uid("haven")
    p(f"s_cbranch_scc1 {lab}")
    p.srd(SF_, P_DBG, 0, 256)
    get_nonce(p)
    p.label(lab)
    p("s_barrier")
    flag_store_rep(p, FL_S1R, 2)
    stamp(p, 2)
    p.wait_vm()
    hbuild(p)
    p("s_branch K_prepdone")
    p.label("K_noprep")
    p.srd(S_FL, P_WS, WS_FLAGS, FLAGS_BYTES)
    mlp_setup(p)
    q_loads(p)
    p.srd(SF_, P_DBG, 0, 256)
    get_nonce(p)
    p("s_barrier")
    p.label("K_prepdone")
    p.vmq = []; p.lgq = []
    lab = p.uid("xp")
    p(f"s_cmp_eq_u32 s{S_W}, 0")
    p(f"s_cbranch_scc0 {lab}")
    p("s_getreg_b32 s9, hwreg(HW_REG_XCC_ID, 0, 4)")
    p(f"s_add_u32 s9, s9, s{S_N}")
    p("v_mov_b32 v2, s9"); p(f"v_mov_b32 v3, s{S_N+1}")
    p(f"s_lshl_b32 s9, s{S_RB}, 3"); p(f"s_add_u32 s9, s9, {FL_XCC}")
    p("v_mov_b32 v1, s9")
    p("s_mov_b64 exec, 1")
    p(f"buffer_store_dwordx2 v[2:3], v1, {sr(S_FL)}, 0 offen sc1")
    p("s_mov_b64 exec, -1")
    p.label(lab)
    p(f"s_mul_i32 s9, s{S_MEM}, {7*CHUNK}"); p(f"s_add_u32 s9, s9, {hex(WS_W1P)}")
    p(f"s_add_u32 s{S_W1}, s{P_WS}, s9"); p(f"s_addc_u32 s{S_W1+1}, s{P_WS+1}, 0")
    p(f"s_mov_b32 s{S_W1+2}, {7*CHUNK}"); p(f"s_mov_b32 s{S_W1+3}, 0x20000")
    p(f"s_mul_i32 s9, s{S_CL}, {64*ROWB}"); p(f"s_add_u32 s9, s9, {hex(WS_XP)}")
    p(f"s_add_u32 s{S_X}, s{P_WS}, s9"); p(f"s_addc_u32 s{S_X+1}, s{P_WS+1}, 0")
    p(f"s_mov_b32 s{S_X+2}, {64*ROWB}"); p(f"s_mov_b32 s{S_X+3}, 0x20000")
    p(f"s_mul_i32 s9, s{S_RB}, {64*ROWB}"); p(f"s_add_u32 s9, s9, {hex(WS_PB)}")
    p(f"s_add_u32 s{S_PW}, s{P_WS}, s9"); p(f"s_addc_u32 s{S_PW+1}, s{P_WS+1}, 0")
    p(f"s_mov_b32 s{S_PW+2}, {64*ROWB}"); p(f"s_mov_b32 s{S_PW+3}, 0x20000")
    p(f"s_mul_i32 s9, s{S_CL}, {8*64*ROWB}"); p(f"s_add_u32 s9, s9, {hex(WS_PB)}")
    p(f"s_add_u32 s{S_PR}, s{P_WS}, s9"); p(f"s_addc_u32 s{S_PR+1}, s{P_WS+1}, 0")
    p(f"s_mov_b32 s{S_PR+2}, {8*64*ROWB}"); p(f"s_mov_b32 s{S_PR+3}, 0x20000")
    if 'warm1' in EXP: prewarm(p)
    p("v_and_b32 v1, 63, v0")
    p("s_lshr_b32 s9, s2, 5")
    p("s_min_u32 s9, s9, 6")
    p("v_mul_u32_u24 v8, 7, v1")
    p("v_add_u32 v8, s9, v8")
    p(f"s_mul_i32 s9, s{S_MEM}, 14")
    p("v_subrev_u32 v9, 32, v1")
    p("v_add_u32 v9, s9, v9")
    p("v_add_u32 v10, 98, v9")
    p("v_cmp_gt_u32 vcc, 46, v1")
    p("v_cndmask_b32 v9, v10, v9, vcc")
    p("v_cmp_gt_u32 vcc, 32, v1")
    p("v_cndmask_b32 v8, v9, v8, vcc")
    p("v_lshlrev_b32 v8, 3, v8")
    p("s_and_b32 s9, s2, 7"); p("s_lshl_b32 s9, s9, 11"); p(f"s_add_u32 s9, s9, {FL_S1R}")
    p("v_add_u32 v8, s9, v8")
    p("s_waitcnt lgkmcnt(0)")
    poll(p, [8], 1, [60])
    stamp(p, 3)
    p(f"s_lshl_b32 s9, s{S_MEM}, 2"); p(f"s_add_u32 s9, s9, s{S_W}")
    p(f"s_mul_i32 s9, s9, {49*1024}"); p(f"s_add_u32 s9, s9, {hex(WS_W2P)}")
    p(f"s_add_u32 s{SE}, s{P_WS}, s9"); p(f"s_addc_u32 s{SE+1}, s{P_WS+1}, 0")
    p(f"s_mov_b32 s{SE+2}, {49*1024}"); p(f"s_mov_b32 s{SE+3}, 0x20000")
    p.srd(SD, P_WS, WS_YB, MAT)
    p("s_cmp_ge_u32 s2, 224")
    p("s_cbranch_scc1 K_noconv")
    p("s_lshl_b32 s9, s2, 13")
    p(f"s_add_u32 s{SA}, s{P_WS}, s9"); p(f"s_addc_u32 s{SA+1}, s{P_WS+1}, 0")
    p(f"s_mov_b32 s{SA+2}, 8192"); p(f"s_mov_b32 s{SA+3}, 0x20000")
    p("v_lshlrev_b32 v10, 4, v0")
    p.vm(f"buffer_load_dwordx4 v[64:67], v10, {sr(SA)}, 0 offen sc1", "u")
    p("v_add_u32 v11, 4096, v10")
    p.vm(f"buffer_load_dwordx4 v[68:71], v11, {sr(SA)}, 0 offen sc1", "u")
    if 'qlate' in EXP: q_loads(p)
    p("s_lshl_b32 s9, s2, 2")
    p(f"s_load_dword s13, s[{P_DV}:{P_DV+1}], s9")
    for g_ in w2_items(SE)[:W20]:
        for it in g_: emit(p, it)
    p(f"v_add_u32 v10, {L_U+512}, v10")
    p.wait_vm("u")
    p.lg("ds_write_b128 v10, v[64:67]")
    p.lg(f"ds_write_b128 v10, v[68:71] offset:{U_CH}")
    p("s_waitcnt lgkmcnt(0)"); p.lgq = []
    p("s_lshl_b32 s12, s13, 16")
    p("s_and_b32 s14, s13, 0xffff0000")
    p(f"s_cmp_eq_u32 s{S_B}, 0")
    p("s_cselect_b32 s14, s12, s14")
    p("s_barrier")
    if 'warm2' in EXP: prewarm(p)
    stamp(p, 4)
    conv_main(p)
    stamp(p, 5)
    conv_out(p, SD)
    signal(p, FL_S2R, 2, upto="yst")
    stamp(p, 6)
    p("s_branch K_convdone")
    p.label("K_noconv")
    p.vmq = []
    for g_ in w2_items(SE)[:W2A]:
        for it in g_: emit(p, it)
    idle = [x for x in EXP if x.startswith('idle')]
    if idle:
        nld = int(idle[0][4:])
        p("s_and_b32 s9, s2, 7"); p("s_lshl_b32 s9, s9, 2")
        p("s_sub_u32 s10, s2, 224"); p("s_lshr_b32 s10, s10, 3"); p("s_add_u32 s9, s9, s10")
        p(f"s_mul_i32 s9, s9, {8*64*ROWB}"); p(f"s_add_u32 s9, s9, {hex(WS_PB)}")
        p(f"s_add_u32 s{SA}, s{P_WS}, s9"); p(f"s_addc_u32 s{SA+1}, s{P_WS+1}, 0")
        p(f"s_mov_b32 s{SA+2}, {8*64*ROWB}"); p(f"s_mov_b32 s{SA+3}, 0x20000")
        p(f"s_mul_i32 s10, s{S_W}, {112*1024}")
        lab = p.uid("idl")
        p("s_mov_b32 s11, 0")
        p.label(lab)
        for i in range(4):
            p(f"buffer_load_dwordx4 v[124:127], v{V_L16}, {sr(SA)}, s10 offen offset:{1024*i}")
        p("s_add_u32 s10, s10, 4096"); p("s_add_u32 s11, s11, 4"); p(f"s_cmp_lt_u32 s11, {nld}")
        p(f"s_cbranch_scc1 {lab}")
    p.wait_vm()
    p.label("K_convdone")
    if 'warm3' in EXP: prewarm(p)
    if 'pws2' in EXP:
        lab = p.uid("pws")
        p(f"s_cmp_eq_u32 s{S_W}, 0"); p(f"s_cbranch_scc1 {lab}")
        p(f"s_sub_u32 s9, s{S_W}, 1"); p("s_mul_i32 s9, s9, 19456")
        for i in range(19):
            if i % 4 == 0: p(f"s_add_u32 s10, s9, {1024*i}")
            p(f"buffer_load_dwordx4 v[220:223], v{V_L16}, {sr(S_PW)}, s10 offen offset:{1024*(i%4)}")
        p.label(lab)
    p("s_waitcnt vmcnt(0)")
    p("v_mov_b32 v7, 0xffff0000")
    unpack(p, X, XP, 8)
    layernorm(p, X, T)
    poll_s2(p)
    stamp(p, 7)
    y_load(p, SD)
    fast_get(p)
    for g_ in dma_w1_items(0 if 'pfb' in EXP else 2, "pf2"):
        for it in g_: emit(p, it)
    if 'pwY' in EXP: prewarm_burst(p, False)
    for g_ in w2_items(SE)[W2A:]:
        for it in g_: emit(p, it)
    y_transpose(p)
    stamp(p, 8)
    p("v_mov_b32 v7, 0xffff0000")
    p("s_branch K_gate")
    p.label("K_layer")
    p.vmq = []; p.lgq = []
    layernorm(p, X, T)
    p.label("K_gate")
    p.vmq = []; p.lgq = []
    q = K()
    for i in range(0, 16, 2):
        q(f"v_pk_fma_f32 {v(X+i,2)}, {v(T+i,2)}, {v(YV+i,2)}, {v(X+i,2)}")
    layernorm(q, X, T, LOG2E)
    pack(q, PK, T, 8)
    body = [it.text for it in q.items]
    if 'pfb' in EXP: pf = dma_w1_items(1, "pf")
    elif 'pfafter' in EXP: pf = dma_w1_items(0, "pf")
    else: pf = [g for c in range(2) for g in dma_w1_items(c, "pf")]
    step = len(body) // (len(pf) + (5 if 'pfb' in EXP else 1))
    for i, t in enumerate(body):
        p(t)
        if pf and i % step == step - 1:
            for it in pf.pop(0): emit(p, it)
    assert not pf
    p(f"s_mul_i32 s9, s{S_CL}, {64*ROWB}")
    p(f"v_subrev_u32 v3, s9, v{OFFA}")
    p(f"v_subrev_u32 v4, s9, v{OFFB}")
    p(f"v_cndmask_b32 v3, -1, v3, {ACT}")
    p(f"v_cndmask_b32 v4, -1, v4, {ACT}")
    p.vm(f"buffer_store_dwordx4 {v(PK,4)}, v3, {sr(S_X)}, 0 offen", "xs")
    p.vm(f"buffer_store_dwordx4 {v(PK+4,4)}, v4, {sr(S_X)}, 0 offen", "xs")
    pack(p, XP, X, 8)
    if 'pfafter' in EXP:
        for g_ in dma_w1_items(1, "pf1"):
            for it in g_: emit(p, it)
    stamp(p, 9, True)
    if 'oldsync' in EXP:
        signal(p, FL_CA, S_RB, layer_off=True, cluster=True, upto="xs")
        stamp(p, 10, True)
        def cluster_offs():
            p("v_and_b32 v1, 7, v0")
            p(f"s_lshl_b32 s9, s{S_CL}, 7")
            p(f"s_lshl_b32 s10, s{S_LAY}, 13")
            p("s_add_u32 s9, s9, s10")
        cluster_offs()
        p(f"s_add_u32 s9, s9, {FL_CA}")
        p("v_lshl_add_u32 v10, v1, 3, s9")
        poll(p, [10], 1, [8], cluster=True)
    else:
        cluster_sync(p, FL_CA, upto="xs", sid=10)
    stamp(p, 11, True)
    dma_x(p)
    x_read_setup(p)
    if 'ldw128' in EXP: prewarm_ld(p, 128)
    if 'ldw64' in EXP: prewarm_ld(p, 64)
    gemm1(p)
    stamp(p, 13, True)
    gemm2(p)
    stamp(p, 14, True)
    if 'oldsync' in EXP:
        signal(p, FL_CC, S_RB, layer_off=True, cluster=True)
        if 'wb2' in EXP:
            lab = p.uid("wb2")
            p(f"s_cmp_eq_u32 s{S_LAY}, 1"); p(f"s_cbranch_scc0 {lab}")
            p(f"s_cmp_eq_u32 s{S_W}, 3"); p(f"s_cbranch_scc0 {lab}")
            p(f"s_and_b32 s9, s{S_RB}, 31"); p("s_cmp_eq_u32 s9, 0"); p(f"s_cbranch_scc0 {lab}")
            p("buffer_wbl2 sc1")
            p.label(lab)
        stamp(p, 15, True)
        partials_prelude(p)
        cluster_offs()
        p(f"s_add_u32 s9, s9, {FL_CC}")
        p("v_lshl_add_u32 v10, v1, 3, s9")
        poll(p, [10], 1, [8], cluster=True)
        if 'wb' in EXP:
            lab = p.uid("wb")
            p(f"s_cmp_eq_u32 s{S_LAY}, 1"); p(f"s_cbranch_scc0 {lab}")
            p(f"s_cmp_eq_u32 s{S_MEM}, 0"); p(f"s_cbranch_scc0 {lab}")
            p(f"s_cmp_eq_u32 s{S_W}, 3"); p(f"s_cbranch_scc0 {lab}")
            p("buffer_wbl2 sc1")
            p.label(lab)
    else:
        cluster_sync(p, FL_CC, before=lambda: partials_prelude(p), sid=15)
    stamp(p, 16, True)
    add_partials(p)
    stamp(p, 17, True)
    p(f"s_cmp_eq_u32 s{S_LAY}, 1")
    p("s_cbranch_scc1 K_final")
    p(f"s_mov_b32 s{S_LAY}, 1")
    p("s_branch K_layer")
    p.label("K_final")
    pack(p, XP, X, 8)
    p.srd(SA, P_OUT, 0, MAT)
    ofl = "sc1" if 'osc1' in EXP else ("nt" if 'ont' in EXP else "")
    p(f"buffer_store_dwordx4 {v(XP,4)}, v{OFFA}, {sr(SA)}, 0 offen {ofl}")
    p(f"buffer_store_dwordx4 {v(XP+4,4)}, v{OFFB}, {sr(SA)}, 0 offen {ofl}")
    stamp(p, 40)
    stamp_flush(p)
    if SLOWPATHS:
        p("s_endpgm")
        emit_slowpaths(p)
    if OUTLINE:
        p("s_endpgm")
        for la, t, lb in OUTLINE:
            p.label(la); p(t); p(f"s_branch {lb}")
    p.label("K_end")
    p("s_endpgm")
    txt, n = kernel_text(KNAME, p, 256, sgprs=102, agprs=256)
    print("nops inserted:", n, "instructions:", p.count(), file=sys.stderr)
    head = HEADER + f"; @launch grid=(256,1,1) block=(256,1,1) lds={LDS_BYTES}\n" + '.amdgcn_target "amdgcn-amd-amdhsa--gfx950"\n'
    return head + txt

if __name__ == "__main__":
    open(sys.argv[1], "w").write(build(stamps="st" in sys.argv[2:], force_slow="slow" in sys.argv[2:]))
```

```python
import sys
from common import *
import common
EXP = set(sys.argv[2:])
if 'pfa' not in EXP: EXP.add('pfb')

KNAME = "interleave_layers__ssm_conv_h3__dense_activation_silu__prompt_kernel"
HEADER = open("interleave_layers__ssm_conv_h3__dense_activation_silu__prompt.s.ref").read().split("; Override launch")[0]

S_W, S_RB, S_CL, S_MEM, S_A, S_B = 3, 4, 5, 6, 7, 8
SA, SB_, SC, SD, SE, SF_ = 40, 44, 48, 52, 56, 60
S_FL, S_W1, S_X, S_PW, S_PR = 64, 68, 72, 76, 80
S_N, S_FAST, S_LAY = 84, 86, 87
S_W7, S_W14 = 100, 101
ACT = "s[88:89]"
S_T = 90
V_XE, V_XO, V_A, V_A2, V_HW, V_HR, V_L16, V_PO, V_PO1 = 200, 201, 202, 203, 204, 205, 206, 207, 208
V_XD = 209
V_PWA, V_PWB = 216, 217
V_HW1, V_A3 = 218, 219
XP = 224
YV = 232
OFFA, OFFB = 248, 249
VN = 250
LA, LB = 0, 8192
HC_COPY = 4160; HC_CH = 8 * HC_COPY; L_U = 2 * HC_CH; U_CH = 512 + 4096; YS_CH = 4096 + 128
LY = 0
L_X = 0; SH_ = 448; L_RING = 57344; CHUNK = 28672
def slot_base(c):
    return CHUNK if c == 3 else L_RING + (c if c < 3 else c - 4) * CHUNK
SPIN_MAX = 0x100000
LDS_BYTES = 163840
L_FASTW = 163836 - 60

def sr(r): return f"s[{r}:{r+3}]"

def stamp(p, sid, layered=False):
    if not common.STAMPS[0]: return
    p("s_memrealtime s[96:97]")
    p("s_memtime s[98:99]")
    p("s_waitcnt lgkmcnt(0)")
    if layered:
        p(f"s_mul_i32 s97, s{S_LAY}, 10")
        p(f"s_add_u32 m0, s97, {sid}")
        p("s_nop 3")
        p("v_writelane_b32 v252, s96, m0")
        p("v_writelane_b32 v253, s98, m0")
    else:
        p(f"v_writelane_b32 v252, s96, {sid}")
        p(f"v_writelane_b32 v253, s98, {sid}")
    p.lgq = []

def stamp_flush(p):
    if not common.STAMPS[0]: return
    lab = p.uid("sf")
    p(f"s_cmp_eq_u32 s{S_W}, 0")
    p(f"s_cbranch_scc0 {lab}")
    p("v_lshlrev_b32 v1, 2, v0")
    p("s_lshl_b32 s9, s2, 9")
    p("v_add_u32 v1, s9, v1")
    p("buffer_store_dword v252, v1, s[92:95], 0 offen")
    p("buffer_store_dword v253, v1, s[92:95], 0 offen offset:256")
    if 'dbgst' in EXP:
        wg = [x for x in EXP if x.startswith('wg')]
        wg = int(wg[0][2:]) if wg else 0
        l2 = p.uid("sf2")
        p(f"s_cmp_eq_u32 s2, {wg}")
        p(f"s_cbranch_scc0 {l2}")
        p.srd(SA, P_DBG, 0, 256)
        sel = [0, 2, 3, 5, 7, 9, 12, 13, 14, 17, 22, 23, 24, 40]
        p("s_nop 4")
        p("v_readlane_b32 s12, v252, 0")
        for i, sid in enumerate(sel):
            p(f"v_readlane_b32 s9, v252, {sid}")
            p("s_nop 3")
            p("s_sub_u32 s9, s9, s12")
            if i == 0: p("s_mov_b32 s9, s12")
            p(f"v_writelane_b32 v1, s9, {i}")
        p("v_and_b32 v2, 63, v0")
        p("v_lshlrev_b32 v2, 2, v2")
        p("v_add_u32 v2, 8, v2")
        p("s_mov_b32 exec_lo, 0x3fff"); p("s_mov_b32 exec_hi, 0")
        p(f"buffer_store_dword v1, v2, {sr(SA)}, 0 offen")
        p("s_mov_b64 exec, -1")
        p.label(l2)
    p.label(lab)

def flag_store(p, table, idx_sreg, layer_off=False, cluster=False):
    lab = p.uid("sig")
    p(f"s_cmp_eq_u32 s{S_W}, 0")
    p(f"s_cbranch_scc0 {lab}")
    p(f"s_lshl_b32 s{S_T}, s{S_CL}, 7")
    p(f"s_lshl_b32 s{S_T+1}, s{S_MEM}, 3")
    p(f"s_add_u32 s{S_T}, s{S_T}, s{S_T+1}")
    p(f"s_add_u32 s{S_T}, s{S_T}, {table}")
    p(f"s_lshl_b32 s{S_T+1}, s{S_LAY}, 13")
    p(f"s_add_u32 s{S_T}, s{S_T}, s{S_T+1}")
    p(f"v_mov_b32 v{VN}, s{S_N}")
    p(f"v_mov_b32 v{VN+1}, s{S_N+1}")
    p(f"v_mov_b32 v1, s{S_T}")
    p("s_mov_b64 exec, 1")
    if cluster:
        l2 = p.uid("sigslow"); l3 = p.uid("sigdone")
        p(f"s_cmp_eq_u32 s{S_FAST}, 1")
        p(f"s_cbranch_scc0 {l2}")
        p(f"buffer_store_dwordx2 {v(VN,2)}, v1, {sr(S_FL)}, 0 offen")
        p(f"s_branch {l3}")
        p.label(l2)
        p("buffer_wbl2 sc1")
        p("s_waitcnt vmcnt(0)")
        p(f"buffer_store_dwordx2 {v(VN,2)}, v1, {sr(S_FL)}, 0 offen sc1")
        p.label(l3)
    else:
        p(f"buffer_store_dwordx2 {v(VN,2)}, v1, {sr(S_FL)}, 0 offen sc1")
    p("s_mov_b64 exec, -1")
    p.label(lab)

def flag_store_rep(p, table, idx_sreg):
    lab = p.uid("sigr")
    p(f"s_cmp_eq_u32 s{S_W}, 0")
    p(f"s_cbranch_scc0 {lab}")
    p(f"s_lshl_b32 s{S_T}, s{idx_sreg}, 3")
    p(f"s_add_u32 s{S_T}, s{S_T}, {table}")
    p(f"v_mov_b32 v{VN}, s{S_N}")
    p(f"v_mov_b32 v{VN+1}, s{S_N+1}")
    p("v_lshlrev_b32 v1, 11, v0")
    p(f"v_add_u32 v1, s{S_T}, v1")
    p("s_mov_b64 exec, 0xff")
    p(f"buffer_store_dwordx2 {v(VN,2)}, v1, {sr(S_FL)}, 0 offen sc1")
    p("s_mov_b64 exec, -1")
    p.label(lab)

def signal(p, table, idx_sreg, layer_off=False, cluster=False, upto=None):
    if upto: p.wait_vm(upto)
    else: p.wait_vm()
    p("s_barrier")
    if table in (FL_S1R, FL_S2R): flag_store_rep(p, table, idx_sreg)
    else: flag_store(p, table, idx_sreg, layer_off, cluster)

def cluster_sync(p, table, upto=None, before=None, sid=None):
    p("v_and_b32 v10, 7, v0")
    p(f"s_lshl_b32 s9, s{S_CL}, 7")
    p(f"s_lshl_b32 s10, s{S_LAY}, 13")
    p("s_add_u32 s9, s9, s10")
    p(f"s_add_u32 s9, s9, {table}")
    p("v_lshl_add_u32 v10, v10, 3, s9")
    p(f"s_lshl_b32 s10, s{S_MEM}, 3")
    p("s_add_u32 s9, s9, s10")
    p("v_mov_b32 v9, s9")
    p(f"v_mov_b32 v{VN}, s{S_N}")
    p(f"v_mov_b32 v{VN+1}, s{S_N+1}")
    if before: before()
    if upto: p.wait_vm(upto)
    else: p.wait_vm()
    p("s_barrier")
    skip = p.uid("css"); slow = p.uid("csl"); go = p.uid("csg"); lab = p.uid("csp"); done = p.uid("csd"); acq = p.uid("csa")
    p(f"s_cmp_eq_u32 s{S_W}, 0")
    p(f"s_cbranch_scc0 {skip}")
    p("s_mov_b64 exec, 1")
    p(f"s_cmp_eq_u32 s{S_FAST}, 1")
    p(f"s_cbranch_scc0 {slow}")
    p(f"buffer_store_dwordx2 {v(VN,2)}, v9, {sr(S_FL)}, 0 offen")
    p.label(go)
    if sid is not None: stamp(p, sid, True)
    p("s_mov_b64 exec, 0xff")
    p(f"s_mov_b32 s{S_T}, 0")
    p.label(lab)
    p(f"buffer_load_dwordx2 v[2:3], v10, {sr(S_FL)}, 0 offen sc1")
    p("s_waitcnt vmcnt(0)")
    p(f"v_cmp_eq_u64 vcc, {s(S_N,2)}, v[2:3]")
    p(f"s_add_u32 s{S_T}, s{S_T}, 1")
    p("s_nop 3")
    p("s_cmp_eq_u64 vcc, exec")
    p(f"s_cbranch_scc1 {done}")
    p(f"s_cmp_lt_u32 s{S_T}, {hex(SPIN_MAX)}")
    p(f"s_cbranch_scc1 {lab}")
    p.label(done)
    p("s_mov_b64 exec, -1")
    p(f"s_cmp_eq_u32 s{S_FAST}, 1")
    p(f"s_cbranch_scc1 {skip}")
    p("buffer_inv sc1")
    p("s_waitcnt vmcnt(0)")
    p.label(skip)
    p("s_barrier")
    p.vmq = []
    SLOWPATHS.append((slow, go))

SLOWPATHS = []
def emit_slowpaths(p):
    for slow, go in SLOWPATHS:
        p.label(slow)
        p("buffer_wbl2 sc1")
        p("s_waitcnt vmcnt(0)")
        p(f"buffer_store_dwordx2 {v(VN,2)}, v9, {sr(S_FL)}, 0 offen sc1")
        p(f"s_branch {go}")

def setexec(p, nl):
    m = (1 << nl) - 1
    lo, hi = m & 0xffffffff, m >> 32
    p(f"s_mov_b32 exec_lo, {hex(lo) if lo != 0xffffffff else -1}")
    p(f"s_mov_b32 exec_hi, {hex(hi) if hi != 0xffffffff else -1}")

def poll(p, offs, n_loads, masks, cluster=False, all_waves=False):
    lab = p.uid("poll"); done = p.uid("polld"); skip = p.uid("polls")
    if not all_waves:
        p(f"s_cmp_eq_u32 s{S_W}, 0")
        p(f"s_cbranch_scc0 {skip}")
    p(f"s_mov_b32 s{S_T}, 0")
    p.label(lab)
    for i in range(n_loads):
        setexec(p, masks[i])
        p(f"buffer_load_dwordx2 {v(2+2*i,2)}, v{offs[i]}, {sr(S_FL)}, 0 offen sc1")
    p("s_waitcnt vmcnt(0)")
    p("s_mov_b32 s9, 1")
    for i in range(n_loads):
        setexec(p, masks[i])
        p(f"v_cmp_eq_u64 vcc, {s(S_N,2)}, {v(2+2*i,2)}")
        p("s_nop 4")
        p("s_cmp_eq_u64 vcc, exec")
        p("s_cselect_b32 s9, s9, 0")
    p("s_mov_b64 exec, -1")
    p("s_cmp_eq_u32 s9, 1")
    p(f"s_cbranch_scc1 {done}")
    p(f"s_add_u32 s{S_T}, s{S_T}, 1")
    p(f"s_cmp_lt_u32 s{S_T}, {hex(SPIN_MAX)}")
    p(f"s_cbranch_scc0 {done}")
    if not cluster or 'nosleep' not in EXP: p("s_sleep 1")
    p(f"s_branch {lab}")
    p.label(done)
    if cluster:
        l2 = p.uid("acq")
        p(f"s_cmp_eq_u32 s{S_FAST}, 1")
        p(f"s_cbranch_scc1 {l2}")
        p("buffer_inv sc1")
        p("s_waitcnt vmcnt(0)")
        p.label(l2)
    p.label(skip)
    p("s_barrier")
    p.vmq = []

FRESH_TICKS = 1200
NONCE_PATIENCE = 0x40000
def nonce_threshold(p):
    p(f"s_sub_u32 s{S_N}, s{S_N}, {FRESH_TICKS}")
    p(f"s_subb_u32 s{S_N+1}, s{S_N+1}, 0")
    p(f"s_lshl_b64 {s(S_N,2)}, {s(S_N,2)}, 4")
    p(f"s_or_b32 s{S_N+1}, s{S_N+1}, 0x40000000")

def nonce_try(p, va, ok):
    p(f"v_readfirstlane_b32 s10, v{va}")
    p(f"v_readfirstlane_b32 s11, v{va+1}")
    p("s_nop 3")
    p(f"s_sub_u32 s9, s10, s{S_N}")
    p(f"s_subb_u32 s9, s11, s{S_N+1}")
    lab = p.uid("stale")
    p(f"s_cbranch_scc1 {lab}")
    p(f"s_mov_b64 {s(S_N,2)}, s[10:11]")
    p(f"s_branch {ok}")
    p.label(lab)

def get_nonce(p, done):
    lab = p.uid("non")
    p(f"s_mov_b32 s{S_T}, 0")
    p.label(lab)
    p("v_mov_b32 v1, 0")
    p(f"buffer_load_dwordx2 v[2:3], v1, {sr(SF_)}, 0 offen sc1")
    p("s_waitcnt vmcnt(0)")
    nonce_try(p, 2, done)
    p(f"s_add_u32 s{S_T}, s{S_T}, 1")
    p("s_sleep 1")
    p(f"s_cmp_lt_u32 s{S_T}, {hex(NONCE_PATIENCE)}")
    p(f"s_cbranch_scc1 {lab}")
    p(f"s_mov_b64 {s(S_N,2)}, s[10:11]")
    p.vmq = []

def tlb_warm(p):
    if 'notlb' in EXP: return
    ent = [(P_K, None), (P_V, None), (P_SK, 0), (P_W1, 0), (P_W2, 0), (P_H, "h"), (P_Q, "q"), (P_DV, 0), (P_DBG, 0), (P_OUT, "q"),
           (P_WS, WS_KVT), (P_WS, WS_YB), (P_WS, WS_W1P), (P_WS, WS_W2P), (P_WS, WS_FLAGS), (P_WS, "pb0"), (P_WS, "pb1")]
    lab = p.uid("tw")
    p(f"s_cmp_eq_u32 s{S_W}, 0")
    p(f"s_cbranch_scc0 {lab}")
    p(f"v_mov_b32 v2, s{P_K}"); p(f"v_mov_b32 v3, s{P_K+1}")
    p(f"s_mul_i32 s9, s{S_RB}, {8*ROWB}")
    p("s_min_u32 s10, s2, 223"); p("s_lshl_b32 s10, s10, 13")
    p(f"s_mul_i32 s11, s{S_CL}, {8*64*ROWB}"); p(f"s_add_u32 s11, s11, {hex(WS_PB)}")
    for i, (ptr, off) in enumerate(ent):
        if off in (None, 0):
            lo, hi = ptr, ptr + 1
        else:
            if off == "q": src = "s9"
            elif off == "h": src = "s10"
            elif off == "pb0": src = "s11"
            elif off == "pb1":
                p(f"s_add_u32 s11, s11, {8*64*ROWB - 128}"); src = "s11"
            else: src = hex(off)
            p(f"s_add_u32 s12, s{ptr}, {src}"); p(f"s_addc_u32 s13, s{ptr+1}, 0")
            lo, hi = 12, 13
        p(f"v_writelane_b32 v2, s{lo}, {i}")
        p(f"v_writelane_b32 v3, s{hi}, {i}")
    setexec(p, len(ent))
    p("global_load_dword v254, v[2:3], off")
    p("s_mov_b64 exec, -1")
    p.label(lab)

def nonce_publish(p):
    lab = p.uid("nn")
    p("s_cmp_eq_u32 s2, 0")
    p(f"s_cbranch_scc0 {lab}")
    p(f"s_cmp_eq_u32 s{S_W}, 0")
    p(f"s_cbranch_scc0 {lab}")
    p.srd(SF_, P_DBG, 0, 256)
    p("s_memrealtime s[10:11]")
    p("s_waitcnt lgkmcnt(0)")
    p("s_lshl_b64 s[10:11], s[10:11], 4")
    p("s_or_b32 s11, s11, 0x40000000")
    p("v_mov_b32 v46, s10"); p("v_mov_b32 v47, s11"); p("v_mov_b32 v13, 0")
    p("s_mov_b64 exec, 1")
    p(f"buffer_store_dwordx2 v[46:47], v13, {sr(SF_)}, 0 offen sc1")
    p("s_mov_b64 exec, -1")
    p.label(lab)

S_RBK, S_CG = 12, 13
def prep_addr(p):
    p("s_min_u32 s14, s2, 223")
    p.div_const(S_RBK, 14, 7)
    p(f"s_mul_i32 s{S_CG}, s{S_RBK}, 7")
    p(f"s_sub_u32 s{S_CG}, s14, s{S_CG}")
    p("v_and_b32 v1, 15, v0")
    p("v_lshrrev_b32 v2, 4, v0")
    p(f"s_lshl_b32 s9, s{S_RBK}, 6")
    p("s_sub_u32 s9, s9, 3")
    p("v_lshl_add_u32 v3, v2, 2, s9")
    p(f"v_mul_i32_i24 v4, {ROWB}, v3")
    p(f"s_lshl_b32 s10, s{S_CG}, 7")
    p("v_lshl_add_u32 v5, v1, 3, s10")
    p("v_add_u32 v4, v4, v5")
    for i in range(1, 7):
        p(f"v_add_u32 v{5+i}, {ROWB*i}, v4")
    p("v_lshlrev_b32 v12, 2, v5")

def prep(p):
    SK_, SV_, SSK, SKVT, SSRC, SDST = SA, SB_, SC, SD, SE, S_W1
    T0 = 72
    off = lambda i: "v4" if i == 0 else f"v{5+i}"
    p.srd(SK_, P_K, 0, MAT)
    for i in range(7):
        p.vm(f"buffer_load_dwordx2 {v(16+2*i,2)}, {off(i)}, {sr(SK_)}, 0 offen", "k")
    p.srd(SV_, P_V, 0, MAT)
    for i in range(4):
        p.vm(f"buffer_load_dwordx2 {v(30+2*i,2)}, {off(i+3)}, {sr(SV_)}, 0 offen", "k")
    p.srd(SSK, P_SK, 0, D * 8)
    p.vm(f"buffer_load_dwordx4 v[38:41], v12, {sr(SSK)}, 0 offen", "k")
    p.vm(f"buffer_load_dwordx4 v[42:45], v12, {sr(SSK)}, 0 offen offset:16", "k")
    nonce_publish(p)
    p.srd(SKVT, P_WS, WS_KVT, MAT)
    p.srd(S_FL, P_WS, WS_FLAGS, FLAGS_BYTES)
    if 'pp' in EXP: stamp(p, 34)
    S_J, S_R, S_ISW2, S_STR = T0, T0 + 1, T0 + 2, T0 + 3
    p("s_cmp_ge_u32 s2, 112")
    p(f"s_cselect_b32 s{S_ISW2}, 1, 0")
    p("s_cselect_b32 s9, 112, 0")
    p("s_sub_u32 s9, s2, s9")
    p.div_const(S_J, 9, 14)
    p(f"s_mul_i32 s10, s{S_J}, 14")
    p(f"s_sub_u32 s{S_R}, s9, s10")
    p(f"s_mul_i32 s10, s{S_R}, {32*3584}")
    p(f"s_mul_i32 s11, s{S_J}, 448")
    p("s_add_u32 s10, s10, s11")
    p(f"s_lshr_b32 s11, s{S_R}, 1")
    p(f"s_mul_i32 s11, s11, {32*896}")
    p(f"s_mul_i32 s14, s{S_J}, {224*896}")
    p("s_add_u32 s11, s11, s14")
    p(f"s_and_b32 s14, s{S_R}, 1")
    p("s_mul_i32 s14, s14, 448")
    p("s_add_u32 s11, s11, s14")
    p(f"s_cmp_eq_u32 s{S_ISW2}, 1")
    p("s_cselect_b32 s10, s11, s10")
    p.csel(S_STR, 896, 3584)
    p(f"s_cselect_b32 s{SSRC}, s{P_W2}, s{P_W1}")
    p(f"s_cselect_b32 s{SSRC+1}, s{P_W2+1}, s{P_W1+1}")
    p(f"s_mov_b32 s{SSRC+2}, {hex(D*F*2)}")
    p(f"s_mov_b32 s{SSRC+3}, 0x20000")
    for m in range(4):
        p(f"v_add_u32 v13, {256*m}, v0")
        p("v_mul_u32_u24 v14, 2341, v13")
        p("v_lshrrev_b32 v14, 16, v14")
        p("v_mul_u32_u24 v15, 28, v14")
        p("v_sub_u32 v15, v13, v15")
        p(f"v_mul_lo_u32 v14, v14, s{S_STR}")
        p("v_lshl_add_u32 v14, v15, 4, v14")
        p("v_add_u32 v14, s10, v14")
        if m == 3:
            p("v_cmp_gt_u32 vcc, 896, v13")
            p("v_cndmask_b32 v14, -1, v14, vcc")
        p.vm(f"buffer_load_dwordx4 {v(48+4*m,4)}, v14, {sr(SSRC)}, 0 offen", "w")
    if 'pp' in EXP: stamp(p, 35)
    p("v_and_b32 v46, 63, v0")
    p("v_lshrrev_b32 v47, 4, v46")
    p("v_bfe_u32 v14, v46, 2, 2")
    p("v_and_b32 v15, 3, v46")
    p("v_lshl_add_u32 v47, v47, 3, v14")
    p("v_mul_u32_u24 v47, 448, v47")
    p("v_lshlrev_b32 v46, 4, v46")
    p(f"s_cmp_eq_u32 s{S_ISW2}, 1")
    p.csel(9, hex(WS_W2P), hex(WS_W1P))
    p(f"s_add_u32 s{SDST}, s{P_WS}, s9")
    p(f"s_addc_u32 s{SDST+1}, s{P_WS+1}, 0")
    p(f"s_mov_b32 s{SDST+2}, {hex(W1P_BYTES)}")
    p(f"s_mov_b32 s{SDST+3}, 0x20000")
    t = [76, 77, 78, 79]
    for m in range(4):
        ST, DST = 14, 80 + m
        p(f"s_add_u32 s{ST}, s{S_W}, {4*m}")
        p(f"s_cmp_ge_u32 s{ST}, 7")
        p(f"s_cselect_b32 s{t[0]}, 1, 0")
        p(f"s_mul_i32 s{t[1]}, s{t[0]}, 7")
        p(f"s_sub_u32 s{t[1]}, s{ST}, s{t[1]}")
        p(f"s_mul_i32 s{DST}, s{S_J}, 7")
        p(f"s_add_u32 s{DST}, s{DST}, s{t[1]}")
        p(f"s_lshl_b32 s{DST}, s{DST}, 1")
        p(f"s_add_u32 s{DST}, s{DST}, s{t[0]}")
        p(f"s_mul_i32 s{DST}, s{DST}, 14")
        p(f"s_add_u32 s{DST}, s{DST}, s{S_R}")
        p(f"s_and_b32 s9, s{ST}, 1")
        p(f"s_lshr_b32 s10, s{ST}, 1")
        p(f"s_and_b32 s11, s{S_R}, 1")
        p("s_mul_i32 s11, s11, 7")
        p("s_add_u32 s11, s11, s10")
        p(f"s_lshr_b32 s15, s{S_R}, 1")
        p("s_mul_i32 s15, s15, 7")
        p(f"s_mul_i32 s{t[0]}, s{S_J}, 196")
        p(f"s_add_u32 s15, s15, s{t[0]}")
        p(f"s_and_b32 s{t[0]}, s11, 3")
        p(f"s_mul_i32 s{t[0]}, s{t[0]}, 49")
        p(f"s_lshr_b32 s{t[1]}, s11, 2")
        p(f"s_lshl_b32 s{t[1]}, s{t[1]}, 1")
        p(f"s_add_u32 s{t[1]}, s{t[1]}, s9")
        p(f"s_add_u32 s{t[0]}, s{t[0]}, s{t[1]}")
        p(f"s_lshl_b32 s10, s10, 6")
        p(f"s_lshl_b32 s{t[1]}, s9, 3")
        p(f"s_add_u32 s{t[1]}, s{t[1]}, s10")
        p(f"s_sub_u32 s{t[2]}, s11, 12")
        p(f"s_lshl_b32 s{t[2]}, s{t[2]}, 1")
        p(f"s_add_u32 s{t[2]}, s{t[2]}, s9")
        p(f"s_mul_i32 s{t[2]}, s{t[2]}, 49")
        p(f"s_add_u32 s{t[2]}, s{t[2]}, 6")
        p(f"s_lshl_b32 s{t[3]}, s9, 5")
        p(f"s_add_u32 s{t[3]}, s{t[3]}, s10")
        p("s_cmp_lt_u32 s11, 12")
        p(f"s_cselect_b32 s{t[0]}, s{t[0]}, s{t[2]}")
        p(f"s_cselect_b32 s{t[1]}, s{t[1]}, s{t[3]}")
        p(f"s_cselect_b32 s{t[2]}, 4, 3")
        p(f"s_add_u32 s{t[0]}, s{t[0]}, s15")
        p(f"s_lshl_b32 s{t[3]}, s{ST}, 5")
        p(f"s_cmp_eq_u32 s{S_ISW2}, 1")
        p(f"s_cselect_b32 s{DST}, s{t[0]}, s{DST}")
        p(f"s_cselect_b32 s{t[1]}, s{t[1]}, s{t[3]}")
        p(f"s_cselect_b32 s{t[2]}, s{t[2]}, 3")
        p(f"s_lshl_b32 s{DST}, s{DST}, 10")
        p(f"v_lshlrev_b32 v{144+m}, s{t[2]}, v15")
        p(f"v_add3_u32 v{144+m}, v{144+m}, v47, s{t[1]}")
    mlp_setup(p)
    if 'pp' in EXP: stamp(p, 30)
    p.wait_vm("w")
    if 'pp' in EXP: stamp(p, 31)
    early_loads(p)
    p("v_lshlrev_b32 v14, 4, v0")
    for m in range(3):
        p.lg(f"ds_write_b128 v14, {v(48+4*m,4)} offset:{LB+4096*m}")
    lab = p.uid("skip3")
    p(f"s_cmp_ge_u32 s{S_W}, 2")
    p(f"s_cbranch_scc1 {lab}")
    p(f"ds_write_b128 v14, {v(60,4)} offset:{LB+4096*3}")
    p.label(lab)
    p.wait_lg()
    p("s_barrier")
    for m in range(4):
        p.lg(f"ds_read_b64_tr_b16 {v(48+4*m,2)}, v{144+m} offset:{LB}", f"t{m}")
        p.lg(f"ds_read_b64_tr_b16 {v(48+4*m+2,2)}, v{144+m} offset:{LB+4*448}", f"t{m}")
    for m in range(3):
        p.wait_lg(f"t{m}")
        p.vm(f"buffer_store_dwordx4 {v(48+4*m,4)}, v46, {sr(SDST)}, s{80+m} offen sc1", "wst")
    lab = p.uid("pk")
    p.wait_lg()
    p(f"s_cmp_ge_u32 s{S_W}, 2")
    p(f"s_cbranch_scc1 {lab}")
    p(f"buffer_store_dwordx4 {v(60,4)}, v46, {sr(SDST)}, s83 offen sc1")
    p.label(lab)
    p.srd(SF_, P_DBG, 0, 256)
    p("v_mov_b32 v47, 0")
    p.vm(f"buffer_load_dwordx2 v[150:151], v47, {sr(SF_)}, 0 offen sc1", "nonce")
    if 'pp' in EXP: stamp(p, 32)
    KF, SF, VF, AC, OP = 64, 92, 108, 124, 140
    p("v_mov_b32 v15, 0xffff0000")
    for i in range(7):
        for d in range(2):
            p(f"v_lshlrev_b32 v{KF+4*i+2*d}, 16, v{16+2*i+d}")
            p(f"v_and_b32 v{KF+4*i+2*d+1}, v15, v{16+2*i+d}")
    for e in range(4):
        for j in range(4):
            src = 38 + 2*e + (j >> 1)
            if j & 1: p(f"v_and_b32 v{SF+4*j+e}, v15, v{src}")
            else: p(f"v_lshlrev_b32 v{SF+4*j+e}, 16, v{src}")
    for i in range(4):
        for d in range(2):
            p(f"v_lshlrev_b32 v{VF+4*i+2*d}, 16, v{30+2*i+d}")
            p(f"v_and_b32 v{VF+4*i+2*d+1}, v15, v{30+2*i+d}")
    for j in range(4):
        for r in range(4):
            for e in (0, 2):
                kf = v(KF+4*(r+3-j)+e, 2); sf = v(SF+4*j+e, 2); ac = v(AC+4*r+e, 2)
                if j == 0: p(f"v_pk_mul_f32 {ac}, {kf}, {sf}")
                else: p(f"v_pk_fma_f32 {ac}, {kf}, {sf}, {ac}")
    for r in range(4):
        for e in (0, 2):
            p(f"v_pk_mul_f32 {v(AC+4*r+e,2)}, {v(AC+4*r+e,2)}, {v(VF+4*r+e,2)}")
    for e in range(4):
        p(f"v_cvt_pk_bf16_f32 v{OP+2*e}, v{AC+e}, v{AC+4+e}")
        p(f"v_cvt_pk_bf16_f32 v{OP+2*e+1}, v{AC+8+e}, v{AC+12+e}")
    if 'pp' in EXP: stamp(p, 33)
    p("v_xor_b32 v13, v1, v2")
    p("v_lshlrev_b32 v13, 3, v13")
    p("v_lshl_add_u32 v13, v1, 9, v13")
    for e in range(4):
        p.lg(f"ds_write_b64 v13, {v(OP+2*e,2)} offset:{LA+128*e}")
    p.wait_lg()
    p("s_barrier")
    p("v_lshrrev_b32 v1, 3, v0")
    p("v_and_b32 v2, 7, v0")
    p("v_lshlrev_b32 v3, 1, v2")
    p(f"s_lshl_b32 s9, s{S_CG}, 6")
    p(f"s_lshl_b32 s10, s{S_RBK}, 7")
    for pi in range(2):
        p(f"v_add_u32 v4, {32*pi}, v1")
        p("v_lshrrev_b32 v5, 2, v4")
        p("v_xor_b32 v6, v3, v5")
        p("v_xor_b32 v7, 1, v6")
        p("v_lshlrev_b32 v8, 7, v4")
        p("v_lshl_add_u32 v6, v6, 3, v8")
        p("v_lshl_add_u32 v7, v7, 3, v8")
        p.lg(f"ds_read_b64 {v(16+4*pi,2)}, v6 offset:{LA}", f"a{pi}")
        p.lg(f"ds_read_b64 {v(18+4*pi,2)}, v7 offset:{LA}", f"a{pi}")
        p("v_add_u32 v8, s9, v4")
        p("v_lshlrev_b32 v8, 12, v8")
        p("v_lshl_add_u32 v8, v2, 4, v8")
        p(f"v_add_u32 v{24+pi}, s10, v8")
    for pi in range(2):
        p.wait_lg(f"a{pi}")
        p.vm(f"buffer_store_dwordx4 {v(16+4*pi,4)}, v{24+pi}, {sr(SKVT)}, 0 offen sc1", "kvst")

HW = 160
def code_prefetch(p):
    if 'nocode' in EXP: return
    p("s_getpc_b64 s[90:91]")
    lab = p.uid("K_pc")
    p.label(lab)
    p("v_lshlrev_b32 v180, 7, v0")
    p(f"v_cmp_gt_u32 vcc, (K_end - {lab}), v180")
    p("s_and_saveexec_b64 s[10:11], vcc")
    p.vm("global_load_dword v255, v180, s[90:91]", "code")
    p("s_mov_b64 exec, s[10:11]")

def q_loads(p):
    p.srd(SF_, P_Q, 0, MAT)
    p.vm(f"buffer_load_dwordx4 {v(XP,4)}, v{OFFA}, {sr(SF_)}, 0 offen", "q")
    p.vm(f"buffer_load_dwordx4 {v(XP+4,4)}, v{OFFB}, {sr(SF_)}, 0 offen", "q")

def early_loads(p):
    SH = SF_
    p("s_lshl_b32 s9, s2, 13")
    p(f"s_add_u32 s{SH}, s{P_H}, s9"); p(f"s_addc_u32 s{SH+1}, s{P_H+1}, 0")
    p(f"s_mov_b32 s{SH+2}, 8192"); p(f"s_mov_b32 s{SH+3}, 0x20000")
    p("v_sub_u32 v176, 255, v0")
    p("v_lshlrev_b32 v176, 4, v176")
    p("v_subrev_u32 v177, 16, v176")
    for ch in range(2):
        p(f"v_add_u32 v178, {4096*ch}, v177")
        p(f"v_add_u32 v179, {4096*ch}, v176")
        p.vm(f"buffer_load_dwordx4 {v(HW+8*ch,4)}, v178, {sr(SH)}, 0 offen", "h")
        p.vm(f"buffer_load_dwordx4 {v(HW+4+8*ch,4)}, v179, {sr(SH)}, 0 offen", "h")
    if 'qlate' not in EXP: q_loads(p)

def hbuild(p):
    p("v_mov_b32 v5, 0xffff")
    p("v_cmp_ne_u32 vcc, 255, v0")
    p("v_lshlrev_b32 v6, 4, v0")
    E1, E2, O1, O2 = 32, 40, 46, 54
    for ch in range(2):
        W = HW + 8 * ch
        for d in range(4):
            p(f"v_cndmask_b32 v{W+d}, 0, v{W+d}, vcc")
        def o(dst, sidx):
            if sidx % 2 == 0:
                pz = (14 - sidx) // 2
                p(f"v_alignbit_b32 v{dst}, v{W+pz}, v{W+pz}, 16")
            else:
                p(f"v_bfi_b32 v{dst}, v5, v{W+(15-sidx)//2}, v{W+(13-sidx)//2}")
        for n in range(7): o(E1 + n, 2 * n)
        for n in range(6): o(E2 + n, 2 * n + 2)
        for n in range(7): o(O1 + n, 2 * n + 1)
        for n in range(6): o(O2 + n, 2 * n + 3)
        src = {0: E1, 4: E1 + 2, 2: E2, 6: E2 + 2, 1: O1, 5: O1 + 2, 3: O2, 7: O2 + 2}
        for c in range(8):
            p.lg(f"ds_write_b128 v6, {v(src[c],4)} offset:{ch*HC_CH + c*HC_COPY}")
        p("s_nop 1")
    for r in range(4): p(f"v_mov_b32 v{60+r}, 0")
    p("v_and_b32 v7, 15, v0")
    p(f"v_mul_u32_u24 v7, {HC_COPY}, v7")
    p("v_add_u32 v7, 4096, v7")
    p("v_and_b32 v8, 31, v0")
    p("v_lshlrev_b32 v8, 4, v8")
    p("v_bfe_u32 v9, v0, 5, 1")
    p(f"v_mul_u32_u24 v9, {U_CH}, v9")
    p(f"s_mov_b32 s9, {L_U}")
    p("v_add3_u32 v8, v8, v9, s9")
    p.lg(f"ds_write_b128 v7, {v(60,4)}")
    p.lg(f"ds_write_b128 v8, {v(60,4)}")

_w2 = [x for x in EXP if x.startswith('w2_')]
W20, W2A = (int(_w2[0].split('_')[1]), int(_w2[0].split('_')[2])) if _w2 else (12, 49)
W2B = 49
def w2_items(SW2):
    G = []
    for f in range(49):
        it = []
        base = f - f % 4
        if f % 4 == 0 or f in (W20, W2A, W2B): it.append((f"s_mov_b32 s15, {1024*base}", "", None))
        it.append((f"buffer_load_dwordx4 {a(4*f,4)}, v{V_L16}, {sr(SW2)}, s15 offen offset:{1024*(f%4)} {'sc1 nt' if 'wnt2' in EXP else 'sc1'}", "vm", "w2"))
        G.append(it)
    return G

def load_w2(p, SW2):
    for f in range(49):
        if f % 4 == 0: p(f"s_mov_b32 s9, {1024*f}")
        p.vm(f"buffer_load_dwordx4 {a(4*f,4)}, v{V_L16}, {sr(SW2)}, s9 offen offset:{1024*(f%4)} sc1", "w2")

def conv_main(p):
    ACC, FA, FB = 72, 96, 16
    fb = lambda buf, m: (16 + 28 * buf + 4 * m) if m < 7 else (160 + 4 * buf)
    p("v_and_b32 v1, 63, v0")
    p("v_and_b32 v2, 15, v1")
    p("v_lshrrev_b32 v3, 4, v1")
    p("v_and_b32 v4, 7, v2")
    p("v_sub_u32 v4, 7, v4")
    p(f"v_mul_u32_u24 v4, {HC_COPY}, v4")
    p("v_lshrrev_b32 v5, 3, v2")
    p("v_sub_u32 v5, v3, v5")
    p("v_add_u32 v5, 1, v5")
    p("v_lshl_add_u32 v4, v5, 4, v4")
    p(f"s_mul_i32 s9, s{S_B}, {HC_CH}")
    p("v_add_u32 v12, s9, v4")
    p(f"s_mul_i32 s9, s{S_B}, {U_CH}")
    p(f"s_add_u32 s9, s9, {L_U + 512 - 32 - 64*7}")
    p("v_lshlrev_b32 v5, 5, v2")
    p("v_lshl_add_u32 v5, v3, 4, v5")
    p("v_add_u32 v13, s9, v5")
    set1 = p.uid("cset1"); join = p.uid("cjoin")
    p(f"s_cmp_eq_u32 s{S_A}, 1")
    p(f"s_cbranch_scc1 {set1}")
    for st, tiles in ((0, (0, 3, 4, 7)), (1, (1, 2, 5, 6))):
        if st == 1: p.label(set1)
        mx = max(tiles)
        def reads(rho, buf):
            L = []
            for m in range(mx + 1):
                L.append((f"ds_read_b128 {v(FA+32*buf+4*m,4)}, v12 offset:{512*(7-m)+64*(7-rho)}", "lg", f"r{rho}_{m}"))
                L.append((f"ds_read_b128 {v(fb(buf,m),4)}, v13 offset:{512*m+64*(7-rho)}", "lg", f"r{rho}_{m}"))
            return L
        saved_vm = list(p.vmq)
        w2 = w2_items(SE)[W20:W2A] if 'now2' not in EXP else []
        for it in reads(0, 0): emit(p, it)
        first = set()
        for rho in range(8):
            buf = rho & 1
            nxt = reads(rho + 1, buf ^ 1) if rho < 7 else []
            mf = sorted([(max(mu, nt - mu), ti, nt, mu) for ti, nt in enumerate(tiles) for mu in range(nt + 1)])
            M = []; seen = -1
            for (mm, ti, nt, mu) in mf:
                c = v(ACC+4*ti,4) if ti in first else "0"
                first.add(ti)
                t = f"v_mfma_f32_16x16x32_bf16 {v(ACC+4*ti,4)}, {v(FA+32*buf+4*mu,4)}, {v(fb(buf,nt-mu),4)}, {c}"
                w = []
                if mm > seen: w.append((None, "wlg", f"r{rho}_{mm}")); seen = mm
                M.append((t, w))
            N = {}
            for i, it in enumerate(nxt): N.setdefault(i, []).append(it)
            slots = [3, 6, 9, 12, 15, 17]
            per = -(-(W2A - W20) // 7) if 'w2early' not in EXP else 6
            slots = {6: slots, 5: [3, 7, 10, 13, 16], 4: [4, 8, 12, 16], 3: [5, 10, 15], 2: [6, 13], 1: [9]}[per]
            for q_ in range(per if rho < 7 else 0):
                if w2: N.setdefault(slots[q_], []).extend(w2.pop(0))
            schedule(p, M, [], N)
        assert not w2
        p.vmq = saved_vm + ["w2"]
        p("s_barrier")
        p(f"s_mul_i32 s9, s{S_B}, {U_CH}")
        p(f"s_add_u32 s9, s9, {L_U + 512}")
        p("v_lshlrev_b32 v5, 5, v2")
        p("v_lshl_add_u32 v5, v3, 3, v5")
        p("v_add_u32 v6, s9, v5")
        p(f"s_mul_i32 s9, s{S_B}, {YS_CH}")
        p("v_add_u32 v7, s9, v5")
        for ti, nt in enumerate(tiles):
            p.lg(f"ds_read_b64 {v(FA+2*ti,2)}, v6 offset:{512*nt}", f"u{ti}")
        p("v_mov_b32 v8, 0xffff0000")
        for ti, nt in enumerate(tiles):
            p.wait_lg(f"u{ti}")
            u = FA + 2 * ti; t = 16 + 4 * ti
            p(f"v_lshlrev_b32 v{t}, 16, v{u}")
            p(f"v_and_b32 v{t+1}, v8, v{u}")
            p(f"v_lshlrev_b32 v{t+2}, 16, v{u+1}")
            p(f"v_and_b32 v{t+3}, v8, v{u+1}")
            for r in range(4):
                p(f"v_fma_f32 v{t+r}, v{t+r}, s14, v{ACC+4*ti+r}")
            p(f"v_cvt_pk_bf16_f32 v{t}, v{t}, v{t+1}")
            p(f"v_cvt_pk_bf16_f32 v{t+1}, v{t+2}, v{t+3}")
            p.lg(f"ds_write_b64 v7, {v(t,2)} offset:{512*nt}")
        p.wait_lg()
        if st == 0: p(f"s_branch {join}")
    p.label(join)
    p("s_barrier")

def conv_out(p, SY):
    p("v_and_b32 v1, 3, v0")
    p("v_lshrrev_b32 v2, 2, v0")
    p("v_lshrrev_b32 v3, 1, v1")
    p("v_and_b32 v4, 1, v1")
    p(f"v_mul_u32_u24 v3, {YS_CH}, v3")
    p("v_lshl_add_u32 v3, v4, 4, v3")
    p("v_lshl_add_u32 v3, v2, 5, v3")
    p.lg("ds_read_b128 v[16:19], v3", "y0")
    p.lg(f"ds_read_b128 v[20:23], v3 offset:{64*32}", "y1")
    p(f"v_mul_u32_u24 v5, {D*32}, v2")
    p("v_lshl_add_u32 v5, v1, 4, v5")
    p("s_lshl_b32 s9, s2, 6")
    p("v_add_u32 v5, s9, v5")
    p(f"v_add_u32 v6, {64*D*32}, v5")
    p.wait_lg("y0")
    p.vm(f"buffer_store_dwordx4 v[16:19], v5, {sr(SY)}, 0 offen sc1", "yst")
    p.wait_lg("y1")
    p.vm(f"buffer_store_dwordx4 v[20:23], v6, {sr(SY)}, 0 offen sc1", "yst")

X, T, PK, TMP = 16, 32, 64, 72
YT = 96
def row_setup(p):
    p("v_and_b32 v181, 31, v0")
    p("v_lshrrev_b32 v182, 5, v0")
    p(f"v_cmp_gt_u32 {ACT}, 28, v181")
    p(f"v_mul_u32_u24 v183, {ROWB}, v182")
    p("v_lshl_add_u32 v183, v181, 4, v183")
    p(f"s_mul_i32 s9, s{S_RB}, {8*ROWB}")
    p("v_add_u32 v183, s9, v183")
    p(f"v_cndmask_b32 v{OFFA}, -1, v183, {ACT}")
    p("v_add_u32 v183, 448, v183")
    p(f"v_cndmask_b32 v{OFFB}, -1, v183, {ACT}")

def unpack(p, dst, src, n):
    for i in range(n):
        p(f"v_lshlrev_b32 v{dst+2*i}, 16, v{src+i}")
        p(f"v_and_b32 v{dst+2*i+1}, v7, v{src+i}")
def pack(p, dst, src, n):
    for i in range(n):
        p(f"v_cvt_pk_bf16_f32 v{dst+i}, v{src+2*i}, v{src+2*i+1}")
def allreduce32(p, r, t):
    for m in ("quad_perm:[1,0,3,2]", "quad_perm:[2,3,0,1]", "row_half_mirror", "row_mirror"):
        p(f"v_add_f32_dpp v{r}, v{r}, v{r} {m} row_mask:0xf bank_mask:0xf")
    p(f"v_mov_b32 v{t}, v{r}")
    p(f"v_permlane16_swap_b32 v{r}, v{t}")
    p(f"v_add_f32 v{r}, v{r}, v{t}")
def sum16(p, dst, src):
    p(f"v_pk_add_f32 {v(TMP,2)}, {v(src,2)}, {v(src+2,2)}")
    p(f"v_pk_add_f32 {v(TMP+2,2)}, {v(src+4,2)}, {v(src+6,2)}")
    p(f"v_pk_add_f32 {v(TMP+4,2)}, {v(src+8,2)}, {v(src+10,2)}")
    p(f"v_pk_add_f32 {v(TMP+6,2)}, {v(src+12,2)}, {v(src+14,2)}")
    p(f"v_pk_add_f32 {v(TMP,2)}, {v(TMP,2)}, {v(TMP+2,2)}")
    p(f"v_pk_add_f32 {v(TMP+4,2)}, {v(TMP+4,2)}, {v(TMP+6,2)}")
    p(f"v_pk_add_f32 {v(TMP,2)}, {v(TMP,2)}, {v(TMP+4,2)}")
    p(f"v_add_f32 v{dst}, v{TMP}, v{TMP+1}")
    p(f"v_cndmask_b32 v{dst}, 0, v{dst}, {ACT}")
def layernorm(p, src, dst, scale=None):
    M, V_ = TMP + 8, TMP + 10
    sum16(p, M, src)
    allreduce32(p, M, TMP + 9)
    p(f"v_mul_f32 v{M}, {fbits(-1.0/D)}, v{M}")
    p(f"v_mov_b32 v{M+1}, v{M}")
    for i in range(0, 16, 2):
        p(f"v_pk_add_f32 {v(dst+i,2)}, {v(src+i,2)}, {v(M,2)}")
    p(f"v_pk_mul_f32 {v(TMP,2)}, {v(dst,2)}, {v(dst,2)}")
    p(f"v_pk_mul_f32 {v(TMP+2,2)}, {v(dst+2,2)}, {v(dst+2,2)}")
    for i in range(4, 16, 4):
        p(f"v_pk_fma_f32 {v(TMP,2)}, {v(dst+i,2)}, {v(dst+i,2)}, {v(TMP,2)}")
        p(f"v_pk_fma_f32 {v(TMP+2,2)}, {v(dst+i+2,2)}, {v(dst+i+2,2)}, {v(TMP+2,2)}")
    p(f"v_pk_add_f32 {v(TMP,2)}, {v(TMP,2)}, {v(TMP+2,2)}")
    p(f"v_add_f32 v{V_}, v{TMP}, v{TMP+1}")
    p(f"v_cndmask_b32 v{V_}, 0, v{V_}, {ACT}")
    allreduce32(p, V_, TMP + 11)
    p(f"v_mov_b32 v{V_+1}, {fbits(1e-5)}")
    p(f"v_fmac_f32 v{V_+1}, {fbits(1.0/D)}, v{V_}")
    p(f"v_rsq_f32 v{V_}, v{V_+1}")
    if scale is not None: p(f"v_mul_f32 v{V_}, {fbits(scale)}, v{V_}")
    else: p("s_nop 0")
    p(f"v_mov_b32 v{V_+1}, v{V_}")
    for i in range(0, 16, 2):
        p(f"v_pk_mul_f32 {v(dst+i,2)}, {v(dst+i,2)}, {v(V_,2)}")

def y_load(p, SY):
    p(f"s_lshr_b32 s9, s{S_RB}, 1")
    p(f"s_mul_i32 s9, s9, {D*32}")
    p(f"s_and_b32 s10, s{S_RB}, 1")
    p("s_lshl_b32 s10, s10, 4")
    p("s_add_u32 s9, s9, s10")
    p("v_lshlrev_b32 v3, 5, v0")
    p("v_add_u32 v3, s9, v3")
    p(f"v_add_u32 v4, {256*32}, v3")
    p("v_cmp_gt_u32 vcc, 192, v0")
    p("v_cndmask_b32 v4, -1, v4, vcc")
    p.vm(f"buffer_load_dwordx4 {v(YT,4)}, v3, {sr(SY)}, 0 offen sc1", "y")
    p.vm(f"buffer_load_dwordx4 {v(YT+4,4)}, v4, {sr(SY)}, 0 offen sc1", "y")

def y_transpose(p):
    p("v_lshlrev_b32 v3, 2, v0")
    p.wait_vm("y")
    for wq in range(4):
        p.lg(f"ds_write_b32 v3, v{YT+wq} offset:{LY+2048*wq}")
        p.lg(f"ds_write_b32 v3, v{YT+4+wq} offset:{LY+2048*wq+1024}")
    p.wait_lg()
    p("s_barrier")
    p("v_and_b32 v1, 31, v0")
    p("v_lshrrev_b32 v4, 6, v0")
    p("v_lshlrev_b32 v4, 11, v4")
    p("v_lshl_add_u32 v4, v1, 5, v4")
    for k in range(2):
        p.lg(f"ds_read_b128 {v(YT+8*k,4)}, v4 offset:{LY+896*k}")
        p.lg(f"ds_read_b128 {v(YT+8*k+4,4)}, v4 offset:{LY+896*k+16}")
    p("v_bfe_u32 v5, v0, 5, 1")
    p("v_mov_b32 v6, 0x01000c0c")
    p("v_mov_b32 v3, 0x03020c0c")
    p("v_cmp_eq_u32 vcc, 1, v5")
    p("v_cndmask_b32 v6, v6, v3, vcc")
    p.wait_lg()
    for i in range(16):
        p(f"v_perm_b32 v{YV+i}, v{YT+i}, v{YT+i}, v6")

def poll_s2(p):
    lab = p.uid("s2"); done = p.uid("s2d"); skip = p.uid("s2s")
    p("v_and_b32 v1, 63, v0")
    p("s_and_b32 s9, s2, 7"); p("s_lshl_b32 s9, s9, 11"); p(f"s_add_u32 s9, s9, {FL_S2R}")
    for i in range(4):
        p(f"v_lshl_add_u32 v{12+i}, v1, 3, s9")
        if i: p(f"v_add_u32 v{12+i}, {512*i}, v{12+i}")
    p("v_and_b32 v48, 7, v0")
    p(f"s_lshl_b32 s9, s{S_CL}, 6")
    p(f"s_add_u32 s9, s9, {FL_XCC}")
    p("v_lshl_add_u32 v48, v48, 3, s9")
    p(f"s_cmp_eq_u32 s{S_W}, 0")
    p(f"s_cbranch_scc0 {skip}")
    if 's2st' in EXP:
        p("s_waitcnt vmcnt(0)"); stamp(p, 41)
    p(f"s_mov_b32 s{S_T}, 0")
    p.label(lab)
    masks = [64, 64, 64, 32]
    for i in range(4):
        setexec(p, masks[i])
        p(f"buffer_load_dwordx2 {v(2+2*i,2)}, v{12+i}, {sr(S_FL)}, 0 offen sc1")
    p("s_mov_b64 exec, -1")
    p(f"buffer_load_dwordx2 v[10:11], v48, {sr(S_FL)}, 0 offen sc1")
    p("s_waitcnt vmcnt(0)")
    p(f"v_subrev_u32 v10, s{S_N}, v10")
    p(f"v_cmp_eq_u32 vcc, s{S_N+1}, v11")
    p("v_cmp_gt_u32 s[10:11], 16, v10")
    p("s_nop 4")
    p("s_and_b64 vcc, vcc, s[10:11]")
    p("s_cmp_eq_u64 vcc, exec")
    p("s_cselect_b32 s9, 1, 0")
    for i in range(4):
        setexec(p, masks[i])
        p(f"v_cmp_eq_u64 vcc, {s(S_N,2)}, {v(2+2*i,2)}")
        p("s_nop 4")
        p("s_cmp_eq_u64 vcc, exec")
        p("s_cselect_b32 s9, s9, 0")
    p("s_mov_b64 exec, -1")
    p("s_cmp_eq_u32 s9, 1")
    p(f"s_cbranch_scc1 {done}")
    p(f"s_add_u32 s{S_T}, s{S_T}, 1")
    p(f"s_cmp_lt_u32 s{S_T}, {hex(SPIN_MAX)}")
    p(f"s_cbranch_scc0 {done}")
    p("s_sleep 1")
    p(f"s_branch {lab}")
    p.label(done)
    if 's2st' in EXP:
        p(f"v_writelane_b32 v253, s{S_T}, 42"); p(f"v_writelane_b32 v252, s{S_T}, 43"); p(f"v_writelane_b32 v253, s{S_T}, 43")
    p("s_getreg_b32 s9, hwreg(HW_REG_XCC_ID, 0, 4)")
    p("v_cmp_eq_u32 vcc, s9, v10")
    p("s_nop 4")
    p("s_cmp_eq_u64 vcc, exec")
    p("s_cselect_b32 s9, 1, 0")
    if FORCE_SLOW: p("s_mov_b32 s9, 0")
    p("v_mov_b32 v2, s9")
    p(f"v_mov_b32 v3, {L_FASTW}")
    p("ds_write_b32 v3, v2")
    p("s_waitcnt lgkmcnt(0)")
    p.label(skip)
    p("s_barrier")
    p.vmq = []; p.lgq = []
    p(f"v_mov_b32 v3, {L_FASTW}")
    p.lg("ds_read_b32 v49, v3", "fw")

def fast_get(p):
    p.wait_lg("fw")
    p(f"v_readfirstlane_b32 s{S_FAST}, v49")

PB_ = 96
def partials_prelude(p):
    p("v_and_b32 v1, 31, v0")
    p("v_lshrrev_b32 v2, 5, v0")
    p(f"s_mul_i32 s9, s{S_MEM}, {8*ROWB}")
    p(f"v_mul_u32_u24 v3, {ROWB}, v2")
    p("v_lshl_add_u32 v3, v1, 4, v3")
    p("v_add_u32 v3, s9, v3")
    p(f"v_cndmask_b32 v12, -1, v3, {ACT}")
    p("v_add_u32 v3, 448, v3")
    p(f"v_cndmask_b32 v13, -1, v3, {ACT}")

def add_partials(p):
    for j in range(8):
        if j % 4 == 0: p(f"s_mov_b32 s9, {j*64*ROWB}")
        else: p(f"s_add_u32 s9, s9, {64*ROWB}")
        p.vm(f"buffer_load_dwordx4 {v(PB_+8*j,4)}, v12, {sr(S_PR)}, s9 offen sc1", f"p{j}")
        p.vm(f"buffer_load_dwordx4 {v(PB_+8*j+4,4)}, v13, {sr(S_PR)}, s9 offen sc1", f"p{j}")
    lab = p.uid("pf2")
    p(f"s_cmp_eq_u32 s{S_LAY}, 0"); p(f"s_cbranch_scc0 {lab}")
    for g_ in dma_w1_items(0 if 'pfb' in EXP else 2, "pf2"):
        for it in g_: p(it[0])
    p.label(lab)
    p("v_mov_b32 v7, 0xffff0000")
    p("v_mov_b32 v14, 0x00003f80")
    p("v_mov_b32 v15, 0x3f800000")
    unpack(p, X, XP, 8)
    for i in range(16): p(f"v_mov_b32 v{T+i}, 0")
    p(f"v_mov_b32 v{TMP}, {fbits(LN2)}"); p(f"v_mov_b32 v{TMP+1}, {fbits(LN2)}")
    for j in range(8):
        p.wait_vm(f"p{j}")
        for i in range(8):
            p(f"v_dot2c_f32_bf16 v{T+2*i}, v{PB_+8*j+i}, v14")
            p(f"v_dot2c_f32_bf16 v{T+2*i+1}, v{PB_+8*j+i}, v15")
    for i in range(0, 16, 2):
        p(f"v_pk_fma_f32 {v(X+i,2)}, {v(T+i,2)}, {v(TMP,2)}, {v(X+i,2)}")

def xh(phi):
    return a(196 + 4 * phi, 4) if phi < 15 else v(148 + 4 * (phi - 15), 4)

def mlp_setup(p):
    row_setup(p)
    p("v_and_b32 v181, 63, v0")
    p("v_and_b32 v182, 15, v181")
    p("v_lshrrev_b32 v183, 4, v181")
    p(f"s_mul_i32 s9, s{S_A}, 14336")
    p(f"s_add_u32 s9, s9, {L_RING}")
    p(f"v_lshl_add_u32 v{V_A}, v181, 4, s9")
    p(f"v_add_u32 v{V_A2}, {2*CHUNK}, v{V_A}")
    p(f"s_lshl_b32 s9, s{S_B}, 5")
    p("v_add_u32 v184, s9, v182")
    p(f"v_mul_u32_u24 v184, {SH_}, v184")
    p("v_bfe_u32 v185, v182, 1, 2")
    p("v_lshrrev_b32 v186, 1, v183")
    p("v_xor_b32 v186, v186, v185")
    p("v_lshl_add_u32 v184, v186, 4, v184")
    p("v_and_b32 v186, 1, v183")
    p("v_lshl_add_u32 v184, v186, 3, v184")
    p("v_xor_b32 v186, 32, v184")
    p(f"s_cmp_eq_u32 s{S_A}, 1")
    p("s_cselect_b64 vcc, -1, 0")
    p("v_add_u32 v187, 192, v186")
    p(f"v_cndmask_b32 v{V_HW}, v184, v187, vcc")
    p("v_add_u32 v187, 256, v184")
    p(f"v_cndmask_b32 v{V_HW1}, v186, v187, vcc")
    p(f"v_mul_u32_u24 v184, {SH_}, v182")
    p("v_xor_b32 v185, v185, v183")
    p(f"v_lshl_add_u32 v{V_HR}, v185, 4, v184")
    p(f"v_subrev_u32 v{V_A3}, {L_RING - CHUNK}, v{V_A}")
    p(f"v_lshlrev_b32 v{V_L16}, 4, v181")
    p(f"v_mul_u32_u24 v184, {ROWB}, v182")
    p(f"s_lshl_b32 s9, s{S_W}, 6")
    p("v_lshl_add_u32 v185, v183, 4, v184")
    p(f"v_add_u32 v{V_PO}, s9, v185")
    p(f"s_add_u32 s9, s{S_A}, 12")
    p("s_lshl_b32 s9, s9, 6")
    p(f"s_lshl_b32 s10, s{S_B}, 5")
    p("s_add_u32 s9, s9, s10")
    p("v_lshl_add_u32 v185, v183, 3, v184")
    p(f"v_add_u32 v{V_PO1}, s9, v185")
    x_dma_setup(p)

XD1 = [200, 201, 209, 210, 211, 212, 213, 214]
XD2 = [215, 216, 217, 220, 221, 222]
XR1, XR2 = 108, 112
L_X2 = L_X + 64 * 512
def x_dma_setup(p):
    p("v_and_b32 v181, 63, v0")
    p("v_lshrrev_b32 v182, 5, v181")
    p("v_and_b32 v183, 31, v181")
    for i in range(8):
        p(f"v_add_u32 v184, {2*i}, v182")
        p("v_xor_b32 v185, v183, v184")
        p(f"v_mul_u32_u24 v184, {ROWB}, v184")
        p(f"v_lshl_add_u32 v{XD1[i]}, v185, 4, v184")
    for i in range(6):
        p(f"v_add_u32 v184, {64*i}, v181")
        p("v_mul_u32_u24 v185, 2731, v184")
        p("v_lshrrev_b32 v185, 16, v185")
        p("v_mul_u32_u24 v186, 24, v185")
        p("v_sub_u32 v186, v184, v186")
        p("v_and_b32 v184, 6, v185")
        p("v_xor_b32 v186, v186, v184")
        p(f"v_mul_u32_u24 v185, {ROWB}, v185")
        p("v_lshl_add_u32 v185, v186, 4, v185")
        p(f"v_add_u32 v{XD2[i]}, 512, v185")

def x_read_setup(p):
    p("v_and_b32 v1, 63, v0")
    p("v_and_b32 v2, 15, v1")
    p("v_lshrrev_b32 v3, 4, v1")
    p(f"s_lshl_b32 s9, s{S_B}, 5")
    p("v_add_u32 v4, s9, v2")
    p("v_and_b32 v5, 3, v2")
    p("v_xor_b32 v5, v5, v3")
    p("v_lshlrev_b32 v5, 4, v5")
    p("v_lshl_add_u32 v5, v4, 9, v5")
    p("v_lshrrev_b32 v6, 2, v2")
    for r in range(4):
        p(f"v_xor_b32 v8, {r}, v6")
        p(f"v_lshl_add_u32 v{XR1+r}, v8, 6, v5")
    p("v_and_b32 v5, 2, v2")
    p("v_xor_b32 v5, v5, v3")
    p("v_lshlrev_b32 v5, 4, v5")
    p("v_mul_u32_u24 v4, 384, v4")
    p("v_add_u32 v5, v5, v4")
    p(f"v_add_u32 v5, {L_X2}, v5")
    p("v_and_b32 v6, 1, v6")
    p(f"v_lshl_add_u32 v{XR2}, v6, 6, v5")
    p("v_xor_b32 v6, 1, v6")
    p(f"v_lshl_add_u32 v{XR2+1}, v6, 6, v5")

def dma_x(p):
    p(f"s_lshl_b32 s9, s{S_W}, 13")
    p(f"s_mul_i32 s10, s{S_W}, {16*384}")
    for i in range(8):
        p(f"s_add_u32 m0, s9, {L_X + 1024*i}")
        p.vm(f"buffer_load_dwordx4 v{XD1[i]}, {sr(S_X)}, s{S_W14} offen sc1 lds", "x1")
    for i in range(6):
        p(f"s_add_u32 m0, s10, {L_X2 + 1024*i}")
        p.vm(f"buffer_load_dwordx4 v{XD2[i]}, {sr(S_X)}, s{S_W14} offen sc1 lds", "x2")

def dma_w1_items(chunk, tag, g=12):
    G = []
    for i in range(7):
        it = []
        if i in (0, 4):
            o = 4096 if i else 0
            it += [(f"s_add_u32 m0, s{S_W7}, {slot_base(chunk) + o}", "", None),
                   (f"s_add_u32 s{g}, s{S_W7}, {chunk * CHUNK + o}", "", None)]
        it.append((f"buffer_load_dwordx4 v{V_L16}, {sr(S_W1)}, s{g} offen offset:{1024*(i%4)} {'sc1 nt' if 'wnt1' in EXP else 'sc1'} lds", "vm", tag))
        G.append(it)
    return G

def dma_w1(p, chunk, tag):
    p(f"s_mul_i32 s9, s{S_W}, 7168")
    p(f"s_add_u32 s10, s9, {L_RING + (chunk % 3) * CHUNK}")
    p(f"s_add_u32 s9, s9, {chunk * CHUNK}")
    for grp, cnt in ((0, 4), (4, 3)):
        if grp:
            p("s_add_u32 s10, s10, 4096"); p("s_add_u32 s9, s9, 4096")
        p("s_mov_b32 m0, s10")
        for i in range(cnt):
            p.vm(f"buffer_load_dwordx4 v{V_L16}, {sr(S_W1)}, s9 offen offset:{1024*i} sc1 lds", tag)

def cost(t):
    op = t.split()[0]
    if op.startswith(("v_exp", "v_rcp", "v_rsq")): return 8
    if op.startswith("v_"): return 4
    return 0

def emit(p, item):
    t, kind, tag = item
    if kind == "lg": p.lg(t, tag)
    elif kind == "vm": p.vm(t, tag)
    elif kind == "wlg": p.wait_lg(tag)
    elif kind == "wvm": p.wait_vm(tag)
    else: p(t)

def schedule(p, M, V=(), N=None, vstart=0, vend=None):
    N = N or {}
    vend = len(M) if vend is None else vend
    total = sum(cost(x[0]) for x in V)
    done, cum = 0, 0
    for i, m in enumerate(M):
        if isinstance(m, tuple):
            for w in m[1]: emit(p, w)
            m = m[0]
        p(m)
        for it in N.get(i, []): emit(p, it)
        if i >= vstart and done < len(V):
            last = (i >= vend - 1)
            target = total * (i - vstart + 1) / max(1, vend - vstart)
            while done < len(V) and (last or cum + cost(V[done][0]) / 2 <= target):
                cum += cost(V[done][0]); emit(p, V[done]); done += 1
    while done < len(V):
        emit(p, V[done]); done += 1

def interleave(p, M, O, first=0):
    n = len(M) - first
    done = 0
    for i, m in enumerate(M):
        p(m)
        if i >= first:
            want = (len(O) * (i - first + 1) + n - 1) // n
            while done < want:
                t, kind, tag = O[done]; done += 1
                if kind == "lg": p.lg(t, tag)
                elif kind == "vm": p.vm(t, tag)
                else: p(t)

FA, AC1, ST_, HO = 16, 72, 96, 104
def silu_stages(T):
    z = AC1 + 8 * (T % 3); t = ST_
    E = [(f"v_exp_f32_e64 v{t+r}, -v{z+r}", "", None) for r in range(8)]
    A = [(f"v_add_f32 v{t+r}, 1.0, v{t+r}", "", None) for r in range(8)]
    C = [(f"v_rcp_f32 v{t+r}, v{t+r}", "", None) for r in range(8)]
    M = [(f"v_mul_f32 v{t+r}, v{z+r}, v{t+r}", "", None) for r in range(8)]
    V = []
    for nt in range(2):
        V.append((f"v_cvt_pk_bf16_f32 v{HO+2*nt}, v{t+4*nt}, v{t+4*nt+1}", "", None))
        V.append((f"v_cvt_pk_bf16_f32 v{HO+2*nt+1}, v{t+4*nt+2}, v{t+4*nt+3}", "", None))
    W = [(f"ds_write_b64 v{V_HW1 if T & 1 else V_HW}, {v(HO+2*nt,2)} offset:{L_X + nt*16*SH_ + 64*(T>>1)}", "lg", "hw") for nt in range(2)]
    return E, A, C, M, V, W

def gemm1(p):
    def areads(h):
        T, half, buf = h >> 1, h & 1, h & 1
        if T == 3: base, o = V_A3, 0
        else:
            sl = T if T < 3 else T - 4
            base, o = (V_A, sl * CHUNK) if sl < 2 else (V_A2, 0)
        return [(f"ds_read_b128 {v(FA+28*buf+4*i,4)}, v{base} offset:{o + 1024*(7*half+i)}", "lg", f"g{h}") for i in range(7)]
    p.wait_vm("x1")
    p("s_barrier")
    stamp(p, 12, True)
    def xread(k, nt):
        if k < 8: return (f"ds_read_b128 {xh(2*k+nt)}, v{XR1 + (k & 3)} offset:{L_X + 256*(k>>2) + nt*16*512}", "lg", f"x{k}")
        kk = k - 8
        return (f"ds_read_b128 {xh(2*k+nt)}, v{XR2 + (kk & 1)} offset:{128*(kk>>1) + nt*16*384}", "lg", f"x{k}")
    a0 = areads(0)
    for k in range(7):
        t, kind, _ = a0[k]
        emit(p, (t, kind, f"a0_{k}")); emit(p, xread(k, 0)); emit(p, xread(k, 1))
    silu = 'nosilu' not in EXP
    for h in range(14):
        T, half, buf = h >> 1, h & 1, h & 1
        nxt = areads(h + 1) if h < 13 else []
        pre = [[] for _ in range(14)]
        val = [[] for _ in range(14)]
        post = [[] for _ in range(14)]
        for i, it in enumerate(nxt): pre[i].append(it)
        if h == 0:
            pre[0].append(xread(7, 0)); pre[1].append(xread(7, 1))
            pre[2] += [(None, "wvm", "x2"), ("s_barrier", "", None)]
            extra = [xread(k, nt) for k in range(8, 14) for nt in range(2)]
            for i in range(12): pre[2 + i].append(extra[i])
            if 'pfb' in EXP:
                for g_, grp in zip((3, 5, 6, 8, 9, 11, 12), dma_w1_items(2, "c2")):
                    sal = [x for x in grp if x[1] == ""]; dm = [x for x in grp if x[1] == "vm"]
                    pre[g_] = sal + pre[g_] + dm
            if 'pwX' in EXP or 'pwH' in EXP:
                lab = p.uid("pwx")
                grp = [(f"s_cmp_eq_u32 s{S_LAY}, 0", "", None), (f"s_cbranch_scc0 {lab}", "", None)]
                for i in range(14):
                    if i % 4 == 0: grp.append((f"s_add_u32 s12, s{S_W14}, {1024*i}", "", None))
                    grp.append((f"buffer_load_dwordx4 v[124:127], v{V_L16}, {sr(S_PW)}, s12 offen offset:{1024*(i%4)}", "", None))
                grp.append((f"{lab}:", "", None))
                pre[3] = pre[3] + grp
        if 1 <= h <= 8 and 'nodma1' not in EXP:
            c = 3 + (h - 1) // 2
            grps = dma_w1_items(c, f"c{c}")
            grps = grps[:4] if h & 1 else grps[4:]
            at = [1, 4, 8, 11] if h & 1 else [2, 6, 10]
            for g_, grp in zip(at, grps):
                sal = [x for x in grp if x[1] == ""]; dm = [x for x in grp if x[1] == "vm"]
                pre[g_] = sal + pre[g_] + dm
        if 9 <= h <= 13 and 'noldwc' not in EXP and not any(x in ('pwX', 'pwY') for x in EXP) and 'pw7' not in EXP:
            first = 3 * (h - 9)
            for g_, i in zip((1, 5, 9), range(first, min(first + 3, 14))):
                pre[g_] = [(f"s_add_u32 s12, s{S_W14}, {1024*i}", "", None)] + pre[g_] + [(f"buffer_load_dwordx4 v[124:127], v{V_L16}, {sr(S_PW)}, s12 offen {'sc1' if 'pwsc1' in EXP else ('nt' if 'pwnt' in EXP else '')}", "vm", "pw")]
        if 7 <= h <= 13 and 'pw7' in EXP:
            first = 2 * (h - 7)
            for g_, i in zip((3, 9), range(first, min(first + 2, 14))):
                pre[g_] = [(f"s_add_u32 s13, s{S_W14}, {1024*i}", "", None)] + pre[g_] + [(f"buffer_load_dwordx4 v[124:127], v{V_L16}, {sr(S_PW)}, s13 offen", "vm", "pw")]
        if silu:
            if half == 0 and T >= 2:
                E, A, C, M, V, W = silu_stages(T - 2)
                seq = M + V
                order = [2, 2, 2, 2, 2, 1, 1]
                for g_, cnt in enumerate(order):
                    for _ in range(cnt): val[g_].append(seq.pop(0))
                pre[7].append(W[0]); pre[9].append(W[1])
            if half == 0 and T >= 1:
                E = silu_stages(T - 1)[0]
                for r in range(7): val[7 + r].append(E[r])
                val[13].append(E[7])
            if half == 1 and T >= 1:
                E, A, C, M, V, W = silu_stages(T - 1)
                for r in range(7): val[r].append(A[r])
                val[6].append(A[7])
                for r in range(7): val[7 + r].append(C[r])
                val[13].append(C[7])
        if h < 13:
            w = [(None, "wlg", f"g{h+1}")]
            if h == 0: w.append((None, "wlg", "x13"))
            if half == 0 and (2 if 'pfb' in EXP else 3) <= T + 1 <= 6: w.append((None, "wvm", f"c{T+1}"))
            pre[13] = w + pre[13] if h != 0 else pre[13] + w
        for q_ in range(14):
            i, nt = q_ >> 1, q_ & 1
            k = 7 * half + i
            if h == 0 and nt == 0:
                p.wait_lg(f"a0_{i}"); p.wait_lg(f"x{k}")
            acc = v(AC1 + 8 * (T % 3) + 4 * nt, 4)
            p(f"v_mfma_f32_16x16x32_bf16 {acc}, {v(FA+28*buf+4*i,4)}, {xh(2*k+nt)}, {'0' if k == 0 else acc}")
            for it in pre[q_] + val[q_] + post[q_]: emit(p, it)
        if half == 0 and 'nobar1' not in EXP: p("s_barrier")
        if 'tt' in EXP: p(f"s_memtime s[{40+0}:{41}]" if False else f"s_memtime s[{34+2*(h+3)}:{35+2*(h+3)}]") if False else None
        if 'tt' in EXP and h < 12: p(f"s_memtime s[{40+2*h}:{41+2*h}]")
    if 'tt' in EXP:
        p("s_waitcnt lgkmcnt(0)"); p.lgq = []
        for h in range(12): p(f"v_mov_b32 v{108+h}, s{40+2*h}")
        p("s_lshl_b32 s9, s2, 6"); p(f"s_mul_i32 s10, s{S_LAY}, 16384"); p("s_add_u32 s9, s9, s10"); p(f"s_add_u32 s9, s9, {0x30000}")
        p("v_mov_b32 v120, s9")
        p("s_mov_b64 s[10:11], exec"); p("s_mov_b64 exec, 1")
        for q_ in range(3): p.vm(f"buffer_store_dwordx4 {v(108+4*q_,4)}, v120, s[92:95], 0 offen offset:{16*q_}")
        p("s_mov_b64 exec, s[10:11]")
    if silu:
        E, A, C, M, V, W = silu_stages(5)
        for it in M + V + W: emit(p, it)
        E, A, C, M, V, W = silu_stages(6)
        for it in E + A + C + M + V + W: emit(p, it)
    p.wait_lg()
    p("s_barrier")

AC2, CO = 72, 16
OUTLINE = []
def gemm2(p):
    if 'l1sc1' in EXP or 'l1nt' in EXP: p(f"s_cmp_eq_u32 s{S_LAY}, 1")
    if 'l0sc1' in EXP: p(f"s_cmp_eq_u32 s{S_LAY}, 0")
    hread = lambda nt, k: (f"ds_read_b128 {xh(7*nt+k)}, v{V_HR} offset:{L_X + nt*16*SH_ + 64*k}", "lg", f"h{nt}_{k}")
    for k in range(7): emit(p, hread(0, k))
    pf = []
    units = [(3, nt) for nt in range(4)] + [(P, nt) for P in range(3) for nt in range(4)]
    def epi(u):
        P, nt = units[u]; ac = AC2 + 8 * (u & 1); o = CO + 4 * (u & 3)
        O = []
        O.append((f"v_cvt_pk_bf16_f32 v{o}, v{ac}, v{ac+1}", "", None))
        O.append((f"v_cvt_pk_bf16_f32 v{o+1}, v{ac+2}, v{ac+3}", "", None))
        if P < 3:
            O.append((f"v_cvt_pk_bf16_f32 v{o+2}, v{ac+4}, v{ac+5}", "", None))
            O.append((f"v_cvt_pk_bf16_f32 v{o+3}, v{ac+6}, v{ac+7}", "", None))
        st = [(f"s_mov_b32 s9, {nt*16*ROWB}", "", None)]
        sfl = "sc1" if 'psc1' in EXP else ("nt" if 'psnt' in EXP else ("sc0" if 'pssc0' in EXP else ""))
        base = f"buffer_store_dwordx4 {v(o,4)}, v{V_PO}, {sr(S_PW)}, s9 offen offset:{256*P}" if P < 3 else f"buffer_store_dwordx2 {v(o,2)}, v{V_PO1}, {sr(S_PW)}, s9 offen"
        if 'l1sc1' in EXP or 'l1nt' in EXP or 'l0sc1' in EXP:
            alt = "nt" if 'l1nt' in EXP else "sc1"
            la, lb = p.uid("stA"), p.uid("stB")
            st.append((f"s_cbranch_scc1 {la}", "", None))
            st.append((f"{base} {sfl}", "vm", "ps"))
            st.append((f"{lb}:", "", None))
            OUTLINE.append((la, f"{base} {alt}", lb))
        else:
            st.append((f"{base} {sfl}", "vm", "ps"))
        return O, st
    for u, (P, nt) in enumerate(units):
        ac = AC2 + 8 * (u & 1)
        M = []
        for k in range(7):
            for sub in range(2 if P < 3 else 1):
                Tt = 2 * P + sub
                acc = v(ac + 4 * sub, 4)
                t = f"v_mfma_f32_16x16x32_bf16 {acc}, {a(4*(7*k+Tt),4)}, {xh(7*nt+k)}, {'0' if k == 0 else acc}"
                w = [(None, "wlg", f"h{nt}_{k}")] if (u < 4 and sub == 0) else []
                M.append((t, w))
        n = len(M)
        N = {}
        if u < 3:
            for k in range(7): N.setdefault(k, []).append(hread(u + 1, k))
        V, st = epi(u - 1) if u else ([], [])
        if st and 'nostore' not in EXP: N.setdefault(n - 1 if n == 7 else 10, []).extend(st)
        schedule(p, M, V, N, vstart=(4 if n == 7 else 5), vend=(6 if n == 7 else 9))
    assert not pf
    V, st = epi(len(units) - 1)
    for it in V + st: emit(p, it)

def prewarm_burst(p, layer0_only=True):
    lab = p.uid("pwb")
    if layer0_only:
        p(f"s_cmp_eq_u32 s{S_LAY}, 0"); p(f"s_cbranch_scc0 {lab}")
    for i in range(14):
        if i % 4 == 0: p(f"s_add_u32 s12, s{S_W14}, {1024*i}")
        t = f"buffer_load_dwordx4 v[124:127], v{V_L16}, {sr(S_PW)}, s12 offen offset:{1024*(i%4)}"
        if layer0_only: p(t)
        else: p.vm(t, "pw")
    p.label(lab)

def prewarm_ld(p, stride=128):
    n = 57344 // stride
    for i in range((n + 255) // 256):
        p(f"v_add_u32 v2, {256*i}, v0")
        p(f"v_mul_u32_u24 v2, {stride}, v2")
        p.vm(f"buffer_load_dword v255, v2, {sr(S_PW)}, 0 offen", "pw")

def prewarm(p):
    if 'nowarm' in EXP: return
    fl = "sc1" if 'wsc1' in EXP else ("nt" if 'wnt' in EXP else "")
    stride = 64 if 'w64' in EXP else 128
    for i in range((57344 // stride + 255) // 256):
        p(f"v_add_u32 v2, {256*i}, v0")
        p(f"v_mul_u32_u24 v2, {stride}, v2")
        p(f"buffer_store_dword v0, v2, {sr(S_PW)}, 0 offen {fl}")
    p("v_lshlrev_b32 v1, 7, v0")
    p(f"s_mul_i32 s9, s{S_MEM}, {8*ROWB}")
    p("v_add_u32 v2, s9, v1")
    p(f"v_cmp_gt_u32 vcc, {8*ROWB}, v1")
    p("v_cndmask_b32 v2, -1, v2, vcc")
    p(f"buffer_store_dword v0, v2, {sr(S_X)}, 0 offen {fl}")

FORCE_SLOW = False
def build(stamps=False, force_slow=False):
    global FORCE_SLOW
    FORCE_SLOW = force_slow
    common.STAMPS[0] = stamps
    p = K()
    p("s_cmp_ge_u32 s2, 256")
    p("s_cbranch_scc1 K_end")
    p.load_ptrs()
    p(f"s_memrealtime {s(S_N,2)}")
    code_prefetch(p)
    p.wave_id(S_W, 1)
    p("s_and_b32 s4, s2, 7")
    p("s_lshr_b32 s5, s2, 3")
    p("s_lshl_b32 s4, s4, 5")
    p("s_add_u32 s4, s4, s5")
    p("s_lshr_b32 s5, s4, 3")
    p("s_and_b32 s6, s4, 7")
    p(f"s_lshr_b32 s{S_A}, s{S_W}, 1")
    p(f"s_and_b32 s{S_B}, s{S_W}, 1")
    p(f"s_mov_b32 s{S_LAY}, 0")
    p(f"s_mov_b32 s{S_FAST}, 0")
    p(f"s_mul_i32 s{S_W7}, s{S_W}, 7168")
    p(f"s_mul_i32 s{S_W14}, s{S_W}, 14336")
    prep_addr(p)
    p("s_waitcnt lgkmcnt(0)")
    nonce_threshold(p)
    if stamps:
        p.srd(92, P_WS, WS_FLAGS + 0x80000, 0x40000)
        p("v_mov_b32 v252, 0"); p("v_mov_b32 v253, 0")
    stamp(p, 0)
    p("s_cmp_ge_u32 s2, 224")
    p("s_cbranch_scc1 K_noprep")
    prep(p)
    stamp(p, 1)
    p.wait_vm("kvst")
    lab = p.uid("haven")
    nonce_try(p, 150, lab)
    saved = list(p.vmq)
    p.srd(SF_, P_DBG, 0, 256)
    get_nonce(p, lab)
    p.vmq = saved
    p.label(lab)
    p("s_barrier")
    flag_store_rep(p, FL_S1R, 2)
    stamp(p, 2)
    p.wait_vm()
    hbuild(p)
    p("s_branch K_prepdone")
    p.label("K_noprep")
    p.srd(S_FL, P_WS, WS_FLAGS, FLAGS_BYTES)
    mlp_setup(p)
    q_loads(p)
    p.srd(SF_, P_DBG, 0, 256)
    lab = p.uid("haven")
    get_nonce(p, lab)
    p.label(lab)
    p("s_barrier")
    p.label("K_prepdone")
    p.vmq = []; p.lgq = []
    lab = p.uid("xp")
    p(f"s_cmp_eq_u32 s{S_W}, 0")
    p(f"s_cbranch_scc0 {lab}")
    p("s_getreg_b32 s9, hwreg(HW_REG_XCC_ID, 0, 4)")
    p(f"s_add_u32 s9, s9, s{S_N}")
    p("v_mov_b32 v2, s9"); p(f"v_mov_b32 v3, s{S_N+1}")
    p(f"s_lshl_b32 s9, s{S_RB}, 3"); p(f"s_add_u32 s9, s9, {FL_XCC}")
    p("v_mov_b32 v1, s9")
    p("s_mov_b64 exec, 1")
    p(f"buffer_store_dwordx2 v[2:3], v1, {sr(S_FL)}, 0 offen sc1")
    p("s_mov_b64 exec, -1")
    p.label(lab)
    p(f"s_mul_i32 s9, s{S_MEM}, {7*CHUNK}"); p(f"s_add_u32 s9, s9, {hex(WS_W1P)}")
    p(f"s_add_u32 s{S_W1}, s{P_WS}, s9"); p(f"s_addc_u32 s{S_W1+1}, s{P_WS+1}, 0")
    p(f"s_mov_b32 s{S_W1+2}, {7*CHUNK}"); p(f"s_mov_b32 s{S_W1+3}, 0x20000")
    p(f"s_mul_i32 s9, s{S_CL}, {64*ROWB}"); p(f"s_add_u32 s9, s9, {hex(WS_XP)}")
    p(f"s_add_u32 s{S_X}, s{P_WS}, s9"); p(f"s_addc_u32 s{S_X+1}, s{P_WS+1}, 0")
    p(f"s_mov_b32 s{S_X+2}, {64*ROWB}"); p(f"s_mov_b32 s{S_X+3}, 0x20000")
    p(f"s_mul_i32 s9, s{S_RB}, {64*ROWB}"); p(f"s_add_u32 s9, s9, {hex(WS_PB)}")
    p(f"s_add_u32 s{S_PW}, s{P_WS}, s9"); p(f"s_addc_u32 s{S_PW+1}, s{P_WS+1}, 0")
    p(f"s_mov_b32 s{S_PW+2}, {64*ROWB}"); p(f"s_mov_b32 s{S_PW+3}, 0x20000")
    p(f"s_mul_i32 s9, s{S_CL}, {8*64*ROWB}"); p(f"s_add_u32 s9, s9, {hex(WS_PB)}")
    p(f"s_add_u32 s{S_PR}, s{P_WS}, s9"); p(f"s_addc_u32 s{S_PR+1}, s{P_WS+1}, 0")
    p(f"s_mov_b32 s{S_PR+2}, {8*64*ROWB}"); p(f"s_mov_b32 s{S_PR+3}, 0x20000")
    if 'warm1' in EXP: prewarm(p)
    p("v_and_b32 v1, 63, v0")
    p("s_lshr_b32 s9, s2, 5")
    p("s_min_u32 s9, s9, 6")
    p("v_mul_u32_u24 v8, 7, v1")
    p("v_add_u32 v8, s9, v8")
    p(f"s_mul_i32 s9, s{S_MEM}, 14")
    p("v_subrev_u32 v9, 32, v1")
    p("v_add_u32 v9, s9, v9")
    p("v_add_u32 v10, 98, v9")
    p("v_cmp_gt_u32 vcc, 46, v1")
    p("v_cndmask_b32 v9, v10, v9, vcc")
    p("v_cmp_gt_u32 vcc, 32, v1")
    p("v_cndmask_b32 v8, v9, v8, vcc")
    p("v_lshlrev_b32 v8, 3, v8")
    p("s_and_b32 s9, s2, 7"); p("s_lshl_b32 s9, s9, 11"); p(f"s_add_u32 s9, s9, {FL_S1R}")
    p("v_add_u32 v8, s9, v8")
    p("s_waitcnt lgkmcnt(0)")
    poll(p, [8], 1, [60])
    stamp(p, 3)
    p(f"s_lshl_b32 s9, s{S_MEM}, 2"); p(f"s_add_u32 s9, s9, s{S_W}")
    p(f"s_mul_i32 s9, s9, {49*1024}"); p(f"s_add_u32 s9, s9, {hex(WS_W2P)}")
    p(f"s_add_u32 s{SE}, s{P_WS}, s9"); p(f"s_addc_u32 s{SE+1}, s{P_WS+1}, 0")
    p(f"s_mov_b32 s{SE+2}, {49*1024}"); p(f"s_mov_b32 s{SE+3}, 0x20000")
    p.srd(SD, P_WS, WS_YB, MAT)
    p("s_cmp_ge_u32 s2, 224")
    p("s_cbranch_scc1 K_noconv")
    p("s_lshl_b32 s9, s2, 13")
    p(f"s_add_u32 s{SA}, s{P_WS}, s9"); p(f"s_addc_u32 s{SA+1}, s{P_WS+1}, 0")
    p(f"s_mov_b32 s{SA+2}, 8192"); p(f"s_mov_b32 s{SA+3}, 0x20000")
    p("v_lshlrev_b32 v10, 4, v0")
    p.vm(f"buffer_load_dwordx4 v[64:67], v10, {sr(SA)}, 0 offen sc1", "u")
    p("v_add_u32 v11, 4096, v10")
    p.vm(f"buffer_load_dwordx4 v[68:71], v11, {sr(SA)}, 0 offen sc1", "u")
    if 'qlate' in EXP: q_loads(p)
    p("s_lshl_b32 s9, s2, 2")
    p(f"s_load_dword s13, s[{P_DV}:{P_DV+1}], s9")
    for g_ in w2_items(SE)[:W20]:
        for it in g_: emit(p, it)
    p(f"v_add_u32 v10, {L_U+512}, v10")
    p.wait_vm("u")
    p.lg("ds_write_b128 v10, v[64:67]")
    p.lg(f"ds_write_b128 v10, v[68:71] offset:{U_CH}")
    p("s_waitcnt lgkmcnt(0)"); p.lgq = []
    p("s_lshl_b32 s12, s13, 16")
    p("s_and_b32 s14, s13, 0xffff0000")
    p(f"s_cmp_eq_u32 s{S_B}, 0")
    p("s_cselect_b32 s14, s12, s14")
    p("s_barrier")
    if 'warm2' in EXP: prewarm(p)
    stamp(p, 4)
    conv_main(p)
    stamp(p, 5)
    conv_out(p, SD)
    signal(p, FL_S2R, 2, upto="yst")
    stamp(p, 6)
    p("s_branch K_convdone")
    p.label("K_noconv")
    p.vmq = []
    for g_ in w2_items(SE)[:W2A]:
        for it in g_: emit(p, it)
    idle = [x for x in EXP if x.startswith('idle')]
    if idle:
        nld = int(idle[0][4:])
        p("s_and_b32 s9, s2, 7"); p("s_lshl_b32 s9, s9, 2")
        p("s_sub_u32 s10, s2, 224"); p("s_lshr_b32 s10, s10, 3"); p("s_add_u32 s9, s9, s10")
        p(f"s_mul_i32 s9, s9, {8*64*ROWB}"); p(f"s_add_u32 s9, s9, {hex(WS_PB)}")
        p(f"s_add_u32 s{SA}, s{P_WS}, s9"); p(f"s_addc_u32 s{SA+1}, s{P_WS+1}, 0")
        p(f"s_mov_b32 s{SA+2}, {8*64*ROWB}"); p(f"s_mov_b32 s{SA+3}, 0x20000")
        p(f"s_mul_i32 s10, s{S_W}, {112*1024}")
        lab = p.uid("idl")
        p("s_mov_b32 s11, 0")
        p.label(lab)
        for i in range(4):
            p(f"buffer_load_dwordx4 v[124:127], v{V_L16}, {sr(SA)}, s10 offen offset:{1024*i}")
        p("s_add_u32 s10, s10, 4096"); p("s_add_u32 s11, s11, 4"); p(f"s_cmp_lt_u32 s11, {nld}")
        p(f"s_cbranch_scc1 {lab}")
    p.wait_vm()
    p.label("K_convdone")
    if 'warm3' in EXP: prewarm(p)
    if 'pws2' in EXP:
        lab = p.uid("pws")
        p(f"s_cmp_eq_u32 s{S_W}, 0"); p(f"s_cbranch_scc1 {lab}")
        p(f"s_sub_u32 s9, s{S_W}, 1"); p("s_mul_i32 s9, s9, 19456")
        for i in range(19):
            if i % 4 == 0: p(f"s_add_u32 s10, s9, {1024*i}")
            p(f"buffer_load_dwordx4 v[220:223], v{V_L16}, {sr(S_PW)}, s10 offen offset:{1024*(i%4)}")
        p.label(lab)
    p("s_waitcnt vmcnt(0)")
    p("v_mov_b32 v7, 0xffff0000")
    unpack(p, X, XP, 8)
    layernorm(p, X, T)
    poll_s2(p)
    stamp(p, 7)
    y_load(p, SD)
    fast_get(p)
    for g_ in dma_w1_items(0 if 'pfb' in EXP else 2, "pf2"):
        for it in g_: emit(p, it)
    if 'pwY' in EXP: prewarm_burst(p, False)
    for g_ in w2_items(SE)[W2A:]:
        for it in g_: emit(p, it)
    y_transpose(p)
    stamp(p, 8)
    p("v_mov_b32 v7, 0xffff0000")
    p("s_branch K_gate")
    p.label("K_layer")
    p.vmq = []; p.lgq = []
    layernorm(p, X, T)
    p.label("K_gate")
    p.vmq = []; p.lgq = []
    q = K()
    for i in range(0, 16, 2):
        q(f"v_pk_fma_f32 {v(X+i,2)}, {v(T+i,2)}, {v(YV+i,2)}, {v(X+i,2)}")
    layernorm(q, X, T, LOG2E)
    pack(q, PK, T, 8)
    body = [it.text for it in q.items]
    if 'pfb' in EXP: pf = dma_w1_items(1, "pf")
    elif 'pfafter' in EXP: pf = dma_w1_items(0, "pf")
    else: pf = [g for c in range(2) for g in dma_w1_items(c, "pf")]
    step = len(body) // (len(pf) + (5 if 'pfb' in EXP else 1))
    for i, t in enumerate(body):
        p(t)
        if pf and i % step == step - 1:
            for it in pf.pop(0): emit(p, it)
    assert not pf
    p(f"s_mul_i32 s9, s{S_CL}, {64*ROWB}")
    p(f"v_subrev_u32 v3, s9, v{OFFA}")
    p(f"v_subrev_u32 v4, s9, v{OFFB}")
    p(f"v_cndmask_b32 v3, -1, v3, {ACT}")
    p(f"v_cndmask_b32 v4, -1, v4, {ACT}")
    p.vm(f"buffer_store_dwordx4 {v(PK,4)}, v3, {sr(S_X)}, 0 offen", "xs")
    p.vm(f"buffer_store_dwordx4 {v(PK+4,4)}, v4, {sr(S_X)}, 0 offen", "xs")
    pack(p, XP, X, 8)
    if 'pfafter' in EXP:
        for g_ in dma_w1_items(1, "pf1"):
            for it in g_: emit(p, it)
    stamp(p, 9, True)
    if 'oldsync' in EXP:
        signal(p, FL_CA, S_RB, layer_off=True, cluster=True, upto="xs")
        stamp(p, 10, True)
        def cluster_offs():
            p("v_and_b32 v1, 7, v0")
            p(f"s_lshl_b32 s9, s{S_CL}, 7")
            p(f"s_lshl_b32 s10, s{S_LAY}, 13")
            p("s_add_u32 s9, s9, s10")
        cluster_offs()
        p(f"s_add_u32 s9, s9, {FL_CA}")
        p("v_lshl_add_u32 v10, v1, 3, s9")
        poll(p, [10], 1, [8], cluster=True)
    else:
        cluster_sync(p, FL_CA, upto="xs", sid=10)
    stamp(p, 11, True)
    dma_x(p)
    x_read_setup(p)
    if 'ldw128' in EXP: prewarm_ld(p, 128)
    if 'ldw64' in EXP: prewarm_ld(p, 64)
    gemm1(p)
    stamp(p, 13, True)
    gemm2(p)
    stamp(p, 14, True)
    if 'oldsync' in EXP:
        signal(p, FL_CC, S_RB, layer_off=True, cluster=True)
        if 'wb2' in EXP:
            lab = p.uid("wb2")
            p(f"s_cmp_eq_u32 s{S_LAY}, 1"); p(f"s_cbranch_scc0 {lab}")
            p(f"s_cmp_eq_u32 s{S_W}, 3"); p(f"s_cbranch_scc0 {lab}")
            p(f"s_and_b32 s9, s{S_RB}, 31"); p("s_cmp_eq_u32 s9, 0"); p(f"s_cbranch_scc0 {lab}")
            p("buffer_wbl2 sc1")
            p.label(lab)
        stamp(p, 15, True)
        partials_prelude(p)
        cluster_offs()
        p(f"s_add_u32 s9, s9, {FL_CC}")
        p("v_lshl_add_u32 v10, v1, 3, s9")
        poll(p, [10], 1, [8], cluster=True)
        if 'wb' in EXP:
            lab = p.uid("wb")
            p(f"s_cmp_eq_u32 s{S_LAY}, 1"); p(f"s_cbranch_scc0 {lab}")
            p(f"s_cmp_eq_u32 s{S_MEM}, 0"); p(f"s_cbranch_scc0 {lab}")
            p(f"s_cmp_eq_u32 s{S_W}, 3"); p(f"s_cbranch_scc0 {lab}")
            p("buffer_wbl2 sc1")
            p.label(lab)
    else:
        cluster_sync(p, FL_CC, before=lambda: partials_prelude(p), sid=15)
    stamp(p, 16, True)
    add_partials(p)
    stamp(p, 17, True)
    p(f"s_cmp_eq_u32 s{S_LAY}, 1")
    p("s_cbranch_scc1 K_final")
    p(f"s_mov_b32 s{S_LAY}, 1")
    p("s_branch K_layer")
    p.label("K_final")
    pack(p, XP, X, 8)
    p.srd(SA, P_OUT, 0, MAT)
    ofl = "sc1" if 'osc1' in EXP else ("nt" if 'ont' in EXP else "")
    p(f"buffer_store_dwordx4 {v(XP,4)}, v{OFFA}, {sr(SA)}, 0 offen {ofl}")
    p(f"buffer_store_dwordx4 {v(XP+4,4)}, v{OFFB}, {sr(SA)}, 0 offen {ofl}")
    stamp(p, 40)
    stamp_flush(p)
    if SLOWPATHS:
        p("s_endpgm")
        emit_slowpaths(p)
    if OUTLINE:
        p("s_endpgm")
        for la, t, lb in OUTLINE:
            p.label(la); p(t); p(f"s_branch {lb}")
    p.label("K_end")
    p("s_endpgm")
    txt, n = kernel_text(KNAME, p, 256, sgprs=102, agprs=256)
    print("nops inserted:", n, "instructions:", p.count(), file=sys.stderr)
    head = HEADER + f"; @launch grid=(256,1,1) block=(256,1,1) lds={LDS_BYTES}\n" + '.amdgcn_target "amdgcn-amd-amdhsa--gfx950"\n'
    return head + txt

if __name__ == "__main__":
    open(sys.argv[1], "w").write(build(stamps="st" in sys.argv[2:], force_slow="slow" in sys.argv[2:]))
```

```python
import sys
from common import *
import common
EXP = set(sys.argv[2:])
if 'pfa' not in EXP: EXP.add('pfb')

KNAME = "interleave_layers__ssm_conv_h3__dense_activation_silu__prompt_kernel"
HEADER = open("interleave_layers__ssm_conv_h3__dense_activation_silu__prompt.s.ref").read().split("; Override launch")[0]

S_W, S_RB, S_CL, S_MEM, S_A, S_B = 3, 4, 5, 6, 7, 8
SA, SB_, SC, SD, SE, SF_ = 40, 44, 48, 52, 56, 60
S_FL, S_W1, S_X, S_PW, S_PR = 64, 68, 72, 76, 80
S_N, S_FAST, S_LAY = 84, 86, 87
S_W7, S_W14 = 100, 101
ACT = "s[88:89]"
S_T = 90
V_XE, V_XO, V_A, V_A2, V_HW, V_HR, V_L16, V_PO, V_PO1 = 200, 201, 202, 203, 204, 205, 206, 207, 208
V_XD = 209
V_PWA, V_PWB = 216, 217
V_HW1, V_A3 = 218, 219
XP = 224
YV = 232
OFFA, OFFB = 248, 249
VN = 250
LA, LB = 0, 8192
HC_COPY = 4160; HC_CH = 8 * HC_COPY; L_U = 2 * HC_CH; U_CH = 512 + 4096; YS_CH = 4096 + 128
LY = 0
L_X = 0; SH_ = 448; L_RING = 57344; CHUNK = 28672
def slot_base(c):
    return CHUNK if c == 3 else L_RING + (c if c < 3 else c - 4) * CHUNK
SPIN_MAX = 0x100000
LDS_BYTES = 163840
L_FASTW = 163836 - 60

def sr(r): return f"s[{r}:{r+3}]"

def stamp(p, sid, layered=False):
    if not common.STAMPS[0]: return
    p("s_memrealtime s[96:97]")
    p("s_memtime s[98:99]")
    p("s_waitcnt lgkmcnt(0)")
    if layered:
        p(f"s_mul_i32 s97, s{S_LAY}, 10")
        p(f"s_add_u32 m0, s97, {sid}")
        p("s_nop 3")
        p("v_writelane_b32 v252, s96, m0")
        p("v_writelane_b32 v253, s98, m0")
    else:
        p(f"v_writelane_b32 v252, s96, {sid}")
        p(f"v_writelane_b32 v253, s98, {sid}")
    p.lgq = []

def stamp_flush(p):
    if not common.STAMPS[0]: return
    lab = p.uid("sf")
    p(f"s_cmp_eq_u32 s{S_W}, 0")
    p(f"s_cbranch_scc0 {lab}")
    p("v_lshlrev_b32 v1, 2, v0")
    p("s_lshl_b32 s9, s2, 9")
    p("v_add_u32 v1, s9, v1")
    p("buffer_store_dword v252, v1, s[92:95], 0 offen")
    p("buffer_store_dword v253, v1, s[92:95], 0 offen offset:256")
    if 'dbgst' in EXP:
        wg = [x for x in EXP if x.startswith('wg')]
        wg = int(wg[0][2:]) if wg else 0
        l2 = p.uid("sf2")
        p(f"s_cmp_eq_u32 s2, {wg}")
        p(f"s_cbranch_scc0 {l2}")
        p.srd(SA, P_DBG, 0, 256)
        sel = [0, 2, 3, 5, 7, 9, 12, 13, 14, 17, 22, 23, 24, 40]
        p("s_nop 4")
        p("v_readlane_b32 s12, v252, 0")
        for i, sid in enumerate(sel):
            p(f"v_readlane_b32 s9, v252, {sid}")
            p("s_nop 3")
            p("s_sub_u32 s9, s9, s12")
            if i == 0: p("s_mov_b32 s9, s12")
            p(f"v_writelane_b32 v1, s9, {i}")
        p("v_and_b32 v2, 63, v0")
        p("v_lshlrev_b32 v2, 2, v2")
        p("v_add_u32 v2, 8, v2")
        p("s_mov_b32 exec_lo, 0x3fff"); p("s_mov_b32 exec_hi, 0")
        p(f"buffer_store_dword v1, v2, {sr(SA)}, 0 offen")
        p("s_mov_b64 exec, -1")
        p.label(l2)
    p.label(lab)

def flag_store(p, table, idx_sreg, layer_off=False, cluster=False):
    lab = p.uid("sig")
    p(f"s_cmp_eq_u32 s{S_W}, 0")
    p(f"s_cbranch_scc0 {lab}")
    p(f"s_lshl_b32 s{S_T}, s{S_CL}, 7")
    p(f"s_lshl_b32 s{S_T+1}, s{S_MEM}, 3")
    p(f"s_add_u32 s{S_T}, s{S_T}, s{S_T+1}")
    p(f"s_add_u32 s{S_T}, s{S_T}, {table}")
    p(f"s_lshl_b32 s{S_T+1}, s{S_LAY}, 13")
    p(f"s_add_u32 s{S_T}, s{S_T}, s{S_T+1}")
    p(f"v_mov_b32 v{VN}, s{S_N}")
    p(f"v_mov_b32 v{VN+1}, s{S_N+1}")
    p(f"v_mov_b32 v1, s{S_T}")
    p("s_mov_b64 exec, 1")
    if cluster:
        l2 = p.uid("sigslow"); l3 = p.uid("sigdone")
        p(f"s_cmp_eq_u32 s{S_FAST}, 1")
        p(f"s_cbranch_scc0 {l2}")
        p(f"buffer_store_dwordx2 {v(VN,2)}, v1, {sr(S_FL)}, 0 offen")
        p(f"s_branch {l3}")
        p.label(l2)
        p("buffer_wbl2 sc1")
        p("s_waitcnt vmcnt(0)")
        p(f"buffer_store_dwordx2 {v(VN,2)}, v1, {sr(S_FL)}, 0 offen sc1")
        p.label(l3)
    else:
        p(f"buffer_store_dwordx2 {v(VN,2)}, v1, {sr(S_FL)}, 0 offen sc1")
    p("s_mov_b64 exec, -1")
    p.label(lab)

def flag_store_rep(p, table, idx_sreg):
    lab = p.uid("sigr")
    p(f"s_cmp_eq_u32 s{S_W}, 0")
    p(f"s_cbranch_scc0 {lab}")
    p(f"s_lshl_b32 s{S_T}, s{idx_sreg}, 3")
    p(f"s_add_u32 s{S_T}, s{S_T}, {table}")
    p(f"v_mov_b32 v{VN}, s{S_N}")
    p(f"v_mov_b32 v{VN+1}, s{S_N+1}")
    p("v_lshlrev_b32 v1, 11, v0")
    p(f"v_add_u32 v1, s{S_T}, v1")
    p("s_mov_b64 exec, 0xff")
    p(f"buffer_store_dwordx2 {v(VN,2)}, v1, {sr(S_FL)}, 0 offen sc1")
    p("s_mov_b64 exec, -1")
    p.label(lab)

def signal(p, table, idx_sreg, layer_off=False, cluster=False, upto=None):
    if upto: p.wait_vm(upto)
    else: p.wait_vm()
    p("s_barrier")
    if table in (FL_S1R, FL_S2R): flag_store_rep(p, table, idx_sreg)
    else: flag_store(p, table, idx_sreg, layer_off, cluster)

def cluster_sync(p, table, upto=None, before=None, sid=None):
    p("v_and_b32 v10, 7, v0")
    p(f"s_lshl_b32 s9, s{S_CL}, 7")
    p(f"s_lshl_b32 s10, s{S_LAY}, 13")
    p("s_add_u32 s9, s9, s10")
    p(f"s_add_u32 s9, s9, {table}")
    p("v_lshl_add_u32 v10, v10, 3, s9")
    p(f"s_lshl_b32 s10, s{S_MEM}, 3")
    p("s_add_u32 s9, s9, s10")
    p("v_mov_b32 v9, s9")
    p(f"v_mov_b32 v{VN}, s{S_N}")
    p(f"v_mov_b32 v{VN+1}, s{S_N+1}")
    if before: before()
    if upto: p.wait_vm(upto)
    else: p.wait_vm()
    p("s_barrier")
    skip = p.uid("css"); slow = p.uid("csl"); go = p.uid("csg"); lab = p.uid("csp"); done = p.uid("csd"); acq = p.uid("csa")
    p(f"s_cmp_eq_u32 s{S_W}, 0")
    p(f"s_cbranch_scc0 {skip}")
    p("s_mov_b64 exec, 1")
    p(f"s_cmp_eq_u32 s{S_FAST}, 1")
    p(f"s_cbranch_scc0 {slow}")
    p(f"buffer_store_dwordx2 {v(VN,2)}, v9, {sr(S_FL)}, 0 offen")
    p.label(go)
    if sid is not None: stamp(p, sid, True)
    p("s_mov_b64 exec, 0xff")
    p(f"s_mov_b32 s{S_T}, 0")
    p.label(lab)
    p(f"buffer_load_dwordx2 v[2:3], v10, {sr(S_FL)}, 0 offen sc1")
    p("s_waitcnt vmcnt(0)")
    p(f"v_cmp_eq_u64 vcc, {s(S_N,2)}, v[2:3]")
    p(f"s_add_u32 s{S_T}, s{S_T}, 1")
    p("s_nop 3")
    p("s_cmp_eq_u64 vcc, exec")
    p(f"s_cbranch_scc1 {done}")
    p(f"s_cmp_lt_u32 s{S_T}, {hex(SPIN_MAX)}")
    p(f"s_cbranch_scc1 {lab}")
    p.label(done)
    p("s_mov_b64 exec, -1")
    p(f"s_cmp_eq_u32 s{S_FAST}, 1")
    p(f"s_cbranch_scc1 {skip}")
    p("buffer_inv sc1")
    p("s_waitcnt vmcnt(0)")
    p.label(skip)
    p("s_barrier")
    p.vmq = []
    SLOWPATHS.append((slow, go))

SLOWPATHS = []
def emit_slowpaths(p):
    for slow, go in SLOWPATHS:
        p.label(slow)
        p("buffer_wbl2 sc1")
        p("s_waitcnt vmcnt(0)")
        p(f"buffer_store_dwordx2 {v(VN,2)}, v9, {sr(S_FL)}, 0 offen sc1")
        p(f"s_branch {go}")

def setexec(p, nl):
    m = (1 << nl) - 1
    lo, hi = m & 0xffffffff, m >> 32
    p(f"s_mov_b32 exec_lo, {hex(lo) if lo != 0xffffffff else -1}")
    p(f"s_mov_b32 exec_hi, {hex(hi) if hi != 0xffffffff else -1}")

def poll(p, offs, n_loads, masks, cluster=False, all_waves=False):
    lab = p.uid("poll"); done = p.uid("polld"); skip = p.uid("polls")
    if not all_waves:
        p(f"s_cmp_eq_u32 s{S_W}, 0")
        p(f"s_cbranch_scc0 {skip}")
    p(f"s_mov_b32 s{S_T}, 0")
    p.label(lab)
    for i in range(n_loads):
        setexec(p, masks[i])
        p(f"buffer_load_dwordx2 {v(2+2*i,2)}, v{offs[i]}, {sr(S_FL)}, 0 offen sc1")
    p("s_waitcnt vmcnt(0)")
    p("s_mov_b32 s9, 1")
    for i in range(n_loads):
        setexec(p, masks[i])
        p(f"v_cmp_eq_u64 vcc, {s(S_N,2)}, {v(2+2*i,2)}")
        p("s_nop 4")
        p("s_cmp_eq_u64 vcc, exec")
        p("s_cselect_b32 s9, s9, 0")
    p("s_mov_b64 exec, -1")
    p("s_cmp_eq_u32 s9, 1")
    p(f"s_cbranch_scc1 {done}")
    p(f"s_add_u32 s{S_T}, s{S_T}, 1")
    p(f"s_cmp_lt_u32 s{S_T}, {hex(SPIN_MAX)}")
    p(f"s_cbranch_scc0 {done}")
    if not cluster or 'nosleep' not in EXP: p("s_sleep 1")
    p(f"s_branch {lab}")
    p.label(done)
    if cluster:
        l2 = p.uid("acq")
        p(f"s_cmp_eq_u32 s{S_FAST}, 1")
        p(f"s_cbranch_scc1 {l2}")
        p("buffer_inv sc1")
        p("s_waitcnt vmcnt(0)")
        p.label(l2)
    p.label(skip)
    p("s_barrier")
    p.vmq = []

FRESH_TICKS = 1200
NONCE_PATIENCE = 0x40000
def nonce_threshold(p):
    p(f"s_sub_u32 s{S_N}, s{S_N}, {FRESH_TICKS}")
    p(f"s_subb_u32 s{S_N+1}, s{S_N+1}, 0")
    p(f"s_lshl_b64 {s(S_N,2)}, {s(S_N,2)}, 4")
    p(f"s_or_b32 s{S_N+1}, s{S_N+1}, 0x40000000")

def nonce_try(p, va, ok):
    p(f"v_readfirstlane_b32 s10, v{va}")
    p(f"v_readfirstlane_b32 s11, v{va+1}")
    p("s_nop 3")
    p(f"s_sub_u32 s9, s10, s{S_N}")
    p(f"s_subb_u32 s9, s11, s{S_N+1}")
    lab = p.uid("stale")
    p(f"s_cbranch_scc1 {lab}")
    p(f"s_mov_b64 {s(S_N,2)}, s[10:11]")
    p(f"s_branch {ok}")
    p.label(lab)

def get_nonce(p, done):
    lab = p.uid("non")
    p(f"s_mov_b32 s{S_T}, 0")
    p.label(lab)
    p("v_mov_b32 v1, 0")
    p(f"buffer_load_dwordx2 v[2:3], v1, {sr(SF_)}, 0 offen sc1")
    p("s_waitcnt vmcnt(0)")
    nonce_try(p, 2, done)
    p(f"s_add_u32 s{S_T}, s{S_T}, 1")
    p("s_sleep 1")
    p(f"s_cmp_lt_u32 s{S_T}, {hex(NONCE_PATIENCE)}")
    p(f"s_cbranch_scc1 {lab}")
    p(f"s_mov_b64 {s(S_N,2)}, s[10:11]")
    p.vmq = []

def tlb_warm(p):
    if 'notlb' in EXP: return
    ent = [(P_K, None), (P_V, None), (P_SK, 0), (P_W1, 0), (P_W2, 0), (P_H, "h"), (P_Q, "q"), (P_DV, 0), (P_DBG, 0), (P_OUT, "q"),
           (P_WS, WS_KVT), (P_WS, WS_YB), (P_WS, WS_W1P), (P_WS, WS_W2P), (P_WS, WS_FLAGS), (P_WS, "pb0"), (P_WS, "pb1")]
    lab = p.uid("tw")
    p(f"s_cmp_eq_u32 s{S_W}, 0")
    p(f"s_cbranch_scc0 {lab}")
    p(f"v_mov_b32 v2, s{P_K}"); p(f"v_mov_b32 v3, s{P_K+1}")
    p(f"s_mul_i32 s9, s{S_RB}, {8*ROWB}")
    p("s_min_u32 s10, s2, 223"); p("s_lshl_b32 s10, s10, 13")
    p(f"s_mul_i32 s11, s{S_CL}, {8*64*ROWB}"); p(f"s_add_u32 s11, s11, {hex(WS_PB)}")
    for i, (ptr, off) in enumerate(ent):
        if off in (None, 0):
            lo, hi = ptr, ptr + 1
        else:
            if off == "q": src = "s9"
            elif off == "h": src = "s10"
            elif off == "pb0": src = "s11"
            elif off == "pb1":
                p(f"s_add_u32 s11, s11, {8*64*ROWB - 128}"); src = "s11"
            else: src = hex(off)
            p(f"s_add_u32 s12, s{ptr}, {src}"); p(f"s_addc_u32 s13, s{ptr+1}, 0")
            lo, hi = 12, 13
        p(f"v_writelane_b32 v2, s{lo}, {i}")
        p(f"v_writelane_b32 v3, s{hi}, {i}")
    setexec(p, len(ent))
    p("global_load_dword v254, v[2:3], off")
    p("s_mov_b64 exec, -1")
    p.label(lab)

def nonce_publish(p):
    lab = p.uid("nn")
    p("s_cmp_eq_u32 s2, 0")
    p(f"s_cbranch_scc0 {lab}")
    p(f"s_cmp_eq_u32 s{S_W}, 0")
    p(f"s_cbranch_scc0 {lab}")
    p.srd(SF_, P_DBG, 0, 256)
    p("s_memrealtime s[10:11]")
    p("s_waitcnt lgkmcnt(0)")
    p("s_lshl_b64 s[10:11], s[10:11], 4")
    p("s_or_b32 s11, s11, 0x40000000")
    p("v_mov_b32 v46, s10"); p("v_mov_b32 v47, s11"); p("v_mov_b32 v13, 0")
    p("s_mov_b64 exec, 1")
    p(f"buffer_store_dwordx2 v[46:47], v13, {sr(SF_)}, 0 offen sc1")
    p("s_mov_b64 exec, -1")
    p.label(lab)

S_RBK, S_CG = 12, 13
def prep_addr(p):
    p("s_min_u32 s14, s2, 223")
    p.div_const(S_RBK, 14, 7)
    p(f"s_mul_i32 s{S_CG}, s{S_RBK}, 7")
    p(f"s_sub_u32 s{S_CG}, s14, s{S_CG}")
    p("v_and_b32 v1, 15, v0")
    p("v_lshrrev_b32 v2, 4, v0")
    p(f"s_lshl_b32 s9, s{S_RBK}, 6")
    p("s_sub_u32 s9, s9, 3")
    p("v_lshl_add_u32 v3, v2, 2, s9")
    p(f"v_mul_i32_i24 v4, {ROWB}, v3")
    p(f"s_lshl_b32 s10, s{S_CG}, 7")
    p("v_lshl_add_u32 v5, v1, 3, s10")
    p("v_add_u32 v4, v4, v5")
    for i in range(1, 7):
        p(f"v_add_u32 v{5+i}, {ROWB*i}, v4")
    p("v_lshlrev_b32 v12, 2, v5")

def prep(p):
    SK_, SV_, SSK, SKVT, SSRC, SDST = SA, SB_, SC, SD, SE, S_W1
    T0 = 72
    off = lambda i: "v4" if i == 0 else f"v{5+i}"
    p.srd(SK_, P_K, 0, MAT)
    for i in range(7):
        p.vm(f"buffer_load_dwordx2 {v(16+2*i,2)}, {off(i)}, {sr(SK_)}, 0 offen", "k")
    p.srd(SV_, P_V, 0, MAT)
    for i in range(4):
        p.vm(f"buffer_load_dwordx2 {v(30+2*i,2)}, {off(i+3)}, {sr(SV_)}, 0 offen", "k")
    p.srd(SSK, P_SK, 0, D * 8)
    p.vm(f"buffer_load_dwordx4 v[38:41], v12, {sr(SSK)}, 0 offen", "k")
    p.vm(f"buffer_load_dwordx4 v[42:45], v12, {sr(SSK)}, 0 offen offset:16", "k")
    nonce_publish(p)
    p.srd(SKVT, P_WS, WS_KVT, MAT)
    p.srd(S_FL, P_WS, WS_FLAGS, FLAGS_BYTES)
    if 'pp' in EXP: stamp(p, 34)
    S_J, S_R, S_ISW2, S_STR = T0, T0 + 1, T0 + 2, T0 + 3
    p("s_cmp_ge_u32 s2, 112")
    p(f"s_cselect_b32 s{S_ISW2}, 1, 0")
    p("s_cselect_b32 s9, 112, 0")
    p("s_sub_u32 s9, s2, s9")
    p.div_const(S_J, 9, 14)
    p(f"s_mul_i32 s10, s{S_J}, 14")
    p(f"s_sub_u32 s{S_R}, s9, s10")
    p(f"s_mul_i32 s10, s{S_R}, {32*3584}")
    p(f"s_mul_i32 s11, s{S_J}, 448")
    p("s_add_u32 s10, s10, s11")
    p(f"s_lshr_b32 s11, s{S_R}, 1")
    p(f"s_mul_i32 s11, s11, {32*896}")
    p(f"s_mul_i32 s14, s{S_J}, {224*896}")
    p("s_add_u32 s11, s11, s14")
    p(f"s_and_b32 s14, s{S_R}, 1")
    p("s_mul_i32 s14, s14, 448")
    p("s_add_u32 s11, s11, s14")
    p(f"s_cmp_eq_u32 s{S_ISW2}, 1")
    p("s_cselect_b32 s10, s11, s10")
    p.csel(S_STR, 896, 3584)
    p(f"s_cselect_b32 s{SSRC}, s{P_W2}, s{P_W1}")
    p(f"s_cselect_b32 s{SSRC+1}, s{P_W2+1}, s{P_W1+1}")
    p(f"s_mov_b32 s{SSRC+2}, {hex(D*F*2)}")
    p(f"s_mov_b32 s{SSRC+3}, 0x20000")
    for m in range(4):
        p(f"v_add_u32 v13, {256*m}, v0")
        p("v_mul_u32_u24 v14, 2341, v13")
        p("v_lshrrev_b32 v14, 16, v14")
        p("v_mul_u32_u24 v15, 28, v14")
        p("v_sub_u32 v15, v13, v15")
        p(f"v_mul_lo_u32 v14, v14, s{S_STR}")
        p("v_lshl_add_u32 v14, v15, 4, v14")
        p("v_add_u32 v14, s10, v14")
        if m == 3:
            p("v_cmp_gt_u32 vcc, 896, v13")
            p("v_cndmask_b32 v14, -1, v14, vcc")
        p.vm(f"buffer_load_dwordx4 {v(48+4*m,4)}, v14, {sr(SSRC)}, 0 offen", "w")
    if 'pp' in EXP: stamp(p, 35)
    p("v_and_b32 v46, 63, v0")
    p("v_lshrrev_b32 v47, 4, v46")
    p("v_bfe_u32 v14, v46, 2, 2")
    p("v_and_b32 v15, 3, v46")
    p("v_lshl_add_u32 v47, v47, 3, v14")
    p("v_mul_u32_u24 v47, 448, v47")
    p("v_lshlrev_b32 v46, 4, v46")
    p(f"s_cmp_eq_u32 s{S_ISW2}, 1")
    p.csel(9, hex(WS_W2P), hex(WS_W1P))
    p(f"s_add_u32 s{SDST}, s{P_WS}, s9")
    p(f"s_addc_u32 s{SDST+1}, s{P_WS+1}, 0")
    p(f"s_mov_b32 s{SDST+2}, {hex(W1P_BYTES)}")
    p(f"s_mov_b32 s{SDST+3}, 0x20000")
    t = [76, 77, 78, 79]
    for m in range(4):
        ST, DST = 14, 80 + m
        p(f"s_add_u32 s{ST}, s{S_W}, {4*m}")
        p(f"s_cmp_ge_u32 s{ST}, 7")
        p(f"s_cselect_b32 s{t[0]}, 1, 0")
        p(f"s_mul_i32 s{t[1]}, s{t[0]}, 7")
        p(f"s_sub_u32 s{t[1]}, s{ST}, s{t[1]}")
        p(f"s_mul_i32 s{DST}, s{S_J}, 7")
        p(f"s_add_u32 s{DST}, s{DST}, s{t[1]}")
        p(f"s_lshl_b32 s{DST}, s{DST}, 1")
        p(f"s_add_u32 s{DST}, s{DST}, s{t[0]}")
        p(f"s_mul_i32 s{DST}, s{DST}, 14")
        p(f"s_add_u32 s{DST}, s{DST}, s{S_R}")
        p(f"s_and_b32 s9, s{ST}, 1")
        p(f"s_lshr_b32 s10, s{ST}, 1")
        p(f"s_and_b32 s11, s{S_R}, 1")
        p("s_mul_i32 s11, s11, 7")
        p("s_add_u32 s11, s11, s10")
        p(f"s_lshr_b32 s15, s{S_R}, 1")
        p("s_mul_i32 s15, s15, 7")
        p(f"s_mul_i32 s{t[0]}, s{S_J}, 196")
        p(f"s_add_u32 s15, s15, s{t[0]}")
        p(f"s_and_b32 s{t[0]}, s11, 3")
        p(f"s_mul_i32 s{t[0]}, s{t[0]}, 49")
        p(f"s_lshr_b32 s{t[1]}, s11, 2")
        p(f"s_lshl_b32 s{t[1]}, s{t[1]}, 1")
        p(f"s_add_u32 s{t[1]}, s{t[1]}, s9")
        p(f"s_add_u32 s{t[0]}, s{t[0]}, s{t[1]}")
        p(f"s_lshl_b32 s10, s10, 6")
        p(f"s_lshl_b32 s{t[1]}, s9, 3")
        p(f"s_add_u32 s{t[1]}, s{t[1]}, s10")
        p(f"s_sub_u32 s{t[2]}, s11, 12")
        p(f"s_lshl_b32 s{t[2]}, s{t[2]}, 1")
        p(f"s_add_u32 s{t[2]}, s{t[2]}, s9")
        p(f"s_mul_i32 s{t[2]}, s{t[2]}, 49")
        p(f"s_add_u32 s{t[2]}, s{t[2]}, 6")
        p(f"s_lshl_b32 s{t[3]}, s9, 5")
        p(f"s_add_u32 s{t[3]}, s{t[3]}, s10")
        p("s_cmp_lt_u32 s11, 12")
        p(f"s_cselect_b32 s{t[0]}, s{t[0]}, s{t[2]}")
        p(f"s_cselect_b32 s{t[1]}, s{t[1]}, s{t[3]}")
        p(f"s_cselect_b32 s{t[2]}, 4, 3")
        p(f"s_add_u32 s{t[0]}, s{t[0]}, s15")
        p(f"s_lshl_b32 s{t[3]}, s{ST}, 5")
        p(f"s_cmp_eq_u32 s{S_ISW2}, 1")
        p(f"s_cselect_b32 s{DST}, s{t[0]}, s{DST}")
        p(f"s_cselect_b32 s{t[1]}, s{t[1]}, s{t[3]}")
        p(f"s_cselect_b32 s{t[2]}, s{t[2]}, 3")
        p(f"s_lshl_b32 s{DST}, s{DST}, 10")
        p(f"v_lshlrev_b32 v{144+m}, s{t[2]}, v15")
        p(f"v_add3_u32 v{144+m}, v{144+m}, v47, s{t[1]}")
    mlp_setup(p)
    if 'pp' in EXP: stamp(p, 30)
    p.wait_vm("w")
    if 'pp' in EXP: stamp(p, 31)
    early_loads(p)
    p("v_lshlrev_b32 v14, 4, v0")
    for m in range(3):
        p.lg(f"ds_write_b128 v14, {v(48+4*m,4)} offset:{LB+4096*m}")
    lab = p.uid("skip3")
    p(f"s_cmp_ge_u32 s{S_W}, 2")
    p(f"s_cbranch_scc1 {lab}")
    p(f"ds_write_b128 v14, {v(60,4)} offset:{LB+4096*3}")
    p.label(lab)
    p.wait_lg()
    p("s_barrier")
    for m in range(4):
        p.lg(f"ds_read_b64_tr_b16 {v(48+4*m,2)}, v{144+m} offset:{LB}", f"t{m}")
        p.lg(f"ds_read_b64_tr_b16 {v(48+4*m+2,2)}, v{144+m} offset:{LB+4*448}", f"t{m}")
    for m in range(3):
        p.wait_lg(f"t{m}")
        p.vm(f"buffer_store_dwordx4 {v(48+4*m,4)}, v46, {sr(SDST)}, s{80+m} offen sc1", "wst")
    lab = p.uid("pk")
    p.wait_lg()
    p(f"s_cmp_ge_u32 s{S_W}, 2")
    p(f"s_cbranch_scc1 {lab}")
    p(f"buffer_store_dwordx4 {v(60,4)}, v46, {sr(SDST)}, s83 offen sc1")
    p.label(lab)
    p.srd(SF_, P_DBG, 0, 256)
    p("v_mov_b32 v47, 0")
    p.vm(f"buffer_load_dwordx2 v[150:151], v47, {sr(SF_)}, 0 offen sc1", "nonce")
    if 'pp' in EXP: stamp(p, 32)
    KF, SF, VF, AC, OP = 64, 92, 108, 124, 140
    p("v_mov_b32 v15, 0xffff0000")
    for i in range(7):
        for d in range(2):
            p(f"v_lshlrev_b32 v{KF+4*i+2*d}, 16, v{16+2*i+d}")
            p(f"v_and_b32 v{KF+4*i+2*d+1}, v15, v{16+2*i+d}")
    for e in range(4):
        for j in range(4):
            src = 38 + 2*e + (j >> 1)
            if j & 1: p(f"v_and_b32 v{SF+4*j+e}, v15, v{src}")
            else: p(f"v_lshlrev_b32 v{SF+4*j+e}, 16, v{src}")
    for i in range(4):
        for d in range(2):
            p(f"v_lshlrev_b32 v{VF+4*i+2*d}, 16, v{30+2*i+d}")
            p(f"v_and_b32 v{VF+4*i+2*d+1}, v15, v{30+2*i+d}")
    for j in range(4):
        for r in range(4):
            for e in (0, 2):
                kf = v(KF+4*(r+3-j)+e, 2); sf = v(SF+4*j+e, 2); ac = v(AC+4*r+e, 2)
                if j == 0: p(f"v_pk_mul_f32 {ac}, {kf}, {sf}")
                else: p(f"v_pk_fma_f32 {ac}, {kf}, {sf}, {ac}")
    for r in range(4):
        for e in (0, 2):
            p(f"v_pk_mul_f32 {v(AC+4*r+e,2)}, {v(AC+4*r+e,2)}, {v(VF+4*r+e,2)}")
    for e in range(4):
        p(f"v_cvt_pk_bf16_f32 v{OP+2*e}, v{AC+e}, v{AC+4+e}")
        p(f"v_cvt_pk_bf16_f32 v{OP+2*e+1}, v{AC+8+e}, v{AC+12+e}")
    if 'pp' in EXP: stamp(p, 33)
    p("v_xor_b32 v13, v1, v2")
    p("v_lshlrev_b32 v13, 3, v13")
    p("v_lshl_add_u32 v13, v1, 9, v13")
    for e in range(4):
        p.lg(f"ds_write_b64 v13, {v(OP+2*e,2)} offset:{LA+128*e}")
    p.wait_lg()
    p("s_barrier")
    p("v_lshrrev_b32 v1, 3, v0")
    p("v_and_b32 v2, 7, v0")
    p("v_lshlrev_b32 v3, 1, v2")
    p(f"s_lshl_b32 s9, s{S_CG}, 6")
    p(f"s_lshl_b32 s10, s{S_RBK}, 7")
    for pi in range(2):
        p(f"v_add_u32 v4, {32*pi}, v1")
        p("v_lshrrev_b32 v5, 2, v4")
        p("v_xor_b32 v6, v3, v5")
        p("v_xor_b32 v7, 1, v6")
        p("v_lshlrev_b32 v8, 7, v4")
        p("v_lshl_add_u32 v6, v6, 3, v8")
        p("v_lshl_add_u32 v7, v7, 3, v8")
        p.lg(f"ds_read_b64 {v(16+4*pi,2)}, v6 offset:{LA}", f"a{pi}")
        p.lg(f"ds_read_b64 {v(18+4*pi,2)}, v7 offset:{LA}", f"a{pi}")
        p("v_add_u32 v8, s9, v4")
        p("v_lshlrev_b32 v8, 12, v8")
        p("v_lshl_add_u32 v8, v2, 4, v8")
        p(f"v_add_u32 v{24+pi}, s10, v8")
    for pi in range(2):
        p.wait_lg(f"a{pi}")
        p.vm(f"buffer_store_dwordx4 {v(16+4*pi,4)}, v{24+pi}, {sr(SKVT)}, 0 offen sc1", "kvst")

HW = 160
def code_prefetch(p):
    if 'nocode' in EXP: return
    p("s_getpc_b64 s[90:91]")
    lab = p.uid("K_pc")
    p.label(lab)
    p("v_lshlrev_b32 v180, 7, v0")
    p(f"v_cmp_gt_u32 vcc, (K_end - {lab}), v180")
    p("s_and_saveexec_b64 s[10:11], vcc")
    p.vm("global_load_dword v255, v180, s[90:91]", "code")
    p("s_mov_b64 exec, s[10:11]")

def q_loads(p):
    p.srd(SF_, P_Q, 0, MAT)
    p.vm(f"buffer_load_dwordx4 {v(XP,4)}, v{OFFA}, {sr(SF_)}, 0 offen", "q")
    p.vm(f"buffer_load_dwordx4 {v(XP+4,4)}, v{OFFB}, {sr(SF_)}, 0 offen", "q")

def early_loads(p):
    SH = SF_
    p("s_lshl_b32 s9, s2, 13")
    p(f"s_add_u32 s{SH}, s{P_H}, s9"); p(f"s_addc_u32 s{SH+1}, s{P_H+1}, 0")
    p(f"s_mov_b32 s{SH+2}, 8192"); p(f"s_mov_b32 s{SH+3}, 0x20000")
    p("v_sub_u32 v176, 255, v0")
    p("v_lshlrev_b32 v176, 4, v176")
    p("v_subrev_u32 v177, 16, v176")
    for ch in range(2):
        p(f"v_add_u32 v178, {4096*ch}, v177")
        p(f"v_add_u32 v179, {4096*ch}, v176")
        p.vm(f"buffer_load_dwordx4 {v(HW+8*ch,4)}, v178, {sr(SH)}, 0 offen", "h")
        p.vm(f"buffer_load_dwordx4 {v(HW+4+8*ch,4)}, v179, {sr(SH)}, 0 offen", "h")
    if 'qlate' not in EXP: q_loads(p)

def hbuild(p):
    p("v_mov_b32 v5, 0xffff")
    p("v_cmp_ne_u32 vcc, 255, v0")
    p("v_lshlrev_b32 v6, 4, v0")
    E1, E2, O1, O2 = 32, 40, 46, 54
    for ch in range(2):
        W = HW + 8 * ch
        for d in range(4):
            p(f"v_cndmask_b32 v{W+d}, 0, v{W+d}, vcc")
        def o(dst, sidx):
            if sidx % 2 == 0:
                pz = (14 - sidx) // 2
                p(f"v_alignbit_b32 v{dst}, v{W+pz}, v{W+pz}, 16")
            else:
                p(f"v_bfi_b32 v{dst}, v5, v{W+(15-sidx)//2}, v{W+(13-sidx)//2}")
        for n in range(7): o(E1 + n, 2 * n)
        for n in range(6): o(E2 + n, 2 * n + 2)
        for n in range(7): o(O1 + n, 2 * n + 1)
        for n in range(6): o(O2 + n, 2 * n + 3)
        src = {0: E1, 4: E1 + 2, 2: E2, 6: E2 + 2, 1: O1, 5: O1 + 2, 3: O2, 7: O2 + 2}
        for c in range(8):
            p.lg(f"ds_write_b128 v6, {v(src[c],4)} offset:{ch*HC_CH + c*HC_COPY}")
        p("s_nop 1")
    for r in range(4): p(f"v_mov_b32 v{60+r}, 0")
    p("v_and_b32 v7, 15, v0")
    p(f"v_mul_u32_u24 v7, {HC_COPY}, v7")
    p("v_add_u32 v7, 4096, v7")
    p("v_and_b32 v8, 31, v0")
    p("v_lshlrev_b32 v8, 4, v8")
    p("v_bfe_u32 v9, v0, 5, 1")
    p(f"v_mul_u32_u24 v9, {U_CH}, v9")
    p(f"s_mov_b32 s9, {L_U}")
    p("v_add3_u32 v8, v8, v9, s9")
    p.lg(f"ds_write_b128 v7, {v(60,4)}")
    p.lg(f"ds_write_b128 v8, {v(60,4)}")

_w2 = [x for x in EXP if x.startswith('w2_')]
W20, W2A = (int(_w2[0].split('_')[1]), int(_w2[0].split('_')[2])) if _w2 else (12, 49)
W2B = 49
def w2_items(SW2):
    G = []
    for f in range(49):
        it = []
        base = f - f % 4
        if f % 4 == 0 or f in (W20, W2A, W2B): it.append((f"s_mov_b32 s15, {1024*base}", "", None))
        it.append((f"buffer_load_dwordx4 {a(4*f,4)}, v{V_L16}, {sr(SW2)}, s15 offen offset:{1024*(f%4)} {'sc1 nt' if 'wnt2' in EXP else 'sc1'}", "vm", "w2"))
        G.append(it)
    return G

def load_w2(p, SW2):
    for f in range(49):
        if f % 4 == 0: p(f"s_mov_b32 s9, {1024*f}")
        p.vm(f"buffer_load_dwordx4 {a(4*f,4)}, v{V_L16}, {sr(SW2)}, s9 offen offset:{1024*(f%4)} sc1", "w2")

def conv_main(p):
    ACC, FA, FB = 72, 96, 16
    fb = lambda buf, m: (16 + 28 * buf + 4 * m) if m < 7 else (160 + 4 * buf)
    p("v_and_b32 v1, 63, v0")
    p("v_and_b32 v2, 15, v1")
    p("v_lshrrev_b32 v3, 4, v1")
    p("v_and_b32 v4, 7, v2")
    p("v_sub_u32 v4, 7, v4")
    p(f"v_mul_u32_u24 v4, {HC_COPY}, v4")
    p("v_lshrrev_b32 v5, 3, v2")
    p("v_sub_u32 v5, v3, v5")
    p("v_add_u32 v5, 1, v5")
    p("v_lshl_add_u32 v4, v5, 4, v4")
    p(f"s_mul_i32 s9, s{S_B}, {HC_CH}")
    p("v_add_u32 v12, s9, v4")
    p(f"s_mul_i32 s9, s{S_B}, {U_CH}")
    p(f"s_add_u32 s9, s9, {L_U + 512 - 32 - 64*7}")
    p("v_lshlrev_b32 v5, 5, v2")
    p("v_lshl_add_u32 v5, v3, 4, v5")
    p("v_add_u32 v13, s9, v5")
    set1 = p.uid("cset1"); join = p.uid("cjoin")
    p(f"s_cmp_eq_u32 s{S_A}, 1")
    p(f"s_cbranch_scc1 {set1}")
    for st, tiles in ((0, (0, 3, 4, 7)), (1, (1, 2, 5, 6))):
        if st == 1: p.label(set1)
        mx = max(tiles)
        def reads(rho, buf):
            L = []
            for m in range(mx + 1):
                L.append((f"ds_read_b128 {v(FA+32*buf+4*m,4)}, v12 offset:{512*(7-m)+64*(7-rho)}", "lg", f"r{rho}_{m}"))
                L.append((f"ds_read_b128 {v(fb(buf,m),4)}, v13 offset:{512*m+64*(7-rho)}", "lg", f"r{rho}_{m}"))
            return L
        saved_vm = list(p.vmq)
        w2 = w2_items(SE)[W20:W2A] if 'now2' not in EXP else []
        for it in reads(0, 0): emit(p, it)
        first = set()
        for rho in range(8):
            buf = rho & 1
            nxt = reads(rho + 1, buf ^ 1) if rho < 7 else []
            mf = sorted([(max(mu, nt - mu), ti, nt, mu) for ti, nt in enumerate(tiles) for mu in range(nt + 1)])
            M = []; seen = -1
            for (mm, ti, nt, mu) in mf:
                c = v(ACC+4*ti,4) if ti in first else "0"
                first.add(ti)
                t = f"v_mfma_f32_16x16x32_bf16 {v(ACC+4*ti,4)}, {v(FA+32*buf+4*mu,4)}, {v(fb(buf,nt-mu),4)}, {c}"
                w = []
                if mm > seen: w.append((None, "wlg", f"r{rho}_{mm}")); seen = mm
                M.append((t, w))
            N = {}
            for i, it in enumerate(nxt): N.setdefault(i, []).append(it)
            slots = [3, 6, 9, 12, 15, 17]
            per = -(-(W2A - W20) // 7) if 'w2early' not in EXP else 6
            slots = {6: slots, 5: [3, 7, 10, 13, 16], 4: [4, 8, 12, 16], 3: [5, 10, 15], 2: [6, 13], 1: [9]}[per]
            for q_ in range(per if rho < 7 else 0):
                if w2: N.setdefault(slots[q_], []).extend(w2.pop(0))
            schedule(p, M, [], N)
        assert not w2
        p.vmq = saved_vm + ["w2"]
        p("s_barrier")
        p(f"s_mul_i32 s9, s{S_B}, {U_CH}")
        p(f"s_add_u32 s9, s9, {L_U + 512}")
        p("v_lshlrev_b32 v5, 5, v2")
        p("v_lshl_add_u32 v5, v3, 3, v5")
        p("v_add_u32 v6, s9, v5")
        p(f"s_mul_i32 s9, s{S_B}, {YS_CH}")
        p("v_add_u32 v7, s9, v5")
        for ti, nt in enumerate(tiles):
            p.lg(f"ds_read_b64 {v(FA+2*ti,2)}, v6 offset:{512*nt}", f"u{ti}")
        p("v_mov_b32 v8, 0xffff0000")
        for ti, nt in enumerate(tiles):
            p.wait_lg(f"u{ti}")
            u = FA + 2 * ti; t = 16 + 4 * ti
            p(f"v_lshlrev_b32 v{t}, 16, v{u}")
            p(f"v_and_b32 v{t+1}, v8, v{u}")
            p(f"v_lshlrev_b32 v{t+2}, 16, v{u+1}")
            p(f"v_and_b32 v{t+3}, v8, v{u+1}")
            for r in range(4):
                p(f"v_fma_f32 v{t+r}, v{t+r}, s14, v{ACC+4*ti+r}")
            p(f"v_cvt_pk_bf16_f32 v{t}, v{t}, v{t+1}")
            p(f"v_cvt_pk_bf16_f32 v{t+1}, v{t+2}, v{t+3}")
            p.lg(f"ds_write_b64 v7, {v(t,2)} offset:{512*nt}")
        p.wait_lg()
        if st == 0: p(f"s_branch {join}")
    p.label(join)
    p("s_barrier")

def conv_out(p, SY):
    p("v_and_b32 v1, 3, v0")
    p("v_lshrrev_b32 v2, 2, v0")
    p("v_lshrrev_b32 v3, 1, v1")
    p("v_and_b32 v4, 1, v1")
    p(f"v_mul_u32_u24 v3, {YS_CH}, v3")
    p("v_lshl_add_u32 v3, v4, 4, v3")
    p("v_lshl_add_u32 v3, v2, 5, v3")
    p.lg("ds_read_b128 v[16:19], v3", "y0")
    p.lg(f"ds_read_b128 v[20:23], v3 offset:{64*32}", "y1")
    p(f"v_mul_u32_u24 v5, {D*32}, v2")
    p("v_lshl_add_u32 v5, v1, 4, v5")
    p("s_lshl_b32 s9, s2, 6")
    p("v_add_u32 v5, s9, v5")
    p(f"v_add_u32 v6, {64*D*32}, v5")
    p.wait_lg("y0")
    p.vm(f"buffer_store_dwordx4 v[16:19], v5, {sr(SY)}, 0 offen sc1", "yst")
    p.wait_lg("y1")
    p.vm(f"buffer_store_dwordx4 v[20:23], v6, {sr(SY)}, 0 offen sc1", "yst")

X, T, PK, TMP = 16, 32, 64, 72
YT = 96
def row_setup(p):
    p("v_and_b32 v181, 31, v0")
    p("v_lshrrev_b32 v182, 5, v0")
    p(f"v_cmp_gt_u32 {ACT}, 28, v181")
    p(f"v_mul_u32_u24 v183, {ROWB}, v182")
    p("v_lshl_add_u32 v183, v181, 4, v183")
    p(f"s_mul_i32 s9, s{S_RB}, {8*ROWB}")
    p("v_add_u32 v183, s9, v183")
    p(f"v_cndmask_b32 v{OFFA}, -1, v183, {ACT}")
    p("v_add_u32 v183, 448, v183")
    p(f"v_cndmask_b32 v{OFFB}, -1, v183, {ACT}")

def unpack(p, dst, src, n):
    for i in range(n):
        p(f"v_lshlrev_b32 v{dst+2*i}, 16, v{src+i}")
        p(f"v_and_b32 v{dst+2*i+1}, v7, v{src+i}")
def pack(p, dst, src, n):
    for i in range(n):
        p(f"v_cvt_pk_bf16_f32 v{dst+i}, v{src+2*i}, v{src+2*i+1}")
def allreduce32(p, r, t):
    for m in ("quad_perm:[1,0,3,2]", "quad_perm:[2,3,0,1]", "row_half_mirror", "row_mirror"):
        p(f"v_add_f32_dpp v{r}, v{r}, v{r} {m} row_mask:0xf bank_mask:0xf")
    p(f"v_mov_b32 v{t}, v{r}")
    p(f"v_permlane16_swap_b32 v{r}, v{t}")
    p(f"v_add_f32 v{r}, v{r}, v{t}")
def sum16(p, dst, src):
    p(f"v_pk_add_f32 {v(TMP,2)}, {v(src,2)}, {v(src+2,2)}")
    p(f"v_pk_add_f32 {v(TMP+2,2)}, {v(src+4,2)}, {v(src+6,2)}")
    p(f"v_pk_add_f32 {v(TMP+4,2)}, {v(src+8,2)}, {v(src+10,2)}")
    p(f"v_pk_add_f32 {v(TMP+6,2)}, {v(src+12,2)}, {v(src+14,2)}")
    p(f"v_pk_add_f32 {v(TMP,2)}, {v(TMP,2)}, {v(TMP+2,2)}")
    p(f"v_pk_add_f32 {v(TMP+4,2)}, {v(TMP+4,2)}, {v(TMP+6,2)}")
    p(f"v_pk_add_f32 {v(TMP,2)}, {v(TMP,2)}, {v(TMP+4,2)}")
    p(f"v_add_f32 v{dst}, v{TMP}, v{TMP+1}")
    p(f"v_cndmask_b32 v{dst}, 0, v{dst}, {ACT}")
def layernorm(p, src, dst, scale=None):
    M, V_ = TMP + 8, TMP + 10
    sum16(p, M, src)
    allreduce32(p, M, TMP + 9)
    p(f"v_mul_f32 v{M}, {fbits(-1.0/D)}, v{M}")
    p(f"v_mov_b32 v{M+1}, v{M}")
    for i in range(0, 16, 2):
        p(f"v_pk_add_f32 {v(dst+i,2)}, {v(src+i,2)}, {v(M,2)}")
    p(f"v_pk_mul_f32 {v(TMP,2)}, {v(dst,2)}, {v(dst,2)}")
    p(f"v_pk_mul_f32 {v(TMP+2,2)}, {v(dst+2,2)}, {v(dst+2,2)}")
    for i in range(4, 16, 4):
        p(f"v_pk_fma_f32 {v(TMP,2)}, {v(dst+i,2)}, {v(dst+i,2)}, {v(TMP,2)}")
        p(f"v_pk_fma_f32 {v(TMP+2,2)}, {v(dst+i+2,2)}, {v(dst+i+2,2)}, {v(TMP+2,2)}")
    p(f"v_pk_add_f32 {v(TMP,2)}, {v(TMP,2)}, {v(TMP+2,2)}")
    p(f"v_add_f32 v{V_}, v{TMP}, v{TMP+1}")
    p(f"v_cndmask_b32 v{V_}, 0, v{V_}, {ACT}")
    allreduce32(p, V_, TMP + 11)
    p(f"v_mov_b32 v{V_+1}, {fbits(1e-5)}")
    p(f"v_fmac_f32 v{V_+1}, {fbits(1.0/D)}, v{V_}")
    p(f"v_rsq_f32 v{V_}, v{V_+1}")
    if scale is not None: p(f"v_mul_f32 v{V_}, {fbits(scale)}, v{V_}")
    else: p("s_nop 0")
    p(f"v_mov_b32 v{V_+1}, v{V_}")
    for i in range(0, 16, 2):
        p(f"v_pk_mul_f32 {v(dst+i,2)}, {v(dst+i,2)}, {v(V_,2)}")

def y_load(p, SY):
    p(f"s_lshr_b32 s9, s{S_RB}, 1")
    p(f"s_mul_i32 s9, s9, {D*32}")
    p(f"s_and_b32 s10, s{S_RB}, 1")
    p("s_lshl_b32 s10, s10, 4")
    p("s_add_u32 s9, s9, s10")
    p("v_lshlrev_b32 v3, 5, v0")
    p("v_add_u32 v3, s9, v3")
    p(f"v_add_u32 v4, {256*32}, v3")
    p("v_cmp_gt_u32 vcc, 192, v0")
    p("v_cndmask_b32 v4, -1, v4, vcc")
    p.vm(f"buffer_load_dwordx4 {v(YT,4)}, v3, {sr(SY)}, 0 offen sc1", "y")
    p.vm(f"buffer_load_dwordx4 {v(YT+4,4)}, v4, {sr(SY)}, 0 offen sc1", "y")

def y_transpose(p):
    p("v_lshlrev_b32 v3, 2, v0")
    p.wait_vm("y")
    for wq in range(4):
        p.lg(f"ds_write_b32 v3, v{YT+wq} offset:{LY+2048*wq}")
        p.lg(f"ds_write_b32 v3, v{YT+4+wq} offset:{LY+2048*wq+1024}")
    p.wait_lg()
    p("s_barrier")
    p("v_and_b32 v1, 31, v0")
    p("v_lshrrev_b32 v4, 6, v0")
    p("v_lshlrev_b32 v4, 11, v4")
    p("v_lshl_add_u32 v4, v1, 5, v4")
    for k in range(2):
        p.lg(f"ds_read_b128 {v(YT+8*k,4)}, v4 offset:{LY+896*k}")
        p.lg(f"ds_read_b128 {v(YT+8*k+4,4)}, v4 offset:{LY+896*k+16}")
    p("v_bfe_u32 v5, v0, 5, 1")
    p("v_mov_b32 v6, 0x01000c0c")
    p("v_mov_b32 v3, 0x03020c0c")
    p("v_cmp_eq_u32 vcc, 1, v5")
    p("v_cndmask_b32 v6, v6, v3, vcc")
    p.wait_lg()
    for i in range(16):
        p(f"v_perm_b32 v{YV+i}, v{YT+i}, v{YT+i}, v6")

def poll_s2(p):
    lab = p.uid("s2"); done = p.uid("s2d"); skip = p.uid("s2s")
    p("v_and_b32 v1, 63, v0")
    p("s_and_b32 s9, s2, 7"); p("s_lshl_b32 s9, s9, 11"); p(f"s_add_u32 s9, s9, {FL_S2R}")
    for i in range(4):
        p(f"v_lshl_add_u32 v{12+i}, v1, 3, s9")
        if i: p(f"v_add_u32 v{12+i}, {512*i}, v{12+i}")
    p("v_and_b32 v48, 7, v0")
    p(f"s_lshl_b32 s9, s{S_CL}, 6")
    p(f"s_add_u32 s9, s9, {FL_XCC}")
    p("v_lshl_add_u32 v48, v48, 3, s9")
    p(f"s_cmp_eq_u32 s{S_W}, 0")
    p(f"s_cbranch_scc0 {skip}")
    if 's2st' in EXP:
        p("s_waitcnt vmcnt(0)"); stamp(p, 41)
    p(f"s_mov_b32 s{S_T}, 0")
    p.label(lab)
    masks = [64, 64, 64, 32]
    for i in range(4):
        setexec(p, masks[i])
        p(f"buffer_load_dwordx2 {v(2+2*i,2)}, v{12+i}, {sr(S_FL)}, 0 offen sc1")
    p("s_mov_b64 exec, -1")
    p(f"buffer_load_dwordx2 v[10:11], v48, {sr(S_FL)}, 0 offen sc1")
    p("s_waitcnt vmcnt(0)")
    p(f"v_subrev_u32 v10, s{S_N}, v10")
    p(f"v_cmp_eq_u32 vcc, s{S_N+1}, v11")
    p("v_cmp_gt_u32 s[10:11], 16, v10")
    p("s_nop 4")
    p("s_and_b64 vcc, vcc, s[10:11]")
    p("s_cmp_eq_u64 vcc, exec")
    p("s_cselect_b32 s9, 1, 0")
    for i in range(4):
        setexec(p, masks[i])
        p(f"v_cmp_eq_u64 vcc, {s(S_N,2)}, {v(2+2*i,2)}")
        p("s_nop 4")
        p("s_cmp_eq_u64 vcc, exec")
        p("s_cselect_b32 s9, s9, 0")
    p("s_mov_b64 exec, -1")
    p("s_cmp_eq_u32 s9, 1")
    p(f"s_cbranch_scc1 {done}")
    p(f"s_add_u32 s{S_T}, s{S_T}, 1")
    p(f"s_cmp_lt_u32 s{S_T}, {hex(SPIN_MAX)}")
    p(f"s_cbranch_scc0 {done}")
    p("s_sleep 1")
    p(f"s_branch {lab}")
    p.label(done)
    if 's2st' in EXP:
        p(f"v_writelane_b32 v253, s{S_T}, 42"); p(f"v_writelane_b32 v252, s{S_T}, 43"); p(f"v_writelane_b32 v253, s{S_T}, 43")
    p("s_getreg_b32 s9, hwreg(HW_REG_XCC_ID, 0, 4)")
    p("v_cmp_eq_u32 vcc, s9, v10")
    p("s_nop 4")
    p("s_cmp_eq_u64 vcc, exec")
    p("s_cselect_b32 s9, 1, 0")
    if FORCE_SLOW: p("s_mov_b32 s9, 0")
    p("v_mov_b32 v2, s9")
    p(f"v_mov_b32 v3, {L_FASTW}")
    p("ds_write_b32 v3, v2")
    p("s_waitcnt lgkmcnt(0)")
    p.label(skip)
    p("s_barrier")
    p.vmq = []; p.lgq = []
    p(f"v_mov_b32 v3, {L_FASTW}")
    p.lg("ds_read_b32 v49, v3", "fw")

def fast_get(p):
    p.wait_lg("fw")
    p(f"v_readfirstlane_b32 s{S_FAST}, v49")

PB_ = 96
def partials_prelude(p):
    p("v_and_b32 v1, 31, v0")
    p("v_lshrrev_b32 v2, 5, v0")
    p(f"s_mul_i32 s9, s{S_MEM}, {8*ROWB}")
    p(f"v_mul_u32_u24 v3, {ROWB}, v2")
    p("v_lshl_add_u32 v3, v1, 4, v3")
    if 'noown' not in EXP:
        p(f"v_add_u32 v11, {L_OWN}, v3")
        for i in range(7):
            p(f"s_add_u32 s{SA+i}, s{S_MEM}, {1+i}")
            p(f"s_and_b32 s{SA+i}, s{SA+i}, 7")
            p(f"s_mul_i32 s{SA+i}, s{SA+i}, {64*ROWB}")
    p("v_add_u32 v3, s9, v3")
    p(f"v_cndmask_b32 v12, -1, v3, {ACT}")
    p("v_add_u32 v3, 448, v3")
    p(f"v_cndmask_b32 v13, -1, v3, {ACT}")
    if 'noown' not in EXP: p("s_waitcnt lgkmcnt(0)"); p.lgq = []

def add_partials(p):
    own = 'noown' not in EXP
    for j in range(7 if own else 8):
        if own: so = f"s{SA+j}"
        else:
            so = "s9"
            if j % 4 == 0: p(f"s_mov_b32 s9, {j*64*ROWB}")
            else: p(f"s_add_u32 s9, s9, {64*ROWB}")
        p.vm(f"buffer_load_dwordx4 {v(PB_+8*j,4)}, v12, {sr(S_PR)}, {so} offen sc1", f"p{j}")
        p.vm(f"buffer_load_dwordx4 {v(PB_+8*j+4,4)}, v13, {sr(S_PR)}, {so} offen sc1", f"p{j}")
    if own:
        p.lg(f"ds_read_b128 {v(PB_+56,4)}, v11", "own")
        p.lg(f"ds_read_b128 {v(PB_+60,4)}, v11 offset:448", "own")
    lab = p.uid("pf2")
    p(f"s_cmp_eq_u32 s{S_LAY}, 0"); p(f"s_cbranch_scc0 {lab}")
    for g_ in dma_w1_items(0 if 'pfb' in EXP else 2, "pf2"):
        for it in g_: p(it[0])
    p.label(lab)
    p("v_mov_b32 v7, 0xffff0000")
    p("v_mov_b32 v14, 0x00003f80")
    p("v_mov_b32 v15, 0x3f800000")
    unpack(p, X, XP, 8)
    for i in range(16): p(f"v_mov_b32 v{T+i}, 0")
    p(f"v_mov_b32 v{TMP}, {fbits(LN2)}"); p(f"v_mov_b32 v{TMP+1}, {fbits(LN2)}")
    for j in ([7] + list(range(7)) if own else range(8)):
        if own and j == 7: p.wait_lg("own")
        else: p.wait_vm(f"p{j}")
        for i in range(8):
            p(f"v_dot2c_f32_bf16 v{T+2*i}, v{PB_+8*j+i}, v14")
            p(f"v_dot2c_f32_bf16 v{T+2*i+1}, v{PB_+8*j+i}, v15")
    for i in range(0, 16, 2):
        p(f"v_pk_fma_f32 {v(X+i,2)}, {v(T+i,2)}, {v(TMP,2)}, {v(X+i,2)}")

def xh(phi):
    return a(196 + 4 * phi, 4) if phi < 15 else v(148 + 4 * (phi - 15), 4)

def mlp_setup(p):
    row_setup(p)
    p("v_and_b32 v181, 63, v0")
    p("v_and_b32 v182, 15, v181")
    p("v_lshrrev_b32 v183, 4, v181")
    p(f"s_mul_i32 s9, s{S_A}, 14336")
    p(f"s_add_u32 s9, s9, {L_RING}")
    p(f"v_lshl_add_u32 v{V_A}, v181, 4, s9")
    p(f"v_add_u32 v{V_A2}, {2*CHUNK}, v{V_A}")
    p(f"s_lshl_b32 s9, s{S_B}, 5")
    p("v_add_u32 v184, s9, v182")
    p(f"v_mul_u32_u24 v184, {SH_}, v184")
    p("v_bfe_u32 v185, v182, 1, 2")
    p("v_lshrrev_b32 v186, 1, v183")
    p("v_xor_b32 v186, v186, v185")
    p("v_lshl_add_u32 v184, v186, 4, v184")
    p("v_and_b32 v186, 1, v183")
    p("v_lshl_add_u32 v184, v186, 3, v184")
    p("v_xor_b32 v186, 32, v184")
    p(f"s_cmp_eq_u32 s{S_A}, 1")
    p("s_cselect_b64 vcc, -1, 0")
    p("v_add_u32 v187, 192, v186")
    p(f"v_cndmask_b32 v{V_HW}, v184, v187, vcc")
    p("v_add_u32 v187, 256, v184")
    p(f"v_cndmask_b32 v{V_HW1}, v186, v187, vcc")
    p(f"v_mul_u32_u24 v184, {SH_}, v182")
    p("v_xor_b32 v185, v185, v183")
    p(f"v_lshl_add_u32 v{V_HR}, v185, 4, v184")
    p(f"v_subrev_u32 v{V_A3}, {L_RING - CHUNK}, v{V_A}")
    p(f"v_lshlrev_b32 v{V_L16}, 4, v181")
    p(f"v_mul_u32_u24 v184, {ROWB}, v182")
    p(f"s_lshl_b32 s9, s{S_W}, 6")
    p("v_lshl_add_u32 v185, v183, 4, v184")
    p(f"v_add_u32 v{V_PO}, s9, v185")
    p(f"s_add_u32 s9, s{S_A}, 12")
    p("s_lshl_b32 s9, s9, 6")
    p(f"s_lshl_b32 s10, s{S_B}, 5")
    p("s_add_u32 s9, s9, s10")
    p("v_lshl_add_u32 v185, v183, 3, v184")
    p(f"v_add_u32 v{V_PO1}, s9, v185")
    x_dma_setup(p)

XD1 = [200, 201, 209, 210, 211, 212, 213, 214]
XD2 = [215, 216, 217, 220, 221, 222]
XR1, XR2 = 108, 112
L_X2 = L_X + 64 * 512
def x_dma_setup(p):
    p("v_and_b32 v181, 63, v0")
    p("v_lshrrev_b32 v182, 5, v181")
    p("v_and_b32 v183, 31, v181")
    for i in range(8):
        p(f"v_add_u32 v184, {2*i}, v182")
        p("v_xor_b32 v185, v183, v184")
        p(f"v_mul_u32_u24 v184, {ROWB}, v184")
        p(f"v_lshl_add_u32 v{XD1[i]}, v185, 4, v184")
    for i in range(6):
        p(f"v_add_u32 v184, {64*i}, v181")
        p("v_mul_u32_u24 v185, 2731, v184")
        p("v_lshrrev_b32 v185, 16, v185")
        p("v_mul_u32_u24 v186, 24, v185")
        p("v_sub_u32 v186, v184, v186")
        p("v_and_b32 v184, 6, v185")
        p("v_xor_b32 v186, v186, v184")
        p(f"v_mul_u32_u24 v185, {ROWB}, v185")
        p("v_lshl_add_u32 v185, v186, 4, v185")
        p(f"v_add_u32 v{XD2[i]}, 512, v185")

def x_read_setup(p):
    p("v_and_b32 v1, 63, v0")
    p("v_and_b32 v2, 15, v1")
    p("v_lshrrev_b32 v3, 4, v1")
    p(f"s_lshl_b32 s9, s{S_B}, 5")
    p("v_add_u32 v4, s9, v2")
    p("v_and_b32 v5, 3, v2")
    p("v_xor_b32 v5, v5, v3")
    p("v_lshlrev_b32 v5, 4, v5")
    p("v_lshl_add_u32 v5, v4, 9, v5")
    p("v_lshrrev_b32 v6, 2, v2")
    for r in range(4):
        p(f"v_xor_b32 v8, {r}, v6")
        p(f"v_lshl_add_u32 v{XR1+r}, v8, 6, v5")
    p("v_and_b32 v5, 2, v2")
    p("v_xor_b32 v5, v5, v3")
    p("v_lshlrev_b32 v5, 4, v5")
    p("v_mul_u32_u24 v4, 384, v4")
    p("v_add_u32 v5, v5, v4")
    p(f"v_add_u32 v5, {L_X2}, v5")
    p("v_and_b32 v6, 1, v6")
    p(f"v_lshl_add_u32 v{XR2}, v6, 6, v5")
    p("v_xor_b32 v6, 1, v6")
    p(f"v_lshl_add_u32 v{XR2+1}, v6, 6, v5")

def dma_x(p):
    p(f"s_lshl_b32 s9, s{S_W}, 13")
    p(f"s_mul_i32 s10, s{S_W}, {16*384}")
    for i in range(8):
        p(f"s_add_u32 m0, s9, {L_X + 1024*i}")
        p.vm(f"buffer_load_dwordx4 v{XD1[i]}, {sr(S_X)}, s{S_W14} offen sc1 lds", "x1")
    for i in range(6):
        p(f"s_add_u32 m0, s10, {L_X2 + 1024*i}")
        p.vm(f"buffer_load_dwordx4 v{XD2[i]}, {sr(S_X)}, s{S_W14} offen sc1 lds", "x2")

def dma_w1_items(chunk, tag, g=12):
    G = []
    for i in range(7):
        it = []
        if i in (0, 4):
            o = 4096 if i else 0
            it += [(f"s_add_u32 m0, s{S_W7}, {slot_base(chunk) + o}", "", None),
                   (f"s_add_u32 s{g}, s{S_W7}, {chunk * CHUNK + o}", "", None)]
        it.append((f"buffer_load_dwordx4 v{V_L16}, {sr(S_W1)}, s{g} offen offset:{1024*(i%4)} {'sc1 nt' if 'wnt1' in EXP else 'sc1'} lds", "vm", tag))
        G.append(it)
    return G

def dma_w1(p, chunk, tag):
    p(f"s_mul_i32 s9, s{S_W}, 7168")
    p(f"s_add_u32 s10, s9, {L_RING + (chunk % 3) * CHUNK}")
    p(f"s_add_u32 s9, s9, {chunk * CHUNK}")
    for grp, cnt in ((0, 4), (4, 3)):
        if grp:
            p("s_add_u32 s10, s10, 4096"); p("s_add_u32 s9, s9, 4096")
        p("s_mov_b32 m0, s10")
        for i in range(cnt):
            p.vm(f"buffer_load_dwordx4 v{V_L16}, {sr(S_W1)}, s9 offen offset:{1024*i} sc1 lds", tag)

def cost(t):
    op = t.split()[0]
    if op.startswith(("v_exp", "v_rcp", "v_rsq")): return 8
    if op.startswith("v_"): return 4
    return 0

def emit(p, item):
    t, kind, tag = item
    if kind == "lg": p.lg(t, tag)
    elif kind == "vm": p.vm(t, tag)
    elif kind == "wlg": p.wait_lg(tag)
    elif kind == "wvm": p.wait_vm(tag)
    else: p(t)

def schedule(p, M, V=(), N=None, vstart=0, vend=None):
    N = N or {}
    vend = len(M) if vend is None else vend
    total = sum(cost(x[0]) for x in V)
    done, cum = 0, 0
    for i, m in enumerate(M):
        if isinstance(m, tuple):
            for w in m[1]: emit(p, w)
            m = m[0]
        p(m)
        for it in N.get(i, []): emit(p, it)
        if i >= vstart and done < len(V):
            last = (i >= vend - 1)
            target = total * (i - vstart + 1) / max(1, vend - vstart)
            while done < len(V) and (last or cum + cost(V[done][0]) / 2 <= target):
                cum += cost(V[done][0]); emit(p, V[done]); done += 1
    while done < len(V):
        emit(p, V[done]); done += 1

def interleave(p, M, O, first=0):
    n = len(M) - first
    done = 0
    for i, m in enumerate(M):
        p(m)
        if i >= first:
            want = (len(O) * (i - first + 1) + n - 1) // n
            while done < want:
                t, kind, tag = O[done]; done += 1
                if kind == "lg": p.lg(t, tag)
                elif kind == "vm": p.vm(t, tag)
                else: p(t)

FA, AC1, ST_, HO = 16, 72, 96, 104
def silu_stages(T):
    z = AC1 + 8 * (T % 3); t = ST_
    E = [(f"v_exp_f32_e64 v{t+r}, -v{z+r}", "", None) for r in range(8)]
    A = [(f"v_add_f32 v{t+r}, 1.0, v{t+r}", "", None) for r in range(8)]
    C = [(f"v_rcp_f32 v{t+r}, v{t+r}", "", None) for r in range(8)]
    M = [(f"v_mul_f32 v{t+r}, v{z+r}, v{t+r}", "", None) for r in range(8)]
    V = []
    for nt in range(2):
        V.append((f"v_cvt_pk_bf16_f32 v{HO+2*nt}, v{t+4*nt}, v{t+4*nt+1}", "", None))
        V.append((f"v_cvt_pk_bf16_f32 v{HO+2*nt+1}, v{t+4*nt+2}, v{t+4*nt+3}", "", None))
    W = [(f"ds_write_b64 v{V_HW1 if T & 1 else V_HW}, {v(HO+2*nt,2)} offset:{L_X + nt*16*SH_ + 64*(T>>1)}", "lg", "hw") for nt in range(2)]
    return E, A, C, M, V, W

def gemm1(p):
    def areads(h):
        T, half, buf = h >> 1, h & 1, h & 1
        if T == 3: base, o = V_A3, 0
        else:
            sl = T if T < 3 else T - 4
            base, o = (V_A, sl * CHUNK) if sl < 2 else (V_A2, 0)
        return [(f"ds_read_b128 {v(FA+28*buf+4*i,4)}, v{base} offset:{o + 1024*(7*half+i)}", "lg", f"g{h}") for i in range(7)]
    if 'noown' not in EXP and 'pwall' not in EXP:
        p(f"s_lshr_b32 s9, s{S_MEM}, 1")
        p(f"s_cmp_eq_u32 s9, s{S_W}")
        p("s_cselect_b32 s9, 1, 0")
        p(f"s_and_b32 s10, s{S_MEM}, 1")
        p("s_xor_b32 s11, s10, 1")
        p("s_and_b32 s11, s11, s9"); p("s_and_b32 s10, s10, s9")
        p("s_lshl_b32 s11, s11, 31"); p("s_lshl_b32 s10, s10, 31")
        p(f"s_or_b32 s14, s{S_W14}, s11")
        p(f"s_or_b32 s15, s{S_W14}, s10")
        if 'pwboth' not in EXP:
            p(f"s_lshl_b32 s9, s{S_LAY}, 31")
            p("s_or_b32 s14, s14, s9"); p("s_or_b32 s15, s15, s9")
    p.wait_vm("x1")
    p("s_barrier")
    stamp(p, 12, True)
    def xread(k, nt):
        if k < 8: return (f"ds_read_b128 {xh(2*k+nt)}, v{XR1 + (k & 3)} offset:{L_X + 256*(k>>2) + nt*16*512}", "lg", f"x{k}")
        kk = k - 8
        return (f"ds_read_b128 {xh(2*k+nt)}, v{XR2 + (kk & 1)} offset:{128*(kk>>1) + nt*16*384}", "lg", f"x{k}")
    a0 = areads(0)
    for k in range(7):
        t, kind, _ = a0[k]
        emit(p, (t, kind, f"a0_{k}")); emit(p, xread(k, 0)); emit(p, xread(k, 1))
    silu = 'nosilu' not in EXP
    for h in range(14):
        T, half, buf = h >> 1, h & 1, h & 1
        nxt = areads(h + 1) if h < 13 else []
        pre = [[] for _ in range(14)]
        val = [[] for _ in range(14)]
        post = [[] for _ in range(14)]
        for i, it in enumerate(nxt): pre[i].append(it)
        if h == 0:
            pre[0].append(xread(7, 0)); pre[1].append(xread(7, 1))
            pre[2] += [(None, "wvm", "x2"), ("s_barrier", "", None)]
            extra = [xread(k, nt) for k in range(8, 14) for nt in range(2)]
            for i in range(12): pre[2 + i].append(extra[i])
            if 'pfb' in EXP:
                for g_, grp in zip((3, 5, 6, 8, 9, 11, 12), dma_w1_items(2, "c2")):
                    sal = [x for x in grp if x[1] == ""]; dm = [x for x in grp if x[1] == "vm"]
                    pre[g_] = sal + pre[g_] + dm
            if 'pwX' in EXP or 'pwH' in EXP:
                lab = p.uid("pwx")
                grp = [(f"s_cmp_eq_u32 s{S_LAY}, 0", "", None), (f"s_cbranch_scc0 {lab}", "", None)]
                for i in range(14):
                    if i % 4 == 0: grp.append((f"s_add_u32 s12, s{S_W14}, {1024*i}", "", None))
                    grp.append((f"buffer_load_dwordx4 v[124:127], v{V_L16}, {sr(S_PW)}, s12 offen offset:{1024*(i%4)}", "", None))
                grp.append((f"{lab}:", "", None))
                pre[3] = pre[3] + grp
        if 1 <= h <= 8 and 'nodma1' not in EXP:
            c = 3 + (h - 1) // 2
            grps = dma_w1_items(c, f"c{c}")
            grps = grps[:4] if h & 1 else grps[4:]
            at = [1, 4, 8, 11] if h & 1 else [2, 6, 10]
            for g_, grp in zip(at, grps):
                sal = [x for x in grp if x[1] == ""]; dm = [x for x in grp if x[1] == "vm"]
                pre[g_] = sal + pre[g_] + dm
        if 9 <= h <= 13 and 'noldwc' not in EXP and not any(x in ('pwX', 'pwY') for x in EXP) and 'pw7' not in EXP:
            first = 3 * (h - 9)
            for g_, i in zip((1, 5, 9), range(first, min(first + 3, 14))):
                pre[g_] = [(f"s_add_u32 s12, s{(14 if i < 7 else 15) if 'noown' not in EXP and 'pwall' not in EXP else S_W14}, {1024*i}", "", None)] + pre[g_] + [(f"buffer_load_dwordx4 v[124:127], v{V_L16}, {sr(S_PW)}, s12 offen {'sc1' if 'pwsc1' in EXP else ('nt' if 'pwnt' in EXP else '')}", "vm", "pw")]
        if 7 <= h <= 13 and 'pw7' in EXP:
            first = 2 * (h - 7)
            for g_, i in zip((3, 9), range(first, min(first + 2, 14))):
                pre[g_] = [(f"s_add_u32 s13, s{S_W14}, {1024*i}", "", None)] + pre[g_] + [(f"buffer_load_dwordx4 v[124:127], v{V_L16}, {sr(S_PW)}, s13 offen", "vm", "pw")]
        if silu:
            if half == 0 and T >= 2:
                E, A, C, M, V, W = silu_stages(T - 2)
                seq = M + V
                order = [2, 2, 2, 2, 2, 1, 1]
                for g_, cnt in enumerate(order):
                    for _ in range(cnt): val[g_].append(seq.pop(0))
                pre[7].append(W[0]); pre[9].append(W[1])
            if half == 0 and T >= 1:
                E = silu_stages(T - 1)[0]
                for r in range(7): val[7 + r].append(E[r])
                val[13].append(E[7])
            if half == 1 and T >= 1:
                E, A, C, M, V, W = silu_stages(T - 1)
                for r in range(7): val[r].append(A[r])
                val[6].append(A[7])
                for r in range(7): val[7 + r].append(C[r])
                val[13].append(C[7])
        if h < 13:
            w = [(None, "wlg", f"g{h+1}")]
            if h == 0: w.append((None, "wlg", "x13"))
            if half == 0 and (2 if 'pfb' in EXP else 3) <= T + 1 <= 6: w.append((None, "wvm", f"c{T+1}"))
            pre[13] = w + pre[13] if h != 0 else pre[13] + w
        for q_ in range(14):
            i, nt = q_ >> 1, q_ & 1
            k = 7 * half + i
            if h == 0 and nt == 0:
                p.wait_lg(f"a0_{i}"); p.wait_lg(f"x{k}")
            acc = v(AC1 + 8 * (T % 3) + 4 * nt, 4)
            p(f"v_mfma_f32_16x16x32_bf16 {acc}, {v(FA+28*buf+4*i,4)}, {xh(2*k+nt)}, {'0' if k == 0 else acc}")
            for it in pre[q_] + val[q_] + post[q_]: emit(p, it)
        if half == 0 and 'nobar1' not in EXP: p("s_barrier")
        if 'tt' in EXP: p(f"s_memtime s[{40+0}:{41}]" if False else f"s_memtime s[{34+2*(h+3)}:{35+2*(h+3)}]") if False else None
        if 'tt' in EXP and h < 12: p(f"s_memtime s[{40+2*h}:{41+2*h}]")
    if 'tt' in EXP:
        p("s_waitcnt lgkmcnt(0)"); p.lgq = []
        for h in range(12): p(f"v_mov_b32 v{108+h}, s{40+2*h}")
        p("s_lshl_b32 s9, s2, 6"); p(f"s_mul_i32 s10, s{S_LAY}, 16384"); p("s_add_u32 s9, s9, s10"); p(f"s_add_u32 s9, s9, {0x30000}")
        p("v_mov_b32 v120, s9")
        p("s_mov_b64 s[10:11], exec"); p("s_mov_b64 exec, 1")
        for q_ in range(3): p.vm(f"buffer_store_dwordx4 {v(108+4*q_,4)}, v120, s[92:95], 0 offen offset:{16*q_}")
        p("s_mov_b64 exec, s[10:11]")
    if silu:
        E, A, C, M, V, W = silu_stages(5)
        for it in M + V + W: emit(p, it)
        E, A, C, M, V, W = silu_stages(6)
        for it in E + A + C + M + V + W: emit(p, it)
    p.wait_lg()
    p("s_barrier")

AC2, CO = 72, 16
OUTLINE = []
OWNLINE = []
L_OWN = 143360
def gemm2(p):
    if 'l1sc1' in EXP or 'l1nt' in EXP: p(f"s_cmp_eq_u32 s{S_LAY}, 1")
    if 'l0sc1' in EXP: p(f"s_cmp_eq_u32 s{S_LAY}, 0")
    own = 'noown' not in EXP
    rot = own and 'norot' not in EXP
    if rot:
        HRV = [116, 117, 118, 119]
        p(f"s_lshr_b32 s10, s{S_MEM}, 1")
        for n_ in range(4):
            p(f"s_add_u32 s11, s10, {n_}"); p("s_and_b32 s11, s11, 3")
            p(f"s_mul_i32 s12, s11, {16*SH_}")
            p(f"v_add_u32 v{HRV[n_]}, s12, v{V_HR}")
            p(f"s_mul_i32 s{SA+n_}, s11, {16*ROWB}")
        hread = lambda nt, k: (f"ds_read_b128 {xh(7*nt+k)}, v{HRV[nt]} offset:{L_X + 64*k}", "lg", f"h{nt}_{k}")
        for k in range(7): emit(p, hread(0, k))
        p(f"s_and_b32 s11, s{S_MEM}, 1")
        p("s_mov_b32 s14, 0x00ff00ff")
        p("s_lshl_b32 s12, s11, 3")
        p("s_lshl_b32 s14, s14, s12")
        p("s_mov_b32 s15, s14")
        p(f"s_mul_i32 s12, s11, {8*ROWB}")
        p(f"s_sub_u32 s12, {L_OWN}, s12")
        p(f"v_add_u32 v120, s12, v{V_PO}")
        p(f"v_add_u32 v121, s12, v{V_PO1}")
        p(f"v_add_u32 v122, {L_OWN + 7168}, v{V_L16}")
        p("v_cndmask_b32 v120, v122, v120, s[14:15]")
        p("v_cndmask_b32 v121, v122, v121, s[14:15]")
        p("v_bfrev_b32 v123, 1")
        p(f"v_cndmask_b32 v122, v{V_PO}, v123, s[14:15]")
        p(f"v_cndmask_b32 v123, v{V_PO1}, v123, s[14:15]")
    else:
        hread = lambda nt, k: (f"ds_read_b128 {xh(7*nt+k)}, v{V_HR} offset:{L_X + nt*16*SH_ + 64*k}", "lg", f"h{nt}_{k}")
        for k in range(7): emit(p, hread(0, k))
        if own:
            p(f"s_lshr_b32 s10, s{S_MEM}, 1")
            p(f"s_and_b32 s11, s{S_MEM}, 1")
            p("s_mov_b32 s14, 0x00ff00ff")
            p("s_mul_i32 s12, s11, 8")
            p("s_lshl_b32 s14, s14, s12")
            p("s_mov_b32 s15, s14")
            p(f"s_mul_i32 s12, s11, {8*ROWB}")
            p(f"s_sub_u32 s12, {L_OWN}, s12")
            p(f"v_add_u32 v120, s12, v{V_PO}")
            p(f"v_add_u32 v121, s12, v{V_PO1}")
    pf = []
    units = [(3, nt) for nt in range(4)] + [(P, nt) for P in range(3) for nt in range(4)]
    def epi(u):
        P, nt = units[u]; ac = AC2 + 8 * (u & 1); o = CO + 4 * (u & 3)
        O = []
        O.append((f"v_cvt_pk_bf16_f32 v{o}, v{ac}, v{ac+1}", "", None))
        O.append((f"v_cvt_pk_bf16_f32 v{o+1}, v{ac+2}, v{ac+3}", "", None))
        if P < 3:
            O.append((f"v_cvt_pk_bf16_f32 v{o+2}, v{ac+4}, v{ac+5}", "", None))
            O.append((f"v_cvt_pk_bf16_f32 v{o+3}, v{ac+6}, v{ac+7}", "", None))
        st = [(f"s_mov_b32 s9, {nt*16*ROWB}", "", None)]
        sfl = "sc1" if 'psc1' in EXP else ("nt" if 'psnt' in EXP else ("sc0" if 'pssc0' in EXP else ""))
        base = f"buffer_store_dwordx4 {v(o,4)}, v{V_PO}, {sr(S_PW)}, s9 offen offset:{256*P}" if P < 3 else f"buffer_store_dwordx2 {v(o,2)}, v{V_PO1}, {sr(S_PW)}, s9 offen"
        if 'l1sc1' in EXP or 'l1nt' in EXP or 'l0sc1' in EXP:
            alt = "nt" if 'l1nt' in EXP else "sc1"
            la, lb = p.uid("stA"), p.uid("stB")
            st.append((f"s_cbranch_scc1 {la}", "", None))
            st.append((f"{base} {sfl}", "vm", "ps"))
            st.append((f"{lb}:", "", None))
            OUTLINE.append((la, f"{base} {alt}", lb))
        elif rot:
            so = f"s{SA+nt}"
            st = []
            if nt == 0:
                ad, ad1 = 122, 123
                w_ = f"ds_write_b128 v120, {v(o,4)} offset:{256*P}" if P < 3 else f"ds_write_b64 v121, {v(o,2)}"
            else: ad, ad1 = V_PO, V_PO1
            t_ = f"buffer_store_dwordx4 {v(o,4)}, v{ad}, {sr(S_PW)}, {so} offen offset:{256*P}" if P < 3 else f"buffer_store_dwordx2 {v(o,2)}, v{ad1}, {sr(S_PW)}, {so} offen"
            st.append((f"{t_} {sfl}", "vm", "ps"))
            if nt == 0: st.append((w_, "lg", "ow"))
        elif own:
            la, lb = p.uid("owA"), p.uid("owB")
            st.append((f"s_cmp_eq_u32 s10, {nt}", "", None))
            st.append((f"s_cbranch_scc1 {la}", "", None))
            st.append((f"{base} {sfl}", "vm", "ps"))
            st.append((f"{lb}:", "", None))
            w_ = f"ds_write_b128 v120, {v(o,4)} offset:{256*P}" if P < 3 else f"ds_write_b64 v121, {v(o,2)}"
            OWNLINE.append((la, f"{base} {sfl}", w_, lb))
        else:
            st.append((f"{base} {sfl}", "vm", "ps"))
        return O, st
    for u, (P, nt) in enumerate(units):
        ac = AC2 + 8 * (u & 1)
        M = []
        for k in range(7):
            for sub in range(2 if P < 3 else 1):
                Tt = 2 * P + sub
                acc = v(ac + 4 * sub, 4)
                t = f"v_mfma_f32_16x16x32_bf16 {acc}, {a(4*(7*k+Tt),4)}, {xh(7*nt+k)}, {'0' if k == 0 else acc}"
                w = [(None, "wlg", f"h{nt}_{k}")] if (u < 4 and sub == 0) else []
                M.append((t, w))
        n = len(M)
        N = {}
        if u < 3:
            for k in range(7): N.setdefault(k, []).append(hread(u + 1, k))
        V, st = epi(u - 1) if u else ([], [])
        if st and 'nostore' not in EXP: N.setdefault(n - 1 if n == 7 else 10, []).extend(st)
        schedule(p, M, V, N, vstart=(4 if n == 7 else 5), vend=(6 if n == 7 else 9))
    assert not pf
    V, st = epi(len(units) - 1)
    for it in V + st: emit(p, it)

def prewarm_burst(p, layer0_only=True):
    lab = p.uid("pwb")
    if layer0_only:
        p(f"s_cmp_eq_u32 s{S_LAY}, 0"); p(f"s_cbranch_scc0 {lab}")
    for i in range(14):
        if i % 4 == 0: p(f"s_add_u32 s12, s{S_W14}, {1024*i}")
        t = f"buffer_load_dwordx4 v[124:127], v{V_L16}, {sr(S_PW)}, s12 offen offset:{1024*(i%4)}"
        if layer0_only: p(t)
        else: p.vm(t, "pw")
    p.label(lab)

def prewarm_ld(p, stride=128):
    n = 57344 // stride
    for i in range((n + 255) // 256):
        p(f"v_add_u32 v2, {256*i}, v0")
        p(f"v_mul_u32_u24 v2, {stride}, v2")
        p.vm(f"buffer_load_dword v255, v2, {sr(S_PW)}, 0 offen", "pw")

def prewarm(p):
    if 'nowarm' in EXP: return
    fl = "sc1" if 'wsc1' in EXP else ("nt" if 'wnt' in EXP else "")
    stride = 64 if 'w64' in EXP else 128
    for i in range((57344 // stride + 255) // 256):
        p(f"v_add_u32 v2, {256*i}, v0")
        p(f"v_mul_u32_u24 v2, {stride}, v2")
        p(f"buffer_store_dword v0, v2, {sr(S_PW)}, 0 offen {fl}")
    p("v_lshlrev_b32 v1, 7, v0")
    p(f"s_mul_i32 s9, s{S_MEM}, {8*ROWB}")
    p("v_add_u32 v2, s9, v1")
    p(f"v_cmp_gt_u32 vcc, {8*ROWB}, v1")
    p("v_cndmask_b32 v2, -1, v2, vcc")
    p(f"buffer_store_dword v0, v2, {sr(S_X)}, 0 offen {fl}")

FORCE_SLOW = False
def build(stamps=False, force_slow=False):
    global FORCE_SLOW
    FORCE_SLOW = force_slow
    common.STAMPS[0] = stamps
    p = K()
    p("s_cmp_ge_u32 s2, 256")
    p("s_cbranch_scc1 K_end")
    p.load_ptrs()
    p(f"s_memrealtime {s(S_N,2)}")
    code_prefetch(p)
    p.wave_id(S_W, 1)
    p("s_and_b32 s4, s2, 7")
    p("s_lshr_b32 s5, s2, 3")
    p("s_lshl_b32 s4, s4, 5")
    p("s_add_u32 s4, s4, s5")
    p("s_lshr_b32 s5, s4, 3")
    p("s_and_b32 s6, s4, 7")
    p(f"s_lshr_b32 s{S_A}, s{S_W}, 1")
    p(f"s_and_b32 s{S_B}, s{S_W}, 1")
    p(f"s_mov_b32 s{S_LAY}, 0")
    p(f"s_mov_b32 s{S_FAST}, 0")
    p(f"s_mul_i32 s{S_W7}, s{S_W}, 7168")
    p(f"s_mul_i32 s{S_W14}, s{S_W}, 14336")
    prep_addr(p)
    p("s_waitcnt lgkmcnt(0)")
    nonce_threshold(p)
    if stamps:
        p.srd(92, P_WS, WS_FLAGS + 0x80000, 0x40000)
        p("v_mov_b32 v252, 0"); p("v_mov_b32 v253, 0")
    stamp(p, 0)
    p("s_cmp_ge_u32 s2, 224")
    p("s_cbranch_scc1 K_noprep")
    prep(p)
    stamp(p, 1)
    p.wait_vm("kvst")
    lab = p.uid("haven")
    nonce_try(p, 150, lab)
    saved = list(p.vmq)
    p.srd(SF_, P_DBG, 0, 256)
    get_nonce(p, lab)
    p.vmq = saved
    p.label(lab)
    p("s_barrier")
    flag_store_rep(p, FL_S1R, 2)
    stamp(p, 2)
    p.wait_vm()
    hbuild(p)
    p("s_branch K_prepdone")
    p.label("K_noprep")
    p.srd(S_FL, P_WS, WS_FLAGS, FLAGS_BYTES)
    mlp_setup(p)
    q_loads(p)
    p.srd(SF_, P_DBG, 0, 256)
    lab = p.uid("haven")
    get_nonce(p, lab)
    p.label(lab)
    p("s_barrier")
    p.label("K_prepdone")
    p.vmq = []; p.lgq = []
    lab = p.uid("xp")
    p(f"s_cmp_eq_u32 s{S_W}, 0")
    p(f"s_cbranch_scc0 {lab}")
    p("s_getreg_b32 s9, hwreg(HW_REG_XCC_ID, 0, 4)")
    p(f"s_add_u32 s9, s9, s{S_N}")
    p("v_mov_b32 v2, s9"); p(f"v_mov_b32 v3, s{S_N+1}")
    p(f"s_lshl_b32 s9, s{S_RB}, 3"); p(f"s_add_u32 s9, s9, {FL_XCC}")
    p("v_mov_b32 v1, s9")
    p("s_mov_b64 exec, 1")
    p(f"buffer_store_dwordx2 v[2:3], v1, {sr(S_FL)}, 0 offen sc1")
    p("s_mov_b64 exec, -1")
    p.label(lab)
    p(f"s_mul_i32 s9, s{S_MEM}, {7*CHUNK}"); p(f"s_add_u32 s9, s9, {hex(WS_W1P)}")
    p(f"s_add_u32 s{S_W1}, s{P_WS}, s9"); p(f"s_addc_u32 s{S_W1+1}, s{P_WS+1}, 0")
    p(f"s_mov_b32 s{S_W1+2}, {7*CHUNK}"); p(f"s_mov_b32 s{S_W1+3}, 0x20000")
    p(f"s_mul_i32 s9, s{S_CL}, {64*ROWB}"); p(f"s_add_u32 s9, s9, {hex(WS_XP)}")
    p(f"s_add_u32 s{S_X}, s{P_WS}, s9"); p(f"s_addc_u32 s{S_X+1}, s{P_WS+1}, 0")
    p(f"s_mov_b32 s{S_X+2}, {64*ROWB}"); p(f"s_mov_b32 s{S_X+3}, 0x20000")
    p(f"s_mul_i32 s9, s{S_RB}, {64*ROWB}"); p(f"s_add_u32 s9, s9, {hex(WS_PB)}")
    p(f"s_add_u32 s{S_PW}, s{P_WS}, s9"); p(f"s_addc_u32 s{S_PW+1}, s{P_WS+1}, 0")
    p(f"s_mov_b32 s{S_PW+2}, {64*ROWB}"); p(f"s_mov_b32 s{S_PW+3}, 0x20000")
    p(f"s_mul_i32 s9, s{S_CL}, {8*64*ROWB}"); p(f"s_add_u32 s9, s9, {hex(WS_PB)}")
    p(f"s_add_u32 s{S_PR}, s{P_WS}, s9"); p(f"s_addc_u32 s{S_PR+1}, s{P_WS+1}, 0")
    p(f"s_mov_b32 s{S_PR+2}, {8*64*ROWB}"); p(f"s_mov_b32 s{S_PR+3}, 0x20000")
    if 'warm1' in EXP: prewarm(p)
    p("v_and_b32 v1, 63, v0")
    p("s_lshr_b32 s9, s2, 5")
    p("s_min_u32 s9, s9, 6")
    p("v_mul_u32_u24 v8, 7, v1")
    p("v_add_u32 v8, s9, v8")
    p(f"s_mul_i32 s9, s{S_MEM}, 14")
    p("v_subrev_u32 v9, 32, v1")
    p("v_add_u32 v9, s9, v9")
    p("v_add_u32 v10, 98, v9")
    p("v_cmp_gt_u32 vcc, 46, v1")
    p("v_cndmask_b32 v9, v10, v9, vcc")
    p("v_cmp_gt_u32 vcc, 32, v1")
    p("v_cndmask_b32 v8, v9, v8, vcc")
    p("v_lshlrev_b32 v8, 3, v8")
    p("s_and_b32 s9, s2, 7"); p("s_lshl_b32 s9, s9, 11"); p(f"s_add_u32 s9, s9, {FL_S1R}")
    p("v_add_u32 v8, s9, v8")
    p("s_waitcnt lgkmcnt(0)")
    poll(p, [8], 1, [60])
    stamp(p, 3)
    p(f"s_lshl_b32 s9, s{S_MEM}, 2"); p(f"s_add_u32 s9, s9, s{S_W}")
    p(f"s_mul_i32 s9, s9, {49*1024}"); p(f"s_add_u32 s9, s9, {hex(WS_W2P)}")
    p(f"s_add_u32 s{SE}, s{P_WS}, s9"); p(f"s_addc_u32 s{SE+1}, s{P_WS+1}, 0")
    p(f"s_mov_b32 s{SE+2}, {49*1024}"); p(f"s_mov_b32 s{SE+3}, 0x20000")
    p.srd(SD, P_WS, WS_YB, MAT)
    p("s_cmp_ge_u32 s2, 224")
    p("s_cbranch_scc1 K_noconv")
    p("s_lshl_b32 s9, s2, 13")
    p(f"s_add_u32 s{SA}, s{P_WS}, s9"); p(f"s_addc_u32 s{SA+1}, s{P_WS+1}, 0")
    p(f"s_mov_b32 s{SA+2}, 8192"); p(f"s_mov_b32 s{SA+3}, 0x20000")
    p("v_lshlrev_b32 v10, 4, v0")
    p.vm(f"buffer_load_dwordx4 v[64:67], v10, {sr(SA)}, 0 offen sc1", "u")
    p("v_add_u32 v11, 4096, v10")
    p.vm(f"buffer_load_dwordx4 v[68:71], v11, {sr(SA)}, 0 offen sc1", "u")
    if 'qlate' in EXP: q_loads(p)
    p("s_lshl_b32 s9, s2, 2")
    p(f"s_load_dword s13, s[{P_DV}:{P_DV+1}], s9")
    for g_ in w2_items(SE)[:W20]:
        for it in g_: emit(p, it)
    p(f"v_add_u32 v10, {L_U+512}, v10")
    p.wait_vm("u")
    p.lg("ds_write_b128 v10, v[64:67]")
    p.lg(f"ds_write_b128 v10, v[68:71] offset:{U_CH}")
    p("s_waitcnt lgkmcnt(0)"); p.lgq = []
    p("s_lshl_b32 s12, s13, 16")
    p("s_and_b32 s14, s13, 0xffff0000")
    p(f"s_cmp_eq_u32 s{S_B}, 0")
    p("s_cselect_b32 s14, s12, s14")
    p("s_barrier")
    if 'warm2' in EXP: prewarm(p)
    stamp(p, 4)
    conv_main(p)
    stamp(p, 5)
    conv_out(p, SD)
    signal(p, FL_S2R, 2, upto="yst")
    stamp(p, 6)
    p("s_branch K_convdone")
    p.label("K_noconv")
    p.vmq = []
    for g_ in w2_items(SE)[:W2A]:
        for it in g_: emit(p, it)
    idle = [x for x in EXP if x.startswith('idle')]
    if idle:
        nld = int(idle[0][4:])
        p("s_and_b32 s9, s2, 7"); p("s_lshl_b32 s9, s9, 2")
        p("s_sub_u32 s10, s2, 224"); p("s_lshr_b32 s10, s10, 3"); p("s_add_u32 s9, s9, s10")
        p(f"s_mul_i32 s9, s9, {8*64*ROWB}"); p(f"s_add_u32 s9, s9, {hex(WS_PB)}")
        p(f"s_add_u32 s{SA}, s{P_WS}, s9"); p(f"s_addc_u32 s{SA+1}, s{P_WS+1}, 0")
        p(f"s_mov_b32 s{SA+2}, {8*64*ROWB}"); p(f"s_mov_b32 s{SA+3}, 0x20000")
        p(f"s_mul_i32 s10, s{S_W}, {112*1024}")
        lab = p.uid("idl")
        p("s_mov_b32 s11, 0")
        p.label(lab)
        for i in range(4):
            p(f"buffer_load_dwordx4 v[124:127], v{V_L16}, {sr(SA)}, s10 offen offset:{1024*i}")
        p("s_add_u32 s10, s10, 4096"); p("s_add_u32 s11, s11, 4"); p(f"s_cmp_lt_u32 s11, {nld}")
        p(f"s_cbranch_scc1 {lab}")
    p.wait_vm()
    p.label("K_convdone")
    if 'warm3' in EXP: prewarm(p)
    if 'pws2' in EXP:
        lab = p.uid("pws")
        p(f"s_cmp_eq_u32 s{S_W}, 0"); p(f"s_cbranch_scc1 {lab}")
        p(f"s_sub_u32 s9, s{S_W}, 1"); p("s_mul_i32 s9, s9, 19456")
        for i in range(19):
            if i % 4 == 0: p(f"s_add_u32 s10, s9, {1024*i}")
            p(f"buffer_load_dwordx4 v[220:223], v{V_L16}, {sr(S_PW)}, s10 offen offset:{1024*(i%4)}")
        p.label(lab)
    p("s_waitcnt vmcnt(0)")
    p("v_mov_b32 v7, 0xffff0000")
    unpack(p, X, XP, 8)
    layernorm(p, X, T)
    poll_s2(p)
    stamp(p, 7)
    y_load(p, SD)
    fast_get(p)
    for g_ in dma_w1_items(0 if 'pfb' in EXP else 2, "pf2"):
        for it in g_: emit(p, it)
    if 'pwY' in EXP: prewarm_burst(p, False)
    for g_ in w2_items(SE)[W2A:]:
        for it in g_: emit(p, it)
    y_transpose(p)
    stamp(p, 8)
    p("v_mov_b32 v7, 0xffff0000")
    p("s_branch K_gate")
    p.label("K_layer")
    p.vmq = []; p.lgq = []
    layernorm(p, X, T)
    p.label("K_gate")
    p.vmq = []; p.lgq = []
    q = K()
    for i in range(0, 16, 2):
        q(f"v_pk_fma_f32 {v(X+i,2)}, {v(T+i,2)}, {v(YV+i,2)}, {v(X+i,2)}")
    layernorm(q, X, T, LOG2E)
    pack(q, PK, T, 8)
    body = [it.text for it in q.items]
    if 'pfb' in EXP: pf = dma_w1_items(1, "pf")
    elif 'pfafter' in EXP: pf = dma_w1_items(0, "pf")
    else: pf = [g for c in range(2) for g in dma_w1_items(c, "pf")]
    step = len(body) // (len(pf) + (5 if 'pfb' in EXP else 1))
    for i, t in enumerate(body):
        p(t)
        if pf and i % step == step - 1:
            for it in pf.pop(0): emit(p, it)
    assert not pf
    p(f"s_mul_i32 s9, s{S_CL}, {64*ROWB}")
    p(f"v_subrev_u32 v3, s9, v{OFFA}")
    p(f"v_subrev_u32 v4, s9, v{OFFB}")
    p(f"v_cndmask_b32 v3, -1, v3, {ACT}")
    p(f"v_cndmask_b32 v4, -1, v4, {ACT}")
    p.vm(f"buffer_store_dwordx4 {v(PK,4)}, v3, {sr(S_X)}, 0 offen", "xs")
    p.vm(f"buffer_store_dwordx4 {v(PK+4,4)}, v4, {sr(S_X)}, 0 offen", "xs")
    pack(p, XP, X, 8)
    if 'pfafter' in EXP:
        for g_ in dma_w1_items(1, "pf1"):
            for it in g_: emit(p, it)
    stamp(p, 9, True)
    if 'oldsync' in EXP:
        signal(p, FL_CA, S_RB, layer_off=True, cluster=True, upto="xs")
        stamp(p, 10, True)
        def cluster_offs():
            p("v_and_b32 v1, 7, v0")
            p(f"s_lshl_b32 s9, s{S_CL}, 7")
            p(f"s_lshl_b32 s10, s{S_LAY}, 13")
            p("s_add_u32 s9, s9, s10")
        cluster_offs()
        p(f"s_add_u32 s9, s9, {FL_CA}")
        p("v_lshl_add_u32 v10, v1, 3, s9")
        poll(p, [10], 1, [8], cluster=True)
    else:
        cluster_sync(p, FL_CA, upto="xs", sid=10)
    stamp(p, 11, True)
    dma_x(p)
    x_read_setup(p)
    if 'ldw128' in EXP: prewarm_ld(p, 128)
    if 'ldw64' in EXP: prewarm_ld(p, 64)
    gemm1(p)
    stamp(p, 13, True)
    gemm2(p)
    stamp(p, 14, True)
    if 'oldsync' in EXP:
        signal(p, FL_CC, S_RB, layer_off=True, cluster=True)
        if 'wb2' in EXP:
            lab = p.uid("wb2")
            p(f"s_cmp_eq_u32 s{S_LAY}, 1"); p(f"s_cbranch_scc0 {lab}")
            p(f"s_cmp_eq_u32 s{S_W}, 3"); p(f"s_cbranch_scc0 {lab}")
            p(f"s_and_b32 s9, s{S_RB}, 31"); p("s_cmp_eq_u32 s9, 0"); p(f"s_cbranch_scc0 {lab}")
            p("buffer_wbl2 sc1")
            p.label(lab)
        stamp(p, 15, True)
        partials_prelude(p)
        cluster_offs()
        p(f"s_add_u32 s9, s9, {FL_CC}")
        p("v_lshl_add_u32 v10, v1, 3, s9")
        poll(p, [10], 1, [8], cluster=True)
        if 'wb' in EXP:
            lab = p.uid("wb")
            p(f"s_cmp_eq_u32 s{S_LAY}, 1"); p(f"s_cbranch_scc0 {lab}")
            p(f"s_cmp_eq_u32 s{S_MEM}, 0"); p(f"s_cbranch_scc0 {lab}")
            p(f"s_cmp_eq_u32 s{S_W}, 3"); p(f"s_cbranch_scc0 {lab}")
            p("buffer_wbl2 sc1")
            p.label(lab)
    else:
        cluster_sync(p, FL_CC, before=lambda: partials_prelude(p), sid=15)
    stamp(p, 16, True)
    add_partials(p)
    stamp(p, 17, True)
    p(f"s_cmp_eq_u32 s{S_LAY}, 1")
    p("s_cbranch_scc1 K_final")
    p(f"s_mov_b32 s{S_LAY}, 1")
    p("s_branch K_layer")
    p.label("K_final")
    pack(p, XP, X, 8)
    p.srd(SA, P_OUT, 0, MAT)
    ofl = "sc1" if 'osc1' in EXP else ("nt" if 'ont' in EXP else "")
    p(f"buffer_store_dwordx4 {v(XP,4)}, v{OFFA}, {sr(SA)}, 0 offen {ofl}")
    p(f"buffer_store_dwordx4 {v(XP+4,4)}, v{OFFB}, {sr(SA)}, 0 offen {ofl}")
    stamp(p, 40)
    stamp_flush(p)
    if SLOWPATHS:
        p("s_endpgm")
        emit_slowpaths(p)
        for la, t, w_, lb in OWNLINE:
            p.label(la)
            p("s_not_b64 exec, s[14:15]")
            p(t)
            p("s_mov_b64 exec, s[14:15]")
            p(w_)
            p("s_mov_b64 exec, -1")
            p("s_nop 1")
            p(f"s_branch {lb}")
    if OUTLINE:
        p("s_endpgm")
        for la, t, lb in OUTLINE:
            p.label(la); p(t); p(f"s_branch {lb}")
    p.label("K_end")
    p("s_endpgm")
    txt, n = kernel_text(KNAME, p, 256, sgprs=102, agprs=256)
    print("nops inserted:", n, "instructions:", p.count(), file=sys.stderr)
    head = HEADER + f"; @launch grid=(256,1,1) block=(256,1,1) lds={LDS_BYTES}\n" + '.amdgcn_target "amdgcn-amd-amdhsa--gfx950"\n'
    return head + txt

if __name__ == "__main__":
    open(sys.argv[1], "w").write(build(stamps="st" in sys.argv[2:], force_slow="slow" in sys.argv[2:]))
```

```python
import sys
from common import *
import common
EXP = set(sys.argv[2:])
if 'pfa' not in EXP: EXP.add('pfb')

KNAME = "interleave_layers__ssm_conv_h3__dense_activation_silu__prompt_kernel"
HEADER = open("interleave_layers__ssm_conv_h3__dense_activation_silu__prompt.s.ref").read().split("; Override launch")[0]

S_W, S_RB, S_CL, S_MEM, S_A, S_B = 3, 4, 5, 6, 7, 8
SA, SB_, SC, SD, SE, SF_ = 40, 44, 48, 52, 56, 60
S_FL, S_W1, S_X, S_PW, S_PR = 64, 68, 72, 76, 80
S_N, S_FAST, S_LAY = 84, 86, 87
S_W7, S_W14 = 100, 101
ACT = "s[88:89]"
S_T = 90
V_XE, V_XO, V_A, V_A2, V_HW, V_HR, V_L16, V_PO, V_PO1 = 200, 201, 202, 203, 204, 205, 206, 207, 208
V_XD = 209
V_PWA, V_PWB = 216, 217
V_HW1, V_A3 = 218, 219
XP = 224
YV = 232
OFFA, OFFB = 248, 249
VN = 250
LA, LB = 0, 8192
HC_COPY = 4160; HC_CH = 8 * HC_COPY; L_U = 2 * HC_CH; U_CH = 512 + 4096; YS_CH = 4096 + 128
LY = 0
L_X = 0; SH_ = 448; L_RING = 57344; CHUNK = 28672
def slot_base(c):
    return CHUNK if c == 3 else L_RING + (c if c < 3 else c - 4) * CHUNK
SPIN_MAX = 0x100000
LDS_BYTES = 163840
L_FASTW = 163836 - 60

def sr(r): return f"s[{r}:{r+3}]"

def stamp(p, sid, layered=False):
    if not common.STAMPS[0]: return
    p("s_memrealtime s[96:97]")
    p("s_memtime s[98:99]")
    p("s_waitcnt lgkmcnt(0)")
    if layered:
        p(f"s_mul_i32 s97, s{S_LAY}, 10")
        p(f"s_add_u32 m0, s97, {sid}")
        p("s_nop 3")
        p("v_writelane_b32 v252, s96, m0")
        p("v_writelane_b32 v253, s98, m0")
    else:
        p(f"v_writelane_b32 v252, s96, {sid}")
        p(f"v_writelane_b32 v253, s98, {sid}")
    p.lgq = []

def stamp_flush(p):
    if not common.STAMPS[0]: return
    lab = p.uid("sf")
    p(f"s_cmp_eq_u32 s{S_W}, 0")
    p(f"s_cbranch_scc0 {lab}")
    p("v_lshlrev_b32 v1, 2, v0")
    p("s_lshl_b32 s9, s2, 9")
    p("v_add_u32 v1, s9, v1")
    p("buffer_store_dword v252, v1, s[92:95], 0 offen")
    p("buffer_store_dword v253, v1, s[92:95], 0 offen offset:256")
    if 'dbgst' in EXP:
        wg = [x for x in EXP if x.startswith('wg')]
        wg = int(wg[0][2:]) if wg else 0
        l2 = p.uid("sf2")
        p(f"s_cmp_eq_u32 s2, {wg}")
        p(f"s_cbranch_scc0 {l2}")
        p.srd(SA, P_DBG, 0, 256)
        sel = [0, 2, 3, 5, 7, 9, 12, 13, 14, 17, 22, 23, 24, 40]
        p("s_nop 4")
        p("v_readlane_b32 s12, v252, 0")
        for i, sid in enumerate(sel):
            p(f"v_readlane_b32 s9, v252, {sid}")
            p("s_nop 3")
            p("s_sub_u32 s9, s9, s12")
            if i == 0: p("s_mov_b32 s9, s12")
            p(f"v_writelane_b32 v1, s9, {i}")
        p("v_and_b32 v2, 63, v0")
        p("v_lshlrev_b32 v2, 2, v2")
        p("v_add_u32 v2, 8, v2")
        p("s_mov_b32 exec_lo, 0x3fff"); p("s_mov_b32 exec_hi, 0")
        p(f"buffer_store_dword v1, v2, {sr(SA)}, 0 offen")
        p("s_mov_b64 exec, -1")
        p.label(l2)
    p.label(lab)

def flag_store(p, table, idx_sreg, layer_off=False, cluster=False):
    lab = p.uid("sig")
    p(f"s_cmp_eq_u32 s{S_W}, 0")
    p(f"s_cbranch_scc0 {lab}")
    p(f"s_lshl_b32 s{S_T}, s{S_CL}, 7")
    p(f"s_lshl_b32 s{S_T+1}, s{S_MEM}, 3")
    p(f"s_add_u32 s{S_T}, s{S_T}, s{S_T+1}")
    p(f"s_add_u32 s{S_T}, s{S_T}, {table}")
    p(f"s_lshl_b32 s{S_T+1}, s{S_LAY}, 13")
    p(f"s_add_u32 s{S_T}, s{S_T}, s{S_T+1}")
    p(f"v_mov_b32 v{VN}, s{S_N}")
    p(f"v_mov_b32 v{VN+1}, s{S_N+1}")
    p(f"v_mov_b32 v1, s{S_T}")
    p("s_mov_b64 exec, 1")
    if cluster:
        l2 = p.uid("sigslow"); l3 = p.uid("sigdone")
        p(f"s_cmp_eq_u32 s{S_FAST}, 1")
        p(f"s_cbranch_scc0 {l2}")
        p(f"buffer_store_dwordx2 {v(VN,2)}, v1, {sr(S_FL)}, 0 offen")
        p(f"s_branch {l3}")
        p.label(l2)
        p("buffer_wbl2 sc1")
        p("s_waitcnt vmcnt(0)")
        p(f"buffer_store_dwordx2 {v(VN,2)}, v1, {sr(S_FL)}, 0 offen sc1")
        p.label(l3)
    else:
        p(f"buffer_store_dwordx2 {v(VN,2)}, v1, {sr(S_FL)}, 0 offen sc1")
    p("s_mov_b64 exec, -1")
    p.label(lab)

def flag_store_rep(p, table, idx_sreg):
    lab = p.uid("sigr")
    p(f"s_cmp_eq_u32 s{S_W}, 0")
    p(f"s_cbranch_scc0 {lab}")
    p(f"s_lshl_b32 s{S_T}, s{idx_sreg}, 3")
    p(f"s_add_u32 s{S_T}, s{S_T}, {table}")
    p(f"v_mov_b32 v{VN}, s{S_N}")
    p(f"v_mov_b32 v{VN+1}, s{S_N+1}")
    p("v_lshlrev_b32 v1, 11, v0")
    p(f"v_add_u32 v1, s{S_T}, v1")
    p("s_mov_b64 exec, 0xff")
    p(f"buffer_store_dwordx2 {v(VN,2)}, v1, {sr(S_FL)}, 0 offen sc1")
    p("s_mov_b64 exec, -1")
    p.label(lab)

def signal(p, table, idx_sreg, layer_off=False, cluster=False, upto=None):
    if upto: p.wait_vm(upto)
    else: p.wait_vm()
    p("s_barrier")
    if table in (FL_S1R, FL_S2R): flag_store_rep(p, table, idx_sreg)
    else: flag_store(p, table, idx_sreg, layer_off, cluster)

def cluster_sync(p, table, upto=None, before=None, sid=None):
    p("v_and_b32 v10, 7, v0")
    p(f"s_lshl_b32 s9, s{S_CL}, 7")
    p(f"s_lshl_b32 s10, s{S_LAY}, 13")
    p("s_add_u32 s9, s9, s10")
    p(f"s_add_u32 s9, s9, {table}")
    p("v_lshl_add_u32 v10, v10, 3, s9")
    p(f"s_lshl_b32 s10, s{S_MEM}, 3")
    p("s_add_u32 s9, s9, s10")
    p("v_mov_b32 v9, s9")
    p(f"v_mov_b32 v{VN}, s{S_N}")
    p(f"v_mov_b32 v{VN+1}, s{S_N+1}")
    if before: before()
    if upto: p.wait_vm(upto)
    else: p.wait_vm()
    p("s_barrier")
    skip = p.uid("css"); slow = p.uid("csl"); go = p.uid("csg"); lab = p.uid("csp"); done = p.uid("csd"); acq = p.uid("csa")
    p(f"s_cmp_eq_u32 s{S_W}, 0")
    p(f"s_cbranch_scc0 {skip}")
    p("s_mov_b64 exec, 1")
    p(f"s_cmp_eq_u32 s{S_FAST}, 1")
    p(f"s_cbranch_scc0 {slow}")
    p(f"buffer_store_dwordx2 {v(VN,2)}, v9, {sr(S_FL)}, 0 offen")
    p.label(go)
    if sid is not None: stamp(p, sid, True)
    p("s_mov_b64 exec, 0xff")
    p(f"s_mov_b32 s{S_T}, 0")
    p.label(lab)
    p(f"buffer_load_dwordx2 v[2:3], v10, {sr(S_FL)}, 0 offen sc1")
    p("s_waitcnt vmcnt(0)")
    p(f"v_cmp_eq_u64 vcc, {s(S_N,2)}, v[2:3]")
    p(f"s_add_u32 s{S_T}, s{S_T}, 1")
    p("s_nop 3")
    p("s_cmp_eq_u64 vcc, exec")
    p(f"s_cbranch_scc1 {done}")
    p(f"s_cmp_lt_u32 s{S_T}, {hex(SPIN_MAX)}")
    p(f"s_cbranch_scc1 {lab}")
    p.label(done)
    p("s_mov_b64 exec, -1")
    p(f"s_cmp_eq_u32 s{S_FAST}, 1")
    p(f"s_cbranch_scc1 {skip}")
    p("buffer_inv sc1")
    p("s_waitcnt vmcnt(0)")
    p.label(skip)
    p("s_barrier")
    p.vmq = []
    SLOWPATHS.append((slow, go))

SLOWPATHS = []
def emit_slowpaths(p):
    for slow, go in SLOWPATHS:
        p.label(slow)
        p("buffer_wbl2 sc1")
        p("s_waitcnt vmcnt(0)")
        p(f"buffer_store_dwordx2 {v(VN,2)}, v9, {sr(S_FL)}, 0 offen sc1")
        p(f"s_branch {go}")

def setexec(p, nl):
    m = (1 << nl) - 1
    lo, hi = m & 0xffffffff, m >> 32
    p(f"s_mov_b32 exec_lo, {hex(lo) if lo != 0xffffffff else -1}")
    p(f"s_mov_b32 exec_hi, {hex(hi) if hi != 0xffffffff else -1}")

def poll(p, offs, n_loads, masks, cluster=False, all_waves=False):
    lab = p.uid("poll"); done = p.uid("polld"); skip = p.uid("polls")
    if not all_waves:
        p(f"s_cmp_eq_u32 s{S_W}, 0")
        p(f"s_cbranch_scc0 {skip}")
    p(f"s_mov_b32 s{S_T}, 0")
    p.label(lab)
    for i in range(n_loads):
        setexec(p, masks[i])
        p(f"buffer_load_dwordx2 {v(2+2*i,2)}, v{offs[i]}, {sr(S_FL)}, 0 offen sc1")
    p("s_waitcnt vmcnt(0)")
    p("s_mov_b32 s9, 1")
    for i in range(n_loads):
        setexec(p, masks[i])
        p(f"v_cmp_eq_u64 vcc, {s(S_N,2)}, {v(2+2*i,2)}")
        p("s_nop 4")
        p("s_cmp_eq_u64 vcc, exec")
        p("s_cselect_b32 s9, s9, 0")
    p("s_mov_b64 exec, -1")
    p("s_cmp_eq_u32 s9, 1")
    p(f"s_cbranch_scc1 {done}")
    p(f"s_add_u32 s{S_T}, s{S_T}, 1")
    p(f"s_cmp_lt_u32 s{S_T}, {hex(SPIN_MAX)}")
    p(f"s_cbranch_scc0 {done}")
    if not cluster or 'nosleep' not in EXP: p("s_sleep 1")
    p(f"s_branch {lab}")
    p.label(done)
    if cluster:
        l2 = p.uid("acq")
        p(f"s_cmp_eq_u32 s{S_FAST}, 1")
        p(f"s_cbranch_scc1 {l2}")
        p("buffer_inv sc1")
        p("s_waitcnt vmcnt(0)")
        p.label(l2)
    p.label(skip)
    p("s_barrier")
    p.vmq = []

FRESH_TICKS = 1200
NONCE_PATIENCE = 0x40000
def nonce_threshold(p):
    p(f"s_sub_u32 s{S_N}, s{S_N}, {FRESH_TICKS}")
    p(f"s_subb_u32 s{S_N+1}, s{S_N+1}, 0")
    p(f"s_lshl_b64 {s(S_N,2)}, {s(S_N,2)}, 4")
    p(f"s_or_b32 s{S_N+1}, s{S_N+1}, 0x40000000")

def nonce_try(p, va, ok):
    p(f"v_readfirstlane_b32 s10, v{va}")
    p(f"v_readfirstlane_b32 s11, v{va+1}")
    p("s_nop 3")
    p(f"s_sub_u32 s9, s10, s{S_N}")
    p(f"s_subb_u32 s9, s11, s{S_N+1}")
    lab = p.uid("stale")
    p(f"s_cbranch_scc1 {lab}")
    p(f"s_mov_b64 {s(S_N,2)}, s[10:11]")
    p(f"s_branch {ok}")
    p.label(lab)

def get_nonce(p, done):
    lab = p.uid("non")
    p(f"s_mov_b32 s{S_T}, 0")
    p.label(lab)
    p("v_mov_b32 v1, 0")
    p(f"buffer_load_dwordx2 v[2:3], v1, {sr(SF_)}, 0 offen sc1")
    p("s_waitcnt vmcnt(0)")
    nonce_try(p, 2, done)
    p(f"s_add_u32 s{S_T}, s{S_T}, 1")
    p("s_sleep 1")
    p(f"s_cmp_lt_u32 s{S_T}, {hex(NONCE_PATIENCE)}")
    p(f"s_cbranch_scc1 {lab}")
    p(f"s_mov_b64 {s(S_N,2)}, s[10:11]")
    p.vmq = []

def tlb_warm(p):
    if 'notlb' in EXP: return
    ent = [(P_K, None), (P_V, None), (P_SK, 0), (P_W1, 0), (P_W2, 0), (P_H, "h"), (P_Q, "q"), (P_DV, 0), (P_DBG, 0), (P_OUT, "q"),
           (P_WS, WS_KVT), (P_WS, WS_YB), (P_WS, WS_W1P), (P_WS, WS_W2P), (P_WS, WS_FLAGS), (P_WS, "pb0"), (P_WS, "pb1")]
    lab = p.uid("tw")
    p(f"s_cmp_eq_u32 s{S_W}, 0")
    p(f"s_cbranch_scc0 {lab}")
    p(f"v_mov_b32 v2, s{P_K}"); p(f"v_mov_b32 v3, s{P_K+1}")
    p(f"s_mul_i32 s9, s{S_RB}, {8*ROWB}")
    p("s_min_u32 s10, s2, 223"); p("s_lshl_b32 s10, s10, 13")
    p(f"s_mul_i32 s11, s{S_CL}, {8*64*ROWB}"); p(f"s_add_u32 s11, s11, {hex(WS_PB)}")
    for i, (ptr, off) in enumerate(ent):
        if off in (None, 0):
            lo, hi = ptr, ptr + 1
        else:
            if off == "q": src = "s9"
            elif off == "h": src = "s10"
            elif off == "pb0": src = "s11"
            elif off == "pb1":
                p(f"s_add_u32 s11, s11, {8*64*ROWB - 128}"); src = "s11"
            else: src = hex(off)
            p(f"s_add_u32 s12, s{ptr}, {src}"); p(f"s_addc_u32 s13, s{ptr+1}, 0")
            lo, hi = 12, 13
        p(f"v_writelane_b32 v2, s{lo}, {i}")
        p(f"v_writelane_b32 v3, s{hi}, {i}")
    setexec(p, len(ent))
    p("global_load_dword v254, v[2:3], off")
    p("s_mov_b64 exec, -1")
    p.label(lab)

def nonce_publish(p):
    lab = p.uid("nn")
    p("s_cmp_eq_u32 s2, 0")
    p(f"s_cbranch_scc0 {lab}")
    p(f"s_cmp_eq_u32 s{S_W}, 0")
    p(f"s_cbranch_scc0 {lab}")
    p.srd(SF_, P_DBG, 0, 256)
    p("s_memrealtime s[10:11]")
    p("s_waitcnt lgkmcnt(0)")
    p("s_lshl_b64 s[10:11], s[10:11], 4")
    p("s_or_b32 s11, s11, 0x40000000")
    p("v_mov_b32 v46, s10"); p("v_mov_b32 v47, s11"); p("v_mov_b32 v13, 0")
    p("s_mov_b64 exec, 1")
    p(f"buffer_store_dwordx2 v[46:47], v13, {sr(SF_)}, 0 offen sc1")
    p("s_mov_b64 exec, -1")
    p.label(lab)

S_RBK, S_CG = 12, 13
def prep_addr(p):
    p("s_min_u32 s14, s2, 223")
    p.div_const(S_RBK, 14, 7)
    p(f"s_mul_i32 s{S_CG}, s{S_RBK}, 7")
    p(f"s_sub_u32 s{S_CG}, s14, s{S_CG}")
    p("v_and_b32 v1, 15, v0")
    p("v_lshrrev_b32 v2, 4, v0")
    p(f"s_lshl_b32 s9, s{S_RBK}, 6")
    p("s_sub_u32 s9, s9, 3")
    p("v_lshl_add_u32 v3, v2, 2, s9")
    p(f"v_mul_i32_i24 v4, {ROWB}, v3")
    p(f"s_lshl_b32 s10, s{S_CG}, 7")
    p("v_lshl_add_u32 v5, v1, 3, s10")
    p("v_add_u32 v4, v4, v5")
    for i in range(1, 7):
        p(f"v_add_u32 v{5+i}, {ROWB*i}, v4")
    p("v_lshlrev_b32 v12, 2, v5")

def prep(p):
    SK_, SV_, SSK, SKVT, SSRC, SDST = SA, SB_, SC, SD, SE, S_W1
    T0 = 72
    off = lambda i: "v4" if i == 0 else f"v{5+i}"
    p.srd(SK_, P_K, 0, MAT)
    for i in range(7):
        p.vm(f"buffer_load_dwordx2 {v(16+2*i,2)}, {off(i)}, {sr(SK_)}, 0 offen", "k")
    p.srd(SV_, P_V, 0, MAT)
    for i in range(4):
        p.vm(f"buffer_load_dwordx2 {v(30+2*i,2)}, {off(i+3)}, {sr(SV_)}, 0 offen", "k")
    p.srd(SSK, P_SK, 0, D * 8)
    p.vm(f"buffer_load_dwordx4 v[38:41], v12, {sr(SSK)}, 0 offen", "k")
    p.vm(f"buffer_load_dwordx4 v[42:45], v12, {sr(SSK)}, 0 offen offset:16", "k")
    nonce_publish(p)
    p.srd(SKVT, P_WS, WS_KVT, MAT)
    p.srd(S_FL, P_WS, WS_FLAGS, FLAGS_BYTES)
    if 'pp' in EXP: stamp(p, 34)
    S_J, S_R, S_ISW2, S_STR = T0, T0 + 1, T0 + 2, T0 + 3
    p("s_cmp_ge_u32 s2, 112")
    p(f"s_cselect_b32 s{S_ISW2}, 1, 0")
    p("s_cselect_b32 s9, 112, 0")
    p("s_sub_u32 s9, s2, s9")
    p.div_const(S_J, 9, 14)
    p(f"s_mul_i32 s10, s{S_J}, 14")
    p(f"s_sub_u32 s{S_R}, s9, s10")
    p(f"s_mul_i32 s10, s{S_R}, {32*3584}")
    p(f"s_mul_i32 s11, s{S_J}, 448")
    p("s_add_u32 s10, s10, s11")
    p(f"s_lshr_b32 s11, s{S_R}, 1")
    p(f"s_mul_i32 s11, s11, {32*896}")
    p(f"s_mul_i32 s14, s{S_J}, {224*896}")
    p("s_add_u32 s11, s11, s14")
    p(f"s_and_b32 s14, s{S_R}, 1")
    p("s_mul_i32 s14, s14, 448")
    p("s_add_u32 s11, s11, s14")
    p(f"s_cmp_eq_u32 s{S_ISW2}, 1")
    p("s_cselect_b32 s10, s11, s10")
    p.csel(S_STR, 896, 3584)
    p(f"s_cselect_b32 s{SSRC}, s{P_W2}, s{P_W1}")
    p(f"s_cselect_b32 s{SSRC+1}, s{P_W2+1}, s{P_W1+1}")
    p(f"s_mov_b32 s{SSRC+2}, {hex(D*F*2)}")
    p(f"s_mov_b32 s{SSRC+3}, 0x20000")
    for m in range(4):
        p(f"v_add_u32 v13, {256*m}, v0")
        p("v_mul_u32_u24 v14, 2341, v13")
        p("v_lshrrev_b32 v14, 16, v14")
        p("v_mul_u32_u24 v15, 28, v14")
        p("v_sub_u32 v15, v13, v15")
        p(f"v_mul_lo_u32 v14, v14, s{S_STR}")
        p("v_lshl_add_u32 v14, v15, 4, v14")
        p("v_add_u32 v14, s10, v14")
        if m == 3:
            p("v_cmp_gt_u32 vcc, 896, v13")
            p("v_cndmask_b32 v14, -1, v14, vcc")
        p.vm(f"buffer_load_dwordx4 {v(48+4*m,4)}, v14, {sr(SSRC)}, 0 offen", "w")
    if 'pp' in EXP: stamp(p, 35)
    p("v_and_b32 v46, 63, v0")
    p("v_lshrrev_b32 v47, 4, v46")
    p("v_bfe_u32 v14, v46, 2, 2")
    p("v_and_b32 v15, 3, v46")
    p("v_lshl_add_u32 v47, v47, 3, v14")
    p("v_mul_u32_u24 v47, 448, v47")
    p("v_lshlrev_b32 v46, 4, v46")
    p(f"s_cmp_eq_u32 s{S_ISW2}, 1")
    p.csel(9, hex(WS_W2P), hex(WS_W1P))
    p(f"s_add_u32 s{SDST}, s{P_WS}, s9")
    p(f"s_addc_u32 s{SDST+1}, s{P_WS+1}, 0")
    p(f"s_mov_b32 s{SDST+2}, {hex(W1P_BYTES)}")
    p(f"s_mov_b32 s{SDST+3}, 0x20000")
    t = [76, 77, 78, 79]
    for m in range(4):
        ST, DST = 14, 80 + m
        p(f"s_add_u32 s{ST}, s{S_W}, {4*m}")
        p(f"s_cmp_ge_u32 s{ST}, 7")
        p(f"s_cselect_b32 s{t[0]}, 1, 0")
        p(f"s_mul_i32 s{t[1]}, s{t[0]}, 7")
        p(f"s_sub_u32 s{t[1]}, s{ST}, s{t[1]}")
        p(f"s_mul_i32 s{DST}, s{S_J}, 7")
        p(f"s_add_u32 s{DST}, s{DST}, s{t[1]}")
        p(f"s_lshl_b32 s{DST}, s{DST}, 1")
        p(f"s_add_u32 s{DST}, s{DST}, s{t[0]}")
        p(f"s_mul_i32 s{DST}, s{DST}, 14")
        p(f"s_add_u32 s{DST}, s{DST}, s{S_R}")
        p(f"s_and_b32 s9, s{ST}, 1")
        p(f"s_lshr_b32 s10, s{ST}, 1")
        p(f"s_and_b32 s11, s{S_R}, 1")
        p("s_mul_i32 s11, s11, 7")
        p("s_add_u32 s11, s11, s10")
        p(f"s_lshr_b32 s15, s{S_R}, 1")
        p("s_mul_i32 s15, s15, 7")
        p(f"s_mul_i32 s{t[0]}, s{S_J}, 196")
        p(f"s_add_u32 s15, s15, s{t[0]}")
        p(f"s_and_b32 s{t[0]}, s11, 3")
        p(f"s_mul_i32 s{t[0]}, s{t[0]}, 49")
        p(f"s_lshr_b32 s{t[1]}, s11, 2")
        p(f"s_lshl_b32 s{t[1]}, s{t[1]}, 1")
        p(f"s_add_u32 s{t[1]}, s{t[1]}, s9")
        p(f"s_add_u32 s{t[0]}, s{t[0]}, s{t[1]}")
        p(f"s_lshl_b32 s10, s10, 6")
        p(f"s_lshl_b32 s{t[1]}, s9, 3")
        p(f"s_add_u32 s{t[1]}, s{t[1]}, s10")
        p(f"s_sub_u32 s{t[2]}, s11, 12")
        p(f"s_lshl_b32 s{t[2]}, s{t[2]}, 1")
        p(f"s_add_u32 s{t[2]}, s{t[2]}, s9")
        p(f"s_mul_i32 s{t[2]}, s{t[2]}, 49")
        p(f"s_add_u32 s{t[2]}, s{t[2]}, 6")
        p(f"s_lshl_b32 s{t[3]}, s9, 5")
        p(f"s_add_u32 s{t[3]}, s{t[3]}, s10")
        p("s_cmp_lt_u32 s11, 12")
        p(f"s_cselect_b32 s{t[0]}, s{t[0]}, s{t[2]}")
        p(f"s_cselect_b32 s{t[1]}, s{t[1]}, s{t[3]}")
        p(f"s_cselect_b32 s{t[2]}, 4, 3")
        p(f"s_add_u32 s{t[0]}, s{t[0]}, s15")
        p(f"s_lshl_b32 s{t[3]}, s{ST}, 5")
        p(f"s_cmp_eq_u32 s{S_ISW2}, 1")
        p(f"s_cselect_b32 s{DST}, s{t[0]}, s{DST}")
        p(f"s_cselect_b32 s{t[1]}, s{t[1]}, s{t[3]}")
        p(f"s_cselect_b32 s{t[2]}, s{t[2]}, 3")
        p(f"s_lshl_b32 s{DST}, s{DST}, 10")
        p(f"v_lshlrev_b32 v{144+m}, s{t[2]}, v15")
        p(f"v_add3_u32 v{144+m}, v{144+m}, v47, s{t[1]}")
    mlp_setup(p)
    if 'pp' in EXP: stamp(p, 30)
    p.wait_vm("w")
    if 'pp' in EXP: stamp(p, 31)
    early_loads(p)
    p("v_lshlrev_b32 v14, 4, v0")
    for m in range(3):
        p.lg(f"ds_write_b128 v14, {v(48+4*m,4)} offset:{LB+4096*m}")
    lab = p.uid("skip3")
    p(f"s_cmp_ge_u32 s{S_W}, 2")
    p(f"s_cbranch_scc1 {lab}")
    p(f"ds_write_b128 v14, {v(60,4)} offset:{LB+4096*3}")
    p.label(lab)
    p.wait_lg()
    p("s_barrier")
    for m in range(4):
        p.lg(f"ds_read_b64_tr_b16 {v(48+4*m,2)}, v{144+m} offset:{LB}", f"t{m}")
        p.lg(f"ds_read_b64_tr_b16 {v(48+4*m+2,2)}, v{144+m} offset:{LB+4*448}", f"t{m}")
    for m in range(3):
        p.wait_lg(f"t{m}")
        p.vm(f"buffer_store_dwordx4 {v(48+4*m,4)}, v46, {sr(SDST)}, s{80+m} offen sc1", "wst")
    lab = p.uid("pk")
    p.wait_lg()
    p(f"s_cmp_ge_u32 s{S_W}, 2")
    p(f"s_cbranch_scc1 {lab}")
    p(f"buffer_store_dwordx4 {v(60,4)}, v46, {sr(SDST)}, s83 offen sc1")
    p.label(lab)
    p.srd(SF_, P_DBG, 0, 256)
    p("v_mov_b32 v47, 0")
    p.vm(f"buffer_load_dwordx2 v[150:151], v47, {sr(SF_)}, 0 offen sc1", "nonce")
    if 'pp' in EXP: stamp(p, 32)
    KF, SF, VF, AC, OP = 64, 92, 108, 124, 140
    p("v_mov_b32 v15, 0xffff0000")
    for i in range(7):
        for d in range(2):
            p(f"v_lshlrev_b32 v{KF+4*i+2*d}, 16, v{16+2*i+d}")
            p(f"v_and_b32 v{KF+4*i+2*d+1}, v15, v{16+2*i+d}")
    for e in range(4):
        for j in range(4):
            src = 38 + 2*e + (j >> 1)
            if j & 1: p(f"v_and_b32 v{SF+4*j+e}, v15, v{src}")
            else: p(f"v_lshlrev_b32 v{SF+4*j+e}, 16, v{src}")
    for i in range(4):
        for d in range(2):
            p(f"v_lshlrev_b32 v{VF+4*i+2*d}, 16, v{30+2*i+d}")
            p(f"v_and_b32 v{VF+4*i+2*d+1}, v15, v{30+2*i+d}")
    for j in range(4):
        for r in range(4):
            for e in (0, 2):
                kf = v(KF+4*(r+3-j)+e, 2); sf = v(SF+4*j+e, 2); ac = v(AC+4*r+e, 2)
                if j == 0: p(f"v_pk_mul_f32 {ac}, {kf}, {sf}")
                else: p(f"v_pk_fma_f32 {ac}, {kf}, {sf}, {ac}")
    for r in range(4):
        for e in (0, 2):
            p(f"v_pk_mul_f32 {v(AC+4*r+e,2)}, {v(AC+4*r+e,2)}, {v(VF+4*r+e,2)}")
    for e in range(4):
        p(f"v_cvt_pk_bf16_f32 v{OP+2*e}, v{AC+e}, v{AC+4+e}")
        p(f"v_cvt_pk_bf16_f32 v{OP+2*e+1}, v{AC+8+e}, v{AC+12+e}")
    if 'pp' in EXP: stamp(p, 33)
    p("v_xor_b32 v13, v1, v2")
    p("v_lshlrev_b32 v13, 3, v13")
    p("v_lshl_add_u32 v13, v1, 9, v13")
    for e in range(4):
        p.lg(f"ds_write_b64 v13, {v(OP+2*e,2)} offset:{LA+128*e}")
    p.wait_lg()
    p("s_barrier")
    p("v_lshrrev_b32 v1, 3, v0")
    p("v_and_b32 v2, 7, v0")
    p("v_lshlrev_b32 v3, 1, v2")
    p(f"s_lshl_b32 s9, s{S_CG}, 6")
    p(f"s_lshl_b32 s10, s{S_RBK}, 7")
    for pi in range(2):
        p(f"v_add_u32 v4, {32*pi}, v1")
        p("v_lshrrev_b32 v5, 2, v4")
        p("v_xor_b32 v6, v3, v5")
        p("v_xor_b32 v7, 1, v6")
        p("v_lshlrev_b32 v8, 7, v4")
        p("v_lshl_add_u32 v6, v6, 3, v8")
        p("v_lshl_add_u32 v7, v7, 3, v8")
        p.lg(f"ds_read_b64 {v(16+4*pi,2)}, v6 offset:{LA}", f"a{pi}")
        p.lg(f"ds_read_b64 {v(18+4*pi,2)}, v7 offset:{LA}", f"a{pi}")
        p("v_add_u32 v8, s9, v4")
        p("v_lshlrev_b32 v8, 12, v8")
        p("v_lshl_add_u32 v8, v2, 4, v8")
        p(f"v_add_u32 v{24+pi}, s10, v8")
    for pi in range(2):
        p.wait_lg(f"a{pi}")
        p.vm(f"buffer_store_dwordx4 {v(16+4*pi,4)}, v{24+pi}, {sr(SKVT)}, 0 offen sc1", "kvst")

HW = 160
def code_prefetch(p):
    if 'nocode' in EXP: return
    p("s_getpc_b64 s[90:91]")
    lab = p.uid("K_pc")
    p.label(lab)
    p("v_lshlrev_b32 v180, 7, v0")
    p(f"v_cmp_gt_u32 vcc, (K_end - {lab}), v180")
    p("s_and_saveexec_b64 s[10:11], vcc")
    p.vm("global_load_dword v255, v180, s[90:91]", "code")
    p("s_mov_b64 exec, s[10:11]")

def q_loads(p):
    p.srd(SF_, P_Q, 0, MAT)
    p.vm(f"buffer_load_dwordx4 {v(XP,4)}, v{OFFA}, {sr(SF_)}, 0 offen", "q")
    p.vm(f"buffer_load_dwordx4 {v(XP+4,4)}, v{OFFB}, {sr(SF_)}, 0 offen", "q")

def early_loads(p):
    SH = SF_
    p("s_lshl_b32 s9, s2, 13")
    p(f"s_add_u32 s{SH}, s{P_H}, s9"); p(f"s_addc_u32 s{SH+1}, s{P_H+1}, 0")
    p(f"s_mov_b32 s{SH+2}, 8192"); p(f"s_mov_b32 s{SH+3}, 0x20000")
    p("v_sub_u32 v176, 255, v0")
    p("v_lshlrev_b32 v176, 4, v176")
    p("v_subrev_u32 v177, 16, v176")
    for ch in range(2):
        p(f"v_add_u32 v178, {4096*ch}, v177")
        p(f"v_add_u32 v179, {4096*ch}, v176")
        p.vm(f"buffer_load_dwordx4 {v(HW+8*ch,4)}, v178, {sr(SH)}, 0 offen", "h")
        p.vm(f"buffer_load_dwordx4 {v(HW+4+8*ch,4)}, v179, {sr(SH)}, 0 offen", "h")
    if 'qlate' not in EXP: q_loads(p)

def hbuild(p):
    p("v_mov_b32 v5, 0xffff")
    p("v_cmp_ne_u32 vcc, 255, v0")
    p("v_lshlrev_b32 v6, 4, v0")
    E1, E2, O1, O2 = 32, 40, 46, 54
    for ch in range(2):
        W = HW + 8 * ch
        for d in range(4):
            p(f"v_cndmask_b32 v{W+d}, 0, v{W+d}, vcc")
        def o(dst, sidx):
            if sidx % 2 == 0:
                pz = (14 - sidx) // 2
                p(f"v_alignbit_b32 v{dst}, v{W+pz}, v{W+pz}, 16")
            else:
                p(f"v_bfi_b32 v{dst}, v5, v{W+(15-sidx)//2}, v{W+(13-sidx)//2}")
        for n in range(7): o(E1 + n, 2 * n)
        for n in range(6): o(E2 + n, 2 * n + 2)
        for n in range(7): o(O1 + n, 2 * n + 1)
        for n in range(6): o(O2 + n, 2 * n + 3)
        src = {0: E1, 4: E1 + 2, 2: E2, 6: E2 + 2, 1: O1, 5: O1 + 2, 3: O2, 7: O2 + 2}
        for c in range(8):
            p.lg(f"ds_write_b128 v6, {v(src[c],4)} offset:{ch*HC_CH + c*HC_COPY}")
        p("s_nop 1")
    for r in range(4): p(f"v_mov_b32 v{60+r}, 0")
    p("v_and_b32 v7, 15, v0")
    p(f"v_mul_u32_u24 v7, {HC_COPY}, v7")
    p("v_add_u32 v7, 4096, v7")
    p("v_and_b32 v8, 31, v0")
    p("v_lshlrev_b32 v8, 4, v8")
    p("v_bfe_u32 v9, v0, 5, 1")
    p(f"v_mul_u32_u24 v9, {U_CH}, v9")
    p(f"s_mov_b32 s9, {L_U}")
    p("v_add3_u32 v8, v8, v9, s9")
    p.lg(f"ds_write_b128 v7, {v(60,4)}")
    p.lg(f"ds_write_b128 v8, {v(60,4)}")

_w2 = [x for x in EXP if x.startswith('w2_')]
W20, W2A = (int(_w2[0].split('_')[1]), int(_w2[0].split('_')[2])) if _w2 else (12, 49)
W2B = 49
def w2_items(SW2):
    G = []
    for f in range(49):
        it = []
        base = f - f % 4
        if f % 4 == 0 or f in (W20, W2A, W2B): it.append((f"s_mov_b32 s15, {1024*base}", "", None))
        it.append((f"buffer_load_dwordx4 {a(4*f,4)}, v{V_L16}, {sr(SW2)}, s15 offen offset:{1024*(f%4)} {'sc1 nt' if 'wnt2' in EXP else 'sc1'}", "vm", "w2"))
        G.append(it)
    return G

def load_w2(p, SW2):
    for f in range(49):
        if f % 4 == 0: p(f"s_mov_b32 s9, {1024*f}")
        p.vm(f"buffer_load_dwordx4 {a(4*f,4)}, v{V_L16}, {sr(SW2)}, s9 offen offset:{1024*(f%4)} sc1", "w2")

def conv_main(p):
    ACC, FA, FB = 72, 96, 16
    fb = lambda buf, m: (16 + 28 * buf + 4 * m) if m < 7 else (160 + 4 * buf)
    p("v_and_b32 v1, 63, v0")
    p("v_and_b32 v2, 15, v1")
    p("v_lshrrev_b32 v3, 4, v1")
    p("v_and_b32 v4, 7, v2")
    p("v_sub_u32 v4, 7, v4")
    p(f"v_mul_u32_u24 v4, {HC_COPY}, v4")
    p("v_lshrrev_b32 v5, 3, v2")
    p("v_sub_u32 v5, v3, v5")
    p("v_add_u32 v5, 1, v5")
    p("v_lshl_add_u32 v4, v5, 4, v4")
    p(f"s_mul_i32 s9, s{S_B}, {HC_CH}")
    p("v_add_u32 v12, s9, v4")
    p(f"s_mul_i32 s9, s{S_B}, {U_CH}")
    p(f"s_add_u32 s9, s9, {L_U + 512 - 32 - 64*7}")
    p("v_lshlrev_b32 v5, 5, v2")
    p("v_lshl_add_u32 v5, v3, 4, v5")
    p("v_add_u32 v13, s9, v5")
    set1 = p.uid("cset1"); join = p.uid("cjoin")
    p(f"s_cmp_eq_u32 s{S_A}, 1")
    p(f"s_cbranch_scc1 {set1}")
    for st, tiles in ((0, (0, 3, 4, 7)), (1, (1, 2, 5, 6))):
        if st == 1: p.label(set1)
        mx = max(tiles)
        def reads(rho, buf):
            L = []
            for m in range(mx + 1):
                L.append((f"ds_read_b128 {v(FA+32*buf+4*m,4)}, v12 offset:{512*(7-m)+64*(7-rho)}", "lg", f"r{rho}_{m}"))
                L.append((f"ds_read_b128 {v(fb(buf,m),4)}, v13 offset:{512*m+64*(7-rho)}", "lg", f"r{rho}_{m}"))
            return L
        saved_vm = list(p.vmq)
        w2 = w2_items(SE)[W20:W2A] if 'now2' not in EXP else []
        for it in reads(0, 0): emit(p, it)
        first = set()
        for rho in range(8):
            buf = rho & 1
            nxt = reads(rho + 1, buf ^ 1) if rho < 7 else []
            mf = sorted([(max(mu, nt - mu), ti, nt, mu) for ti, nt in enumerate(tiles) for mu in range(nt + 1)])
            M = []; seen = -1
            for (mm, ti, nt, mu) in mf:
                c = v(ACC+4*ti,4) if ti in first else "0"
                first.add(ti)
                t = f"v_mfma_f32_16x16x32_bf16 {v(ACC+4*ti,4)}, {v(FA+32*buf+4*mu,4)}, {v(fb(buf,nt-mu),4)}, {c}"
                w = []
                if mm > seen: w.append((None, "wlg", f"r{rho}_{mm}")); seen = mm
                M.append((t, w))
            N = {}
            for i, it in enumerate(nxt): N.setdefault(i, []).append(it)
            slots = [3, 6, 9, 12, 15, 17]
            per = -(-(W2A - W20) // 7) if 'w2early' not in EXP else 6
            slots = {6: slots, 5: [3, 7, 10, 13, 16], 4: [4, 8, 12, 16], 3: [5, 10, 15], 2: [6, 13], 1: [9]}[per]
            for q_ in range(per if rho < 7 else 0):
                if w2: N.setdefault(slots[q_], []).extend(w2.pop(0))
            schedule(p, M, [], N)
        assert not w2
        p.vmq = saved_vm + ["w2"]
        p("s_barrier")
        p(f"s_mul_i32 s9, s{S_B}, {U_CH}")
        p(f"s_add_u32 s9, s9, {L_U + 512}")
        p("v_lshlrev_b32 v5, 5, v2")
        p("v_lshl_add_u32 v5, v3, 3, v5")
        p("v_add_u32 v6, s9, v5")
        p(f"s_mul_i32 s9, s{S_B}, {YS_CH}")
        p("v_add_u32 v7, s9, v5")
        for ti, nt in enumerate(tiles):
            p.lg(f"ds_read_b64 {v(FA+2*ti,2)}, v6 offset:{512*nt}", f"u{ti}")
        p("v_mov_b32 v8, 0xffff0000")
        for ti, nt in enumerate(tiles):
            p.wait_lg(f"u{ti}")
            u = FA + 2 * ti; t = 16 + 4 * ti
            p(f"v_lshlrev_b32 v{t}, 16, v{u}")
            p(f"v_and_b32 v{t+1}, v8, v{u}")
            p(f"v_lshlrev_b32 v{t+2}, 16, v{u+1}")
            p(f"v_and_b32 v{t+3}, v8, v{u+1}")
            for r in range(4):
                p(f"v_fma_f32 v{t+r}, v{t+r}, s14, v{ACC+4*ti+r}")
            p(f"v_cvt_pk_bf16_f32 v{t}, v{t}, v{t+1}")
            p(f"v_cvt_pk_bf16_f32 v{t+1}, v{t+2}, v{t+3}")
            p.lg(f"ds_write_b64 v7, {v(t,2)} offset:{512*nt}")
        p.wait_lg()
        if st == 0: p(f"s_branch {join}")
    p.label(join)
    p("s_barrier")

def conv_out(p, SY):
    p("v_and_b32 v1, 3, v0")
    p("v_lshrrev_b32 v2, 2, v0")
    p("v_lshrrev_b32 v3, 1, v1")
    p("v_and_b32 v4, 1, v1")
    p(f"v_mul_u32_u24 v3, {YS_CH}, v3")
    p("v_lshl_add_u32 v3, v4, 4, v3")
    p("v_lshl_add_u32 v3, v2, 5, v3")
    p.lg("ds_read_b128 v[16:19], v3", "y0")
    p.lg(f"ds_read_b128 v[20:23], v3 offset:{64*32}", "y1")
    p(f"v_mul_u32_u24 v5, {D*32}, v2")
    p("v_lshl_add_u32 v5, v1, 4, v5")
    p("s_lshl_b32 s9, s2, 6")
    p("v_add_u32 v5, s9, v5")
    p(f"v_add_u32 v6, {64*D*32}, v5")
    p.wait_lg("y0")
    p.vm(f"buffer_store_dwordx4 v[16:19], v5, {sr(SY)}, 0 offen sc1", "yst")
    p.wait_lg("y1")
    p.vm(f"buffer_store_dwordx4 v[20:23], v6, {sr(SY)}, 0 offen sc1", "yst")

X, T, PK, TMP = 16, 32, 64, 72
YT = 96
def row_setup(p):
    p("v_and_b32 v181, 31, v0")
    p("v_lshrrev_b32 v182, 5, v0")
    p(f"v_cmp_gt_u32 {ACT}, 28, v181")
    p(f"v_mul_u32_u24 v183, {ROWB}, v182")
    p("v_lshl_add_u32 v183, v181, 4, v183")
    p(f"s_mul_i32 s9, s{S_RB}, {8*ROWB}")
    p("v_add_u32 v183, s9, v183")
    p(f"v_cndmask_b32 v{OFFA}, -1, v183, {ACT}")
    p("v_add_u32 v183, 448, v183")
    p(f"v_cndmask_b32 v{OFFB}, -1, v183, {ACT}")

def unpack(p, dst, src, n):
    for i in range(n):
        p(f"v_lshlrev_b32 v{dst+2*i}, 16, v{src+i}")
        p(f"v_and_b32 v{dst+2*i+1}, v7, v{src+i}")
def pack(p, dst, src, n):
    for i in range(n):
        p(f"v_cvt_pk_bf16_f32 v{dst+i}, v{src+2*i}, v{src+2*i+1}")
def allreduce32(p, r, t):
    for m in ("quad_perm:[1,0,3,2]", "quad_perm:[2,3,0,1]", "row_half_mirror", "row_mirror"):
        p(f"v_add_f32_dpp v{r}, v{r}, v{r} {m} row_mask:0xf bank_mask:0xf")
    p(f"v_mov_b32 v{t}, v{r}")
    p(f"v_permlane16_swap_b32 v{r}, v{t}")
    p(f"v_add_f32 v{r}, v{r}, v{t}")
def sum16(p, dst, src):
    p(f"v_pk_add_f32 {v(TMP,2)}, {v(src,2)}, {v(src+2,2)}")
    p(f"v_pk_add_f32 {v(TMP+2,2)}, {v(src+4,2)}, {v(src+6,2)}")
    p(f"v_pk_add_f32 {v(TMP+4,2)}, {v(src+8,2)}, {v(src+10,2)}")
    p(f"v_pk_add_f32 {v(TMP+6,2)}, {v(src+12,2)}, {v(src+14,2)}")
    p(f"v_pk_add_f32 {v(TMP,2)}, {v(TMP,2)}, {v(TMP+2,2)}")
    p(f"v_pk_add_f32 {v(TMP+4,2)}, {v(TMP+4,2)}, {v(TMP+6,2)}")
    p(f"v_pk_add_f32 {v(TMP,2)}, {v(TMP,2)}, {v(TMP+4,2)}")
    p(f"v_add_f32 v{dst}, v{TMP}, v{TMP+1}")
    p(f"v_cndmask_b32 v{dst}, 0, v{dst}, {ACT}")
def layernorm(p, src, dst, scale=None):
    M, V_ = TMP + 8, TMP + 10
    sum16(p, M, src)
    allreduce32(p, M, TMP + 9)
    p(f"v_mul_f32 v{M}, {fbits(-1.0/D)}, v{M}")
    p(f"v_mov_b32 v{M+1}, v{M}")
    for i in range(0, 16, 2):
        p(f"v_pk_add_f32 {v(dst+i,2)}, {v(src+i,2)}, {v(M,2)}")
    p(f"v_pk_mul_f32 {v(TMP,2)}, {v(dst,2)}, {v(dst,2)}")
    p(f"v_pk_mul_f32 {v(TMP+2,2)}, {v(dst+2,2)}, {v(dst+2,2)}")
    for i in range(4, 16, 4):
        p(f"v_pk_fma_f32 {v(TMP,2)}, {v(dst+i,2)}, {v(dst+i,2)}, {v(TMP,2)}")
        p(f"v_pk_fma_f32 {v(TMP+2,2)}, {v(dst+i+2,2)}, {v(dst+i+2,2)}, {v(TMP+2,2)}")
    p(f"v_pk_add_f32 {v(TMP,2)}, {v(TMP,2)}, {v(TMP+2,2)}")
    p(f"v_add_f32 v{V_}, v{TMP}, v{TMP+1}")
    p(f"v_cndmask_b32 v{V_}, 0, v{V_}, {ACT}")
    allreduce32(p, V_, TMP + 11)
    p(f"v_mov_b32 v{V_+1}, {fbits(1e-5)}")
    p(f"v_fmac_f32 v{V_+1}, {fbits(1.0/D)}, v{V_}")
    p(f"v_rsq_f32 v{V_}, v{V_+1}")
    if scale is not None: p(f"v_mul_f32 v{V_}, {fbits(scale)}, v{V_}")
    else: p("s_nop 0")
    p(f"v_mov_b32 v{V_+1}, v{V_}")
    for i in range(0, 16, 2):
        p(f"v_pk_mul_f32 {v(dst+i,2)}, {v(dst+i,2)}, {v(V_,2)}")

def y_load(p, SY):
    p(f"s_lshr_b32 s9, s{S_RB}, 1")
    p(f"s_mul_i32 s9, s9, {D*32}")
    p(f"s_and_b32 s10, s{S_RB}, 1")
    p("s_lshl_b32 s10, s10, 4")
    p("s_add_u32 s9, s9, s10")
    p("v_lshlrev_b32 v3, 5, v0")
    p("v_add_u32 v3, s9, v3")
    p(f"v_add_u32 v4, {256*32}, v3")
    p("v_cmp_gt_u32 vcc, 192, v0")
    p("v_cndmask_b32 v4, -1, v4, vcc")
    p.vm(f"buffer_load_dwordx4 {v(YT,4)}, v3, {sr(SY)}, 0 offen sc1", "y")
    p.vm(f"buffer_load_dwordx4 {v(YT+4,4)}, v4, {sr(SY)}, 0 offen sc1", "y")

def y_transpose(p):
    p("v_lshlrev_b32 v3, 2, v0")
    p.wait_vm("y")
    for wq in range(4):
        p.lg(f"ds_write_b32 v3, v{YT+wq} offset:{LY+2048*wq}")
        p.lg(f"ds_write_b32 v3, v{YT+4+wq} offset:{LY+2048*wq+1024}")
    p.wait_lg()
    p("s_barrier")
    p("v_and_b32 v1, 31, v0")
    p("v_lshrrev_b32 v4, 6, v0")
    p("v_lshlrev_b32 v4, 11, v4")
    p("v_lshl_add_u32 v4, v1, 5, v4")
    for k in range(2):
        p.lg(f"ds_read_b128 {v(YT+8*k,4)}, v4 offset:{LY+896*k}")
        p.lg(f"ds_read_b128 {v(YT+8*k+4,4)}, v4 offset:{LY+896*k+16}")
    p("v_bfe_u32 v5, v0, 5, 1")
    p("v_mov_b32 v6, 0x01000c0c")
    p("v_mov_b32 v3, 0x03020c0c")
    p("v_cmp_eq_u32 vcc, 1, v5")
    p("v_cndmask_b32 v6, v6, v3, vcc")
    p.wait_lg()
    for i in range(16):
        p(f"v_perm_b32 v{YV+i}, v{YT+i}, v{YT+i}, v6")

def poll_s2(p):
    lab = p.uid("s2"); done = p.uid("s2d"); skip = p.uid("s2s")
    p("v_and_b32 v1, 63, v0")
    p("s_and_b32 s9, s2, 7"); p("s_lshl_b32 s9, s9, 11"); p(f"s_add_u32 s9, s9, {FL_S2R}")
    for i in range(4):
        p(f"v_lshl_add_u32 v{12+i}, v1, 3, s9")
        if i: p(f"v_add_u32 v{12+i}, {512*i}, v{12+i}")
    p("v_and_b32 v48, 7, v0")
    p(f"s_lshl_b32 s9, s{S_CL}, 6")
    p(f"s_add_u32 s9, s9, {FL_XCC}")
    p("v_lshl_add_u32 v48, v48, 3, s9")
    p(f"s_cmp_eq_u32 s{S_W}, 0")
    p(f"s_cbranch_scc0 {skip}")
    if 's2st' in EXP:
        p("s_waitcnt vmcnt(0)"); stamp(p, 41)
    p(f"s_mov_b32 s{S_T}, 0")
    p.label(lab)
    masks = [64, 64, 64, 32]
    for i in range(4):
        setexec(p, masks[i])
        p(f"buffer_load_dwordx2 {v(2+2*i,2)}, v{12+i}, {sr(S_FL)}, 0 offen sc1")
    p("s_mov_b64 exec, -1")
    p(f"buffer_load_dwordx2 v[10:11], v48, {sr(S_FL)}, 0 offen sc1")
    p("s_waitcnt vmcnt(0)")
    p(f"v_subrev_u32 v10, s{S_N}, v10")
    p(f"v_cmp_eq_u32 vcc, s{S_N+1}, v11")
    p("v_cmp_gt_u32 s[10:11], 16, v10")
    p("s_nop 4")
    p("s_and_b64 vcc, vcc, s[10:11]")
    p("s_cmp_eq_u64 vcc, exec")
    p("s_cselect_b32 s9, 1, 0")
    for i in range(4):
        setexec(p, masks[i])
        p(f"v_cmp_eq_u64 vcc, {s(S_N,2)}, {v(2+2*i,2)}")
        p("s_nop 4")
        p("s_cmp_eq_u64 vcc, exec")
        p("s_cselect_b32 s9, s9, 0")
    p("s_mov_b64 exec, -1")
    p("s_cmp_eq_u32 s9, 1")
    p(f"s_cbranch_scc1 {done}")
    p(f"s_add_u32 s{S_T}, s{S_T}, 1")
    p(f"s_cmp_lt_u32 s{S_T}, {hex(SPIN_MAX)}")
    p(f"s_cbranch_scc0 {done}")
    p("s_sleep 1")
    p(f"s_branch {lab}")
    p.label(done)
    if 's2st' in EXP:
        p(f"v_writelane_b32 v253, s{S_T}, 42"); p(f"v_writelane_b32 v252, s{S_T}, 43"); p(f"v_writelane_b32 v253, s{S_T}, 43")
    p("s_getreg_b32 s9, hwreg(HW_REG_XCC_ID, 0, 4)")
    p("v_cmp_eq_u32 vcc, s9, v10")
    p("s_nop 4")
    p("s_cmp_eq_u64 vcc, exec")
    p("s_cselect_b32 s9, 1, 0")
    if FORCE_SLOW: p("s_mov_b32 s9, 0")
    p("v_mov_b32 v2, s9")
    p(f"v_mov_b32 v3, {L_FASTW}")
    p("ds_write_b32 v3, v2")
    p("s_waitcnt lgkmcnt(0)")
    p.label(skip)
    p("s_barrier")
    p.vmq = []; p.lgq = []
    p(f"v_mov_b32 v3, {L_FASTW}")
    p.lg("ds_read_b32 v49, v3", "fw")

def fast_get(p):
    p.wait_lg("fw")
    p(f"v_readfirstlane_b32 s{S_FAST}, v49")

PB_ = 96
def partials_prelude(p):
    p("v_and_b32 v1, 31, v0")
    p("v_lshrrev_b32 v2, 5, v0")
    p(f"s_mul_i32 s9, s{S_MEM}, {8*ROWB}")
    p(f"v_mul_u32_u24 v3, {ROWB}, v2")
    p("v_lshl_add_u32 v3, v1, 4, v3")
    if 'noown' not in EXP:
        p(f"v_mul_u32_u24 v11, {OWN_STR if 'norot' not in EXP else ROWB}, v2")
        p("v_lshl_add_u32 v11, v1, 4, v11")
        p(f"v_add_u32 v11, {L_OWN}, v11")
        for i in range(7):
            p(f"s_add_u32 s{SA+i}, s{S_MEM}, {1+i}")
            p(f"s_and_b32 s{SA+i}, s{SA+i}, 7")
            p(f"s_mul_i32 s{SA+i}, s{SA+i}, {64*ROWB}")
    p("v_add_u32 v3, s9, v3")
    p(f"v_cndmask_b32 v12, -1, v3, {ACT}")
    p("v_add_u32 v3, 448, v3")
    p(f"v_cndmask_b32 v13, -1, v3, {ACT}")
    if 'noown' not in EXP: p("s_waitcnt lgkmcnt(0)"); p.lgq = []

def add_partials(p):
    own = 'noown' not in EXP
    for j in range(7 if own else 8):
        if own: so = f"s{SA+j}"
        else:
            so = "s9"
            if j % 4 == 0: p(f"s_mov_b32 s9, {j*64*ROWB}")
            else: p(f"s_add_u32 s9, s9, {64*ROWB}")
        p.vm(f"buffer_load_dwordx4 {v(PB_+8*j,4)}, v12, {sr(S_PR)}, {so} offen sc1", f"p{j}")
        p.vm(f"buffer_load_dwordx4 {v(PB_+8*j+4,4)}, v13, {sr(S_PR)}, {so} offen sc1", f"p{j}")
    if own:
        p.lg(f"ds_read_b128 {v(PB_+56,4)}, v11", "own")
        p.lg(f"ds_read_b128 {v(PB_+60,4)}, v11 offset:448", "own")
    lab = p.uid("pf2")
    p(f"s_cmp_eq_u32 s{S_LAY}, 0"); p(f"s_cbranch_scc0 {lab}")
    for g_ in dma_w1_items(0 if 'pfb' in EXP else 2, "pf2"):
        for it in g_: p(it[0])
    p.label(lab)
    p("v_mov_b32 v7, 0xffff0000")
    p("v_mov_b32 v14, 0x00003f80")
    p("v_mov_b32 v15, 0x3f800000")
    unpack(p, X, XP, 8)
    for i in range(16): p(f"v_mov_b32 v{T+i}, 0")
    p(f"v_mov_b32 v{TMP}, {fbits(LN2)}"); p(f"v_mov_b32 v{TMP+1}, {fbits(LN2)}")
    for j in ([7] + list(range(7)) if own else range(8)):
        if own and j == 7: p.wait_lg("own")
        else: p.wait_vm(f"p{j}")
        for i in range(8):
            p(f"v_dot2c_f32_bf16 v{T+2*i}, v{PB_+8*j+i}, v14")
            p(f"v_dot2c_f32_bf16 v{T+2*i+1}, v{PB_+8*j+i}, v15")
    for i in range(0, 16, 2):
        p(f"v_pk_fma_f32 {v(X+i,2)}, {v(T+i,2)}, {v(TMP,2)}, {v(X+i,2)}")

def xh(phi):
    return a(196 + 4 * phi, 4) if phi < 15 else v(148 + 4 * (phi - 15), 4)

def mlp_setup(p):
    row_setup(p)
    p("v_and_b32 v181, 63, v0")
    p("v_and_b32 v182, 15, v181")
    p("v_lshrrev_b32 v183, 4, v181")
    p(f"s_mul_i32 s9, s{S_A}, 14336")
    p(f"s_add_u32 s9, s9, {L_RING}")
    p(f"v_lshl_add_u32 v{V_A}, v181, 4, s9")
    p(f"v_add_u32 v{V_A2}, {2*CHUNK}, v{V_A}")
    p(f"s_lshl_b32 s9, s{S_B}, 5")
    p("v_add_u32 v184, s9, v182")
    p(f"v_mul_u32_u24 v184, {SH_}, v184")
    p("v_bfe_u32 v185, v182, 1, 2")
    p("v_lshrrev_b32 v186, 1, v183")
    p("v_xor_b32 v186, v186, v185")
    p("v_lshl_add_u32 v184, v186, 4, v184")
    p("v_and_b32 v186, 1, v183")
    p("v_lshl_add_u32 v184, v186, 3, v184")
    p("v_xor_b32 v186, 32, v184")
    p(f"s_cmp_eq_u32 s{S_A}, 1")
    p("s_cselect_b64 vcc, -1, 0")
    p("v_add_u32 v187, 192, v186")
    p(f"v_cndmask_b32 v{V_HW}, v184, v187, vcc")
    p("v_add_u32 v187, 256, v184")
    p(f"v_cndmask_b32 v{V_HW1}, v186, v187, vcc")
    p(f"v_mul_u32_u24 v184, {SH_}, v182")
    p("v_xor_b32 v185, v185, v183")
    p(f"v_lshl_add_u32 v{V_HR}, v185, 4, v184")
    p(f"v_subrev_u32 v{V_A3}, {L_RING - CHUNK}, v{V_A}")
    p(f"v_lshlrev_b32 v{V_L16}, 4, v181")
    p(f"v_mul_u32_u24 v184, {ROWB}, v182")
    p(f"s_lshl_b32 s9, s{S_W}, 6")
    p("v_lshl_add_u32 v185, v183, 4, v184")
    p(f"v_add_u32 v{V_PO}, s9, v185")
    p(f"s_add_u32 s9, s{S_A}, 12")
    p("s_lshl_b32 s9, s9, 6")
    p(f"s_lshl_b32 s10, s{S_B}, 5")
    p("s_add_u32 s9, s9, s10")
    p("v_lshl_add_u32 v185, v183, 3, v184")
    p(f"v_add_u32 v{V_PO1}, s9, v185")
    x_dma_setup(p)

XD1 = [200, 201, 209, 210, 211, 212, 213, 214]
XD2 = [215, 216, 217, 220, 221, 222]
XR1, XR2 = 108, 112
L_X2 = L_X + 64 * 512
def x_dma_setup(p):
    p("v_and_b32 v181, 63, v0")
    p("v_lshrrev_b32 v182, 5, v181")
    p("v_and_b32 v183, 31, v181")
    for i in range(8):
        p(f"v_add_u32 v184, {2*i}, v182")
        p("v_xor_b32 v185, v183, v184")
        p(f"v_mul_u32_u24 v184, {ROWB}, v184")
        p(f"v_lshl_add_u32 v{XD1[i]}, v185, 4, v184")
    for i in range(6):
        p(f"v_add_u32 v184, {64*i}, v181")
        p("v_mul_u32_u24 v185, 2731, v184")
        p("v_lshrrev_b32 v185, 16, v185")
        p("v_mul_u32_u24 v186, 24, v185")
        p("v_sub_u32 v186, v184, v186")
        p("v_and_b32 v184, 6, v185")
        p("v_xor_b32 v186, v186, v184")
        p(f"v_mul_u32_u24 v185, {ROWB}, v185")
        p("v_lshl_add_u32 v185, v186, 4, v185")
        p(f"v_add_u32 v{XD2[i]}, 512, v185")

def x_read_setup(p):
    p("v_and_b32 v1, 63, v0")
    p("v_and_b32 v2, 15, v1")
    p("v_lshrrev_b32 v3, 4, v1")
    p(f"s_lshl_b32 s9, s{S_B}, 5")
    p("v_add_u32 v4, s9, v2")
    p("v_and_b32 v5, 3, v2")
    p("v_xor_b32 v5, v5, v3")
    p("v_lshlrev_b32 v5, 4, v5")
    p("v_lshl_add_u32 v5, v4, 9, v5")
    p("v_lshrrev_b32 v6, 2, v2")
    for r in range(4):
        p(f"v_xor_b32 v8, {r}, v6")
        p(f"v_lshl_add_u32 v{XR1+r}, v8, 6, v5")
    p("v_and_b32 v5, 2, v2")
    p("v_xor_b32 v5, v5, v3")
    p("v_lshlrev_b32 v5, 4, v5")
    p("v_mul_u32_u24 v4, 384, v4")
    p("v_add_u32 v5, v5, v4")
    p(f"v_add_u32 v5, {L_X2}, v5")
    p("v_and_b32 v6, 1, v6")
    p(f"v_lshl_add_u32 v{XR2}, v6, 6, v5")
    p("v_xor_b32 v6, 1, v6")
    p(f"v_lshl_add_u32 v{XR2+1}, v6, 6, v5")

def dma_x(p):
    p(f"s_lshl_b32 s9, s{S_W}, 13")
    p(f"s_mul_i32 s10, s{S_W}, {16*384}")
    for i in range(8):
        p(f"s_add_u32 m0, s9, {L_X + 1024*i}")
        p.vm(f"buffer_load_dwordx4 v{XD1[i]}, {sr(S_X)}, s{S_W14} offen sc1 lds", "x1")
    for i in range(6):
        p(f"s_add_u32 m0, s10, {L_X2 + 1024*i}")
        p.vm(f"buffer_load_dwordx4 v{XD2[i]}, {sr(S_X)}, s{S_W14} offen sc1 lds", "x2")

def dma_w1_items(chunk, tag, g=12):
    G = []
    for i in range(7):
        it = []
        if i in (0, 4):
            o = 4096 if i else 0
            it += [(f"s_add_u32 m0, s{S_W7}, {slot_base(chunk) + o}", "", None),
                   (f"s_add_u32 s{g}, s{S_W7}, {chunk * CHUNK + o}", "", None)]
        it.append((f"buffer_load_dwordx4 v{V_L16}, {sr(S_W1)}, s{g} offen offset:{1024*(i%4)} {'sc1 nt' if 'wnt1' in EXP else 'sc1'} lds", "vm", tag))
        G.append(it)
    return G

def dma_w1(p, chunk, tag):
    p(f"s_mul_i32 s9, s{S_W}, 7168")
    p(f"s_add_u32 s10, s9, {L_RING + (chunk % 3) * CHUNK}")
    p(f"s_add_u32 s9, s9, {chunk * CHUNK}")
    for grp, cnt in ((0, 4), (4, 3)):
        if grp:
            p("s_add_u32 s10, s10, 4096"); p("s_add_u32 s9, s9, 4096")
        p("s_mov_b32 m0, s10")
        for i in range(cnt):
            p.vm(f"buffer_load_dwordx4 v{V_L16}, {sr(S_W1)}, s9 offen offset:{1024*i} sc1 lds", tag)

def cost(t):
    op = t.split()[0]
    if op.startswith(("v_exp", "v_rcp", "v_rsq")): return 8
    if op.startswith("v_"): return 4
    return 0

def emit(p, item):
    t, kind, tag = item
    if kind == "lg": p.lg(t, tag)
    elif kind == "vm": p.vm(t, tag)
    elif kind == "wlg": p.wait_lg(tag)
    elif kind == "wvm": p.wait_vm(tag)
    else: p(t)

def schedule(p, M, V=(), N=None, vstart=0, vend=None):
    N = N or {}
    vend = len(M) if vend is None else vend
    total = sum(cost(x[0]) for x in V)
    done, cum = 0, 0
    for i, m in enumerate(M):
        if isinstance(m, tuple):
            for w in m[1]: emit(p, w)
            m = m[0]
        p(m)
        for it in N.get(i, []): emit(p, it)
        if i >= vstart and done < len(V):
            last = (i >= vend - 1)
            target = total * (i - vstart + 1) / max(1, vend - vstart)
            while done < len(V) and (last or cum + cost(V[done][0]) / 2 <= target):
                cum += cost(V[done][0]); emit(p, V[done]); done += 1
    while done < len(V):
        emit(p, V[done]); done += 1

def interleave(p, M, O, first=0):
    n = len(M) - first
    done = 0
    for i, m in enumerate(M):
        p(m)
        if i >= first:
            want = (len(O) * (i - first + 1) + n - 1) // n
            while done < want:
                t, kind, tag = O[done]; done += 1
                if kind == "lg": p.lg(t, tag)
                elif kind == "vm": p.vm(t, tag)
                else: p(t)

FA, AC1, ST_, HO = 16, 72, 96, 104
def silu_stages(T):
    z = AC1 + 8 * (T % 3); t = ST_
    E = [(f"v_exp_f32_e64 v{t+r}, -v{z+r}", "", None) for r in range(8)]
    A = [(f"v_add_f32 v{t+r}, 1.0, v{t+r}", "", None) for r in range(8)]
    C = [(f"v_rcp_f32 v{t+r}, v{t+r}", "", None) for r in range(8)]
    M = [(f"v_mul_f32 v{t+r}, v{z+r}, v{t+r}", "", None) for r in range(8)]
    V = []
    for nt in range(2):
        V.append((f"v_cvt_pk_bf16_f32 v{HO+2*nt}, v{t+4*nt}, v{t+4*nt+1}", "", None))
        V.append((f"v_cvt_pk_bf16_f32 v{HO+2*nt+1}, v{t+4*nt+2}, v{t+4*nt+3}", "", None))
    W = [(f"ds_write_b64 v{V_HW1 if T & 1 else V_HW}, {v(HO+2*nt,2)} offset:{L_X + nt*16*SH_ + 64*(T>>1)}", "lg", "hw") for nt in range(2)]
    return E, A, C, M, V, W

def gemm1(p):
    def areads(h):
        T, half, buf = h >> 1, h & 1, h & 1
        if T == 3: base, o = V_A3, 0
        else:
            sl = T if T < 3 else T - 4
            base, o = (V_A, sl * CHUNK) if sl < 2 else (V_A2, 0)
        return [(f"ds_read_b128 {v(FA+28*buf+4*i,4)}, v{base} offset:{o + 1024*(7*half+i)}", "lg", f"g{h}") for i in range(7)]
    if 'noown' not in EXP and 'pwall' not in EXP:
        p(f"s_lshr_b32 s9, s{S_MEM}, 1")
        p(f"s_cmp_eq_u32 s9, s{S_W}")
        p("s_cselect_b32 s9, 1, 0")
        p(f"s_and_b32 s10, s{S_MEM}, 1")
        p("s_xor_b32 s11, s10, 1")
        p("s_and_b32 s11, s11, s9"); p("s_and_b32 s10, s10, s9")
        p("s_lshl_b32 s11, s11, 31"); p("s_lshl_b32 s10, s10, 31")
        p(f"s_or_b32 s14, s{S_W14}, s11")
        p(f"s_or_b32 s15, s{S_W14}, s10")
        if 'pwboth' not in EXP:
            p(f"s_lshl_b32 s9, s{S_LAY}, 31")
            p("s_or_b32 s14, s14, s9"); p("s_or_b32 s15, s15, s9")
    p.wait_vm("x1")
    p("s_barrier")
    stamp(p, 12, True)
    def xread(k, nt):
        if k < 8: return (f"ds_read_b128 {xh(2*k+nt)}, v{XR1 + (k & 3)} offset:{L_X + 256*(k>>2) + nt*16*512}", "lg", f"x{k}")
        kk = k - 8
        return (f"ds_read_b128 {xh(2*k+nt)}, v{XR2 + (kk & 1)} offset:{128*(kk>>1) + nt*16*384}", "lg", f"x{k}")
    a0 = areads(0)
    for k in range(7):
        t, kind, _ = a0[k]
        emit(p, (t, kind, f"a0_{k}")); emit(p, xread(k, 0)); emit(p, xread(k, 1))
    silu = 'nosilu' not in EXP
    for h in range(14):
        T, half, buf = h >> 1, h & 1, h & 1
        nxt = areads(h + 1) if h < 13 else []
        pre = [[] for _ in range(14)]
        val = [[] for _ in range(14)]
        post = [[] for _ in range(14)]
        for i, it in enumerate(nxt): pre[i].append(it)
        if h == 0:
            pre[0].append(xread(7, 0)); pre[1].append(xread(7, 1))
            pre[2] += [(None, "wvm", "x2"), ("s_barrier", "", None)]
            extra = [xread(k, nt) for k in range(8, 14) for nt in range(2)]
            for i in range(12): pre[2 + i].append(extra[i])
            if 'pfb' in EXP:
                for g_, grp in zip((3, 5, 6, 8, 9, 11, 12), dma_w1_items(2, "c2")):
                    sal = [x for x in grp if x[1] == ""]; dm = [x for x in grp if x[1] == "vm"]
                    pre[g_] = sal + pre[g_] + dm
            if 'pwX' in EXP or 'pwH' in EXP:
                lab = p.uid("pwx")
                grp = [(f"s_cmp_eq_u32 s{S_LAY}, 0", "", None), (f"s_cbranch_scc0 {lab}", "", None)]
                for i in range(14):
                    if i % 4 == 0: grp.append((f"s_add_u32 s12, s{S_W14}, {1024*i}", "", None))
                    grp.append((f"buffer_load_dwordx4 v[124:127], v{V_L16}, {sr(S_PW)}, s12 offen offset:{1024*(i%4)}", "", None))
                grp.append((f"{lab}:", "", None))
                pre[3] = pre[3] + grp
        if 1 <= h <= 8 and 'nodma1' not in EXP:
            c = 3 + (h - 1) // 2
            grps = dma_w1_items(c, f"c{c}")
            grps = grps[:4] if h & 1 else grps[4:]
            at = [1, 4, 8, 11] if h & 1 else [2, 6, 10]
            for g_, grp in zip(at, grps):
                sal = [x for x in grp if x[1] == ""]; dm = [x for x in grp if x[1] == "vm"]
                pre[g_] = sal + pre[g_] + dm
        if 9 <= h <= 13 and 'noldwc' not in EXP and not any(x in ('pwX', 'pwY') for x in EXP) and 'pw7' not in EXP:
            first = 3 * (h - 9)
            for g_, i in zip((1, 5, 9), range(first, min(first + 3, 14))):
                pre[g_] = [(f"s_add_u32 s12, s{(14 if i < 7 else 15) if 'noown' not in EXP and 'pwall' not in EXP else S_W14}, {1024*i}", "", None)] + pre[g_] + [(f"buffer_load_dwordx4 v[124:127], v{V_L16}, {sr(S_PW)}, s12 offen {'sc1' if 'pwsc1' in EXP else ('nt' if 'pwnt' in EXP else '')}", "vm", "pw")]
        if 7 <= h <= 13 and 'pw7' in EXP:
            first = 2 * (h - 7)
            for g_, i in zip((3, 9), range(first, min(first + 2, 14))):
                pre[g_] = [(f"s_add_u32 s13, s{S_W14}, {1024*i}", "", None)] + pre[g_] + [(f"buffer_load_dwordx4 v[124:127], v{V_L16}, {sr(S_PW)}, s13 offen", "vm", "pw")]
        if silu:
            if half == 0 and T >= 2:
                E, A, C, M, V, W = silu_stages(T - 2)
                seq = M + V
                order = [2, 2, 2, 2, 2, 1, 1]
                for g_, cnt in enumerate(order):
                    for _ in range(cnt): val[g_].append(seq.pop(0))
                pre[7].append(W[0]); pre[9].append(W[1])
            if half == 0 and T >= 1:
                E = silu_stages(T - 1)[0]
                for r in range(7): val[7 + r].append(E[r])
                val[13].append(E[7])
            if half == 1 and T >= 1:
                E, A, C, M, V, W = silu_stages(T - 1)
                for r in range(7): val[r].append(A[r])
                val[6].append(A[7])
                for r in range(7): val[7 + r].append(C[r])
                val[13].append(C[7])
        if h < 13:
            w = [(None, "wlg", f"g{h+1}")]
            if h == 0: w.append((None, "wlg", "x13"))
            if half == 0 and (2 if 'pfb' in EXP else 3) <= T + 1 <= 6: w.append((None, "wvm", f"c{T+1}"))
            pre[13] = w + pre[13] if h != 0 else pre[13] + w
        for q_ in range(14):
            i, nt = q_ >> 1, q_ & 1
            k = 7 * half + i
            if h == 0 and nt == 0:
                p.wait_lg(f"a0_{i}"); p.wait_lg(f"x{k}")
            acc = v(AC1 + 8 * (T % 3) + 4 * nt, 4)
            p(f"v_mfma_f32_16x16x32_bf16 {acc}, {v(FA+28*buf+4*i,4)}, {xh(2*k+nt)}, {'0' if k == 0 else acc}")
            for it in pre[q_] + val[q_] + post[q_]: emit(p, it)
        if half == 0 and 'nobar1' not in EXP: p("s_barrier")
        if 'tt' in EXP: p(f"s_memtime s[{40+0}:{41}]" if False else f"s_memtime s[{34+2*(h+3)}:{35+2*(h+3)}]") if False else None
        if 'tt' in EXP and h < 12: p(f"s_memtime s[{40+2*h}:{41+2*h}]")
    if 'tt' in EXP:
        p("s_waitcnt lgkmcnt(0)"); p.lgq = []
        for h in range(12): p(f"v_mov_b32 v{108+h}, s{40+2*h}")
        p("s_lshl_b32 s9, s2, 6"); p(f"s_mul_i32 s10, s{S_LAY}, 16384"); p("s_add_u32 s9, s9, s10"); p(f"s_add_u32 s9, s9, {0x30000}")
        p("v_mov_b32 v120, s9")
        p("s_mov_b64 s[10:11], exec"); p("s_mov_b64 exec, 1")
        for q_ in range(3): p.vm(f"buffer_store_dwordx4 {v(108+4*q_,4)}, v120, s[92:95], 0 offen offset:{16*q_}")
        p("s_mov_b64 exec, s[10:11]")
    if silu:
        E, A, C, M, V, W = silu_stages(5)
        for it in M + V + W: emit(p, it)
        E, A, C, M, V, W = silu_stages(6)
        for it in E + A + C + M + V + W: emit(p, it)
    p.wait_lg()
    p("s_barrier")

AC2, CO = 72, 16
OUTLINE = []
OWNLINE = []
L_OWN = 143360
OWN_STR = 912
def gemm2(p):
    if 'l1sc1' in EXP or 'l1nt' in EXP: p(f"s_cmp_eq_u32 s{S_LAY}, 1")
    if 'l0sc1' in EXP: p(f"s_cmp_eq_u32 s{S_LAY}, 0")
    own = 'noown' not in EXP
    rot = own and 'norot' not in EXP
    if rot:
        HRV = [116, 117, 118, 119]
        p(f"s_lshr_b32 s10, s{S_MEM}, 1")
        for n_ in range(4):
            p(f"s_add_u32 s11, s10, {n_}"); p("s_and_b32 s11, s11, 3")
            p(f"s_mul_i32 s12, s11, {16*SH_}")
            p(f"v_add_u32 v{HRV[n_]}, s12, v{V_HR}")
            p(f"s_mul_i32 s{SA+n_}, s11, {16*ROWB}")
        hread = lambda nt, k: (f"ds_read_b128 {xh(7*nt+k)}, v{HRV[nt]} offset:{L_X + 64*k}", "lg", f"h{nt}_{k}")
        for k in range(7): emit(p, hread(0, k))
        p(f"s_and_b32 s11, s{S_MEM}, 1")
        p("s_mov_b32 s14, 0x00ff00ff")
        p("s_lshl_b32 s12, s11, 3")
        p("s_lshl_b32 s14, s14, s12")
        p("s_mov_b32 s15, s14")
        p("v_and_b32 v122, 15, v0")
        p(f"v_mul_u32_u24 v123, {ROWB}, v122")
        p("v_and_b32 v122, 7, v122")
        p(f"v_mul_u32_u24 v122, {OWN_STR}, v122")
        p("v_sub_u32 v122, v122, v123")
        p(f"v_add_u32 v122, {L_OWN}, v122")
        p(f"v_add_u32 v120, v122, v{V_PO}")
        p(f"v_add_u32 v121, v122, v{V_PO1}")
        p(f"v_add_u32 v122, {L_OWN + 8*912}, v{V_L16}")
        p("v_cndmask_b32 v120, v122, v120, s[14:15]")
        p("v_cndmask_b32 v121, v122, v121, s[14:15]")
        p("v_bfrev_b32 v123, 1")
        p(f"v_cndmask_b32 v122, v{V_PO}, v123, s[14:15]")
        p(f"v_cndmask_b32 v123, v{V_PO1}, v123, s[14:15]")
    else:
        hread = lambda nt, k: (f"ds_read_b128 {xh(7*nt+k)}, v{V_HR} offset:{L_X + nt*16*SH_ + 64*k}", "lg", f"h{nt}_{k}")
        for k in range(7): emit(p, hread(0, k))
        if own:
            p(f"s_lshr_b32 s10, s{S_MEM}, 1")
            p(f"s_and_b32 s11, s{S_MEM}, 1")
            p("s_mov_b32 s14, 0x00ff00ff")
            p("s_mul_i32 s12, s11, 8")
            p("s_lshl_b32 s14, s14, s12")
            p("s_mov_b32 s15, s14")
            p(f"s_mul_i32 s12, s11, {8*ROWB}")
            p(f"s_sub_u32 s12, {L_OWN}, s12")
            p(f"v_add_u32 v120, s12, v{V_PO}")
            p(f"v_add_u32 v121, s12, v{V_PO1}")
    pf = []
    units = [(3, nt) for nt in range(4)] + [(P, nt) for P in range(3) for nt in range(4)]
    def epi(u):
        P, nt = units[u]; ac = AC2 + 8 * (u & 1); o = CO + 4 * (u & 3)
        O = []
        O.append((f"v_cvt_pk_bf16_f32 v{o}, v{ac}, v{ac+1}", "", None))
        O.append((f"v_cvt_pk_bf16_f32 v{o+1}, v{ac+2}, v{ac+3}", "", None))
        if P < 3:
            O.append((f"v_cvt_pk_bf16_f32 v{o+2}, v{ac+4}, v{ac+5}", "", None))
            O.append((f"v_cvt_pk_bf16_f32 v{o+3}, v{ac+6}, v{ac+7}", "", None))
        st = [(f"s_mov_b32 s9, {nt*16*ROWB}", "", None)]
        sfl = "sc1" if 'psc1' in EXP else ("nt" if 'psnt' in EXP else ("sc0" if 'pssc0' in EXP else ""))
        base = f"buffer_store_dwordx4 {v(o,4)}, v{V_PO}, {sr(S_PW)}, s9 offen offset:{256*P}" if P < 3 else f"buffer_store_dwordx2 {v(o,2)}, v{V_PO1}, {sr(S_PW)}, s9 offen"
        if 'l1sc1' in EXP or 'l1nt' in EXP or 'l0sc1' in EXP:
            alt = "nt" if 'l1nt' in EXP else "sc1"
            la, lb = p.uid("stA"), p.uid("stB")
            st.append((f"s_cbranch_scc1 {la}", "", None))
            st.append((f"{base} {sfl}", "vm", "ps"))
            st.append((f"{lb}:", "", None))
            OUTLINE.append((la, f"{base} {alt}", lb))
        elif rot:
            so = f"s{SA+nt}"
            st = []
            if nt == 0:
                ad, ad1 = 122, 123
                w_ = f"ds_write_b128 v120, {v(o,4)} offset:{256*P}" if P < 3 else f"ds_write_b64 v121, {v(o,2)}"
            else: ad, ad1 = V_PO, V_PO1
            t_ = f"buffer_store_dwordx4 {v(o,4)}, v{ad}, {sr(S_PW)}, {so} offen offset:{256*P}" if P < 3 else f"buffer_store_dwordx2 {v(o,2)}, v{ad1}, {sr(S_PW)}, {so} offen"
            st.append((f"{t_} {sfl}", "vm", "ps"))
            if nt == 0: st.append((w_, "lg", "ow"))
        elif own:
            la, lb = p.uid("owA"), p.uid("owB")
            st.append((f"s_cmp_eq_u32 s10, {nt}", "", None))
            st.append((f"s_cbranch_scc1 {la}", "", None))
            st.append((f"{base} {sfl}", "vm", "ps"))
            st.append((f"{lb}:", "", None))
            w_ = f"ds_write_b128 v120, {v(o,4)} offset:{256*P}" if P < 3 else f"ds_write_b64 v121, {v(o,2)}"
            OWNLINE.append((la, f"{base} {sfl}", w_, lb))
        else:
            st.append((f"{base} {sfl}", "vm", "ps"))
        return O, st
    for u, (P, nt) in enumerate(units):
        ac = AC2 + 8 * (u & 1)
        M = []
        for k in range(7):
            for sub in range(2 if P < 3 else 1):
                Tt = 2 * P + sub
                acc = v(ac + 4 * sub, 4)
                t = f"v_mfma_f32_16x16x32_bf16 {acc}, {a(4*(7*k+Tt),4)}, {xh(7*nt+k)}, {'0' if k == 0 else acc}"
                w = [(None, "wlg", f"h{nt}_{k}")] if (u < 4 and sub == 0) else []
                M.append((t, w))
        n = len(M)
        N = {}
        if u < 3:
            for k in range(7): N.setdefault(k, []).append(hread(u + 1, k))
        V, st = epi(u - 1) if u else ([], [])
        if st and 'nostore' not in EXP: N.setdefault(n - 1 if n == 7 else 10, []).extend(st)
        schedule(p, M, V, N, vstart=(4 if n == 7 else 5), vend=(6 if n == 7 else 9))
    assert not pf
    V, st = epi(len(units) - 1)
    for it in V + st: emit(p, it)

def prewarm_burst(p, layer0_only=True):
    lab = p.uid("pwb")
    if layer0_only:
        p(f"s_cmp_eq_u32 s{S_LAY}, 0"); p(f"s_cbranch_scc0 {lab}")
    for i in range(14):
        if i % 4 == 0: p(f"s_add_u32 s12, s{S_W14}, {1024*i}")
        t = f"buffer_load_dwordx4 v[124:127], v{V_L16}, {sr(S_PW)}, s12 offen offset:{1024*(i%4)}"
        if layer0_only: p(t)
        else: p.vm(t, "pw")
    p.label(lab)

def prewarm_ld(p, stride=128):
    n = 57344 // stride
    for i in range((n + 255) // 256):
        p(f"v_add_u32 v2, {256*i}, v0")
        p(f"v_mul_u32_u24 v2, {stride}, v2")
        p.vm(f"buffer_load_dword v255, v2, {sr(S_PW)}, 0 offen", "pw")

def prewarm(p):
    if 'nowarm' in EXP: return
    fl = "sc1" if 'wsc1' in EXP else ("nt" if 'wnt' in EXP else "")
    stride = 64 if 'w64' in EXP else 128
    for i in range((57344 // stride + 255) // 256):
        p(f"v_add_u32 v2, {256*i}, v0")
        p(f"v_mul_u32_u24 v2, {stride}, v2")
        p(f"buffer_store_dword v0, v2, {sr(S_PW)}, 0 offen {fl}")
    p("v_lshlrev_b32 v1, 7, v0")
    p(f"s_mul_i32 s9, s{S_MEM}, {8*ROWB}")
    p("v_add_u32 v2, s9, v1")
    p(f"v_cmp_gt_u32 vcc, {8*ROWB}, v1")
    p("v_cndmask_b32 v2, -1, v2, vcc")
    p(f"buffer_store_dword v0, v2, {sr(S_X)}, 0 offen {fl}")

FORCE_SLOW = False
def build(stamps=False, force_slow=False):
    global FORCE_SLOW
    FORCE_SLOW = force_slow
    common.STAMPS[0] = stamps
    p = K()
    p("s_cmp_ge_u32 s2, 256")
    p("s_cbranch_scc1 K_end")
    p.load_ptrs()
    p(f"s_memrealtime {s(S_N,2)}")
    code_prefetch(p)
    p.wave_id(S_W, 1)
    p("s_and_b32 s4, s2, 7")
    p("s_lshr_b32 s5, s2, 3")
    p("s_lshl_b32 s4, s4, 5")
    p("s_add_u32 s4, s4, s5")
    p("s_lshr_b32 s5, s4, 3")
    p("s_and_b32 s6, s4, 7")
    p(f"s_lshr_b32 s{S_A}, s{S_W}, 1")
    p(f"s_and_b32 s{S_B}, s{S_W}, 1")
    p(f"s_mov_b32 s{S_LAY}, 0")
    p(f"s_mov_b32 s{S_FAST}, 0")
    p(f"s_mul_i32 s{S_W7}, s{S_W}, 7168")
    p(f"s_mul_i32 s{S_W14}, s{S_W}, 14336")
    prep_addr(p)
    p("s_waitcnt lgkmcnt(0)")
    nonce_threshold(p)
    if stamps:
        p.srd(92, P_WS, WS_FLAGS + 0x80000, 0x40000)
        p("v_mov_b32 v252, 0"); p("v_mov_b32 v253, 0")
    stamp(p, 0)
    p("s_cmp_ge_u32 s2, 224")
    p("s_cbranch_scc1 K_noprep")
    prep(p)
    stamp(p, 1)
    p.wait_vm("kvst")
    lab = p.uid("haven")
    nonce_try(p, 150, lab)
    saved = list(p.vmq)
    p.srd(SF_, P_DBG, 0, 256)
    get_nonce(p, lab)
    p.vmq = saved
    p.label(lab)
    p("s_barrier")
    flag_store_rep(p, FL_S1R, 2)
    stamp(p, 2)
    p.wait_vm()
    hbuild(p)
    p("s_branch K_prepdone")
    p.label("K_noprep")
    p.srd(S_FL, P_WS, WS_FLAGS, FLAGS_BYTES)
    mlp_setup(p)
    q_loads(p)
    p.srd(SF_, P_DBG, 0, 256)
    lab = p.uid("haven")
    get_nonce(p, lab)
    p.label(lab)
    p("s_barrier")
    p.label("K_prepdone")
    p.vmq = []; p.lgq = []
    lab = p.uid("xp")
    p(f"s_cmp_eq_u32 s{S_W}, 0")
    p(f"s_cbranch_scc0 {lab}")
    p("s_getreg_b32 s9, hwreg(HW_REG_XCC_ID, 0, 4)")
    p(f"s_add_u32 s9, s9, s{S_N}")
    p("v_mov_b32 v2, s9"); p(f"v_mov_b32 v3, s{S_N+1}")
    p(f"s_lshl_b32 s9, s{S_RB}, 3"); p(f"s_add_u32 s9, s9, {FL_XCC}")
    p("v_mov_b32 v1, s9")
    p("s_mov_b64 exec, 1")
    p(f"buffer_store_dwordx2 v[2:3], v1, {sr(S_FL)}, 0 offen sc1")
    p("s_mov_b64 exec, -1")
    p.label(lab)
    p(f"s_mul_i32 s9, s{S_MEM}, {7*CHUNK}"); p(f"s_add_u32 s9, s9, {hex(WS_W1P)}")
    p(f"s_add_u32 s{S_W1}, s{P_WS}, s9"); p(f"s_addc_u32 s{S_W1+1}, s{P_WS+1}, 0")
    p(f"s_mov_b32 s{S_W1+2}, {7*CHUNK}"); p(f"s_mov_b32 s{S_W1+3}, 0x20000")
    p(f"s_mul_i32 s9, s{S_CL}, {64*ROWB}"); p(f"s_add_u32 s9, s9, {hex(WS_XP)}")
    p(f"s_add_u32 s{S_X}, s{P_WS}, s9"); p(f"s_addc_u32 s{S_X+1}, s{P_WS+1}, 0")
    p(f"s_mov_b32 s{S_X+2}, {64*ROWB}"); p(f"s_mov_b32 s{S_X+3}, 0x20000")
    p(f"s_mul_i32 s9, s{S_RB}, {64*ROWB}"); p(f"s_add_u32 s9, s9, {hex(WS_PB)}")
    p(f"s_add_u32 s{S_PW}, s{P_WS}, s9"); p(f"s_addc_u32 s{S_PW+1}, s{P_WS+1}, 0")
    p(f"s_mov_b32 s{S_PW+2}, {64*ROWB}"); p(f"s_mov_b32 s{S_PW+3}, 0x20000")
    p(f"s_mul_i32 s9, s{S_CL}, {8*64*ROWB}"); p(f"s_add_u32 s9, s9, {hex(WS_PB)}")
    p(f"s_add_u32 s{S_PR}, s{P_WS}, s9"); p(f"s_addc_u32 s{S_PR+1}, s{P_WS+1}, 0")
    p(f"s_mov_b32 s{S_PR+2}, {8*64*ROWB}"); p(f"s_mov_b32 s{S_PR+3}, 0x20000")
    if 'warm1' in EXP: prewarm(p)
    p("v_and_b32 v1, 63, v0")
    p("s_lshr_b32 s9, s2, 5")
    p("s_min_u32 s9, s9, 6")
    p("v_mul_u32_u24 v8, 7, v1")
    p("v_add_u32 v8, s9, v8")
    p(f"s_mul_i32 s9, s{S_MEM}, 14")
    p("v_subrev_u32 v9, 32, v1")
    p("v_add_u32 v9, s9, v9")
    p("v_add_u32 v10, 98, v9")
    p("v_cmp_gt_u32 vcc, 46, v1")
    p("v_cndmask_b32 v9, v10, v9, vcc")
    p("v_cmp_gt_u32 vcc, 32, v1")
    p("v_cndmask_b32 v8, v9, v8, vcc")
    p("v_lshlrev_b32 v8, 3, v8")
    p("s_and_b32 s9, s2, 7"); p("s_lshl_b32 s9, s9, 11"); p(f"s_add_u32 s9, s9, {FL_S1R}")
    p("v_add_u32 v8, s9, v8")
    p("s_waitcnt lgkmcnt(0)")
    poll(p, [8], 1, [60])
    stamp(p, 3)
    p(f"s_lshl_b32 s9, s{S_MEM}, 2"); p(f"s_add_u32 s9, s9, s{S_W}")
    p(f"s_mul_i32 s9, s9, {49*1024}"); p(f"s_add_u32 s9, s9, {hex(WS_W2P)}")
    p(f"s_add_u32 s{SE}, s{P_WS}, s9"); p(f"s_addc_u32 s{SE+1}, s{P_WS+1}, 0")
    p(f"s_mov_b32 s{SE+2}, {49*1024}"); p(f"s_mov_b32 s{SE+3}, 0x20000")
    p.srd(SD, P_WS, WS_YB, MAT)
    p("s_cmp_ge_u32 s2, 224")
    p("s_cbranch_scc1 K_noconv")
    p("s_lshl_b32 s9, s2, 13")
    p(f"s_add_u32 s{SA}, s{P_WS}, s9"); p(f"s_addc_u32 s{SA+1}, s{P_WS+1}, 0")
    p(f"s_mov_b32 s{SA+2}, 8192"); p(f"s_mov_b32 s{SA+3}, 0x20000")
    p("v_lshlrev_b32 v10, 4, v0")
    p.vm(f"buffer_load_dwordx4 v[64:67], v10, {sr(SA)}, 0 offen sc1", "u")
    p("v_add_u32 v11, 4096, v10")
    p.vm(f"buffer_load_dwordx4 v[68:71], v11, {sr(SA)}, 0 offen sc1", "u")
    if 'qlate' in EXP: q_loads(p)
    p("s_lshl_b32 s9, s2, 2")
    p(f"s_load_dword s13, s[{P_DV}:{P_DV+1}], s9")
    for g_ in w2_items(SE)[:W20]:
        for it in g_: emit(p, it)
    p(f"v_add_u32 v10, {L_U+512}, v10")
    p.wait_vm("u")
    p.lg("ds_write_b128 v10, v[64:67]")
    p.lg(f"ds_write_b128 v10, v[68:71] offset:{U_CH}")
    p("s_waitcnt lgkmcnt(0)"); p.lgq = []
    p("s_lshl_b32 s12, s13, 16")
    p("s_and_b32 s14, s13, 0xffff0000")
    p(f"s_cmp_eq_u32 s{S_B}, 0")
    p("s_cselect_b32 s14, s12, s14")
    p("s_barrier")
    if 'warm2' in EXP: prewarm(p)
    stamp(p, 4)
    conv_main(p)
    stamp(p, 5)
    conv_out(p, SD)
    signal(p, FL_S2R, 2, upto="yst")
    stamp(p, 6)
    p("s_branch K_convdone")
    p.label("K_noconv")
    p.vmq = []
    for g_ in w2_items(SE)[:W2A]:
        for it in g_: emit(p, it)
    idle = [x for x in EXP if x.startswith('idle')]
    if idle:
        nld = int(idle[0][4:])
        p("s_and_b32 s9, s2, 7"); p("s_lshl_b32 s9, s9, 2")
        p("s_sub_u32 s10, s2, 224"); p("s_lshr_b32 s10, s10, 3"); p("s_add_u32 s9, s9, s10")
        p(f"s_mul_i32 s9, s9, {8*64*ROWB}"); p(f"s_add_u32 s9, s9, {hex(WS_PB)}")
        p(f"s_add_u32 s{SA}, s{P_WS}, s9"); p(f"s_addc_u32 s{SA+1}, s{P_WS+1}, 0")
        p(f"s_mov_b32 s{SA+2}, {8*64*ROWB}"); p(f"s_mov_b32 s{SA+3}, 0x20000")
        p(f"s_mul_i32 s10, s{S_W}, {112*1024}")
        lab = p.uid("idl")
        p("s_mov_b32 s11, 0")
        p.label(lab)
        for i in range(4):
            p(f"buffer_load_dwordx4 v[124:127], v{V_L16}, {sr(SA)}, s10 offen offset:{1024*i}")
        p("s_add_u32 s10, s10, 4096"); p("s_add_u32 s11, s11, 4"); p(f"s_cmp_lt_u32 s11, {nld}")
        p(f"s_cbranch_scc1 {lab}")
    p.wait_vm()
    p.label("K_convdone")
    if 'warm3' in EXP: prewarm(p)
    if 'pws2' in EXP:
        lab = p.uid("pws")
        p(f"s_cmp_eq_u32 s{S_W}, 0"); p(f"s_cbranch_scc1 {lab}")
        p(f"s_sub_u32 s9, s{S_W}, 1"); p("s_mul_i32 s9, s9, 19456")
        for i in range(19):
            if i % 4 == 0: p(f"s_add_u32 s10, s9, {1024*i}")
            p(f"buffer_load_dwordx4 v[220:223], v{V_L16}, {sr(S_PW)}, s10 offen offset:{1024*(i%4)}")
        p.label(lab)
    p("s_waitcnt vmcnt(0)")
    p("v_mov_b32 v7, 0xffff0000")
    unpack(p, X, XP, 8)
    layernorm(p, X, T)
    poll_s2(p)
    stamp(p, 7)
    y_load(p, SD)
    fast_get(p)
    for g_ in dma_w1_items(0 if 'pfb' in EXP else 2, "pf2"):
        for it in g_: emit(p, it)
    if 'pwY' in EXP: prewarm_burst(p, False)
    for g_ in w2_items(SE)[W2A:]:
        for it in g_: emit(p, it)
    y_transpose(p)
    stamp(p, 8)
    p("v_mov_b32 v7, 0xffff0000")
    p("s_branch K_gate")
    p.label("K_layer")
    p.vmq = []; p.lgq = []
    layernorm(p, X, T)
    p.label("K_gate")
    p.vmq = []; p.lgq = []
    q = K()
    for i in range(0, 16, 2):
        q(f"v_pk_fma_f32 {v(X+i,2)}, {v(T+i,2)}, {v(YV+i,2)}, {v(X+i,2)}")
    layernorm(q, X, T, LOG2E)
    pack(q, PK, T, 8)
    body = [it.text for it in q.items]
    if 'pfb' in EXP: pf = dma_w1_items(1, "pf")
    elif 'pfafter' in EXP: pf = dma_w1_items(0, "pf")
    else: pf = [g for c in range(2) for g in dma_w1_items(c, "pf")]
    step = len(body) // (len(pf) + (5 if 'pfb' in EXP else 1))
    for i, t in enumerate(body):
        p(t)
        if pf and i % step == step - 1:
            for it in pf.pop(0): emit(p, it)
    assert not pf
    p(f"s_mul_i32 s9, s{S_CL}, {64*ROWB}")
    p(f"v_subrev_u32 v3, s9, v{OFFA}")
    p(f"v_subrev_u32 v4, s9, v{OFFB}")
    p(f"v_cndmask_b32 v3, -1, v3, {ACT}")
    p(f"v_cndmask_b32 v4, -1, v4, {ACT}")
    p.vm(f"buffer_store_dwordx4 {v(PK,4)}, v3, {sr(S_X)}, 0 offen", "xs")
    p.vm(f"buffer_store_dwordx4 {v(PK+4,4)}, v4, {sr(S_X)}, 0 offen", "xs")
    pack(p, XP, X, 8)
    if 'pfafter' in EXP:
        for g_ in dma_w1_items(1, "pf1"):
            for it in g_: emit(p, it)
    stamp(p, 9, True)
    if 'oldsync' in EXP:
        signal(p, FL_CA, S_RB, layer_off=True, cluster=True, upto="xs")
        stamp(p, 10, True)
        def cluster_offs():
            p("v_and_b32 v1, 7, v0")
            p(f"s_lshl_b32 s9, s{S_CL}, 7")
            p(f"s_lshl_b32 s10, s{S_LAY}, 13")
            p("s_add_u32 s9, s9, s10")
        cluster_offs()
        p(f"s_add_u32 s9, s9, {FL_CA}")
        p("v_lshl_add_u32 v10, v1, 3, s9")
        poll(p, [10], 1, [8], cluster=True)
    else:
        cluster_sync(p, FL_CA, upto="xs", sid=10)
    stamp(p, 11, True)
    dma_x(p)
    x_read_setup(p)
    if 'ldw128' in EXP: prewarm_ld(p, 128)
    if 'ldw64' in EXP: prewarm_ld(p, 64)
    gemm1(p)
    stamp(p, 13, True)
    gemm2(p)
    stamp(p, 14, True)
    if 'oldsync' in EXP:
        signal(p, FL_CC, S_RB, layer_off=True, cluster=True)
        if 'wb2' in EXP:
            lab = p.uid("wb2")
            p(f"s_cmp_eq_u32 s{S_LAY}, 1"); p(f"s_cbranch_scc0 {lab}")
            p(f"s_cmp_eq_u32 s{S_W}, 3"); p(f"s_cbranch_scc0 {lab}")
            p(f"s_and_b32 s9, s{S_RB}, 31"); p("s_cmp_eq_u32 s9, 0"); p(f"s_cbranch_scc0 {lab}")
            p("buffer_wbl2 sc1")
            p.label(lab)
        stamp(p, 15, True)
        partials_prelude(p)
        cluster_offs()
        p(f"s_add_u32 s9, s9, {FL_CC}")
        p("v_lshl_add_u32 v10, v1, 3, s9")
        poll(p, [10], 1, [8], cluster=True)
        if 'wb' in EXP:
            lab = p.uid("wb")
            p(f"s_cmp_eq_u32 s{S_LAY}, 1"); p(f"s_cbranch_scc0 {lab}")
            p(f"s_cmp_eq_u32 s{S_MEM}, 0"); p(f"s_cbranch_scc0 {lab}")
            p(f"s_cmp_eq_u32 s{S_W}, 3"); p(f"s_cbranch_scc0 {lab}")
            p("buffer_wbl2 sc1")
            p.label(lab)
    else:
        cluster_sync(p, FL_CC, before=lambda: partials_prelude(p), sid=15)
    stamp(p, 16, True)
    add_partials(p)
    stamp(p, 17, True)
    p(f"s_cmp_eq_u32 s{S_LAY}, 1")
    p("s_cbranch_scc1 K_final")
    p(f"s_mov_b32 s{S_LAY}, 1")
    p("s_branch K_layer")
    p.label("K_final")
    pack(p, XP, X, 8)
    p.srd(SA, P_OUT, 0, MAT)
    ofl = "sc1" if 'osc1' in EXP else ("nt" if 'ont' in EXP else "")
    p(f"buffer_store_dwordx4 {v(XP,4)}, v{OFFA}, {sr(SA)}, 0 offen {ofl}")
    p(f"buffer_store_dwordx4 {v(XP+4,4)}, v{OFFB}, {sr(SA)}, 0 offen {ofl}")
    stamp(p, 40)
    stamp_flush(p)
    if SLOWPATHS:
        p("s_endpgm")
        emit_slowpaths(p)
        for la, t, w_, lb in OWNLINE:
            p.label(la)
            p("s_not_b64 exec, s[14:15]")
            p(t)
            p("s_mov_b64 exec, s[14:15]")
            p(w_)
            p("s_mov_b64 exec, -1")
            p("s_nop 1")
            p(f"s_branch {lb}")
    if OUTLINE:
        p("s_endpgm")
        for la, t, lb in OUTLINE:
            p.label(la); p(t); p(f"s_branch {lb}")
    p.label("K_end")
    p("s_endpgm")
    txt, n = kernel_text(KNAME, p, 256, sgprs=102, agprs=256)
    print("nops inserted:", n, "instructions:", p.count(), file=sys.stderr)
    head = HEADER + f"; @launch grid=(256,1,1) block=(256,1,1) lds={LDS_BYTES}\n" + '.amdgcn_target "amdgcn-amd-amdhsa--gfx950"\n'
    return head + txt

if __name__ == "__main__":
    open(sys.argv[1], "w").write(build(stamps="st" in sys.argv[2:], force_slow="slow" in sys.argv[2:]))
```

```python
import sys
from common import *
import common
EXP = set(sys.argv[2:])
if 'pfa' not in EXP: EXP.add('pfb')
if 'plainst' not in EXP: EXP |= {'psnt', 'ont'}

KNAME = "interleave_layers__ssm_conv_h3__dense_activation_silu__prompt_kernel"
HEADER = open("interleave_layers__ssm_conv_h3__dense_activation_silu__prompt.s.ref").read().split("; Override launch")[0]

S_W, S_RB, S_CL, S_MEM, S_A, S_B = 3, 4, 5, 6, 7, 8
SA, SB_, SC, SD, SE, SF_ = 40, 44, 48, 52, 56, 60
S_FL, S_W1, S_X, S_PW, S_PR = 64, 68, 72, 76, 80
S_N, S_FAST, S_LAY = 84, 86, 87
S_W7, S_W14 = 100, 101
ACT = "s[88:89]"
S_T = 90
V_XE, V_XO, V_A, V_A2, V_HW, V_HR, V_L16, V_PO, V_PO1 = 200, 201, 202, 203, 204, 205, 206, 207, 208
V_XD = 209
V_PWA, V_PWB = 216, 217
V_HW1, V_A3 = 218, 219
XP = 224
YV = 232
OFFA, OFFB = 248, 249
VN = 250
LA, LB = 0, 8192
HC_COPY = 4160; HC_CH = 8 * HC_COPY; L_U = 2 * HC_CH; U_CH = 512 + 4096; YS_CH = 4096 + 128
LY = 0
L_X = 0; SH_ = 448; L_RING = 57344; CHUNK = 28672
def slot_base(c):
    return CHUNK if c == 3 else L_RING + (c if c < 3 else c - 4) * CHUNK
SPIN_MAX = 0x100000
LDS_BYTES = 163840
L_FASTW = 163836 - 60

def sr(r): return f"s[{r}:{r+3}]"

def stamp(p, sid, layered=False):
    if not common.STAMPS[0]: return
    p("s_memrealtime s[96:97]")
    p("s_memtime s[98:99]")
    p("s_waitcnt lgkmcnt(0)")
    if layered:
        p(f"s_mul_i32 s97, s{S_LAY}, 10")
        p(f"s_add_u32 m0, s97, {sid}")
        p("s_nop 3")
        p("v_writelane_b32 v252, s96, m0")
        p("v_writelane_b32 v253, s98, m0")
    else:
        p(f"v_writelane_b32 v252, s96, {sid}")
        p(f"v_writelane_b32 v253, s98, {sid}")
    p.lgq = []

def stamp_flush(p):
    if not common.STAMPS[0]: return
    lab = p.uid("sf")
    p(f"s_cmp_eq_u32 s{S_W}, 0")
    p(f"s_cbranch_scc0 {lab}")
    p("v_lshlrev_b32 v1, 2, v0")
    p("s_lshl_b32 s9, s2, 9")
    p("v_add_u32 v1, s9, v1")
    p("buffer_store_dword v252, v1, s[92:95], 0 offen")
    p("buffer_store_dword v253, v1, s[92:95], 0 offen offset:256")
    if 'dbgst' in EXP:
        wg = [x for x in EXP if x.startswith('wg')]
        wg = int(wg[0][2:]) if wg else 0
        l2 = p.uid("sf2")
        p(f"s_cmp_eq_u32 s2, {wg}")
        p(f"s_cbranch_scc0 {l2}")
        p.srd(SA, P_DBG, 0, 256)
        sel = [0, 2, 3, 5, 7, 9, 12, 13, 14, 17, 22, 23, 24, 40]
        p("s_nop 4")
        p("v_readlane_b32 s12, v252, 0")
        for i, sid in enumerate(sel):
            p(f"v_readlane_b32 s9, v252, {sid}")
            p("s_nop 3")
            p("s_sub_u32 s9, s9, s12")
            if i == 0: p("s_mov_b32 s9, s12")
            p(f"v_writelane_b32 v1, s9, {i}")
        p("v_and_b32 v2, 63, v0")
        p("v_lshlrev_b32 v2, 2, v2")
        p("v_add_u32 v2, 8, v2")
        p("s_mov_b32 exec_lo, 0x3fff"); p("s_mov_b32 exec_hi, 0")
        p(f"buffer_store_dword v1, v2, {sr(SA)}, 0 offen")
        p("s_mov_b64 exec, -1")
        p.label(l2)
    p.label(lab)

def flag_store(p, table, idx_sreg, layer_off=False, cluster=False):
    lab = p.uid("sig")
    p(f"s_cmp_eq_u32 s{S_W}, 0")
    p(f"s_cbranch_scc0 {lab}")
    p(f"s_lshl_b32 s{S_T}, s{S_CL}, 7")
    p(f"s_lshl_b32 s{S_T+1}, s{S_MEM}, 3")
    p(f"s_add_u32 s{S_T}, s{S_T}, s{S_T+1}")
    p(f"s_add_u32 s{S_T}, s{S_T}, {table}")
    p(f"s_lshl_b32 s{S_T+1}, s{S_LAY}, 13")
    p(f"s_add_u32 s{S_T}, s{S_T}, s{S_T+1}")
    p(f"v_mov_b32 v{VN}, s{S_N}")
    p(f"v_mov_b32 v{VN+1}, s{S_N+1}")
    p(f"v_mov_b32 v1, s{S_T}")
    p("s_mov_b64 exec, 1")
    if cluster:
        l2 = p.uid("sigslow"); l3 = p.uid("sigdone")
        p(f"s_cmp_eq_u32 s{S_FAST}, 1")
        p(f"s_cbranch_scc0 {l2}")
        p(f"buffer_store_dwordx2 {v(VN,2)}, v1, {sr(S_FL)}, 0 offen")
        p(f"s_branch {l3}")
        p.label(l2)
        p("buffer_wbl2 sc1")
        p("s_waitcnt vmcnt(0)")
        p(f"buffer_store_dwordx2 {v(VN,2)}, v1, {sr(S_FL)}, 0 offen sc1")
        p.label(l3)
    else:
        p(f"buffer_store_dwordx2 {v(VN,2)}, v1, {sr(S_FL)}, 0 offen sc1")
    p("s_mov_b64 exec, -1")
    p.label(lab)

def flag_store_rep(p, table, idx_sreg):
    lab = p.uid("sigr")
    p(f"s_cmp_eq_u32 s{S_W}, 0")
    p(f"s_cbranch_scc0 {lab}")
    p(f"s_lshl_b32 s{S_T}, s{idx_sreg}, 3")
    p(f"s_add_u32 s{S_T}, s{S_T}, {table}")
    p(f"v_mov_b32 v{VN}, s{S_N}")
    p(f"v_mov_b32 v{VN+1}, s{S_N+1}")
    p("v_lshlrev_b32 v1, 11, v0")
    p(f"v_add_u32 v1, s{S_T}, v1")
    p("s_mov_b64 exec, 0xff")
    p(f"buffer_store_dwordx2 {v(VN,2)}, v1, {sr(S_FL)}, 0 offen sc1")
    p("s_mov_b64 exec, -1")
    p.label(lab)

def signal(p, table, idx_sreg, layer_off=False, cluster=False, upto=None):
    if upto: p.wait_vm(upto)
    else: p.wait_vm()
    p("s_barrier")
    if table in (FL_S1R, FL_S2R): flag_store_rep(p, table, idx_sreg)
    else: flag_store(p, table, idx_sreg, layer_off, cluster)

def cluster_sync(p, table, upto=None, before=None, sid=None):
    p("v_and_b32 v10, 7, v0")
    p(f"s_lshl_b32 s9, s{S_CL}, 7")
    p(f"s_lshl_b32 s10, s{S_LAY}, 13")
    p("s_add_u32 s9, s9, s10")
    p(f"s_add_u32 s9, s9, {table}")
    p("v_lshl_add_u32 v10, v10, 3, s9")
    p(f"s_lshl_b32 s10, s{S_MEM}, 3")
    p("s_add_u32 s9, s9, s10")
    p("v_mov_b32 v9, s9")
    p(f"v_mov_b32 v{VN}, s{S_N}")
    p(f"v_mov_b32 v{VN+1}, s{S_N+1}")
    if before: before()
    if upto: p.wait_vm(upto)
    else: p.wait_vm()
    p("s_barrier")
    skip = p.uid("css"); slow = p.uid("csl"); go = p.uid("csg"); lab = p.uid("csp"); done = p.uid("csd"); acq = p.uid("csa")
    p(f"s_cmp_eq_u32 s{S_W}, 0")
    p(f"s_cbranch_scc0 {skip}")
    p("s_mov_b64 exec, 1")
    p(f"s_cmp_eq_u32 s{S_FAST}, 1")
    p(f"s_cbranch_scc0 {slow}")
    p(f"buffer_store_dwordx2 {v(VN,2)}, v9, {sr(S_FL)}, 0 offen")
    p.label(go)
    if sid is not None: stamp(p, sid, True)
    p("s_mov_b64 exec, 0xff")
    p(f"s_mov_b32 s{S_T}, 0")
    p.label(lab)
    p(f"buffer_load_dwordx2 v[2:3], v10, {sr(S_FL)}, 0 offen sc1")
    p("s_waitcnt vmcnt(0)")
    p(f"v_cmp_eq_u64 vcc, {s(S_N,2)}, v[2:3]")
    p(f"s_add_u32 s{S_T}, s{S_T}, 1")
    p("s_nop 3")
    p("s_cmp_eq_u64 vcc, exec")
    p(f"s_cbranch_scc1 {done}")
    p(f"s_cmp_lt_u32 s{S_T}, {hex(SPIN_MAX)}")
    p(f"s_cbranch_scc1 {lab}")
    p.label(done)
    p("s_mov_b64 exec, -1")
    p(f"s_cmp_eq_u32 s{S_FAST}, 1")
    p(f"s_cbranch_scc1 {skip}")
    p("buffer_inv sc1")
    p("s_waitcnt vmcnt(0)")
    p.label(skip)
    p("s_barrier")
    p.vmq = []
    SLOWPATHS.append((slow, go))

SLOWPATHS = []
def emit_slowpaths(p):
    for slow, go in SLOWPATHS:
        p.label(slow)
        p("buffer_wbl2 sc1")
        p("s_waitcnt vmcnt(0)")
        p(f"buffer_store_dwordx2 {v(VN,2)}, v9, {sr(S_FL)}, 0 offen sc1")
        p(f"s_branch {go}")

def setexec(p, nl):
    m = (1 << nl) - 1
    lo, hi = m & 0xffffffff, m >> 32
    p(f"s_mov_b32 exec_lo, {hex(lo) if lo != 0xffffffff else -1}")
    p(f"s_mov_b32 exec_hi, {hex(hi) if hi != 0xffffffff else -1}")

def poll(p, offs, n_loads, masks, cluster=False, all_waves=False):
    lab = p.uid("poll"); done = p.uid("polld"); skip = p.uid("polls")
    if not all_waves:
        p(f"s_cmp_eq_u32 s{S_W}, 0")
        p(f"s_cbranch_scc0 {skip}")
    p(f"s_mov_b32 s{S_T}, 0")
    p.label(lab)
    for i in range(n_loads):
        setexec(p, masks[i])
        p(f"buffer_load_dwordx2 {v(2+2*i,2)}, v{offs[i]}, {sr(S_FL)}, 0 offen sc1")
    p("s_waitcnt vmcnt(0)")
    p("s_mov_b32 s9, 1")
    for i in range(n_loads):
        setexec(p, masks[i])
        p(f"v_cmp_eq_u64 vcc, {s(S_N,2)}, {v(2+2*i,2)}")
        p("s_nop 4")
        p("s_cmp_eq_u64 vcc, exec")
        p("s_cselect_b32 s9, s9, 0")
    p("s_mov_b64 exec, -1")
    p("s_cmp_eq_u32 s9, 1")
    p(f"s_cbranch_scc1 {done}")
    p(f"s_add_u32 s{S_T}, s{S_T}, 1")
    p(f"s_cmp_lt_u32 s{S_T}, {hex(SPIN_MAX)}")
    p(f"s_cbranch_scc0 {done}")
    if not cluster or 'nosleep' not in EXP: p("s_sleep 1")
    p(f"s_branch {lab}")
    p.label(done)
    if cluster:
        l2 = p.uid("acq")
        p(f"s_cmp_eq_u32 s{S_FAST}, 1")
        p(f"s_cbranch_scc1 {l2}")
        p("buffer_inv sc1")
        p("s_waitcnt vmcnt(0)")
        p.label(l2)
    p.label(skip)
    p("s_barrier")
    p.vmq = []

FRESH_TICKS = 1200
NONCE_PATIENCE = 0x40000
def nonce_threshold(p):
    p(f"s_sub_u32 s{S_N}, s{S_N}, {FRESH_TICKS}")
    p(f"s_subb_u32 s{S_N+1}, s{S_N+1}, 0")
    p(f"s_lshl_b64 {s(S_N,2)}, {s(S_N,2)}, 4")
    p(f"s_or_b32 s{S_N+1}, s{S_N+1}, 0x40000000")

def nonce_try(p, va, ok):
    p(f"v_readfirstlane_b32 s10, v{va}")
    p(f"v_readfirstlane_b32 s11, v{va+1}")
    p("s_nop 3")
    p(f"s_sub_u32 s9, s10, s{S_N}")
    p(f"s_subb_u32 s9, s11, s{S_N+1}")
    lab = p.uid("stale")
    p(f"s_cbranch_scc1 {lab}")
    p(f"s_mov_b64 {s(S_N,2)}, s[10:11]")
    p(f"s_branch {ok}")
    p.label(lab)

def get_nonce(p, done):
    lab = p.uid("non")
    p(f"s_mov_b32 s{S_T}, 0")
    p.label(lab)
    p("v_mov_b32 v1, 0")
    p(f"buffer_load_dwordx2 v[2:3], v1, {sr(SF_)}, 0 offen sc1")
    p("s_waitcnt vmcnt(0)")
    nonce_try(p, 2, done)
    p(f"s_add_u32 s{S_T}, s{S_T}, 1")
    p("s_sleep 1")
    p(f"s_cmp_lt_u32 s{S_T}, {hex(NONCE_PATIENCE)}")
    p(f"s_cbranch_scc1 {lab}")
    p(f"s_mov_b64 {s(S_N,2)}, s[10:11]")
    p.vmq = []

def tlb_warm(p):
    if 'notlb' in EXP: return
    ent = [(P_K, None), (P_V, None), (P_SK, 0), (P_W1, 0), (P_W2, 0), (P_H, "h"), (P_Q, "q"), (P_DV, 0), (P_DBG, 0), (P_OUT, "q"),
           (P_WS, WS_KVT), (P_WS, WS_YB), (P_WS, WS_W1P), (P_WS, WS_W2P), (P_WS, WS_FLAGS), (P_WS, "pb0"), (P_WS, "pb1")]
    lab = p.uid("tw")
    p(f"s_cmp_eq_u32 s{S_W}, 0")
    p(f"s_cbranch_scc0 {lab}")
    p(f"v_mov_b32 v2, s{P_K}"); p(f"v_mov_b32 v3, s{P_K+1}")
    p(f"s_mul_i32 s9, s{S_RB}, {8*ROWB}")
    p("s_min_u32 s10, s2, 223"); p("s_lshl_b32 s10, s10, 13")
    p(f"s_mul_i32 s11, s{S_CL}, {8*64*ROWB}"); p(f"s_add_u32 s11, s11, {hex(WS_PB)}")
    for i, (ptr, off) in enumerate(ent):
        if off in (None, 0):
            lo, hi = ptr, ptr + 1
        else:
            if off == "q": src = "s9"
            elif off == "h": src = "s10"
            elif off == "pb0": src = "s11"
            elif off == "pb1":
                p(f"s_add_u32 s11, s11, {8*64*ROWB - 128}"); src = "s11"
            else: src = hex(off)
            p(f"s_add_u32 s12, s{ptr}, {src}"); p(f"s_addc_u32 s13, s{ptr+1}, 0")
            lo, hi = 12, 13
        p(f"v_writelane_b32 v2, s{lo}, {i}")
        p(f"v_writelane_b32 v3, s{hi}, {i}")
    setexec(p, len(ent))
    p("global_load_dword v254, v[2:3], off")
    p("s_mov_b64 exec, -1")
    p.label(lab)

def nonce_publish(p):
    lab = p.uid("nn")
    p("s_cmp_eq_u32 s2, 0")
    p(f"s_cbranch_scc0 {lab}")
    p(f"s_cmp_eq_u32 s{S_W}, 0")
    p(f"s_cbranch_scc0 {lab}")
    p.srd(SF_, P_DBG, 0, 256)
    p("s_memrealtime s[10:11]")
    p("s_waitcnt lgkmcnt(0)")
    p("s_lshl_b64 s[10:11], s[10:11], 4")
    p("s_or_b32 s11, s11, 0x40000000")
    p("v_mov_b32 v46, s10"); p("v_mov_b32 v47, s11"); p("v_mov_b32 v13, 0")
    p("s_mov_b64 exec, 1")
    p(f"buffer_store_dwordx2 v[46:47], v13, {sr(SF_)}, 0 offen sc1")
    p("s_mov_b64 exec, -1")
    p.label(lab)

S_RBK, S_CG = 12, 13
def prep_addr(p):
    p("s_min_u32 s14, s2, 223")
    p.div_const(S_RBK, 14, 7)
    p(f"s_mul_i32 s{S_CG}, s{S_RBK}, 7")
    p(f"s_sub_u32 s{S_CG}, s14, s{S_CG}")
    p("v_and_b32 v1, 15, v0")
    p("v_lshrrev_b32 v2, 4, v0")
    p(f"s_lshl_b32 s9, s{S_RBK}, 6")
    p("s_sub_u32 s9, s9, 3")
    p("v_lshl_add_u32 v3, v2, 2, s9")
    p(f"v_mul_i32_i24 v4, {ROWB}, v3")
    p(f"s_lshl_b32 s10, s{S_CG}, 7")
    p("v_lshl_add_u32 v5, v1, 3, s10")
    p("v_add_u32 v4, v4, v5")
    for i in range(1, 7):
        p(f"v_add_u32 v{5+i}, {ROWB*i}, v4")
    p("v_lshlrev_b32 v12, 2, v5")

def prep(p):
    SK_, SV_, SSK, SKVT, SSRC, SDST = SA, SB_, SC, SD, SE, S_W1
    T0 = 72
    off = lambda i: "v4" if i == 0 else f"v{5+i}"
    p.srd(SK_, P_K, 0, MAT)
    for i in range(7):
        p.vm(f"buffer_load_dwordx2 {v(16+2*i,2)}, {off(i)}, {sr(SK_)}, 0 offen", "k")
    p.srd(SV_, P_V, 0, MAT)
    for i in range(4):
        p.vm(f"buffer_load_dwordx2 {v(30+2*i,2)}, {off(i+3)}, {sr(SV_)}, 0 offen", "k")
    p.srd(SSK, P_SK, 0, D * 8)
    p.vm(f"buffer_load_dwordx4 v[38:41], v12, {sr(SSK)}, 0 offen", "k")
    p.vm(f"buffer_load_dwordx4 v[42:45], v12, {sr(SSK)}, 0 offen offset:16", "k")
    nonce_publish(p)
    p.srd(SKVT, P_WS, WS_KVT, MAT)
    p.srd(S_FL, P_WS, WS_FLAGS, FLAGS_BYTES)
    if 'pp' in EXP: stamp(p, 34)
    S_J, S_R, S_ISW2, S_STR = T0, T0 + 1, T0 + 2, T0 + 3
    p("s_cmp_ge_u32 s2, 112")
    p(f"s_cselect_b32 s{S_ISW2}, 1, 0")
    p("s_cselect_b32 s9, 112, 0")
    p("s_sub_u32 s9, s2, s9")
    p.div_const(S_J, 9, 14)
    p(f"s_mul_i32 s10, s{S_J}, 14")
    p(f"s_sub_u32 s{S_R}, s9, s10")
    p(f"s_mul_i32 s10, s{S_R}, {32*3584}")
    p(f"s_mul_i32 s11, s{S_J}, 448")
    p("s_add_u32 s10, s10, s11")
    p(f"s_lshr_b32 s11, s{S_R}, 1")
    p(f"s_mul_i32 s11, s11, {32*896}")
    p(f"s_mul_i32 s14, s{S_J}, {224*896}")
    p("s_add_u32 s11, s11, s14")
    p(f"s_and_b32 s14, s{S_R}, 1")
    p("s_mul_i32 s14, s14, 448")
    p("s_add_u32 s11, s11, s14")
    p(f"s_cmp_eq_u32 s{S_ISW2}, 1")
    p("s_cselect_b32 s10, s11, s10")
    p.csel(S_STR, 896, 3584)
    p(f"s_cselect_b32 s{SSRC}, s{P_W2}, s{P_W1}")
    p(f"s_cselect_b32 s{SSRC+1}, s{P_W2+1}, s{P_W1+1}")
    p(f"s_mov_b32 s{SSRC+2}, {hex(D*F*2)}")
    p(f"s_mov_b32 s{SSRC+3}, 0x20000")
    for m in range(4):
        p(f"v_add_u32 v13, {256*m}, v0")
        p("v_mul_u32_u24 v14, 2341, v13")
        p("v_lshrrev_b32 v14, 16, v14")
        p("v_mul_u32_u24 v15, 28, v14")
        p("v_sub_u32 v15, v13, v15")
        p(f"v_mul_lo_u32 v14, v14, s{S_STR}")
        p("v_lshl_add_u32 v14, v15, 4, v14")
        p("v_add_u32 v14, s10, v14")
        if m == 3:
            p("v_cmp_gt_u32 vcc, 896, v13")
            p("v_cndmask_b32 v14, -1, v14, vcc")
        p.vm(f"buffer_load_dwordx4 {v(48+4*m,4)}, v14, {sr(SSRC)}, 0 offen", "w")
    if 'pp' in EXP: stamp(p, 35)
    p("v_and_b32 v46, 63, v0")
    p("v_lshrrev_b32 v47, 4, v46")
    p("v_bfe_u32 v14, v46, 2, 2")
    p("v_and_b32 v15, 3, v46")
    p("v_lshl_add_u32 v47, v47, 3, v14")
    p("v_mul_u32_u24 v47, 448, v47")
    p("v_lshlrev_b32 v46, 4, v46")
    p(f"s_cmp_eq_u32 s{S_ISW2}, 1")
    p.csel(9, hex(WS_W2P), hex(WS_W1P))
    p(f"s_add_u32 s{SDST}, s{P_WS}, s9")
    p(f"s_addc_u32 s{SDST+1}, s{P_WS+1}, 0")
    p(f"s_mov_b32 s{SDST+2}, {hex(W1P_BYTES)}")
    p(f"s_mov_b32 s{SDST+3}, 0x20000")
    t = [76, 77, 78, 79]
    for m in range(4):
        ST, DST = 14, 80 + m
        p(f"s_add_u32 s{ST}, s{S_W}, {4*m}")
        p(f"s_cmp_ge_u32 s{ST}, 7")
        p(f"s_cselect_b32 s{t[0]}, 1, 0")
        p(f"s_mul_i32 s{t[1]}, s{t[0]}, 7")
        p(f"s_sub_u32 s{t[1]}, s{ST}, s{t[1]}")
        p(f"s_mul_i32 s{DST}, s{S_J}, 7")
        p(f"s_add_u32 s{DST}, s{DST}, s{t[1]}")
        p(f"s_lshl_b32 s{DST}, s{DST}, 1")
        p(f"s_add_u32 s{DST}, s{DST}, s{t[0]}")
        p(f"s_mul_i32 s{DST}, s{DST}, 14")
        p(f"s_add_u32 s{DST}, s{DST}, s{S_R}")
        p(f"s_and_b32 s9, s{ST}, 1")
        p(f"s_lshr_b32 s10, s{ST}, 1")
        p(f"s_and_b32 s11, s{S_R}, 1")
        p("s_mul_i32 s11, s11, 7")
        p("s_add_u32 s11, s11, s10")
        p(f"s_lshr_b32 s15, s{S_R}, 1")
        p("s_mul_i32 s15, s15, 7")
        p(f"s_mul_i32 s{t[0]}, s{S_J}, 196")
        p(f"s_add_u32 s15, s15, s{t[0]}")
        p(f"s_and_b32 s{t[0]}, s11, 3")
        p(f"s_mul_i32 s{t[0]}, s{t[0]}, 49")
        p(f"s_lshr_b32 s{t[1]}, s11, 2")
        p(f"s_lshl_b32 s{t[1]}, s{t[1]}, 1")
        p(f"s_add_u32 s{t[1]}, s{t[1]}, s9")
        p(f"s_add_u32 s{t[0]}, s{t[0]}, s{t[1]}")
        p(f"s_lshl_b32 s10, s10, 6")
        p(f"s_lshl_b32 s{t[1]}, s9, 3")
        p(f"s_add_u32 s{t[1]}, s{t[1]}, s10")
        p(f"s_sub_u32 s{t[2]}, s11, 12")
        p(f"s_lshl_b32 s{t[2]}, s{t[2]}, 1")
        p(f"s_add_u32 s{t[2]}, s{t[2]}, s9")
        p(f"s_mul_i32 s{t[2]}, s{t[2]}, 49")
        p(f"s_add_u32 s{t[2]}, s{t[2]}, 6")
        p(f"s_lshl_b32 s{t[3]}, s9, 5")
        p(f"s_add_u32 s{t[3]}, s{t[3]}, s10")
        p("s_cmp_lt_u32 s11, 12")
        p(f"s_cselect_b32 s{t[0]}, s{t[0]}, s{t[2]}")
        p(f"s_cselect_b32 s{t[1]}, s{t[1]}, s{t[3]}")
        p(f"s_cselect_b32 s{t[2]}, 4, 3")
        p(f"s_add_u32 s{t[0]}, s{t[0]}, s15")
        p(f"s_lshl_b32 s{t[3]}, s{ST}, 5")
        p(f"s_cmp_eq_u32 s{S_ISW2}, 1")
        p(f"s_cselect_b32 s{DST}, s{t[0]}, s{DST}")
        p(f"s_cselect_b32 s{t[1]}, s{t[1]}, s{t[3]}")
        p(f"s_cselect_b32 s{t[2]}, s{t[2]}, 3")
        p(f"s_lshl_b32 s{DST}, s{DST}, 10")
        p(f"v_lshlrev_b32 v{144+m}, s{t[2]}, v15")
        p(f"v_add3_u32 v{144+m}, v{144+m}, v47, s{t[1]}")
    mlp_setup(p)
    if 'pp' in EXP: stamp(p, 30)
    p.wait_vm("w")
    if 'pp' in EXP: stamp(p, 31)
    early_loads(p)
    p("v_lshlrev_b32 v14, 4, v0")
    for m in range(3):
        p.lg(f"ds_write_b128 v14, {v(48+4*m,4)} offset:{LB+4096*m}")
    lab = p.uid("skip3")
    p(f"s_cmp_ge_u32 s{S_W}, 2")
    p(f"s_cbranch_scc1 {lab}")
    p(f"ds_write_b128 v14, {v(60,4)} offset:{LB+4096*3}")
    p.label(lab)
    p.wait_lg()
    p("s_barrier")
    for m in range(4):
        p.lg(f"ds_read_b64_tr_b16 {v(48+4*m,2)}, v{144+m} offset:{LB}", f"t{m}")
        p.lg(f"ds_read_b64_tr_b16 {v(48+4*m+2,2)}, v{144+m} offset:{LB+4*448}", f"t{m}")
    for m in range(3):
        p.wait_lg(f"t{m}")
        p.vm(f"buffer_store_dwordx4 {v(48+4*m,4)}, v46, {sr(SDST)}, s{80+m} offen sc1", "wst")
    lab = p.uid("pk")
    p.wait_lg()
    p(f"s_cmp_ge_u32 s{S_W}, 2")
    p(f"s_cbranch_scc1 {lab}")
    p(f"buffer_store_dwordx4 {v(60,4)}, v46, {sr(SDST)}, s83 offen sc1")
    p.label(lab)
    p.srd(SF_, P_DBG, 0, 256)
    p("v_mov_b32 v47, 0")
    p.vm(f"buffer_load_dwordx2 v[150:151], v47, {sr(SF_)}, 0 offen sc1", "nonce")
    if 'pp' in EXP: stamp(p, 32)
    KF, SF, VF, AC, OP = 64, 92, 108, 124, 140
    p("v_mov_b32 v15, 0xffff0000")
    for i in range(7):
        for d in range(2):
            p(f"v_lshlrev_b32 v{KF+4*i+2*d}, 16, v{16+2*i+d}")
            p(f"v_and_b32 v{KF+4*i+2*d+1}, v15, v{16+2*i+d}")
    for e in range(4):
        for j in range(4):
            src = 38 + 2*e + (j >> 1)
            if j & 1: p(f"v_and_b32 v{SF+4*j+e}, v15, v{src}")
            else: p(f"v_lshlrev_b32 v{SF+4*j+e}, 16, v{src}")
    for i in range(4):
        for d in range(2):
            p(f"v_lshlrev_b32 v{VF+4*i+2*d}, 16, v{30+2*i+d}")
            p(f"v_and_b32 v{VF+4*i+2*d+1}, v15, v{30+2*i+d}")
    for j in range(4):
        for r in range(4):
            for e in (0, 2):
                kf = v(KF+4*(r+3-j)+e, 2); sf = v(SF+4*j+e, 2); ac = v(AC+4*r+e, 2)
                if j == 0: p(f"v_pk_mul_f32 {ac}, {kf}, {sf}")
                else: p(f"v_pk_fma_f32 {ac}, {kf}, {sf}, {ac}")
    for r in range(4):
        for e in (0, 2):
            p(f"v_pk_mul_f32 {v(AC+4*r+e,2)}, {v(AC+4*r+e,2)}, {v(VF+4*r+e,2)}")
    for e in range(4):
        p(f"v_cvt_pk_bf16_f32 v{OP+2*e}, v{AC+e}, v{AC+4+e}")
        p(f"v_cvt_pk_bf16_f32 v{OP+2*e+1}, v{AC+8+e}, v{AC+12+e}")
    if 'pp' in EXP: stamp(p, 33)
    p("v_xor_b32 v13, v1, v2")
    p("v_lshlrev_b32 v13, 3, v13")
    p("v_lshl_add_u32 v13, v1, 9, v13")
    for e in range(4):
        p.lg(f"ds_write_b64 v13, {v(OP+2*e,2)} offset:{LA+128*e}")
    p.wait_lg()
    p("s_barrier")
    p("v_lshrrev_b32 v1, 3, v0")
    p("v_and_b32 v2, 7, v0")
    p("v_lshlrev_b32 v3, 1, v2")
    p(f"s_lshl_b32 s9, s{S_CG}, 6")
    p(f"s_lshl_b32 s10, s{S_RBK}, 7")
    for pi in range(2):
        p(f"v_add_u32 v4, {32*pi}, v1")
        p("v_lshrrev_b32 v5, 2, v4")
        p("v_xor_b32 v6, v3, v5")
        p("v_xor_b32 v7, 1, v6")
        p("v_lshlrev_b32 v8, 7, v4")
        p("v_lshl_add_u32 v6, v6, 3, v8")
        p("v_lshl_add_u32 v7, v7, 3, v8")
        p.lg(f"ds_read_b64 {v(16+4*pi,2)}, v6 offset:{LA}", f"a{pi}")
        p.lg(f"ds_read_b64 {v(18+4*pi,2)}, v7 offset:{LA}", f"a{pi}")
        p("v_add_u32 v8, s9, v4")
        p("v_lshlrev_b32 v8, 12, v8")
        p("v_lshl_add_u32 v8, v2, 4, v8")
        p(f"v_add_u32 v{24+pi}, s10, v8")
    for pi in range(2):
        p.wait_lg(f"a{pi}")
        p.vm(f"buffer_store_dwordx4 {v(16+4*pi,4)}, v{24+pi}, {sr(SKVT)}, 0 offen sc1", "kvst")

HW = 160
def code_prefetch(p):
    if 'nocode' in EXP: return
    p("s_getpc_b64 s[90:91]")
    lab = p.uid("K_pc")
    p.label(lab)
    p("v_lshlrev_b32 v180, 7, v0")
    p(f"v_cmp_gt_u32 vcc, (K_end - {lab}), v180")
    p("s_and_saveexec_b64 s[10:11], vcc")
    p.vm("global_load_dword v255, v180, s[90:91]", "code")
    p("s_mov_b64 exec, s[10:11]")

def q_loads(p):
    p.srd(SF_, P_Q, 0, MAT)
    p.vm(f"buffer_load_dwordx4 {v(XP,4)}, v{OFFA}, {sr(SF_)}, 0 offen", "q")
    p.vm(f"buffer_load_dwordx4 {v(XP+4,4)}, v{OFFB}, {sr(SF_)}, 0 offen", "q")

def early_loads(p):
    SH = SF_
    p("s_lshl_b32 s9, s2, 13")
    p(f"s_add_u32 s{SH}, s{P_H}, s9"); p(f"s_addc_u32 s{SH+1}, s{P_H+1}, 0")
    p(f"s_mov_b32 s{SH+2}, 8192"); p(f"s_mov_b32 s{SH+3}, 0x20000")
    p("v_sub_u32 v176, 255, v0")
    p("v_lshlrev_b32 v176, 4, v176")
    p("v_subrev_u32 v177, 16, v176")
    for ch in range(2):
        p(f"v_add_u32 v178, {4096*ch}, v177")
        p(f"v_add_u32 v179, {4096*ch}, v176")
        p.vm(f"buffer_load_dwordx4 {v(HW+8*ch,4)}, v178, {sr(SH)}, 0 offen", "h")
        p.vm(f"buffer_load_dwordx4 {v(HW+4+8*ch,4)}, v179, {sr(SH)}, 0 offen", "h")
    if 'qlate' not in EXP: q_loads(p)

def hbuild(p):
    p("v_mov_b32 v5, 0xffff")
    p("v_cmp_ne_u32 vcc, 255, v0")
    p("v_lshlrev_b32 v6, 4, v0")
    E1, E2, O1, O2 = 32, 40, 46, 54
    for ch in range(2):
        W = HW + 8 * ch
        for d in range(4):
            p(f"v_cndmask_b32 v{W+d}, 0, v{W+d}, vcc")
        def o(dst, sidx):
            if sidx % 2 == 0:
                pz = (14 - sidx) // 2
                p(f"v_alignbit_b32 v{dst}, v{W+pz}, v{W+pz}, 16")
            else:
                p(f"v_bfi_b32 v{dst}, v5, v{W+(15-sidx)//2}, v{W+(13-sidx)//2}")
        for n in range(7): o(E1 + n, 2 * n)
        for n in range(6): o(E2 + n, 2 * n + 2)
        for n in range(7): o(O1 + n, 2 * n + 1)
        for n in range(6): o(O2 + n, 2 * n + 3)
        src = {0: E1, 4: E1 + 2, 2: E2, 6: E2 + 2, 1: O1, 5: O1 + 2, 3: O2, 7: O2 + 2}
        for c in range(8):
            p.lg(f"ds_write_b128 v6, {v(src[c],4)} offset:{ch*HC_CH + c*HC_COPY}")
        p("s_nop 1")
    for r in range(4): p(f"v_mov_b32 v{60+r}, 0")
    p("v_and_b32 v7, 15, v0")
    p(f"v_mul_u32_u24 v7, {HC_COPY}, v7")
    p("v_add_u32 v7, 4096, v7")
    p("v_and_b32 v8, 31, v0")
    p("v_lshlrev_b32 v8, 4, v8")
    p("v_bfe_u32 v9, v0, 5, 1")
    p(f"v_mul_u32_u24 v9, {U_CH}, v9")
    p(f"s_mov_b32 s9, {L_U}")
    p("v_add3_u32 v8, v8, v9, s9")
    p.lg(f"ds_write_b128 v7, {v(60,4)}")
    p.lg(f"ds_write_b128 v8, {v(60,4)}")

_w2 = [x for x in EXP if x.startswith('w2_')]
W20, W2A = (int(_w2[0].split('_')[1]), int(_w2[0].split('_')[2])) if _w2 else (12, 49)
W2B = 49
def w2_items(SW2):
    G = []
    for f in range(49):
        it = []
        base = f - f % 4
        if f % 4 == 0 or f in (W20, W2A, W2B): it.append((f"s_mov_b32 s15, {1024*base}", "", None))
        it.append((f"buffer_load_dwordx4 {a(4*f,4)}, v{V_L16}, {sr(SW2)}, s15 offen offset:{1024*(f%4)} {'sc1 nt' if 'wnt2' in EXP else 'sc1'}", "vm", "w2"))
        G.append(it)
    return G

def load_w2(p, SW2):
    for f in range(49):
        if f % 4 == 0: p(f"s_mov_b32 s9, {1024*f}")
        p.vm(f"buffer_load_dwordx4 {a(4*f,4)}, v{V_L16}, {sr(SW2)}, s9 offen offset:{1024*(f%4)} sc1", "w2")

def conv_main(p):
    ACC, FA, FB = 72, 96, 16
    fb = lambda buf, m: (16 + 28 * buf + 4 * m) if m < 7 else (160 + 4 * buf)
    p("v_and_b32 v1, 63, v0")
    p("v_and_b32 v2, 15, v1")
    p("v_lshrrev_b32 v3, 4, v1")
    p("v_and_b32 v4, 7, v2")
    p("v_sub_u32 v4, 7, v4")
    p(f"v_mul_u32_u24 v4, {HC_COPY}, v4")
    p("v_lshrrev_b32 v5, 3, v2")
    p("v_sub_u32 v5, v3, v5")
    p("v_add_u32 v5, 1, v5")
    p("v_lshl_add_u32 v4, v5, 4, v4")
    p(f"s_mul_i32 s9, s{S_B}, {HC_CH}")
    p("v_add_u32 v12, s9, v4")
    p(f"s_mul_i32 s9, s{S_B}, {U_CH}")
    p(f"s_add_u32 s9, s9, {L_U + 512 - 32 - 64*7}")
    p("v_lshlrev_b32 v5, 5, v2")
    p("v_lshl_add_u32 v5, v3, 4, v5")
    p("v_add_u32 v13, s9, v5")
    set1 = p.uid("cset1"); join = p.uid("cjoin")
    p(f"s_cmp_eq_u32 s{S_A}, 1")
    p(f"s_cbranch_scc1 {set1}")
    for st, tiles in ((0, (0, 3, 4, 7)), (1, (1, 2, 5, 6))):
        if st == 1: p.label(set1)
        mx = max(tiles)
        def reads(rho, buf):
            L = []
            for m in range(mx + 1):
                L.append((f"ds_read_b128 {v(FA+32*buf+4*m,4)}, v12 offset:{512*(7-m)+64*(7-rho)}", "lg", f"r{rho}_{m}"))
                L.append((f"ds_read_b128 {v(fb(buf,m),4)}, v13 offset:{512*m+64*(7-rho)}", "lg", f"r{rho}_{m}"))
            return L
        saved_vm = list(p.vmq)
        w2 = w2_items(SE)[W20:W2A] if 'now2' not in EXP else []
        for it in reads(0, 0): emit(p, it)
        first = set()
        for rho in range(8):
            buf = rho & 1
            nxt = reads(rho + 1, buf ^ 1) if rho < 7 else []
            mf = sorted([(max(mu, nt - mu), ti, nt, mu) for ti, nt in enumerate(tiles) for mu in range(nt + 1)])
            M = []; seen = -1
            for (mm, ti, nt, mu) in mf:
                c = v(ACC+4*ti,4) if ti in first else "0"
                first.add(ti)
                t = f"v_mfma_f32_16x16x32_bf16 {v(ACC+4*ti,4)}, {v(FA+32*buf+4*mu,4)}, {v(fb(buf,nt-mu),4)}, {c}"
                w = []
                if mm > seen: w.append((None, "wlg", f"r{rho}_{mm}")); seen = mm
                M.append((t, w))
            N = {}
            for i, it in enumerate(nxt): N.setdefault(i, []).append(it)
            slots = [3, 6, 9, 12, 15, 17]
            per = -(-(W2A - W20) // 7) if 'w2early' not in EXP else 6
            slots = {6: slots, 5: [3, 7, 10, 13, 16], 4: [4, 8, 12, 16], 3: [5, 10, 15], 2: [6, 13], 1: [9]}[per]
            for q_ in range(per if rho < 7 else 0):
                if w2: N.setdefault(slots[q_], []).extend(w2.pop(0))
            schedule(p, M, [], N)
        assert not w2
        p.vmq = saved_vm + ["w2"]
        p("s_barrier")
        p(f"s_mul_i32 s9, s{S_B}, {U_CH}")
        p(f"s_add_u32 s9, s9, {L_U + 512}")
        p("v_lshlrev_b32 v5, 5, v2")
        p("v_lshl_add_u32 v5, v3, 3, v5")
        p("v_add_u32 v6, s9, v5")
        p(f"s_mul_i32 s9, s{S_B}, {YS_CH}")
        p("v_add_u32 v7, s9, v5")
        for ti, nt in enumerate(tiles):
            p.lg(f"ds_read_b64 {v(FA+2*ti,2)}, v6 offset:{512*nt}", f"u{ti}")
        p("v_mov_b32 v8, 0xffff0000")
        for ti, nt in enumerate(tiles):
            p.wait_lg(f"u{ti}")
            u = FA + 2 * ti; t = 16 + 4 * ti
            p(f"v_lshlrev_b32 v{t}, 16, v{u}")
            p(f"v_and_b32 v{t+1}, v8, v{u}")
            p(f"v_lshlrev_b32 v{t+2}, 16, v{u+1}")
            p(f"v_and_b32 v{t+3}, v8, v{u+1}")
            for r in range(4):
                p(f"v_fma_f32 v{t+r}, v{t+r}, s14, v{ACC+4*ti+r}")
            p(f"v_cvt_pk_bf16_f32 v{t}, v{t}, v{t+1}")
            p(f"v_cvt_pk_bf16_f32 v{t+1}, v{t+2}, v{t+3}")
            p.lg(f"ds_write_b64 v7, {v(t,2)} offset:{512*nt}")
        p.wait_lg()
        if st == 0: p(f"s_branch {join}")
    p.label(join)
    p("s_barrier")

def conv_out(p, SY):
    p("v_and_b32 v1, 3, v0")
    p("v_lshrrev_b32 v2, 2, v0")
    p("v_lshrrev_b32 v3, 1, v1")
    p("v_and_b32 v4, 1, v1")
    p(f"v_mul_u32_u24 v3, {YS_CH}, v3")
    p("v_lshl_add_u32 v3, v4, 4, v3")
    p("v_lshl_add_u32 v3, v2, 5, v3")
    p.lg("ds_read_b128 v[16:19], v3", "y0")
    p.lg(f"ds_read_b128 v[20:23], v3 offset:{64*32}", "y1")
    p(f"v_mul_u32_u24 v5, {D*32}, v2")
    p("v_lshl_add_u32 v5, v1, 4, v5")
    p("s_lshl_b32 s9, s2, 6")
    p("v_add_u32 v5, s9, v5")
    p(f"v_add_u32 v6, {64*D*32}, v5")
    p.wait_lg("y0")
    p.vm(f"buffer_store_dwordx4 v[16:19], v5, {sr(SY)}, 0 offen sc1", "yst")
    p.wait_lg("y1")
    p.vm(f"buffer_store_dwordx4 v[20:23], v6, {sr(SY)}, 0 offen sc1", "yst")

X, T, PK, TMP = 16, 32, 64, 72
YT = 96
def row_setup(p):
    p("v_and_b32 v181, 31, v0")
    p("v_lshrrev_b32 v182, 5, v0")
    p(f"v_cmp_gt_u32 {ACT}, 28, v181")
    p(f"v_mul_u32_u24 v183, {ROWB}, v182")
    p("v_lshl_add_u32 v183, v181, 4, v183")
    p(f"s_mul_i32 s9, s{S_RB}, {8*ROWB}")
    p("v_add_u32 v183, s9, v183")
    p(f"v_cndmask_b32 v{OFFA}, -1, v183, {ACT}")
    p("v_add_u32 v183, 448, v183")
    p(f"v_cndmask_b32 v{OFFB}, -1, v183, {ACT}")

def unpack(p, dst, src, n):
    for i in range(n):
        p(f"v_lshlrev_b32 v{dst+2*i}, 16, v{src+i}")
        p(f"v_and_b32 v{dst+2*i+1}, v7, v{src+i}")
def pack(p, dst, src, n):
    for i in range(n):
        p(f"v_cvt_pk_bf16_f32 v{dst+i}, v{src+2*i}, v{src+2*i+1}")
def allreduce32(p, r, t):
    for m in ("quad_perm:[1,0,3,2]", "quad_perm:[2,3,0,1]", "row_half_mirror", "row_mirror"):
        p(f"v_add_f32_dpp v{r}, v{r}, v{r} {m} row_mask:0xf bank_mask:0xf")
    p(f"v_mov_b32 v{t}, v{r}")
    p(f"v_permlane16_swap_b32 v{r}, v{t}")
    p(f"v_add_f32 v{r}, v{r}, v{t}")
def sum16(p, dst, src):
    p(f"v_pk_add_f32 {v(TMP,2)}, {v(src,2)}, {v(src+2,2)}")
    p(f"v_pk_add_f32 {v(TMP+2,2)}, {v(src+4,2)}, {v(src+6,2)}")
    p(f"v_pk_add_f32 {v(TMP+4,2)}, {v(src+8,2)}, {v(src+10,2)}")
    p(f"v_pk_add_f32 {v(TMP+6,2)}, {v(src+12,2)}, {v(src+14,2)}")
    p(f"v_pk_add_f32 {v(TMP,2)}, {v(TMP,2)}, {v(TMP+2,2)}")
    p(f"v_pk_add_f32 {v(TMP+4,2)}, {v(TMP+4,2)}, {v(TMP+6,2)}")
    p(f"v_pk_add_f32 {v(TMP,2)}, {v(TMP,2)}, {v(TMP+4,2)}")
    p(f"v_add_f32 v{dst}, v{TMP}, v{TMP+1}")
    p(f"v_cndmask_b32 v{dst}, 0, v{dst}, {ACT}")
def layernorm(p, src, dst, scale=None):
    M, V_ = TMP + 8, TMP + 10
    sum16(p, M, src)
    allreduce32(p, M, TMP + 9)
    p(f"v_mul_f32 v{M}, {fbits(-1.0/D)}, v{M}")
    p(f"v_mov_b32 v{M+1}, v{M}")
    for i in range(0, 16, 2):
        p(f"v_pk_add_f32 {v(dst+i,2)}, {v(src+i,2)}, {v(M,2)}")
    p(f"v_pk_mul_f32 {v(TMP,2)}, {v(dst,2)}, {v(dst,2)}")
    p(f"v_pk_mul_f32 {v(TMP+2,2)}, {v(dst+2,2)}, {v(dst+2,2)}")
    for i in range(4, 16, 4):
        p(f"v_pk_fma_f32 {v(TMP,2)}, {v(dst+i,2)}, {v(dst+i,2)}, {v(TMP,2)}")
        p(f"v_pk_fma_f32 {v(TMP+2,2)}, {v(dst+i+2,2)}, {v(dst+i+2,2)}, {v(TMP+2,2)}")
    p(f"v_pk_add_f32 {v(TMP,2)}, {v(TMP,2)}, {v(TMP+2,2)}")
    p(f"v_add_f32 v{V_}, v{TMP}, v{TMP+1}")
    p(f"v_cndmask_b32 v{V_}, 0, v{V_}, {ACT}")
    allreduce32(p, V_, TMP + 11)
    p(f"v_mov_b32 v{V_+1}, {fbits(1e-5)}")
    p(f"v_fmac_f32 v{V_+1}, {fbits(1.0/D)}, v{V_}")
    p(f"v_rsq_f32 v{V_}, v{V_+1}")
    if scale is not None: p(f"v_mul_f32 v{V_}, {fbits(scale)}, v{V_}")
    else: p("s_nop 0")
    p(f"v_mov_b32 v{V_+1}, v{V_}")
    for i in range(0, 16, 2):
        p(f"v_pk_mul_f32 {v(dst+i,2)}, {v(dst+i,2)}, {v(V_,2)}")

def y_load(p, SY):
    p(f"s_lshr_b32 s9, s{S_RB}, 1")
    p(f"s_mul_i32 s9, s9, {D*32}")
    p(f"s_and_b32 s10, s{S_RB}, 1")
    p("s_lshl_b32 s10, s10, 4")
    p("s_add_u32 s9, s9, s10")
    p("v_lshlrev_b32 v3, 5, v0")
    p("v_add_u32 v3, s9, v3")
    p(f"v_add_u32 v4, {256*32}, v3")
    p("v_cmp_gt_u32 vcc, 192, v0")
    p("v_cndmask_b32 v4, -1, v4, vcc")
    p.vm(f"buffer_load_dwordx4 {v(YT,4)}, v3, {sr(SY)}, 0 offen sc1", "y")
    p.vm(f"buffer_load_dwordx4 {v(YT+4,4)}, v4, {sr(SY)}, 0 offen sc1", "y")

def y_transpose(p):
    p("v_lshlrev_b32 v3, 2, v0")
    p.wait_vm("y")
    for wq in range(4):
        p.lg(f"ds_write_b32 v3, v{YT+wq} offset:{LY+2048*wq}")
        p.lg(f"ds_write_b32 v3, v{YT+4+wq} offset:{LY+2048*wq+1024}")
    p.wait_lg()
    p("s_barrier")
    p("v_and_b32 v1, 31, v0")
    p("v_lshrrev_b32 v4, 6, v0")
    p("v_lshlrev_b32 v4, 11, v4")
    p("v_lshl_add_u32 v4, v1, 5, v4")
    for k in range(2):
        p.lg(f"ds_read_b128 {v(YT+8*k,4)}, v4 offset:{LY+896*k}")
        p.lg(f"ds_read_b128 {v(YT+8*k+4,4)}, v4 offset:{LY+896*k+16}")
    p("v_bfe_u32 v5, v0, 5, 1")
    p("v_mov_b32 v6, 0x01000c0c")
    p("v_mov_b32 v3, 0x03020c0c")
    p("v_cmp_eq_u32 vcc, 1, v5")
    p("v_cndmask_b32 v6, v6, v3, vcc")
    p.wait_lg()
    for i in range(16):
        p(f"v_perm_b32 v{YV+i}, v{YT+i}, v{YT+i}, v6")

def poll_s2(p):
    lab = p.uid("s2"); done = p.uid("s2d"); skip = p.uid("s2s")
    p("v_and_b32 v1, 63, v0")
    p("s_and_b32 s9, s2, 7"); p("s_lshl_b32 s9, s9, 11"); p(f"s_add_u32 s9, s9, {FL_S2R}")
    for i in range(4):
        p(f"v_lshl_add_u32 v{12+i}, v1, 3, s9")
        if i: p(f"v_add_u32 v{12+i}, {512*i}, v{12+i}")
    p("v_and_b32 v48, 7, v0")
    p(f"s_lshl_b32 s9, s{S_CL}, 6")
    p(f"s_add_u32 s9, s9, {FL_XCC}")
    p("v_lshl_add_u32 v48, v48, 3, s9")
    p(f"s_cmp_eq_u32 s{S_W}, 0")
    p(f"s_cbranch_scc0 {skip}")
    if 's2st' in EXP:
        p("s_waitcnt vmcnt(0)"); stamp(p, 41)
    p(f"s_mov_b32 s{S_T}, 0")
    p.label(lab)
    masks = [64, 64, 64, 32]
    for i in range(4):
        setexec(p, masks[i])
        p(f"buffer_load_dwordx2 {v(2+2*i,2)}, v{12+i}, {sr(S_FL)}, 0 offen sc1")
    p("s_mov_b64 exec, -1")
    p(f"buffer_load_dwordx2 v[10:11], v48, {sr(S_FL)}, 0 offen sc1")
    p("s_waitcnt vmcnt(0)")
    p(f"v_subrev_u32 v10, s{S_N}, v10")
    p(f"v_cmp_eq_u32 vcc, s{S_N+1}, v11")
    p("v_cmp_gt_u32 s[10:11], 16, v10")
    p("s_nop 4")
    p("s_and_b64 vcc, vcc, s[10:11]")
    p("s_cmp_eq_u64 vcc, exec")
    p("s_cselect_b32 s9, 1, 0")
    for i in range(4):
        setexec(p, masks[i])
        p(f"v_cmp_eq_u64 vcc, {s(S_N,2)}, {v(2+2*i,2)}")
        p("s_nop 4")
        p("s_cmp_eq_u64 vcc, exec")
        p("s_cselect_b32 s9, s9, 0")
    p("s_mov_b64 exec, -1")
    p("s_cmp_eq_u32 s9, 1")
    p(f"s_cbranch_scc1 {done}")
    p(f"s_add_u32 s{S_T}, s{S_T}, 1")
    p(f"s_cmp_lt_u32 s{S_T}, {hex(SPIN_MAX)}")
    p(f"s_cbranch_scc0 {done}")
    p("s_sleep 1")
    p(f"s_branch {lab}")
    p.label(done)
    if 's2st' in EXP:
        p(f"v_writelane_b32 v253, s{S_T}, 42"); p(f"v_writelane_b32 v252, s{S_T}, 43"); p(f"v_writelane_b32 v253, s{S_T}, 43")
    p("s_getreg_b32 s9, hwreg(HW_REG_XCC_ID, 0, 4)")
    p("v_cmp_eq_u32 vcc, s9, v10")
    p("s_nop 4")
    p("s_cmp_eq_u64 vcc, exec")
    p("s_cselect_b32 s9, 1, 0")
    if FORCE_SLOW: p("s_mov_b32 s9, 0")
    p("v_mov_b32 v2, s9")
    p(f"v_mov_b32 v3, {L_FASTW}")
    p("ds_write_b32 v3, v2")
    p("s_waitcnt lgkmcnt(0)")
    p.label(skip)
    p("s_barrier")
    p.vmq = []; p.lgq = []
    p(f"v_mov_b32 v3, {L_FASTW}")
    p.lg("ds_read_b32 v49, v3", "fw")

def fast_get(p):
    p.wait_lg("fw")
    p(f"v_readfirstlane_b32 s{S_FAST}, v49")

PB_ = 96
def partials_prelude(p):
    p("v_and_b32 v1, 31, v0")
    p("v_lshrrev_b32 v2, 5, v0")
    p(f"s_mul_i32 s9, s{S_MEM}, {8*ROWB}")
    p(f"v_mul_u32_u24 v3, {ROWB}, v2")
    p("v_lshl_add_u32 v3, v1, 4, v3")
    if 'noown' not in EXP:
        p(f"v_mul_u32_u24 v11, {OWN_STR if 'norot' not in EXP else ROWB}, v2")
        p("v_lshl_add_u32 v11, v1, 4, v11")
        p(f"v_add_u32 v11, {L_OWN}, v11")
        for i in range(7):
            p(f"s_add_u32 s{SA+i}, s{S_MEM}, {1+i}")
            p(f"s_and_b32 s{SA+i}, s{SA+i}, 7")
            p(f"s_mul_i32 s{SA+i}, s{SA+i}, {64*ROWB}")
    p("v_add_u32 v3, s9, v3")
    p(f"v_cndmask_b32 v12, -1, v3, {ACT}")
    p("v_add_u32 v3, 448, v3")
    p(f"v_cndmask_b32 v13, -1, v3, {ACT}")
    if 'noown' not in EXP: p("s_waitcnt lgkmcnt(0)"); p.lgq = []

def add_partials(p):
    own = 'noown' not in EXP
    for j in range(7 if own else 8):
        if own: so = f"s{SA+j}"
        else:
            so = "s9"
            if j % 4 == 0: p(f"s_mov_b32 s9, {j*64*ROWB}")
            else: p(f"s_add_u32 s9, s9, {64*ROWB}")
        p.vm(f"buffer_load_dwordx4 {v(PB_+8*j,4)}, v12, {sr(S_PR)}, {so} offen {'sc1 nt' if 'pldnt' in EXP else 'sc1'}", f"p{j}")
        p.vm(f"buffer_load_dwordx4 {v(PB_+8*j+4,4)}, v13, {sr(S_PR)}, {so} offen {'sc1 nt' if 'pldnt' in EXP else 'sc1'}", f"p{j}")
    if own:
        p.lg(f"ds_read_b128 {v(PB_+56,4)}, v11", "own")
        p.lg(f"ds_read_b128 {v(PB_+60,4)}, v11 offset:448", "own")
    lab = p.uid("pf2")
    p(f"s_cmp_eq_u32 s{S_LAY}, 0"); p(f"s_cbranch_scc0 {lab}")
    for g_ in dma_w1_items(0 if 'pfb' in EXP else 2, "pf2"):
        for it in g_: p(it[0])
    p.label(lab)
    p("v_mov_b32 v7, 0xffff0000")
    p("v_mov_b32 v14, 0x00003f80")
    p("v_mov_b32 v15, 0x3f800000")
    unpack(p, X, XP, 8)
    for i in range(16): p(f"v_mov_b32 v{T+i}, 0")
    p(f"v_mov_b32 v{TMP}, {fbits(LN2)}"); p(f"v_mov_b32 v{TMP+1}, {fbits(LN2)}")
    for j in ([7] + list(range(7)) if own else range(8)):
        if own and j == 7: p.wait_lg("own")
        else: p.wait_vm(f"p{j}")
        for i in range(8):
            p(f"v_dot2c_f32_bf16 v{T+2*i}, v{PB_+8*j+i}, v14")
            p(f"v_dot2c_f32_bf16 v{T+2*i+1}, v{PB_+8*j+i}, v15")
    for i in range(0, 16, 2):
        p(f"v_pk_fma_f32 {v(X+i,2)}, {v(T+i,2)}, {v(TMP,2)}, {v(X+i,2)}")

def xh(phi):
    return a(196 + 4 * phi, 4) if phi < 15 else v(148 + 4 * (phi - 15), 4)

def mlp_setup(p):
    row_setup(p)
    p("v_and_b32 v181, 63, v0")
    p("v_and_b32 v182, 15, v181")
    p("v_lshrrev_b32 v183, 4, v181")
    p(f"s_mul_i32 s9, s{S_A}, 14336")
    p(f"s_add_u32 s9, s9, {L_RING}")
    p(f"v_lshl_add_u32 v{V_A}, v181, 4, s9")
    p(f"v_add_u32 v{V_A2}, {2*CHUNK}, v{V_A}")
    p(f"s_lshl_b32 s9, s{S_B}, 5")
    p("v_add_u32 v184, s9, v182")
    p(f"v_mul_u32_u24 v184, {SH_}, v184")
    p("v_bfe_u32 v185, v182, 1, 2")
    p("v_lshrrev_b32 v186, 1, v183")
    p("v_xor_b32 v186, v186, v185")
    p("v_lshl_add_u32 v184, v186, 4, v184")
    p("v_and_b32 v186, 1, v183")
    p("v_lshl_add_u32 v184, v186, 3, v184")
    p("v_xor_b32 v186, 32, v184")
    p(f"s_cmp_eq_u32 s{S_A}, 1")
    p("s_cselect_b64 vcc, -1, 0")
    p("v_add_u32 v187, 192, v186")
    p(f"v_cndmask_b32 v{V_HW}, v184, v187, vcc")
    p("v_add_u32 v187, 256, v184")
    p(f"v_cndmask_b32 v{V_HW1}, v186, v187, vcc")
    p(f"v_mul_u32_u24 v184, {SH_}, v182")
    p("v_xor_b32 v185, v185, v183")
    p(f"v_lshl_add_u32 v{V_HR}, v185, 4, v184")
    p(f"v_subrev_u32 v{V_A3}, {L_RING - CHUNK}, v{V_A}")
    p(f"v_lshlrev_b32 v{V_L16}, 4, v181")
    p(f"v_mul_u32_u24 v184, {ROWB}, v182")
    p(f"s_lshl_b32 s9, s{S_W}, 6")
    p("v_lshl_add_u32 v185, v183, 4, v184")
    p(f"v_add_u32 v{V_PO}, s9, v185")
    p(f"s_add_u32 s9, s{S_A}, 12")
    p("s_lshl_b32 s9, s9, 6")
    p(f"s_lshl_b32 s10, s{S_B}, 5")
    p("s_add_u32 s9, s9, s10")
    p("v_lshl_add_u32 v185, v183, 3, v184")
    p(f"v_add_u32 v{V_PO1}, s9, v185")
    x_dma_setup(p)

XD1 = [200, 201, 209, 210, 211, 212, 213, 214]
XD2 = [215, 216, 217, 220, 221, 222]
XR1, XR2 = 108, 112
L_X2 = L_X + 64 * 512
def x_dma_setup(p):
    p("v_and_b32 v181, 63, v0")
    p("v_lshrrev_b32 v182, 5, v181")
    p("v_and_b32 v183, 31, v181")
    for i in range(8):
        p(f"v_add_u32 v184, {2*i}, v182")
        p("v_xor_b32 v185, v183, v184")
        p(f"v_mul_u32_u24 v184, {ROWB}, v184")
        p(f"v_lshl_add_u32 v{XD1[i]}, v185, 4, v184")
    for i in range(6):
        p(f"v_add_u32 v184, {64*i}, v181")
        p("v_mul_u32_u24 v185, 2731, v184")
        p("v_lshrrev_b32 v185, 16, v185")
        p("v_mul_u32_u24 v186, 24, v185")
        p("v_sub_u32 v186, v184, v186")
        p("v_and_b32 v184, 6, v185")
        p("v_xor_b32 v186, v186, v184")
        p(f"v_mul_u32_u24 v185, {ROWB}, v185")
        p("v_lshl_add_u32 v185, v186, 4, v185")
        p(f"v_add_u32 v{XD2[i]}, 512, v185")

def x_read_setup(p):
    p("v_and_b32 v1, 63, v0")
    p("v_and_b32 v2, 15, v1")
    p("v_lshrrev_b32 v3, 4, v1")
    p(f"s_lshl_b32 s9, s{S_B}, 5")
    p("v_add_u32 v4, s9, v2")
    p("v_and_b32 v5, 3, v2")
    p("v_xor_b32 v5, v5, v3")
    p("v_lshlrev_b32 v5, 4, v5")
    p("v_lshl_add_u32 v5, v4, 9, v5")
    p("v_lshrrev_b32 v6, 2, v2")
    for r in range(4):
        p(f"v_xor_b32 v8, {r}, v6")
        p(f"v_lshl_add_u32 v{XR1+r}, v8, 6, v5")
    p("v_and_b32 v5, 2, v2")
    p("v_xor_b32 v5, v5, v3")
    p("v_lshlrev_b32 v5, 4, v5")
    p("v_mul_u32_u24 v4, 384, v4")
    p("v_add_u32 v5, v5, v4")
    p(f"v_add_u32 v5, {L_X2}, v5")
    p("v_and_b32 v6, 1, v6")
    p(f"v_lshl_add_u32 v{XR2}, v6, 6, v5")
    p("v_xor_b32 v6, 1, v6")
    p(f"v_lshl_add_u32 v{XR2+1}, v6, 6, v5")

def dma_x(p):
    p(f"s_lshl_b32 s9, s{S_W}, 13")
    p(f"s_mul_i32 s10, s{S_W}, {16*384}")
    for i in range(8):
        p(f"s_add_u32 m0, s9, {L_X + 1024*i}")
        p.vm(f"buffer_load_dwordx4 v{XD1[i]}, {sr(S_X)}, s{S_W14} offen sc1 lds", "x1")
    for i in range(6):
        p(f"s_add_u32 m0, s10, {L_X2 + 1024*i}")
        p.vm(f"buffer_load_dwordx4 v{XD2[i]}, {sr(S_X)}, s{S_W14} offen sc1 lds", "x2")

def dma_w1_items(chunk, tag, g=12):
    G = []
    for i in range(7):
        it = []
        if i in (0, 4):
            o = 4096 if i else 0
            it += [(f"s_add_u32 m0, s{S_W7}, {slot_base(chunk) + o}", "", None),
                   (f"s_add_u32 s{g}, s{S_W7}, {chunk * CHUNK + o}", "", None)]
        it.append((f"buffer_load_dwordx4 v{V_L16}, {sr(S_W1)}, s{g} offen offset:{1024*(i%4)} {'sc1 nt' if 'wnt1' in EXP else 'sc1'} lds", "vm", tag))
        G.append(it)
    return G

def dma_w1(p, chunk, tag):
    p(f"s_mul_i32 s9, s{S_W}, 7168")
    p(f"s_add_u32 s10, s9, {L_RING + (chunk % 3) * CHUNK}")
    p(f"s_add_u32 s9, s9, {chunk * CHUNK}")
    for grp, cnt in ((0, 4), (4, 3)):
        if grp:
            p("s_add_u32 s10, s10, 4096"); p("s_add_u32 s9, s9, 4096")
        p("s_mov_b32 m0, s10")
        for i in range(cnt):
            p.vm(f"buffer_load_dwordx4 v{V_L16}, {sr(S_W1)}, s9 offen offset:{1024*i} sc1 lds", tag)

def cost(t):
    op = t.split()[0]
    if op.startswith(("v_exp", "v_rcp", "v_rsq")): return 8
    if op.startswith("v_"): return 4
    return 0

def emit(p, item):
    t, kind, tag = item
    if kind == "lg": p.lg(t, tag)
    elif kind == "vm": p.vm(t, tag)
    elif kind == "wlg": p.wait_lg(tag)
    elif kind == "wvm": p.wait_vm(tag)
    else: p(t)

def schedule(p, M, V=(), N=None, vstart=0, vend=None):
    N = N or {}
    vend = len(M) if vend is None else vend
    total = sum(cost(x[0]) for x in V)
    done, cum = 0, 0
    for i, m in enumerate(M):
        if isinstance(m, tuple):
            for w in m[1]: emit(p, w)
            m = m[0]
        p(m)
        for it in N.get(i, []): emit(p, it)
        if i >= vstart and done < len(V):
            last = (i >= vend - 1)
            target = total * (i - vstart + 1) / max(1, vend - vstart)
            while done < len(V) and (last or cum + cost(V[done][0]) / 2 <= target):
                cum += cost(V[done][0]); emit(p, V[done]); done += 1
    while done < len(V):
        emit(p, V[done]); done += 1

def interleave(p, M, O, first=0):
    n = len(M) - first
    done = 0
    for i, m in enumerate(M):
        p(m)
        if i >= first:
            want = (len(O) * (i - first + 1) + n - 1) // n
            while done < want:
                t, kind, tag = O[done]; done += 1
                if kind == "lg": p.lg(t, tag)
                elif kind == "vm": p.vm(t, tag)
                else: p(t)

FA, AC1, ST_, HO = 16, 72, 96, 104
def silu_stages(T):
    z = AC1 + 8 * (T % 3); t = ST_
    E = [(f"v_exp_f32_e64 v{t+r}, -v{z+r}", "", None) for r in range(8)]
    A = [(f"v_add_f32 v{t+r}, 1.0, v{t+r}", "", None) for r in range(8)]
    C = [(f"v_rcp_f32 v{t+r}, v{t+r}", "", None) for r in range(8)]
    M = [(f"v_mul_f32 v{t+r}, v{z+r}, v{t+r}", "", None) for r in range(8)]
    V = []
    for nt in range(2):
        V.append((f"v_cvt_pk_bf16_f32 v{HO+2*nt}, v{t+4*nt}, v{t+4*nt+1}", "", None))
        V.append((f"v_cvt_pk_bf16_f32 v{HO+2*nt+1}, v{t+4*nt+2}, v{t+4*nt+3}", "", None))
    W = [(f"ds_write_b64 v{V_HW1 if T & 1 else V_HW}, {v(HO+2*nt,2)} offset:{L_X + nt*16*SH_ + 64*(T>>1)}", "lg", "hw") for nt in range(2)]
    return E, A, C, M, V, W

def gemm1(p):
    def areads(h):
        T, half, buf = h >> 1, h & 1, h & 1
        if T == 3: base, o = V_A3, 0
        else:
            sl = T if T < 3 else T - 4
            base, o = (V_A, sl * CHUNK) if sl < 2 else (V_A2, 0)
        return [(f"ds_read_b128 {v(FA+28*buf+4*i,4)}, v{base} offset:{o + 1024*(7*half+i)}", "lg", f"g{h}") for i in range(7)]
    if 'noown' not in EXP and 'pwall' not in EXP:
        p(f"s_lshr_b32 s9, s{S_MEM}, 1")
        p(f"s_cmp_eq_u32 s9, s{S_W}")
        p("s_cselect_b32 s9, 1, 0")
        p(f"s_and_b32 s10, s{S_MEM}, 1")
        p("s_xor_b32 s11, s10, 1")
        p("s_and_b32 s11, s11, s9"); p("s_and_b32 s10, s10, s9")
        p("s_lshl_b32 s11, s11, 31"); p("s_lshl_b32 s10, s10, 31")
        p(f"s_or_b32 s14, s{S_W14}, s11")
        p(f"s_or_b32 s15, s{S_W14}, s10")
        if 'pwboth' not in EXP:
            p(f"s_lshl_b32 s9, s{S_LAY}, 31")
            p("s_or_b32 s14, s14, s9"); p("s_or_b32 s15, s15, s9")
    p.wait_vm("x1")
    p("s_barrier")
    stamp(p, 12, True)
    def xread(k, nt):
        if k < 8: return (f"ds_read_b128 {xh(2*k+nt)}, v{XR1 + (k & 3)} offset:{L_X + 256*(k>>2) + nt*16*512}", "lg", f"x{k}")
        kk = k - 8
        return (f"ds_read_b128 {xh(2*k+nt)}, v{XR2 + (kk & 1)} offset:{128*(kk>>1) + nt*16*384}", "lg", f"x{k}")
    a0 = areads(0)
    for k in range(7):
        t, kind, _ = a0[k]
        emit(p, (t, kind, f"a0_{k}")); emit(p, xread(k, 0)); emit(p, xread(k, 1))
    silu = 'nosilu' not in EXP
    for h in range(14):
        T, half, buf = h >> 1, h & 1, h & 1
        nxt = areads(h + 1) if h < 13 else []
        pre = [[] for _ in range(14)]
        val = [[] for _ in range(14)]
        post = [[] for _ in range(14)]
        for i, it in enumerate(nxt): pre[i].append(it)
        if h == 0:
            pre[0].append(xread(7, 0)); pre[1].append(xread(7, 1))
            pre[2] += [(None, "wvm", "x2"), ("s_barrier", "", None)]
            extra = [xread(k, nt) for k in range(8, 14) for nt in range(2)]
            for i in range(12): pre[2 + i].append(extra[i])
            if 'pfb' in EXP:
                for g_, grp in zip((3, 5, 6, 8, 9, 11, 12), dma_w1_items(2, "c2")):
                    sal = [x for x in grp if x[1] == ""]; dm = [x for x in grp if x[1] == "vm"]
                    pre[g_] = sal + pre[g_] + dm
            if 'pwX' in EXP or 'pwH' in EXP:
                lab = p.uid("pwx")
                grp = [(f"s_cmp_eq_u32 s{S_LAY}, 0", "", None), (f"s_cbranch_scc0 {lab}", "", None)]
                for i in range(14):
                    if i % 4 == 0: grp.append((f"s_add_u32 s12, s{S_W14}, {1024*i}", "", None))
                    grp.append((f"buffer_load_dwordx4 v[124:127], v{V_L16}, {sr(S_PW)}, s12 offen offset:{1024*(i%4)}", "", None))
                grp.append((f"{lab}:", "", None))
                pre[3] = pre[3] + grp
        if 1 <= h <= 8 and 'nodma1' not in EXP:
            c = 3 + (h - 1) // 2
            grps = dma_w1_items(c, f"c{c}")
            grps = grps[:4] if h & 1 else grps[4:]
            at = [1, 4, 8, 11] if h & 1 else [2, 6, 10]
            for g_, grp in zip(at, grps):
                sal = [x for x in grp if x[1] == ""]; dm = [x for x in grp if x[1] == "vm"]
                pre[g_] = sal + pre[g_] + dm
        if 9 <= h <= 13 and 'noldwc' not in EXP and not any(x in ('pwX', 'pwY') for x in EXP) and 'pw7' not in EXP:
            first = 3 * (h - 9)
            for g_, i in zip((1, 5, 9), range(first, min(first + 3, 14))):
                pre[g_] = [(f"s_add_u32 s12, s{(14 if i < 7 else 15) if 'noown' not in EXP and 'pwall' not in EXP else S_W14}, {1024*i}", "", None)] + pre[g_] + [(f"buffer_load_dwordx4 v[124:127], v{V_L16}, {sr(S_PW)}, s12 offen {'sc1' if 'pwsc1' in EXP else ('nt' if 'pwnt' in EXP else '')}", "vm", "pw")]
        if 7 <= h <= 13 and 'pw7' in EXP:
            first = 2 * (h - 7)
            for g_, i in zip((3, 9), range(first, min(first + 2, 14))):
                pre[g_] = [(f"s_add_u32 s13, s{S_W14}, {1024*i}", "", None)] + pre[g_] + [(f"buffer_load_dwordx4 v[124:127], v{V_L16}, {sr(S_PW)}, s13 offen", "vm", "pw")]
        if silu:
            if half == 0 and T >= 2:
                E, A, C, M, V, W = silu_stages(T - 2)
                seq = M + V
                order = [2, 2, 2, 2, 2, 1, 1]
                for g_, cnt in enumerate(order):
                    for _ in range(cnt): val[g_].append(seq.pop(0))
                pre[7].append(W[0]); pre[9].append(W[1])
            if half == 0 and T >= 1:
                E = silu_stages(T - 1)[0]
                for r in range(7): val[7 + r].append(E[r])
                val[13].append(E[7])
            if half == 1 and T >= 1:
                E, A, C, M, V, W = silu_stages(T - 1)
                for r in range(7): val[r].append(A[r])
                val[6].append(A[7])
                for r in range(7): val[7 + r].append(C[r])
                val[13].append(C[7])
        if h < 13:
            w = [(None, "wlg", f"g{h+1}")]
            if h == 0: w.append((None, "wlg", "x13"))
            if half == 0 and (2 if 'pfb' in EXP else 3) <= T + 1 <= 6: w.append((None, "wvm", f"c{T+1}"))
            pre[13] = w + pre[13] if h != 0 else pre[13] + w
        for q_ in range(14):
            i, nt = q_ >> 1, q_ & 1
            k = 7 * half + i
            if h == 0 and nt == 0:
                p.wait_lg(f"a0_{i}"); p.wait_lg(f"x{k}")
            acc = v(AC1 + 8 * (T % 3) + 4 * nt, 4)
            p(f"v_mfma_f32_16x16x32_bf16 {acc}, {v(FA+28*buf+4*i,4)}, {xh(2*k+nt)}, {'0' if k == 0 else acc}")
            for it in pre[q_] + val[q_] + post[q_]: emit(p, it)
        if half == 0 and 'nobar1' not in EXP: p("s_barrier")
        if 'tt' in EXP: p(f"s_memtime s[{40+0}:{41}]" if False else f"s_memtime s[{34+2*(h+3)}:{35+2*(h+3)}]") if False else None
        if 'tt' in EXP and h < 12: p(f"s_memtime s[{40+2*h}:{41+2*h}]")
    if 'tt' in EXP:
        p("s_waitcnt lgkmcnt(0)"); p.lgq = []
        for h in range(12): p(f"v_mov_b32 v{108+h}, s{40+2*h}")
        p("s_lshl_b32 s9, s2, 6"); p(f"s_mul_i32 s10, s{S_LAY}, 16384"); p("s_add_u32 s9, s9, s10"); p(f"s_add_u32 s9, s9, {0x30000}")
        p("v_mov_b32 v120, s9")
        p("s_mov_b64 s[10:11], exec"); p("s_mov_b64 exec, 1")
        for q_ in range(3): p.vm(f"buffer_store_dwordx4 {v(108+4*q_,4)}, v120, s[92:95], 0 offen offset:{16*q_}")
        p("s_mov_b64 exec, s[10:11]")
    if silu:
        E, A, C, M, V, W = silu_stages(5)
        for it in M + V + W: emit(p, it)
        E, A, C, M, V, W = silu_stages(6)
        for it in E + A + C + M + V + W: emit(p, it)
    p.wait_lg()
    p("s_barrier")

AC2, CO = 72, 16
OUTLINE = []
OWNLINE = []
L_OWN = 143360
OWN_STR = 912
def gemm2(p):
    if 'l1sc1' in EXP or 'l1nt' in EXP: p(f"s_cmp_eq_u32 s{S_LAY}, 1")
    if 'l0sc1' in EXP: p(f"s_cmp_eq_u32 s{S_LAY}, 0")
    own = 'noown' not in EXP
    rot = own and 'norot' not in EXP
    if rot:
        HRV = [116, 117, 118, 119]
        p(f"s_lshr_b32 s10, s{S_MEM}, 1")
        for n_ in range(4):
            p(f"s_add_u32 s11, s10, {n_}"); p("s_and_b32 s11, s11, 3")
            p(f"s_mul_i32 s12, s11, {16*SH_}")
            p(f"v_add_u32 v{HRV[n_]}, s12, v{V_HR}")
            p(f"s_mul_i32 s{SA+n_}, s11, {16*ROWB}")
        hread = lambda nt, k: (f"ds_read_b128 {xh(7*nt+k)}, v{HRV[nt]} offset:{L_X + 64*k}", "lg", f"h{nt}_{k}")
        for k in range(7): emit(p, hread(0, k))
        p(f"s_and_b32 s11, s{S_MEM}, 1")
        p("s_mov_b32 s14, 0x00ff00ff")
        p("s_lshl_b32 s12, s11, 3")
        p("s_lshl_b32 s14, s14, s12")
        p("s_mov_b32 s15, s14")
        p("v_and_b32 v122, 15, v0")
        p(f"v_mul_u32_u24 v123, {ROWB}, v122")
        p("v_and_b32 v122, 7, v122")
        p(f"v_mul_u32_u24 v122, {OWN_STR}, v122")
        p("v_sub_u32 v122, v122, v123")
        p(f"v_add_u32 v122, {L_OWN}, v122")
        p(f"v_add_u32 v120, v122, v{V_PO}")
        p(f"v_add_u32 v121, v122, v{V_PO1}")
        p(f"v_add_u32 v122, {L_OWN + 8*912}, v{V_L16}")
        p("v_cndmask_b32 v120, v122, v120, s[14:15]")
        p("v_cndmask_b32 v121, v122, v121, s[14:15]")
        p("v_bfrev_b32 v123, 1")
        p(f"v_cndmask_b32 v122, v{V_PO}, v123, s[14:15]")
        p(f"v_cndmask_b32 v123, v{V_PO1}, v123, s[14:15]")
    else:
        hread = lambda nt, k: (f"ds_read_b128 {xh(7*nt+k)}, v{V_HR} offset:{L_X + nt*16*SH_ + 64*k}", "lg", f"h{nt}_{k}")
        for k in range(7): emit(p, hread(0, k))
        if own:
            p(f"s_lshr_b32 s10, s{S_MEM}, 1")
            p(f"s_and_b32 s11, s{S_MEM}, 1")
            p("s_mov_b32 s14, 0x00ff00ff")
            p("s_mul_i32 s12, s11, 8")
            p("s_lshl_b32 s14, s14, s12")
            p("s_mov_b32 s15, s14")
            p(f"s_mul_i32 s12, s11, {8*ROWB}")
            p(f"s_sub_u32 s12, {L_OWN}, s12")
            p(f"v_add_u32 v120, s12, v{V_PO}")
            p(f"v_add_u32 v121, s12, v{V_PO1}")
    pf = []
    units = [(3, nt) for nt in range(4)] + [(P, nt) for P in range(3) for nt in range(4)]
    def epi(u):
        P, nt = units[u]; ac = AC2 + 8 * (u & 1); o = CO + 4 * (u & 3)
        O = []
        O.append((f"v_cvt_pk_bf16_f32 v{o}, v{ac}, v{ac+1}", "", None))
        O.append((f"v_cvt_pk_bf16_f32 v{o+1}, v{ac+2}, v{ac+3}", "", None))
        if P < 3:
            O.append((f"v_cvt_pk_bf16_f32 v{o+2}, v{ac+4}, v{ac+5}", "", None))
            O.append((f"v_cvt_pk_bf16_f32 v{o+3}, v{ac+6}, v{ac+7}", "", None))
        st = [(f"s_mov_b32 s9, {nt*16*ROWB}", "", None)]
        sfl = "sc1" if 'psc1' in EXP else ("nt" if 'psnt' in EXP else ("sc0" if 'pssc0' in EXP else ""))
        base = f"buffer_store_dwordx4 {v(o,4)}, v{V_PO}, {sr(S_PW)}, s9 offen offset:{256*P}" if P < 3 else f"buffer_store_dwordx2 {v(o,2)}, v{V_PO1}, {sr(S_PW)}, s9 offen"
        if 'l1sc1' in EXP or 'l1nt' in EXP or 'l0sc1' in EXP:
            alt = "nt" if 'l1nt' in EXP else "sc1"
            la, lb = p.uid("stA"), p.uid("stB")
            st.append((f"s_cbranch_scc1 {la}", "", None))
            st.append((f"{base} {sfl}", "vm", "ps"))
            st.append((f"{lb}:", "", None))
            OUTLINE.append((la, f"{base} {alt}", lb))
        elif rot:
            so = f"s{SA+nt}"
            st = []
            if nt == 0:
                ad, ad1 = 122, 123
                w_ = f"ds_write_b128 v120, {v(o,4)} offset:{256*P}" if P < 3 else f"ds_write_b64 v121, {v(o,2)}"
            else: ad, ad1 = V_PO, V_PO1
            t_ = f"buffer_store_dwordx4 {v(o,4)}, v{ad}, {sr(S_PW)}, {so} offen offset:{256*P}" if P < 3 else f"buffer_store_dwordx2 {v(o,2)}, v{ad1}, {sr(S_PW)}, {so} offen"
            st.append((f"{t_} {sfl}", "vm", "ps"))
            if nt == 0: st.append((w_, "lg", "ow"))
        elif own:
            la, lb = p.uid("owA"), p.uid("owB")
            st.append((f"s_cmp_eq_u32 s10, {nt}", "", None))
            st.append((f"s_cbranch_scc1 {la}", "", None))
            st.append((f"{base} {sfl}", "vm", "ps"))
            st.append((f"{lb}:", "", None))
            w_ = f"ds_write_b128 v120, {v(o,4)} offset:{256*P}" if P < 3 else f"ds_write_b64 v121, {v(o,2)}"
            OWNLINE.append((la, f"{base} {sfl}", w_, lb))
        else:
            st.append((f"{base} {sfl}", "vm", "ps"))
        return O, st
    for u, (P, nt) in enumerate(units):
        ac = AC2 + 8 * (u & 1)
        M = []
        for k in range(7):
            for sub in range(2 if P < 3 else 1):
                Tt = 2 * P + sub
                acc = v(ac + 4 * sub, 4)
                t = f"v_mfma_f32_16x16x32_bf16 {acc}, {a(4*(7*k+Tt),4)}, {xh(7*nt+k)}, {'0' if k == 0 else acc}"
                w = [(None, "wlg", f"h{nt}_{k}")] if (u < 4 and sub == 0) else []
                M.append((t, w))
        n = len(M)
        N = {}
        if u < 3:
            for k in range(7): N.setdefault(k, []).append(hread(u + 1, k))
        V, st = epi(u - 1) if u else ([], [])
        if st and 'nostore' not in EXP: N.setdefault(n - 1 if n == 7 else 10, []).extend(st)
        schedule(p, M, V, N, vstart=(4 if n == 7 else 5), vend=(6 if n == 7 else 9))
    assert not pf
    V, st = epi(len(units) - 1)
    for it in V + st: emit(p, it)

def prewarm_burst(p, layer0_only=True):
    lab = p.uid("pwb")
    if layer0_only:
        p(f"s_cmp_eq_u32 s{S_LAY}, 0"); p(f"s_cbranch_scc0 {lab}")
    for i in range(14):
        if i % 4 == 0: p(f"s_add_u32 s12, s{S_W14}, {1024*i}")
        t = f"buffer_load_dwordx4 v[124:127], v{V_L16}, {sr(S_PW)}, s12 offen offset:{1024*(i%4)}"
        if layer0_only: p(t)
        else: p.vm(t, "pw")
    p.label(lab)

def prewarm_ld(p, stride=128):
    n = 57344 // stride
    for i in range((n + 255) // 256):
        p(f"v_add_u32 v2, {256*i}, v0")
        p(f"v_mul_u32_u24 v2, {stride}, v2")
        p.vm(f"buffer_load_dword v255, v2, {sr(S_PW)}, 0 offen", "pw")

def prewarm(p):
    if 'nowarm' in EXP: return
    fl = "sc1" if 'wsc1' in EXP else ("nt" if 'wnt' in EXP else "")
    stride = 64 if 'w64' in EXP else 128
    for i in range((57344 // stride + 255) // 256):
        p(f"v_add_u32 v2, {256*i}, v0")
        p(f"v_mul_u32_u24 v2, {stride}, v2")
        p(f"buffer_store_dword v0, v2, {sr(S_PW)}, 0 offen {fl}")
    p("v_lshlrev_b32 v1, 7, v0")
    p(f"s_mul_i32 s9, s{S_MEM}, {8*ROWB}")
    p("v_add_u32 v2, s9, v1")
    p(f"v_cmp_gt_u32 vcc, {8*ROWB}, v1")
    p("v_cndmask_b32 v2, -1, v2, vcc")
    p(f"buffer_store_dword v0, v2, {sr(S_X)}, 0 offen {fl}")

FORCE_SLOW = False
def build(stamps=False, force_slow=False):
    global FORCE_SLOW
    FORCE_SLOW = force_slow
    common.STAMPS[0] = stamps
    p = K()
    p("s_cmp_ge_u32 s2, 256")
    p("s_cbranch_scc1 K_end")
    p.load_ptrs()
    p(f"s_memrealtime {s(S_N,2)}")
    code_prefetch(p)
    p.wave_id(S_W, 1)
    p("s_and_b32 s4, s2, 7")
    p("s_lshr_b32 s5, s2, 3")
    p("s_lshl_b32 s4, s4, 5")
    p("s_add_u32 s4, s4, s5")
    p("s_lshr_b32 s5, s4, 3")
    p("s_and_b32 s6, s4, 7")
    p(f"s_lshr_b32 s{S_A}, s{S_W}, 1")
    p(f"s_and_b32 s{S_B}, s{S_W}, 1")
    p(f"s_mov_b32 s{S_LAY}, 0")
    p(f"s_mov_b32 s{S_FAST}, 0")
    p(f"s_mul_i32 s{S_W7}, s{S_W}, 7168")
    p(f"s_mul_i32 s{S_W14}, s{S_W}, 14336")
    prep_addr(p)
    p("s_waitcnt lgkmcnt(0)")
    nonce_threshold(p)
    if stamps:
        p.srd(92, P_WS, WS_FLAGS + 0x80000, 0x40000)
        p("v_mov_b32 v252, 0"); p("v_mov_b32 v253, 0")
    stamp(p, 0)
    p("s_cmp_ge_u32 s2, 224")
    p("s_cbranch_scc1 K_noprep")
    prep(p)
    stamp(p, 1)
    p.wait_vm("kvst")
    lab = p.uid("haven")
    nonce_try(p, 150, lab)
    saved = list(p.vmq)
    p.srd(SF_, P_DBG, 0, 256)
    get_nonce(p, lab)
    p.vmq = saved
    p.label(lab)
    p("s_barrier")
    flag_store_rep(p, FL_S1R, 2)
    stamp(p, 2)
    p.wait_vm()
    hbuild(p)
    p("s_branch K_prepdone")
    p.label("K_noprep")
    p.srd(S_FL, P_WS, WS_FLAGS, FLAGS_BYTES)
    mlp_setup(p)
    q_loads(p)
    p.srd(SF_, P_DBG, 0, 256)
    lab = p.uid("haven")
    get_nonce(p, lab)
    p.label(lab)
    p("s_barrier")
    p.label("K_prepdone")
    p.vmq = []; p.lgq = []
    lab = p.uid("xp")
    p(f"s_cmp_eq_u32 s{S_W}, 0")
    p(f"s_cbranch_scc0 {lab}")
    p("s_getreg_b32 s9, hwreg(HW_REG_XCC_ID, 0, 4)")
    p(f"s_add_u32 s9, s9, s{S_N}")
    p("v_mov_b32 v2, s9"); p(f"v_mov_b32 v3, s{S_N+1}")
    p(f"s_lshl_b32 s9, s{S_RB}, 3"); p(f"s_add_u32 s9, s9, {FL_XCC}")
    p("v_mov_b32 v1, s9")
    p("s_mov_b64 exec, 1")
    p(f"buffer_store_dwordx2 v[2:3], v1, {sr(S_FL)}, 0 offen sc1")
    p("s_mov_b64 exec, -1")
    p.label(lab)
    p(f"s_mul_i32 s9, s{S_MEM}, {7*CHUNK}"); p(f"s_add_u32 s9, s9, {hex(WS_W1P)}")
    p(f"s_add_u32 s{S_W1}, s{P_WS}, s9"); p(f"s_addc_u32 s{S_W1+1}, s{P_WS+1}, 0")
    p(f"s_mov_b32 s{S_W1+2}, {7*CHUNK}"); p(f"s_mov_b32 s{S_W1+3}, 0x20000")
    p(f"s_mul_i32 s9, s{S_CL}, {64*ROWB}"); p(f"s_add_u32 s9, s9, {hex(WS_XP)}")
    p(f"s_add_u32 s{S_X}, s{P_WS}, s9"); p(f"s_addc_u32 s{S_X+1}, s{P_WS+1}, 0")
    p(f"s_mov_b32 s{S_X+2}, {64*ROWB}"); p(f"s_mov_b32 s{S_X+3}, 0x20000")
    p(f"s_mul_i32 s9, s{S_RB}, {64*ROWB}"); p(f"s_add_u32 s9, s9, {hex(WS_PB)}")
    p(f"s_add_u32 s{S_PW}, s{P_WS}, s9"); p(f"s_addc_u32 s{S_PW+1}, s{P_WS+1}, 0")
    p(f"s_mov_b32 s{S_PW+2}, {64*ROWB}"); p(f"s_mov_b32 s{S_PW+3}, 0x20000")
    p(f"s_mul_i32 s9, s{S_CL}, {8*64*ROWB}"); p(f"s_add_u32 s9, s9, {hex(WS_PB)}")
    p(f"s_add_u32 s{S_PR}, s{P_WS}, s9"); p(f"s_addc_u32 s{S_PR+1}, s{P_WS+1}, 0")
    p(f"s_mov_b32 s{S_PR+2}, {8*64*ROWB}"); p(f"s_mov_b32 s{S_PR+3}, 0x20000")
    if 'warm1' in EXP: prewarm(p)
    p("v_and_b32 v1, 63, v0")
    p("s_lshr_b32 s9, s2, 5")
    p("s_min_u32 s9, s9, 6")
    p("v_mul_u32_u24 v8, 7, v1")
    p("v_add_u32 v8, s9, v8")
    p(f"s_mul_i32 s9, s{S_MEM}, 14")
    p("v_subrev_u32 v9, 32, v1")
    p("v_add_u32 v9, s9, v9")
    p("v_add_u32 v10, 98, v9")
    p("v_cmp_gt_u32 vcc, 46, v1")
    p("v_cndmask_b32 v9, v10, v9, vcc")
    p("v_cmp_gt_u32 vcc, 32, v1")
    p("v_cndmask_b32 v8, v9, v8, vcc")
    p("v_lshlrev_b32 v8, 3, v8")
    p("s_and_b32 s9, s2, 7"); p("s_lshl_b32 s9, s9, 11"); p(f"s_add_u32 s9, s9, {FL_S1R}")
    p("v_add_u32 v8, s9, v8")
    p("s_waitcnt lgkmcnt(0)")
    poll(p, [8], 1, [60])
    stamp(p, 3)
    p(f"s_lshl_b32 s9, s{S_MEM}, 2"); p(f"s_add_u32 s9, s9, s{S_W}")
    p(f"s_mul_i32 s9, s9, {49*1024}"); p(f"s_add_u32 s9, s9, {hex(WS_W2P)}")
    p(f"s_add_u32 s{SE}, s{P_WS}, s9"); p(f"s_addc_u32 s{SE+1}, s{P_WS+1}, 0")
    p(f"s_mov_b32 s{SE+2}, {49*1024}"); p(f"s_mov_b32 s{SE+3}, 0x20000")
    p.srd(SD, P_WS, WS_YB, MAT)
    p("s_cmp_ge_u32 s2, 224")
    p("s_cbranch_scc1 K_noconv")
    p("s_lshl_b32 s9, s2, 13")
    p(f"s_add_u32 s{SA}, s{P_WS}, s9"); p(f"s_addc_u32 s{SA+1}, s{P_WS+1}, 0")
    p(f"s_mov_b32 s{SA+2}, 8192"); p(f"s_mov_b32 s{SA+3}, 0x20000")
    p("v_lshlrev_b32 v10, 4, v0")
    p.vm(f"buffer_load_dwordx4 v[64:67], v10, {sr(SA)}, 0 offen sc1", "u")
    p("v_add_u32 v11, 4096, v10")
    p.vm(f"buffer_load_dwordx4 v[68:71], v11, {sr(SA)}, 0 offen sc1", "u")
    if 'qlate' in EXP: q_loads(p)
    p("s_lshl_b32 s9, s2, 2")
    p(f"s_load_dword s13, s[{P_DV}:{P_DV+1}], s9")
    for g_ in w2_items(SE)[:W20]:
        for it in g_: emit(p, it)
    p(f"v_add_u32 v10, {L_U+512}, v10")
    p.wait_vm("u")
    p.lg("ds_write_b128 v10, v[64:67]")
    p.lg(f"ds_write_b128 v10, v[68:71] offset:{U_CH}")
    p("s_waitcnt lgkmcnt(0)"); p.lgq = []
    p("s_lshl_b32 s12, s13, 16")
    p("s_and_b32 s14, s13, 0xffff0000")
    p(f"s_cmp_eq_u32 s{S_B}, 0")
    p("s_cselect_b32 s14, s12, s14")
    p("s_barrier")
    if 'warm2' in EXP: prewarm(p)
    stamp(p, 4)
    conv_main(p)
    stamp(p, 5)
    conv_out(p, SD)
    signal(p, FL_S2R, 2, upto="yst")
    stamp(p, 6)
    p("s_branch K_convdone")
    p.label("K_noconv")
    p.vmq = []
    for g_ in w2_items(SE)[:W2A]:
        for it in g_: emit(p, it)
    idle = [x for x in EXP if x.startswith('idle')]
    if idle:
        nld = int(idle[0][4:])
        p("s_and_b32 s9, s2, 7"); p("s_lshl_b32 s9, s9, 2")
        p("s_sub_u32 s10, s2, 224"); p("s_lshr_b32 s10, s10, 3"); p("s_add_u32 s9, s9, s10")
        p(f"s_mul_i32 s9, s9, {8*64*ROWB}"); p(f"s_add_u32 s9, s9, {hex(WS_PB)}")
        p(f"s_add_u32 s{SA}, s{P_WS}, s9"); p(f"s_addc_u32 s{SA+1}, s{P_WS+1}, 0")
        p(f"s_mov_b32 s{SA+2}, {8*64*ROWB}"); p(f"s_mov_b32 s{SA+3}, 0x20000")
        p(f"s_mul_i32 s10, s{S_W}, {112*1024}")
        lab = p.uid("idl")
        p("s_mov_b32 s11, 0")
        p.label(lab)
        for i in range(4):
            p(f"buffer_load_dwordx4 v[124:127], v{V_L16}, {sr(SA)}, s10 offen offset:{1024*i}")
        p("s_add_u32 s10, s10, 4096"); p("s_add_u32 s11, s11, 4"); p(f"s_cmp_lt_u32 s11, {nld}")
        p(f"s_cbranch_scc1 {lab}")
    p.wait_vm()
    p.label("K_convdone")
    if 'warm3' in EXP: prewarm(p)
    if 'pws2' in EXP:
        lab = p.uid("pws")
        p(f"s_cmp_eq_u32 s{S_W}, 0"); p(f"s_cbranch_scc1 {lab}")
        p(f"s_sub_u32 s9, s{S_W}, 1"); p("s_mul_i32 s9, s9, 19456")
        for i in range(19):
            if i % 4 == 0: p(f"s_add_u32 s10, s9, {1024*i}")
            p(f"buffer_load_dwordx4 v[220:223], v{V_L16}, {sr(S_PW)}, s10 offen offset:{1024*(i%4)}")
        p.label(lab)
    p("s_waitcnt vmcnt(0)")
    p("v_mov_b32 v7, 0xffff0000")
    unpack(p, X, XP, 8)
    layernorm(p, X, T)
    poll_s2(p)
    stamp(p, 7)
    y_load(p, SD)
    fast_get(p)
    for g_ in dma_w1_items(0 if 'pfb' in EXP else 2, "pf2"):
        for it in g_: emit(p, it)
    if 'pwY' in EXP: prewarm_burst(p, False)
    for g_ in w2_items(SE)[W2A:]:
        for it in g_: emit(p, it)
    y_transpose(p)
    stamp(p, 8)
    p("v_mov_b32 v7, 0xffff0000")
    p("s_branch K_gate")
    p.label("K_layer")
    p.vmq = []; p.lgq = []
    layernorm(p, X, T)
    p.label("K_gate")
    p.vmq = []; p.lgq = []
    q = K()
    for i in range(0, 16, 2):
        q(f"v_pk_fma_f32 {v(X+i,2)}, {v(T+i,2)}, {v(YV+i,2)}, {v(X+i,2)}")
    layernorm(q, X, T, LOG2E)
    pack(q, PK, T, 8)
    body = [it.text for it in q.items]
    if 'pfb' in EXP: pf = dma_w1_items(1, "pf")
    elif 'pfafter' in EXP: pf = dma_w1_items(0, "pf")
    else: pf = [g for c in range(2) for g in dma_w1_items(c, "pf")]
    step = len(body) // (len(pf) + (5 if 'pfb' in EXP else 1))
    for i, t in enumerate(body):
        p(t)
        if pf and i % step == step - 1:
            for it in pf.pop(0): emit(p, it)
    assert not pf
    p(f"s_mul_i32 s9, s{S_CL}, {64*ROWB}")
    p(f"v_subrev_u32 v3, s9, v{OFFA}")
    p(f"v_subrev_u32 v4, s9, v{OFFB}")
    p(f"v_cndmask_b32 v3, -1, v3, {ACT}")
    p(f"v_cndmask_b32 v4, -1, v4, {ACT}")
    xfl = "nt" if 'xnt' in EXP else ""
    p.vm(f"buffer_store_dwordx4 {v(PK,4)}, v3, {sr(S_X)}, 0 offen {xfl}", "xs")
    p.vm(f"buffer_store_dwordx4 {v(PK+4,4)}, v4, {sr(S_X)}, 0 offen {xfl}", "xs")
    pack(p, XP, X, 8)
    if 'pfafter' in EXP:
        for g_ in dma_w1_items(1, "pf1"):
            for it in g_: emit(p, it)
    stamp(p, 9, True)
    if 'oldsync' in EXP:
        signal(p, FL_CA, S_RB, layer_off=True, cluster=True, upto="xs")
        stamp(p, 10, True)
        def cluster_offs():
            p("v_and_b32 v1, 7, v0")
            p(f"s_lshl_b32 s9, s{S_CL}, 7")
            p(f"s_lshl_b32 s10, s{S_LAY}, 13")
            p("s_add_u32 s9, s9, s10")
        cluster_offs()
        p(f"s_add_u32 s9, s9, {FL_CA}")
        p("v_lshl_add_u32 v10, v1, 3, s9")
        poll(p, [10], 1, [8], cluster=True)
    else:
        cluster_sync(p, FL_CA, upto="xs", sid=10)
    stamp(p, 11, True)
    dma_x(p)
    x_read_setup(p)
    if 'ldw128' in EXP: prewarm_ld(p, 128)
    if 'ldw64' in EXP: prewarm_ld(p, 64)
    gemm1(p)
    stamp(p, 13, True)
    gemm2(p)
    stamp(p, 14, True)
    if 'oldsync' in EXP:
        signal(p, FL_CC, S_RB, layer_off=True, cluster=True)
        if 'wb2' in EXP:
            lab = p.uid("wb2")
            p(f"s_cmp_eq_u32 s{S_LAY}, 1"); p(f"s_cbranch_scc0 {lab}")
            p(f"s_cmp_eq_u32 s{S_W}, 3"); p(f"s_cbranch_scc0 {lab}")
            p(f"s_and_b32 s9, s{S_RB}, 31"); p("s_cmp_eq_u32 s9, 0"); p(f"s_cbranch_scc0 {lab}")
            p("buffer_wbl2 sc1")
            p.label(lab)
        stamp(p, 15, True)
        partials_prelude(p)
        cluster_offs()
        p(f"s_add_u32 s9, s9, {FL_CC}")
        p("v_lshl_add_u32 v10, v1, 3, s9")
        poll(p, [10], 1, [8], cluster=True)
        if 'wb' in EXP:
            lab = p.uid("wb")
            p(f"s_cmp_eq_u32 s{S_LAY}, 1"); p(f"s_cbranch_scc0 {lab}")
            p(f"s_cmp_eq_u32 s{S_MEM}, 0"); p(f"s_cbranch_scc0 {lab}")
            p(f"s_cmp_eq_u32 s{S_W}, 3"); p(f"s_cbranch_scc0 {lab}")
            p("buffer_wbl2 sc1")
            p.label(lab)
    else:
        cluster_sync(p, FL_CC, before=lambda: partials_prelude(p), sid=15)
    stamp(p, 16, True)
    add_partials(p)
    stamp(p, 17, True)
    p(f"s_cmp_eq_u32 s{S_LAY}, 1")
    p("s_cbranch_scc1 K_final")
    p(f"s_mov_b32 s{S_LAY}, 1")
    p("s_branch K_layer")
    p.label("K_final")
    pack(p, XP, X, 8)
    p.srd(SA, P_OUT, 0, MAT)
    ofl = "sc1" if 'osc1' in EXP else ("nt" if 'ont' in EXP else "")
    p(f"buffer_store_dwordx4 {v(XP,4)}, v{OFFA}, {sr(SA)}, 0 offen {ofl}")
    p(f"buffer_store_dwordx4 {v(XP+4,4)}, v{OFFB}, {sr(SA)}, 0 offen {ofl}")
    stamp(p, 40)
    stamp_flush(p)
    if SLOWPATHS:
        p("s_endpgm")
        emit_slowpaths(p)
        for la, t, w_, lb in OWNLINE:
            p.label(la)
            p("s_not_b64 exec, s[14:15]")
            p(t)
            p("s_mov_b64 exec, s[14:15]")
            p(w_)
            p("s_mov_b64 exec, -1")
            p("s_nop 1")
            p(f"s_branch {lb}")
    if OUTLINE:
        p("s_endpgm")
        for la, t, lb in OUTLINE:
            p.label(la); p(t); p(f"s_branch {lb}")
    p.label("K_end")
    p("s_endpgm")
    txt, n = kernel_text(KNAME, p, 256, sgprs=102, agprs=256)
    print("nops inserted:", n, "instructions:", p.count(), file=sys.stderr)
    head = HEADER + f"; @launch grid=(256,1,1) block=(256,1,1) lds={LDS_BYTES}\n" + '.amdgcn_target "amdgcn-amd-amdhsa--gfx950"\n'
    return head + txt

if __name__ == "__main__":
    open(sys.argv[1], "w").write(build(stamps="st" in sys.argv[2:], force_slow="slow" in sys.argv[2:]))
```

```python
import sys
from common import *
import common
EXP = set(sys.argv[2:])
if 'pfa' not in EXP: EXP.add('pfb')
if 'plainst' not in EXP: EXP |= {'psnt', 'ont'}

KNAME = "interleave_layers__ssm_conv_h3__dense_activation_silu__prompt_kernel"
HEADER = open("interleave_layers__ssm_conv_h3__dense_activation_silu__prompt.s.ref").read().split("; Override launch")[0]

NREP = 8
GSLEEP = 1
for _x in EXP:
    if _x.startswith('gs'): GSLEEP = int(_x[2:])
for _x in EXP:
    if _x.startswith('rep'): NREP = int(_x[3:])
if NREP != 8:
    FL_S1R, FL_S2R = 0x14000, 0x24000
    FLAGS_BYTES = 0x34000
S_W, S_RB, S_CL, S_MEM, S_A, S_B = 3, 4, 5, 6, 7, 8
SA, SB_, SC, SD, SE, SF_ = 40, 44, 48, 52, 56, 60
S_FL, S_W1, S_X, S_PW, S_PR = 64, 68, 72, 76, 80
S_N, S_FAST, S_LAY = 84, 86, 87
S_W7, S_W14 = 100, 101
ACT = "s[88:89]"
S_T = 90
V_XE, V_XO, V_A, V_A2, V_HW, V_HR, V_L16, V_PO, V_PO1 = 200, 201, 202, 203, 204, 205, 206, 207, 208
V_XD = 209
V_PWA, V_PWB = 216, 217
V_HW1, V_A3 = 218, 219
XP = 224
YV = 232
OFFA, OFFB = 248, 249
VN = 250
LA, LB = 0, 8192
STG = 81920 if 'hfirst' in EXP else 0
HC_COPY = 4160; HC_CH = 8 * HC_COPY; L_U = 2 * HC_CH; U_CH = 512 + 4096; YS_CH = 4096 + 128
LY = 0
L_X = 0; SH_ = 448; L_RING = 57344; CHUNK = 28672
def slot_base(c):
    return CHUNK if c == 3 else L_RING + (c if c < 3 else c - 4) * CHUNK
SPIN_MAX = 0x100000
LDS_BYTES = 163840
L_FASTW = 163836 - 60

def sr(r): return f"s[{r}:{r+3}]"

def stamp(p, sid, layered=False):
    if not common.STAMPS[0]: return
    p("s_memrealtime s[96:97]")
    p("s_memtime s[98:99]")
    p("s_waitcnt lgkmcnt(0)")
    if layered:
        p(f"s_mul_i32 s97, s{S_LAY}, 10")
        p(f"s_add_u32 m0, s97, {sid}")
        p("s_nop 3")
        p("v_writelane_b32 v252, s96, m0")
        p("v_writelane_b32 v253, s98, m0")
    else:
        p(f"v_writelane_b32 v252, s96, {sid}")
        p(f"v_writelane_b32 v253, s98, {sid}")
    p.lgq = []

def stamp_flush(p):
    if not common.STAMPS[0]: return
    lab = p.uid("sf")
    p(f"s_cmp_eq_u32 s{S_W}, 0")
    p(f"s_cbranch_scc0 {lab}")
    p("v_lshlrev_b32 v1, 2, v0")
    p("s_lshl_b32 s9, s2, 9")
    p("v_add_u32 v1, s9, v1")
    p("buffer_store_dword v252, v1, s[92:95], 0 offen")
    p("buffer_store_dword v253, v1, s[92:95], 0 offen offset:256")
    if 'dbgst' in EXP:
        wg = [x for x in EXP if x.startswith('wg')]
        wg = int(wg[0][2:]) if wg else 0
        l2 = p.uid("sf2")
        p(f"s_cmp_eq_u32 s2, {wg}")
        p(f"s_cbranch_scc0 {l2}")
        p.srd(SA, P_DBG, 0, 256)
        sel = [0, 2, 3, 5, 7, 9, 12, 13, 14, 17, 22, 23, 24, 40]
        p("s_nop 4")
        p("v_readlane_b32 s12, v252, 0")
        for i, sid in enumerate(sel):
            p(f"v_readlane_b32 s9, v252, {sid}")
            p("s_nop 3")
            p("s_sub_u32 s9, s9, s12")
            if i == 0: p("s_mov_b32 s9, s12")
            p(f"v_writelane_b32 v1, s9, {i}")
        p("v_and_b32 v2, 63, v0")
        p("v_lshlrev_b32 v2, 2, v2")
        p("v_add_u32 v2, 8, v2")
        p("s_mov_b32 exec_lo, 0x3fff"); p("s_mov_b32 exec_hi, 0")
        p(f"buffer_store_dword v1, v2, {sr(SA)}, 0 offen")
        p("s_mov_b64 exec, -1")
        p.label(l2)
    p.label(lab)

def flag_store(p, table, idx_sreg, layer_off=False, cluster=False):
    lab = p.uid("sig")
    p(f"s_cmp_eq_u32 s{S_W}, 0")
    p(f"s_cbranch_scc0 {lab}")
    p(f"s_lshl_b32 s{S_T}, s{S_CL}, 7")
    p(f"s_lshl_b32 s{S_T+1}, s{S_MEM}, 3")
    p(f"s_add_u32 s{S_T}, s{S_T}, s{S_T+1}")
    p(f"s_add_u32 s{S_T}, s{S_T}, {table}")
    p(f"s_lshl_b32 s{S_T+1}, s{S_LAY}, 13")
    p(f"s_add_u32 s{S_T}, s{S_T}, s{S_T+1}")
    p(f"v_mov_b32 v{VN}, s{S_N}")
    p(f"v_mov_b32 v{VN+1}, s{S_N+1}")
    p(f"v_mov_b32 v1, s{S_T}")
    p("s_mov_b64 exec, 1")
    if cluster:
        l2 = p.uid("sigslow"); l3 = p.uid("sigdone")
        p(f"s_cmp_eq_u32 s{S_FAST}, 1")
        p(f"s_cbranch_scc0 {l2}")
        p(f"buffer_store_dwordx2 {v(VN,2)}, v1, {sr(S_FL)}, 0 offen")
        p(f"s_branch {l3}")
        p.label(l2)
        p("buffer_wbl2 sc1")
        p("s_waitcnt vmcnt(0)")
        p(f"buffer_store_dwordx2 {v(VN,2)}, v1, {sr(S_FL)}, 0 offen sc1")
        p.label(l3)
    else:
        p(f"buffer_store_dwordx2 {v(VN,2)}, v1, {sr(S_FL)}, 0 offen sc1")
    p("s_mov_b64 exec, -1")
    p.label(lab)

def flag_store_rep(p, table, idx_sreg):
    lab = p.uid("sigr")
    p(f"s_cmp_eq_u32 s{S_W}, 0")
    p(f"s_cbranch_scc0 {lab}")
    p(f"s_lshl_b32 s{S_T}, s{idx_sreg}, 3")
    p(f"s_add_u32 s{S_T}, s{S_T}, {table}")
    p(f"v_mov_b32 v{VN}, s{S_N}")
    p(f"v_mov_b32 v{VN+1}, s{S_N+1}")
    p("v_lshlrev_b32 v1, 11, v0")
    p(f"v_add_u32 v1, s{S_T}, v1")
    p(f"s_mov_b64 exec, {hex((1 << NREP) - 1) if NREP < 32 else '0xffffffff' }") if NREP != 8 else p("s_mov_b64 exec, 0xff")
    p(f"buffer_store_dwordx2 {v(VN,2)}, v1, {sr(S_FL)}, 0 offen sc1")
    p("s_mov_b64 exec, -1")
    p.label(lab)

def signal(p, table, idx_sreg, layer_off=False, cluster=False, upto=None):
    if upto: p.wait_vm(upto)
    else: p.wait_vm()
    p("s_barrier")
    if table in (FL_S1R, FL_S2R): flag_store_rep(p, table, idx_sreg)
    else: flag_store(p, table, idx_sreg, layer_off, cluster)

def cluster_sync(p, table, upto=None, before=None, sid=None):
    p("v_and_b32 v10, 7, v0")
    p(f"s_lshl_b32 s9, s{S_CL}, 7")
    p(f"s_lshl_b32 s10, s{S_LAY}, 13")
    p("s_add_u32 s9, s9, s10")
    p(f"s_add_u32 s9, s9, {table}")
    p("v_lshl_add_u32 v10, v10, 3, s9")
    p(f"s_lshl_b32 s10, s{S_MEM}, 3")
    p("s_add_u32 s9, s9, s10")
    p("v_mov_b32 v9, s9")
    p(f"v_mov_b32 v{VN}, s{S_N}")
    p(f"v_mov_b32 v{VN+1}, s{S_N+1}")
    if before: before()
    if upto: p.wait_vm(upto)
    else: p.wait_vm()
    p("s_barrier")
    skip = p.uid("css"); slow = p.uid("csl"); go = p.uid("csg"); lab = p.uid("csp"); done = p.uid("csd"); acq = p.uid("csa")
    p(f"s_cmp_eq_u32 s{S_W}, 0")
    p(f"s_cbranch_scc0 {skip}")
    p("s_mov_b64 exec, 1")
    p(f"s_cmp_eq_u32 s{S_FAST}, 1")
    p(f"s_cbranch_scc0 {slow}")
    p(f"buffer_store_dwordx2 {v(VN,2)}, v9, {sr(S_FL)}, 0 offen")
    p.label(go)
    if sid is not None: stamp(p, sid, True)
    p("s_mov_b64 exec, 0xff")
    p(f"s_mov_b32 s{S_T}, 0")
    p.label(lab)
    p(f"buffer_load_dwordx2 v[2:3], v10, {sr(S_FL)}, 0 offen sc1")
    p("s_waitcnt vmcnt(0)")
    p(f"v_cmp_eq_u64 vcc, {s(S_N,2)}, v[2:3]")
    p(f"s_add_u32 s{S_T}, s{S_T}, 1")
    p("s_nop 3")
    p("s_cmp_eq_u64 vcc, exec")
    p(f"s_cbranch_scc1 {done}")
    p(f"s_cmp_lt_u32 s{S_T}, {hex(SPIN_MAX)}")
    p(f"s_cbranch_scc1 {lab}")
    p.label(done)
    p("s_mov_b64 exec, -1")
    p(f"s_cmp_eq_u32 s{S_FAST}, 1")
    p(f"s_cbranch_scc1 {skip}")
    p("buffer_inv sc1")
    p("s_waitcnt vmcnt(0)")
    p.label(skip)
    p("s_barrier")
    p.vmq = []
    SLOWPATHS.append((slow, go))

SLOWPATHS = []
def emit_slowpaths(p):
    for slow, go in SLOWPATHS:
        p.label(slow)
        p("buffer_wbl2 sc1")
        p("s_waitcnt vmcnt(0)")
        p(f"buffer_store_dwordx2 {v(VN,2)}, v9, {sr(S_FL)}, 0 offen sc1")
        p(f"s_branch {go}")

def setexec(p, nl):
    m = (1 << nl) - 1
    lo, hi = m & 0xffffffff, m >> 32
    p(f"s_mov_b32 exec_lo, {hex(lo) if lo != 0xffffffff else -1}")
    p(f"s_mov_b32 exec_hi, {hex(hi) if hi != 0xffffffff else -1}")

def poll(p, offs, n_loads, masks, cluster=False, all_waves=False):
    lab = p.uid("poll"); done = p.uid("polld"); skip = p.uid("polls")
    if not all_waves:
        p(f"s_cmp_eq_u32 s{S_W}, 0")
        p(f"s_cbranch_scc0 {skip}")
    p(f"s_mov_b32 s{S_T}, 0")
    p.label(lab)
    for i in range(n_loads):
        setexec(p, masks[i])
        p(f"buffer_load_dwordx2 {v(2+2*i,2)}, v{offs[i]}, {sr(S_FL)}, 0 offen sc1")
    p("s_waitcnt vmcnt(0)")
    p("s_mov_b32 s9, 1")
    for i in range(n_loads):
        setexec(p, masks[i])
        p(f"v_cmp_eq_u64 vcc, {s(S_N,2)}, {v(2+2*i,2)}")
        p("s_nop 4")
        p("s_cmp_eq_u64 vcc, exec")
        p("s_cselect_b32 s9, s9, 0")
    p("s_mov_b64 exec, -1")
    p("s_cmp_eq_u32 s9, 1")
    p(f"s_cbranch_scc1 {done}")
    p(f"s_add_u32 s{S_T}, s{S_T}, 1")
    p(f"s_cmp_lt_u32 s{S_T}, {hex(SPIN_MAX)}")
    p(f"s_cbranch_scc0 {done}")
    if not cluster or 'nosleep' not in EXP: p(f"s_sleep {GSLEEP}") if GSLEEP else None
    p(f"s_branch {lab}")
    p.label(done)
    if cluster:
        l2 = p.uid("acq")
        p(f"s_cmp_eq_u32 s{S_FAST}, 1")
        p(f"s_cbranch_scc1 {l2}")
        p("buffer_inv sc1")
        p("s_waitcnt vmcnt(0)")
        p.label(l2)
    p.label(skip)
    p("s_barrier")
    p.vmq = []

FRESH_TICKS = 1200
NONCE_PATIENCE = 0x40000
def nonce_threshold(p):
    p(f"s_sub_u32 s{S_N}, s{S_N}, {FRESH_TICKS}")
    p(f"s_subb_u32 s{S_N+1}, s{S_N+1}, 0")
    p(f"s_lshl_b64 {s(S_N,2)}, {s(S_N,2)}, 4")
    p(f"s_or_b32 s{S_N+1}, s{S_N+1}, 0x40000000")

def nonce_try(p, va, ok):
    p(f"v_readfirstlane_b32 s10, v{va}")
    p(f"v_readfirstlane_b32 s11, v{va+1}")
    p("s_nop 3")
    p(f"s_sub_u32 s9, s10, s{S_N}")
    p(f"s_subb_u32 s9, s11, s{S_N+1}")
    lab = p.uid("stale")
    p(f"s_cbranch_scc1 {lab}")
    p(f"s_mov_b64 {s(S_N,2)}, s[10:11]")
    p(f"s_branch {ok}")
    p.label(lab)

def get_nonce(p, done):
    lab = p.uid("non")
    p(f"s_mov_b32 s{S_T}, 0")
    p.label(lab)
    p("v_mov_b32 v1, 0")
    p(f"buffer_load_dwordx2 v[2:3], v1, {sr(SF_)}, 0 offen sc1")
    p("s_waitcnt vmcnt(0)")
    nonce_try(p, 2, done)
    p(f"s_add_u32 s{S_T}, s{S_T}, 1")
    p("s_sleep 1")
    p(f"s_cmp_lt_u32 s{S_T}, {hex(NONCE_PATIENCE)}")
    p(f"s_cbranch_scc1 {lab}")
    p(f"s_mov_b64 {s(S_N,2)}, s[10:11]")
    p.vmq = []

def tlb_warm(p):
    if 'notlb' in EXP: return
    ent = [(P_K, None), (P_V, None), (P_SK, 0), (P_W1, 0), (P_W2, 0), (P_H, "h"), (P_Q, "q"), (P_DV, 0), (P_DBG, 0), (P_OUT, "q"),
           (P_WS, WS_KVT), (P_WS, WS_YB), (P_WS, WS_W1P), (P_WS, WS_W2P), (P_WS, WS_FLAGS), (P_WS, "pb0"), (P_WS, "pb1")]
    lab = p.uid("tw")
    p(f"s_cmp_eq_u32 s{S_W}, 0")
    p(f"s_cbranch_scc0 {lab}")
    p(f"v_mov_b32 v2, s{P_K}"); p(f"v_mov_b32 v3, s{P_K+1}")
    p(f"s_mul_i32 s9, s{S_RB}, {8*ROWB}")
    p("s_min_u32 s10, s2, 223"); p("s_lshl_b32 s10, s10, 13")
    p(f"s_mul_i32 s11, s{S_CL}, {8*64*ROWB}"); p(f"s_add_u32 s11, s11, {hex(WS_PB)}")
    for i, (ptr, off) in enumerate(ent):
        if off in (None, 0):
            lo, hi = ptr, ptr + 1
        else:
            if off == "q": src = "s9"
            elif off == "h": src = "s10"
            elif off == "pb0": src = "s11"
            elif off == "pb1":
                p(f"s_add_u32 s11, s11, {8*64*ROWB - 128}"); src = "s11"
            else: src = hex(off)
            p(f"s_add_u32 s12, s{ptr}, {src}"); p(f"s_addc_u32 s13, s{ptr+1}, 0")
            lo, hi = 12, 13
        p(f"v_writelane_b32 v2, s{lo}, {i}")
        p(f"v_writelane_b32 v3, s{hi}, {i}")
    setexec(p, len(ent))
    p("global_load_dword v254, v[2:3], off")
    p("s_mov_b64 exec, -1")
    p.label(lab)

def nonce_publish(p):
    lab = p.uid("nn")
    p("s_cmp_eq_u32 s2, 0")
    p(f"s_cbranch_scc0 {lab}")
    p(f"s_cmp_eq_u32 s{S_W}, 0")
    p(f"s_cbranch_scc0 {lab}")
    p.srd(SF_, P_DBG, 0, 256)
    p("s_memrealtime s[10:11]")
    p("s_waitcnt lgkmcnt(0)")
    p("s_lshl_b64 s[10:11], s[10:11], 4")
    p("s_or_b32 s11, s11, 0x40000000")
    p("v_mov_b32 v46, s10"); p("v_mov_b32 v47, s11"); p("v_mov_b32 v13, 0")
    p("s_mov_b64 exec, 1")
    p(f"buffer_store_dwordx2 v[46:47], v13, {sr(SF_)}, 0 offen sc1")
    p("s_mov_b64 exec, -1")
    p.label(lab)

S_RBK, S_CG = 12, 13
def prep_addr(p):
    p("s_min_u32 s14, s2, 223")
    p.div_const(S_RBK, 14, 7)
    p(f"s_mul_i32 s{S_CG}, s{S_RBK}, 7")
    p(f"s_sub_u32 s{S_CG}, s14, s{S_CG}")
    p("v_and_b32 v1, 15, v0")
    p("v_lshrrev_b32 v2, 4, v0")
    p(f"s_lshl_b32 s9, s{S_RBK}, 6")
    p("s_sub_u32 s9, s9, 3")
    p("v_lshl_add_u32 v3, v2, 2, s9")
    p(f"v_mul_i32_i24 v4, {ROWB}, v3")
    p(f"s_lshl_b32 s10, s{S_CG}, 7")
    p("v_lshl_add_u32 v5, v1, 3, s10")
    p("v_add_u32 v4, v4, v5")
    for i in range(1, 7):
        p(f"v_add_u32 v{5+i}, {ROWB*i}, v4")
    p("v_lshlrev_b32 v12, 2, v5")

def prep(p):
    SK_, SV_, SSK, SKVT, SSRC, SDST = SA, SB_, SC, SD, SE, S_W1
    T0 = 72
    off = lambda i: "v4" if i == 0 else f"v{5+i}"
    if 'hfirst' in EXP: h_loads(p)
    p.srd(SK_, P_K, 0, MAT)
    for i in range(7):
        p.vm(f"buffer_load_dwordx2 {v(16+2*i,2)}, {off(i)}, {sr(SK_)}, 0 offen", "k")
    p.srd(SV_, P_V, 0, MAT)
    for i in range(4):
        p.vm(f"buffer_load_dwordx2 {v(30+2*i,2)}, {off(i+3)}, {sr(SV_)}, 0 offen", "k")
    p.srd(SSK, P_SK, 0, D * 8)
    p.vm(f"buffer_load_dwordx4 v[38:41], v12, {sr(SSK)}, 0 offen", "k")
    p.vm(f"buffer_load_dwordx4 v[42:45], v12, {sr(SSK)}, 0 offen offset:16", "k")
    nonce_publish(p)
    p.srd(SKVT, P_WS, WS_KVT, MAT)
    p.srd(S_FL, P_WS, WS_FLAGS, FLAGS_BYTES)
    if 'pp' in EXP: stamp(p, 34)
    S_J, S_R, S_ISW2, S_STR = T0, T0 + 1, T0 + 2, T0 + 3
    p("s_cmp_ge_u32 s2, 112")
    p(f"s_cselect_b32 s{S_ISW2}, 1, 0")
    p("s_cselect_b32 s9, 112, 0")
    p("s_sub_u32 s9, s2, s9")
    p.div_const(S_J, 9, 14)
    p(f"s_mul_i32 s10, s{S_J}, 14")
    p(f"s_sub_u32 s{S_R}, s9, s10")
    p(f"s_mul_i32 s10, s{S_R}, {32*3584}")
    p(f"s_mul_i32 s11, s{S_J}, 448")
    p("s_add_u32 s10, s10, s11")
    p(f"s_lshr_b32 s11, s{S_R}, 1")
    p(f"s_mul_i32 s11, s11, {32*896}")
    p(f"s_mul_i32 s14, s{S_J}, {224*896}")
    p("s_add_u32 s11, s11, s14")
    p(f"s_and_b32 s14, s{S_R}, 1")
    p("s_mul_i32 s14, s14, 448")
    p("s_add_u32 s11, s11, s14")
    p(f"s_cmp_eq_u32 s{S_ISW2}, 1")
    p("s_cselect_b32 s10, s11, s10")
    p.csel(S_STR, 896, 3584)
    p(f"s_cselect_b32 s{SSRC}, s{P_W2}, s{P_W1}")
    p(f"s_cselect_b32 s{SSRC+1}, s{P_W2+1}, s{P_W1+1}")
    p(f"s_mov_b32 s{SSRC+2}, {hex(D*F*2)}")
    p(f"s_mov_b32 s{SSRC+3}, 0x20000")
    for m in range(4):
        p(f"v_add_u32 v13, {256*m}, v0")
        p("v_mul_u32_u24 v14, 2341, v13")
        p("v_lshrrev_b32 v14, 16, v14")
        p("v_mul_u32_u24 v15, 28, v14")
        p("v_sub_u32 v15, v13, v15")
        p(f"v_mul_lo_u32 v14, v14, s{S_STR}")
        p("v_lshl_add_u32 v14, v15, 4, v14")
        p("v_add_u32 v14, s10, v14")
        if m == 3:
            p("v_cmp_gt_u32 vcc, 896, v13")
            p("v_cndmask_b32 v14, -1, v14, vcc")
        p.vm(f"buffer_load_dwordx4 {v(48+4*m,4)}, v14, {sr(SSRC)}, 0 offen", "w")
    if 'pp' in EXP: stamp(p, 35)
    p("v_and_b32 v46, 63, v0")
    p("v_lshrrev_b32 v47, 4, v46")
    p("v_bfe_u32 v14, v46, 2, 2")
    p("v_and_b32 v15, 3, v46")
    p("v_lshl_add_u32 v47, v47, 3, v14")
    p("v_mul_u32_u24 v47, 448, v47")
    p("v_lshlrev_b32 v46, 4, v46")
    p(f"s_cmp_eq_u32 s{S_ISW2}, 1")
    p.csel(9, hex(WS_W2P), hex(WS_W1P))
    p(f"s_add_u32 s{SDST}, s{P_WS}, s9")
    p(f"s_addc_u32 s{SDST+1}, s{P_WS+1}, 0")
    p(f"s_mov_b32 s{SDST+2}, {hex(W1P_BYTES)}")
    p(f"s_mov_b32 s{SDST+3}, 0x20000")
    t = [76, 77, 78, 79]
    for m in range(4):
        ST, DST = 14, 80 + m
        p(f"s_add_u32 s{ST}, s{S_W}, {4*m}")
        p(f"s_cmp_ge_u32 s{ST}, 7")
        p(f"s_cselect_b32 s{t[0]}, 1, 0")
        p(f"s_mul_i32 s{t[1]}, s{t[0]}, 7")
        p(f"s_sub_u32 s{t[1]}, s{ST}, s{t[1]}")
        p(f"s_mul_i32 s{DST}, s{S_J}, 7")
        p(f"s_add_u32 s{DST}, s{DST}, s{t[1]}")
        p(f"s_lshl_b32 s{DST}, s{DST}, 1")
        p(f"s_add_u32 s{DST}, s{DST}, s{t[0]}")
        p(f"s_mul_i32 s{DST}, s{DST}, 14")
        p(f"s_add_u32 s{DST}, s{DST}, s{S_R}")
        p(f"s_and_b32 s9, s{ST}, 1")
        p(f"s_lshr_b32 s10, s{ST}, 1")
        p(f"s_and_b32 s11, s{S_R}, 1")
        p("s_mul_i32 s11, s11, 7")
        p("s_add_u32 s11, s11, s10")
        p(f"s_lshr_b32 s15, s{S_R}, 1")
        p("s_mul_i32 s15, s15, 7")
        p(f"s_mul_i32 s{t[0]}, s{S_J}, 196")
        p(f"s_add_u32 s15, s15, s{t[0]}")
        p(f"s_and_b32 s{t[0]}, s11, 3")
        p(f"s_mul_i32 s{t[0]}, s{t[0]}, 49")
        p(f"s_lshr_b32 s{t[1]}, s11, 2")
        p(f"s_lshl_b32 s{t[1]}, s{t[1]}, 1")
        p(f"s_add_u32 s{t[1]}, s{t[1]}, s9")
        p(f"s_add_u32 s{t[0]}, s{t[0]}, s{t[1]}")
        p(f"s_lshl_b32 s10, s10, 6")
        p(f"s_lshl_b32 s{t[1]}, s9, 3")
        p(f"s_add_u32 s{t[1]}, s{t[1]}, s10")
        p(f"s_sub_u32 s{t[2]}, s11, 12")
        p(f"s_lshl_b32 s{t[2]}, s{t[2]}, 1")
        p(f"s_add_u32 s{t[2]}, s{t[2]}, s9")
        p(f"s_mul_i32 s{t[2]}, s{t[2]}, 49")
        p(f"s_add_u32 s{t[2]}, s{t[2]}, 6")
        p(f"s_lshl_b32 s{t[3]}, s9, 5")
        p(f"s_add_u32 s{t[3]}, s{t[3]}, s10")
        p("s_cmp_lt_u32 s11, 12")
        p(f"s_cselect_b32 s{t[0]}, s{t[0]}, s{t[2]}")
        p(f"s_cselect_b32 s{t[1]}, s{t[1]}, s{t[3]}")
        p(f"s_cselect_b32 s{t[2]}, 4, 3")
        p(f"s_add_u32 s{t[0]}, s{t[0]}, s15")
        p(f"s_lshl_b32 s{t[3]}, s{ST}, 5")
        p(f"s_cmp_eq_u32 s{S_ISW2}, 1")
        p(f"s_cselect_b32 s{DST}, s{t[0]}, s{DST}")
        p(f"s_cselect_b32 s{t[1]}, s{t[1]}, s{t[3]}")
        p(f"s_cselect_b32 s{t[2]}, s{t[2]}, 3")
        p(f"s_lshl_b32 s{DST}, s{DST}, 10")
        p(f"v_lshlrev_b32 v{144+m}, s{t[2]}, v15")
        p(f"v_add3_u32 v{144+m}, v{144+m}, v47, s{t[1]}")
        if STG: p(f"v_add_u32 v{144+m}, {STG}, v{144+m}")
    mlp_setup(p)
    if 'hfirst' in EXP:
        p.wait_vm("h")
        hbuild(p, keep=True)
    if 'pp' in EXP: stamp(p, 30)
    p.wait_vm("w")
    if 'pp' in EXP: stamp(p, 31)
    early_loads(p)
    p("v_lshlrev_b32 v14, 4, v0")
    if STG: p(f"v_add_u32 v14, {STG}, v14")
    for m in range(3):
        p.lg(f"ds_write_b128 v14, {v(48+4*m,4)} offset:{LB+4096*m}")
    lab = p.uid("skip3")
    p(f"s_cmp_ge_u32 s{S_W}, 2")
    p(f"s_cbranch_scc1 {lab}")
    p(f"ds_write_b128 v14, {v(60,4)} offset:{LB+4096*3}")
    p.label(lab)
    p.wait_lg()
    p("s_barrier")
    for m in range(4):
        p.lg(f"ds_read_b64_tr_b16 {v(48+4*m,2)}, v{144+m} offset:{LB}", f"t{m}")
        p.lg(f"ds_read_b64_tr_b16 {v(48+4*m+2,2)}, v{144+m} offset:{LB+4*448}", f"t{m}")
    for m in range(3):
        p.wait_lg(f"t{m}")
        p.vm(f"buffer_store_dwordx4 {v(48+4*m,4)}, v46, {sr(SDST)}, s{80+m} offen sc1", "wst")
    lab = p.uid("pk")
    p.wait_lg()
    p(f"s_cmp_ge_u32 s{S_W}, 2")
    p(f"s_cbranch_scc1 {lab}")
    p(f"buffer_store_dwordx4 {v(60,4)}, v46, {sr(SDST)}, s83 offen sc1")
    p.label(lab)
    p.srd(SF_, P_DBG, 0, 256)
    p("v_mov_b32 v47, 0")
    p.vm(f"buffer_load_dwordx2 v[150:151], v47, {sr(SF_)}, 0 offen sc1", "nonce")
    if 'pp' in EXP: stamp(p, 32)
    KF, SF, VF, AC, OP = 64, 92, 108, 124, 140
    p("v_mov_b32 v15, 0xffff0000")
    for i in range(7):
        for d in range(2):
            p(f"v_lshlrev_b32 v{KF+4*i+2*d}, 16, v{16+2*i+d}")
            p(f"v_and_b32 v{KF+4*i+2*d+1}, v15, v{16+2*i+d}")
    for e in range(4):
        for j in range(4):
            src = 38 + 2*e + (j >> 1)
            if j & 1: p(f"v_and_b32 v{SF+4*j+e}, v15, v{src}")
            else: p(f"v_lshlrev_b32 v{SF+4*j+e}, 16, v{src}")
    for i in range(4):
        for d in range(2):
            p(f"v_lshlrev_b32 v{VF+4*i+2*d}, 16, v{30+2*i+d}")
            p(f"v_and_b32 v{VF+4*i+2*d+1}, v15, v{30+2*i+d}")
    for j in range(4):
        for r in range(4):
            for e in (0, 2):
                kf = v(KF+4*(r+3-j)+e, 2); sf = v(SF+4*j+e, 2); ac = v(AC+4*r+e, 2)
                if j == 0: p(f"v_pk_mul_f32 {ac}, {kf}, {sf}")
                else: p(f"v_pk_fma_f32 {ac}, {kf}, {sf}, {ac}")
    for r in range(4):
        for e in (0, 2):
            p(f"v_pk_mul_f32 {v(AC+4*r+e,2)}, {v(AC+4*r+e,2)}, {v(VF+4*r+e,2)}")
    for e in range(4):
        p(f"v_cvt_pk_bf16_f32 v{OP+2*e}, v{AC+e}, v{AC+4+e}")
        p(f"v_cvt_pk_bf16_f32 v{OP+2*e+1}, v{AC+8+e}, v{AC+12+e}")
    if 'pp' in EXP: stamp(p, 33)
    p("v_xor_b32 v13, v1, v2")
    p("v_lshlrev_b32 v13, 3, v13")
    p("v_lshl_add_u32 v13, v1, 9, v13")
    if STG: p(f"v_add_u32 v13, {STG}, v13")
    for e in range(4):
        p.lg(f"ds_write_b64 v13, {v(OP+2*e,2)} offset:{LA+128*e}")
    p.wait_lg()
    p("s_barrier")
    p("v_lshrrev_b32 v1, 3, v0")
    p("v_and_b32 v2, 7, v0")
    p("v_lshlrev_b32 v3, 1, v2")
    p(f"s_lshl_b32 s9, s{S_CG}, 6")
    p(f"s_lshl_b32 s10, s{S_RBK}, 7")
    for pi in range(2):
        p(f"v_add_u32 v4, {32*pi}, v1")
        p("v_lshrrev_b32 v5, 2, v4")
        p("v_xor_b32 v6, v3, v5")
        p("v_xor_b32 v7, 1, v6")
        p("v_lshlrev_b32 v8, 7, v4")
        p("v_lshl_add_u32 v6, v6, 3, v8")
        p("v_lshl_add_u32 v7, v7, 3, v8")
        if STG: p(f"v_add_u32 v6, {STG}, v6"); p(f"v_add_u32 v7, {STG}, v7")
        p.lg(f"ds_read_b64 {v(16+4*pi,2)}, v6 offset:{LA}", f"a{pi}")
        p.lg(f"ds_read_b64 {v(18+4*pi,2)}, v7 offset:{LA}", f"a{pi}")
        p("v_add_u32 v8, s9, v4")
        p("v_lshlrev_b32 v8, 12, v8")
        p("v_lshl_add_u32 v8, v2, 4, v8")
        p(f"v_add_u32 v{24+pi}, s10, v8")
    for pi in range(2):
        p.wait_lg(f"a{pi}")
        p.vm(f"buffer_store_dwordx4 {v(16+4*pi,4)}, v{24+pi}, {sr(SKVT)}, 0 offen sc1", "kvst")

HW = 160
def code_prefetch(p):
    if 'nocode' in EXP: return
    p("s_getpc_b64 s[90:91]")
    lab = p.uid("K_pc")
    p.label(lab)
    p("v_lshlrev_b32 v180, 7, v0")
    p(f"v_cmp_gt_u32 vcc, (K_end - {lab}), v180")
    p("s_and_saveexec_b64 s[10:11], vcc")
    p.vm("global_load_dword v255, v180, s[90:91]", "code")
    p("s_mov_b64 exec, s[10:11]")

def q_loads(p):
    p.srd(SF_, P_Q, 0, MAT)
    p.vm(f"buffer_load_dwordx4 {v(XP,4)}, v{OFFA}, {sr(SF_)}, 0 offen", "q")
    p.vm(f"buffer_load_dwordx4 {v(XP+4,4)}, v{OFFB}, {sr(SF_)}, 0 offen", "q")

def h_loads(p):
    SH = SF_
    p("s_lshl_b32 s9, s2, 13")
    p(f"s_add_u32 s{SH}, s{P_H}, s9"); p(f"s_addc_u32 s{SH+1}, s{P_H+1}, 0")
    p(f"s_mov_b32 s{SH+2}, 8192"); p(f"s_mov_b32 s{SH+3}, 0x20000")
    p("v_sub_u32 v176, 255, v0")
    p("v_lshlrev_b32 v176, 4, v176")
    p("v_subrev_u32 v177, 16, v176")
    for ch in range(2):
        p(f"v_add_u32 v178, {4096*ch}, v177")
        p(f"v_add_u32 v179, {4096*ch}, v176")
        p.vm(f"buffer_load_dwordx4 {v(HW+8*ch,4)}, v178, {sr(SH)}, 0 offen", "h")
        p.vm(f"buffer_load_dwordx4 {v(HW+4+8*ch,4)}, v179, {sr(SH)}, 0 offen", "h")

def early_loads(p):
    if 'hfirst' not in EXP: h_loads(p)
    if 'qlate' not in EXP: q_loads(p)

def hbuild(p, keep=False):
    t5, t6, t7, t8, t9 = (96, 97, 98, 99, 100) if keep else (5, 6, 7, 8, 9)
    E1, E2, O1, O2, Z = (64, 72, 78, 86, 92) if keep else (32, 40, 46, 54, 60)
    p(f"v_mov_b32 v{t5}, 0xffff")
    p("v_cmp_ne_u32 vcc, 255, v0")
    p(f"v_lshlrev_b32 v{t6}, 4, v0")
    for ch in range(2):
        W = HW + 8 * ch
        for d in range(4):
            p(f"v_cndmask_b32 v{W+d}, 0, v{W+d}, vcc")
        def o(dst, sidx):
            if sidx % 2 == 0:
                pz = (14 - sidx) // 2
                p(f"v_alignbit_b32 v{dst}, v{W+pz}, v{W+pz}, 16")
            else:
                p(f"v_bfi_b32 v{dst}, v{t5}, v{W+(15-sidx)//2}, v{W+(13-sidx)//2}")
        for n in range(7): o(E1 + n, 2 * n)
        for n in range(6): o(E2 + n, 2 * n + 2)
        for n in range(7): o(O1 + n, 2 * n + 1)
        for n in range(6): o(O2 + n, 2 * n + 3)
        src = {0: E1, 4: E1 + 2, 2: E2, 6: E2 + 2, 1: O1, 5: O1 + 2, 3: O2, 7: O2 + 2}
        for c in range(8):
            p.lg(f"ds_write_b128 v{t6}, {v(src[c],4)} offset:{ch*HC_CH + c*HC_COPY}")
        p("s_nop 1")
    for r in range(4): p(f"v_mov_b32 v{Z+r}, 0")
    p(f"v_and_b32 v{t7}, 15, v0")
    p(f"v_mul_u32_u24 v{t7}, {HC_COPY}, v{t7}")
    p(f"v_add_u32 v{t7}, 4096, v{t7}")
    p(f"v_and_b32 v{t8}, 31, v0")
    p(f"v_lshlrev_b32 v{t8}, 4, v{t8}")
    p(f"v_bfe_u32 v{t9}, v0, 5, 1")
    p(f"v_mul_u32_u24 v{t9}, {U_CH}, v{t9}")
    p(f"s_mov_b32 s9, {L_U}")
    p(f"v_add3_u32 v{t8}, v{t8}, v{t9}, s9")
    p.lg(f"ds_write_b128 v{t7}, {v(Z,4)}")
    p.lg(f"ds_write_b128 v{t8}, {v(Z,4)}")

_w2 = [x for x in EXP if x.startswith('w2_')]
W20, W2A = (int(_w2[0].split('_')[1]), int(_w2[0].split('_')[2])) if _w2 else (12, 49)
W2B = 49
def w2_items(SW2):
    G = []
    for f in range(49):
        it = []
        base = f - f % 4
        if f % 4 == 0 or f in (W20, W2A, W2B): it.append((f"s_mov_b32 s15, {1024*base}", "", None))
        it.append((f"buffer_load_dwordx4 {a(4*f,4)}, v{V_L16}, {sr(SW2)}, s15 offen offset:{1024*(f%4)} {'sc1 nt' if 'wnt2' in EXP else 'sc1'}", "vm", "w2"))
        G.append(it)
    return G

def load_w2(p, SW2):
    for f in range(49):
        if f % 4 == 0: p(f"s_mov_b32 s9, {1024*f}")
        p.vm(f"buffer_load_dwordx4 {a(4*f,4)}, v{V_L16}, {sr(SW2)}, s9 offen offset:{1024*(f%4)} sc1", "w2")

def conv_main(p):
    ACC, FA, FB = 72, 96, 16
    fb = lambda buf, m: (16 + 28 * buf + 4 * m) if m < 7 else (160 + 4 * buf)
    p("v_and_b32 v1, 63, v0")
    p("v_and_b32 v2, 15, v1")
    p("v_lshrrev_b32 v3, 4, v1")
    p("v_and_b32 v4, 7, v2")
    p("v_sub_u32 v4, 7, v4")
    p(f"v_mul_u32_u24 v4, {HC_COPY}, v4")
    p("v_lshrrev_b32 v5, 3, v2")
    p("v_sub_u32 v5, v3, v5")
    p("v_add_u32 v5, 1, v5")
    p("v_lshl_add_u32 v4, v5, 4, v4")
    p(f"s_mul_i32 s9, s{S_B}, {HC_CH}")
    p("v_add_u32 v12, s9, v4")
    p(f"s_mul_i32 s9, s{S_B}, {U_CH}")
    p(f"s_add_u32 s9, s9, {L_U + 512 - 32 - 64*7}")
    p("v_lshlrev_b32 v5, 5, v2")
    p("v_lshl_add_u32 v5, v3, 4, v5")
    p("v_add_u32 v13, s9, v5")
    set1 = p.uid("cset1"); join = p.uid("cjoin")
    p(f"s_cmp_eq_u32 s{S_A}, 1")
    p(f"s_cbranch_scc1 {set1}")
    for st, tiles in ((0, (0, 3, 4, 7)), (1, (1, 2, 5, 6))):
        if st == 1: p.label(set1)
        mx = max(tiles)
        def reads(rho, buf):
            L = []
            for m in range(mx + 1):
                L.append((f"ds_read_b128 {v(FA+32*buf+4*m,4)}, v12 offset:{512*(7-m)+64*(7-rho)}", "lg", f"r{rho}_{m}"))
                L.append((f"ds_read_b128 {v(fb(buf,m),4)}, v13 offset:{512*m+64*(7-rho)}", "lg", f"r{rho}_{m}"))
            return L
        saved_vm = list(p.vmq)
        w2 = w2_items(SE)[W20:W2A] if 'now2' not in EXP else []
        for it in reads(0, 0): emit(p, it)
        first = set()
        for rho in range(8):
            buf = rho & 1
            nxt = reads(rho + 1, buf ^ 1) if rho < 7 else []
            mf = sorted([(max(mu, nt - mu), ti, nt, mu) for ti, nt in enumerate(tiles) for mu in range(nt + 1)])
            M = []; seen = -1
            for (mm, ti, nt, mu) in mf:
                c = v(ACC+4*ti,4) if ti in first else "0"
                first.add(ti)
                t = f"v_mfma_f32_16x16x32_bf16 {v(ACC+4*ti,4)}, {v(FA+32*buf+4*mu,4)}, {v(fb(buf,nt-mu),4)}, {c}"
                w = []
                if mm > seen: w.append((None, "wlg", f"r{rho}_{mm}")); seen = mm
                M.append((t, w))
            N = {}
            for i, it in enumerate(nxt): N.setdefault(i, []).append(it)
            slots = [3, 6, 9, 12, 15, 17]
            per = -(-(W2A - W20) // 7) if 'w2early' not in EXP else 6
            slots = {6: slots, 5: [3, 7, 10, 13, 16], 4: [4, 8, 12, 16], 3: [5, 10, 15], 2: [6, 13], 1: [9]}[per]
            for q_ in range(per if rho < 7 else 0):
                if w2: N.setdefault(slots[q_], []).extend(w2.pop(0))
            schedule(p, M, [], N)
        assert not w2
        p.vmq = saved_vm + ["w2"]
        p("s_barrier")
        p(f"s_mul_i32 s9, s{S_B}, {U_CH}")
        p(f"s_add_u32 s9, s9, {L_U + 512}")
        p("v_lshlrev_b32 v5, 5, v2")
        p("v_lshl_add_u32 v5, v3, 3, v5")
        p("v_add_u32 v6, s9, v5")
        p(f"s_mul_i32 s9, s{S_B}, {YS_CH}")
        p("v_add_u32 v7, s9, v5")
        for ti, nt in enumerate(tiles):
            p.lg(f"ds_read_b64 {v(FA+2*ti,2)}, v6 offset:{512*nt}", f"u{ti}")
        p("v_mov_b32 v8, 0xffff0000")
        for ti, nt in enumerate(tiles):
            p.wait_lg(f"u{ti}")
            u = FA + 2 * ti; t = 16 + 4 * ti
            p(f"v_lshlrev_b32 v{t}, 16, v{u}")
            p(f"v_and_b32 v{t+1}, v8, v{u}")
            p(f"v_lshlrev_b32 v{t+2}, 16, v{u+1}")
            p(f"v_and_b32 v{t+3}, v8, v{u+1}")
            for r in range(4):
                p(f"v_fma_f32 v{t+r}, v{t+r}, s14, v{ACC+4*ti+r}")
            p(f"v_cvt_pk_bf16_f32 v{t}, v{t}, v{t+1}")
            p(f"v_cvt_pk_bf16_f32 v{t+1}, v{t+2}, v{t+3}")
            p.lg(f"ds_write_b64 v7, {v(t,2)} offset:{512*nt}")
        p.wait_lg()
        if st == 0: p(f"s_branch {join}")
    p.label(join)
    p("s_barrier")

def conv_out(p, SY):
    p("v_and_b32 v1, 3, v0")
    p("v_lshrrev_b32 v2, 2, v0")
    p("v_lshrrev_b32 v3, 1, v1")
    p("v_and_b32 v4, 1, v1")
    p(f"v_mul_u32_u24 v3, {YS_CH}, v3")
    p("v_lshl_add_u32 v3, v4, 4, v3")
    p("v_lshl_add_u32 v3, v2, 5, v3")
    p.lg("ds_read_b128 v[16:19], v3", "y0")
    p.lg(f"ds_read_b128 v[20:23], v3 offset:{64*32}", "y1")
    p(f"v_mul_u32_u24 v5, {D*32}, v2")
    p("v_lshl_add_u32 v5, v1, 4, v5")
    p("s_lshl_b32 s9, s2, 6")
    p("v_add_u32 v5, s9, v5")
    p(f"v_add_u32 v6, {64*D*32}, v5")
    p.wait_lg("y0")
    p.vm(f"buffer_store_dwordx4 v[16:19], v5, {sr(SY)}, 0 offen sc1", "yst")
    p.wait_lg("y1")
    p.vm(f"buffer_store_dwordx4 v[20:23], v6, {sr(SY)}, 0 offen sc1", "yst")

X, T, PK, TMP = 16, 32, 64, 72
YT = 96
def row_setup(p):
    p("v_and_b32 v181, 31, v0")
    p("v_lshrrev_b32 v182, 5, v0")
    p(f"v_cmp_gt_u32 {ACT}, 28, v181")
    p(f"v_mul_u32_u24 v183, {ROWB}, v182")
    p("v_lshl_add_u32 v183, v181, 4, v183")
    p(f"s_mul_i32 s9, s{S_RB}, {8*ROWB}")
    p("v_add_u32 v183, s9, v183")
    p(f"v_cndmask_b32 v{OFFA}, -1, v183, {ACT}")
    p("v_add_u32 v183, 448, v183")
    p(f"v_cndmask_b32 v{OFFB}, -1, v183, {ACT}")

def unpack(p, dst, src, n):
    for i in range(n):
        p(f"v_lshlrev_b32 v{dst+2*i}, 16, v{src+i}")
        p(f"v_and_b32 v{dst+2*i+1}, v7, v{src+i}")
def pack(p, dst, src, n):
    for i in range(n):
        p(f"v_cvt_pk_bf16_f32 v{dst+i}, v{src+2*i}, v{src+2*i+1}")
def allreduce32(p, r, t):
    for m in ("quad_perm:[1,0,3,2]", "quad_perm:[2,3,0,1]", "row_half_mirror", "row_mirror"):
        p(f"v_add_f32_dpp v{r}, v{r}, v{r} {m} row_mask:0xf bank_mask:0xf")
    p(f"v_mov_b32 v{t}, v{r}")
    p(f"v_permlane16_swap_b32 v{r}, v{t}")
    p(f"v_add_f32 v{r}, v{r}, v{t}")
def sum16(p, dst, src):
    p(f"v_pk_add_f32 {v(TMP,2)}, {v(src,2)}, {v(src+2,2)}")
    p(f"v_pk_add_f32 {v(TMP+2,2)}, {v(src+4,2)}, {v(src+6,2)}")
    p(f"v_pk_add_f32 {v(TMP+4,2)}, {v(src+8,2)}, {v(src+10,2)}")
    p(f"v_pk_add_f32 {v(TMP+6,2)}, {v(src+12,2)}, {v(src+14,2)}")
    p(f"v_pk_add_f32 {v(TMP,2)}, {v(TMP,2)}, {v(TMP+2,2)}")
    p(f"v_pk_add_f32 {v(TMP+4,2)}, {v(TMP+4,2)}, {v(TMP+6,2)}")
    p(f"v_pk_add_f32 {v(TMP,2)}, {v(TMP,2)}, {v(TMP+4,2)}")
    p(f"v_add_f32 v{dst}, v{TMP}, v{TMP+1}")
    p(f"v_cndmask_b32 v{dst}, 0, v{dst}, {ACT}")
def layernorm(p, src, dst, scale=None):
    M, V_ = TMP + 8, TMP + 10
    sum16(p, M, src)
    allreduce32(p, M, TMP + 9)
    p(f"v_mul_f32 v{M}, {fbits(-1.0/D)}, v{M}")
    p(f"v_mov_b32 v{M+1}, v{M}")
    for i in range(0, 16, 2):
        p(f"v_pk_add_f32 {v(dst+i,2)}, {v(src+i,2)}, {v(M,2)}")
    p(f"v_pk_mul_f32 {v(TMP,2)}, {v(dst,2)}, {v(dst,2)}")
    p(f"v_pk_mul_f32 {v(TMP+2,2)}, {v(dst+2,2)}, {v(dst+2,2)}")
    for i in range(4, 16, 4):
        p(f"v_pk_fma_f32 {v(TMP,2)}, {v(dst+i,2)}, {v(dst+i,2)}, {v(TMP,2)}")
        p(f"v_pk_fma_f32 {v(TMP+2,2)}, {v(dst+i+2,2)}, {v(dst+i+2,2)}, {v(TMP+2,2)}")
    p(f"v_pk_add_f32 {v(TMP,2)}, {v(TMP,2)}, {v(TMP+2,2)}")
    p(f"v_add_f32 v{V_}, v{TMP}, v{TMP+1}")
    p(f"v_cndmask_b32 v{V_}, 0, v{V_}, {ACT}")
    allreduce32(p, V_, TMP + 11)
    p(f"v_mov_b32 v{V_+1}, {fbits(1e-5)}")
    p(f"v_fmac_f32 v{V_+1}, {fbits(1.0/D)}, v{V_}")
    p(f"v_rsq_f32 v{V_}, v{V_+1}")
    if scale is not None: p(f"v_mul_f32 v{V_}, {fbits(scale)}, v{V_}")
    else: p("s_nop 0")
    p(f"v_mov_b32 v{V_+1}, v{V_}")
    for i in range(0, 16, 2):
        p(f"v_pk_mul_f32 {v(dst+i,2)}, {v(dst+i,2)}, {v(V_,2)}")

def y_load(p, SY):
    p(f"s_lshr_b32 s9, s{S_RB}, 1")
    p(f"s_mul_i32 s9, s9, {D*32}")
    p(f"s_and_b32 s10, s{S_RB}, 1")
    p("s_lshl_b32 s10, s10, 4")
    p("s_add_u32 s9, s9, s10")
    p("v_lshlrev_b32 v3, 5, v0")
    p("v_add_u32 v3, s9, v3")
    p(f"v_add_u32 v4, {256*32}, v3")
    p("v_cmp_gt_u32 vcc, 192, v0")
    p("v_cndmask_b32 v4, -1, v4, vcc")
    p.vm(f"buffer_load_dwordx4 {v(YT,4)}, v3, {sr(SY)}, 0 offen sc1", "y")
    p.vm(f"buffer_load_dwordx4 {v(YT+4,4)}, v4, {sr(SY)}, 0 offen sc1", "y")

def y_transpose(p):
    p("v_lshlrev_b32 v3, 2, v0")
    p.wait_vm("y")
    for wq in range(4):
        p.lg(f"ds_write_b32 v3, v{YT+wq} offset:{LY+2048*wq}")
        p.lg(f"ds_write_b32 v3, v{YT+4+wq} offset:{LY+2048*wq+1024}")
    p.wait_lg()
    p("s_barrier")
    p("v_and_b32 v1, 31, v0")
    p("v_lshrrev_b32 v4, 6, v0")
    p("v_lshlrev_b32 v4, 11, v4")
    p("v_lshl_add_u32 v4, v1, 5, v4")
    for k in range(2):
        p.lg(f"ds_read_b128 {v(YT+8*k,4)}, v4 offset:{LY+896*k}")
        p.lg(f"ds_read_b128 {v(YT+8*k+4,4)}, v4 offset:{LY+896*k+16}")
    p("v_bfe_u32 v5, v0, 5, 1")
    p("v_mov_b32 v6, 0x01000c0c")
    p("v_mov_b32 v3, 0x03020c0c")
    p("v_cmp_eq_u32 vcc, 1, v5")
    p("v_cndmask_b32 v6, v6, v3, vcc")
    p.wait_lg()
    for i in range(16):
        p(f"v_perm_b32 v{YV+i}, v{YT+i}, v{YT+i}, v6")

def poll_s2(p):
    lab = p.uid("s2"); done = p.uid("s2d"); skip = p.uid("s2s")
    p("v_and_b32 v1, 63, v0")
    p(f"s_and_b32 s9, s2, {NREP-1}"); p("s_lshl_b32 s9, s9, 11"); p(f"s_add_u32 s9, s9, {FL_S2R}")
    for i in range(4):
        p(f"v_lshl_add_u32 v{12+i}, v1, 3, s9")
        if i: p(f"v_add_u32 v{12+i}, {512*i}, v{12+i}")
    p("v_and_b32 v48, 7, v0")
    p(f"s_lshl_b32 s9, s{S_CL}, 6")
    p(f"s_add_u32 s9, s9, {FL_XCC}")
    p("v_lshl_add_u32 v48, v48, 3, s9")
    p(f"s_cmp_eq_u32 s{S_W}, 0")
    p(f"s_cbranch_scc0 {skip}")
    if 's2st' in EXP:
        p("s_waitcnt vmcnt(0)"); stamp(p, 41)
    p(f"s_mov_b32 s{S_T}, 0")
    p.label(lab)
    masks = [64, 64, 64, 32]
    for i in range(4):
        setexec(p, masks[i])
        p(f"buffer_load_dwordx2 {v(2+2*i,2)}, v{12+i}, {sr(S_FL)}, 0 offen sc1")
    p("s_mov_b64 exec, -1")
    p(f"buffer_load_dwordx2 v[10:11], v48, {sr(S_FL)}, 0 offen sc1")
    p("s_waitcnt vmcnt(0)")
    p(f"v_subrev_u32 v10, s{S_N}, v10")
    p(f"v_cmp_eq_u32 vcc, s{S_N+1}, v11")
    p("v_cmp_gt_u32 s[10:11], 16, v10")
    p("s_nop 4")
    p("s_and_b64 vcc, vcc, s[10:11]")
    p("s_cmp_eq_u64 vcc, exec")
    p("s_cselect_b32 s9, 1, 0")
    for i in range(4):
        setexec(p, masks[i])
        p(f"v_cmp_eq_u64 vcc, {s(S_N,2)}, {v(2+2*i,2)}")
        p("s_nop 4")
        p("s_cmp_eq_u64 vcc, exec")
        p("s_cselect_b32 s9, s9, 0")
    p("s_mov_b64 exec, -1")
    p("s_cmp_eq_u32 s9, 1")
    p(f"s_cbranch_scc1 {done}")
    p(f"s_add_u32 s{S_T}, s{S_T}, 1")
    p(f"s_cmp_lt_u32 s{S_T}, {hex(SPIN_MAX)}")
    p(f"s_cbranch_scc0 {done}")
    if GSLEEP: p(f"s_sleep {GSLEEP}")
    p(f"s_branch {lab}")
    p.label(done)
    if 's2st' in EXP:
        p(f"v_writelane_b32 v253, s{S_T}, 42"); p(f"v_writelane_b32 v252, s{S_T}, 43"); p(f"v_writelane_b32 v253, s{S_T}, 43")
    p("s_getreg_b32 s9, hwreg(HW_REG_XCC_ID, 0, 4)")
    p("v_cmp_eq_u32 vcc, s9, v10")
    p("s_nop 4")
    p("s_cmp_eq_u64 vcc, exec")
    p("s_cselect_b32 s9, 1, 0")
    if FORCE_SLOW: p("s_mov_b32 s9, 0")
    p("v_mov_b32 v2, s9")
    p(f"v_mov_b32 v3, {L_FASTW}")
    p("ds_write_b32 v3, v2")
    p("s_waitcnt lgkmcnt(0)")
    p.label(skip)
    p("s_barrier")
    p.vmq = []; p.lgq = []
    p(f"v_mov_b32 v3, {L_FASTW}")
    p.lg("ds_read_b32 v49, v3", "fw")

def fast_get(p):
    p.wait_lg("fw")
    p(f"v_readfirstlane_b32 s{S_FAST}, v49")

PB_ = 96
def partials_prelude(p):
    p("v_and_b32 v1, 31, v0")
    p("v_lshrrev_b32 v2, 5, v0")
    p(f"s_mul_i32 s9, s{S_MEM}, {8*ROWB}")
    p(f"v_mul_u32_u24 v3, {ROWB}, v2")
    p("v_lshl_add_u32 v3, v1, 4, v3")
    if 'noown' not in EXP:
        p(f"v_mul_u32_u24 v11, {OWN_STR if 'norot' not in EXP else ROWB}, v2")
        p("v_lshl_add_u32 v11, v1, 4, v11")
        p(f"v_add_u32 v11, {L_OWN}, v11")
        for i in range(7):
            p(f"s_add_u32 s{SA+i}, s{S_MEM}, {1+i}")
            p(f"s_and_b32 s{SA+i}, s{SA+i}, 7")
            p(f"s_mul_i32 s{SA+i}, s{SA+i}, {64*ROWB}")
    p("v_add_u32 v3, s9, v3")
    p(f"v_cndmask_b32 v12, -1, v3, {ACT}")
    p("v_add_u32 v3, 448, v3")
    p(f"v_cndmask_b32 v13, -1, v3, {ACT}")
    if 'noown' not in EXP: p("s_waitcnt lgkmcnt(0)"); p.lgq = []

def add_partials(p):
    own = 'noown' not in EXP
    for j in range(7 if own else 8):
        if own: so = f"s{SA+j}"
        else:
            so = "s9"
            if j % 4 == 0: p(f"s_mov_b32 s9, {j*64*ROWB}")
            else: p(f"s_add_u32 s9, s9, {64*ROWB}")
        p.vm(f"buffer_load_dwordx4 {v(PB_+8*j,4)}, v12, {sr(S_PR)}, {so} offen {'sc1 nt' if 'pldnt' in EXP else 'sc1'}", f"p{j}")
        p.vm(f"buffer_load_dwordx4 {v(PB_+8*j+4,4)}, v13, {sr(S_PR)}, {so} offen {'sc1 nt' if 'pldnt' in EXP else 'sc1'}", f"p{j}")
    if own:
        p.lg(f"ds_read_b128 {v(PB_+56,4)}, v11", "own")
        p.lg(f"ds_read_b128 {v(PB_+60,4)}, v11 offset:448", "own")
    lab = p.uid("pf2")
    p(f"s_cmp_eq_u32 s{S_LAY}, 0"); p(f"s_cbranch_scc0 {lab}")
    for g_ in dma_w1_items(0 if 'pfb' in EXP else 2, "pf2"):
        for it in g_: p(it[0])
    p.label(lab)
    p("v_mov_b32 v7, 0xffff0000")
    p("v_mov_b32 v14, 0x00003f80")
    p("v_mov_b32 v15, 0x3f800000")
    unpack(p, X, XP, 8)
    for i in range(16): p(f"v_mov_b32 v{T+i}, 0")
    p(f"v_mov_b32 v{TMP}, {fbits(LN2)}"); p(f"v_mov_b32 v{TMP+1}, {fbits(LN2)}")
    for j in ([7] + list(range(7)) if own else range(8)):
        if own and j == 7: p.wait_lg("own")
        else: p.wait_vm(f"p{j}")
        for i in range(8):
            p(f"v_dot2c_f32_bf16 v{T+2*i}, v{PB_+8*j+i}, v14")
            p(f"v_dot2c_f32_bf16 v{T+2*i+1}, v{PB_+8*j+i}, v15")
    for i in range(0, 16, 2):
        p(f"v_pk_fma_f32 {v(X+i,2)}, {v(T+i,2)}, {v(TMP,2)}, {v(X+i,2)}")

def xh(phi):
    return a(196 + 4 * phi, 4) if phi < 15 else v(148 + 4 * (phi - 15), 4)

def mlp_setup(p):
    row_setup(p)
    p("v_and_b32 v181, 63, v0")
    p("v_and_b32 v182, 15, v181")
    p("v_lshrrev_b32 v183, 4, v181")
    p(f"s_mul_i32 s9, s{S_A}, 14336")
    p(f"s_add_u32 s9, s9, {L_RING}")
    p(f"v_lshl_add_u32 v{V_A}, v181, 4, s9")
    p(f"v_add_u32 v{V_A2}, {2*CHUNK}, v{V_A}")
    p(f"s_lshl_b32 s9, s{S_B}, 5")
    p("v_add_u32 v184, s9, v182")
    p(f"v_mul_u32_u24 v184, {SH_}, v184")
    p("v_bfe_u32 v185, v182, 1, 2")
    p("v_lshrrev_b32 v186, 1, v183")
    p("v_xor_b32 v186, v186, v185")
    p("v_lshl_add_u32 v184, v186, 4, v184")
    p("v_and_b32 v186, 1, v183")
    p("v_lshl_add_u32 v184, v186, 3, v184")
    p("v_xor_b32 v186, 32, v184")
    p(f"s_cmp_eq_u32 s{S_A}, 1")
    p("s_cselect_b64 vcc, -1, 0")
    p("v_add_u32 v187, 192, v186")
    p(f"v_cndmask_b32 v{V_HW}, v184, v187, vcc")
    p("v_add_u32 v187, 256, v184")
    p(f"v_cndmask_b32 v{V_HW1}, v186, v187, vcc")
    p(f"v_mul_u32_u24 v184, {SH_}, v182")
    p("v_xor_b32 v185, v185, v183")
    p(f"v_lshl_add_u32 v{V_HR}, v185, 4, v184")
    p(f"v_subrev_u32 v{V_A3}, {L_RING - CHUNK}, v{V_A}")
    p(f"v_lshlrev_b32 v{V_L16}, 4, v181")
    p(f"v_mul_u32_u24 v184, {ROWB}, v182")
    p(f"s_lshl_b32 s9, s{S_W}, 6")
    p("v_lshl_add_u32 v185, v183, 4, v184")
    p(f"v_add_u32 v{V_PO}, s9, v185")
    p(f"s_add_u32 s9, s{S_A}, 12")
    p("s_lshl_b32 s9, s9, 6")
    p(f"s_lshl_b32 s10, s{S_B}, 5")
    p("s_add_u32 s9, s9, s10")
    p("v_lshl_add_u32 v185, v183, 3, v184")
    p(f"v_add_u32 v{V_PO1}, s9, v185")
    x_dma_setup(p)

XD1 = [200, 201, 209, 210, 211, 212, 213, 214]
XD2 = [215, 216, 217, 220, 221, 222]
XR1, XR2 = 108, 112
L_X2 = L_X + 64 * 512
def x_dma_setup(p):
    p("v_and_b32 v181, 63, v0")
    p("v_lshrrev_b32 v182, 5, v181")
    p("v_and_b32 v183, 31, v181")
    for i in range(8):
        p(f"v_add_u32 v184, {2*i}, v182")
        p("v_xor_b32 v185, v183, v184")
        p(f"v_mul_u32_u24 v184, {ROWB}, v184")
        p(f"v_lshl_add_u32 v{XD1[i]}, v185, 4, v184")
    for i in range(6):
        p(f"v_add_u32 v184, {64*i}, v181")
        p("v_mul_u32_u24 v185, 2731, v184")
        p("v_lshrrev_b32 v185, 16, v185")
        p("v_mul_u32_u24 v186, 24, v185")
        p("v_sub_u32 v186, v184, v186")
        p("v_and_b32 v184, 6, v185")
        p("v_xor_b32 v186, v186, v184")
        p(f"v_mul_u32_u24 v185, {ROWB}, v185")
        p("v_lshl_add_u32 v185, v186, 4, v185")
        p(f"v_add_u32 v{XD2[i]}, 512, v185")

def x_read_setup(p):
    p("v_and_b32 v1, 63, v0")
    p("v_and_b32 v2, 15, v1")
    p("v_lshrrev_b32 v3, 4, v1")
    p(f"s_lshl_b32 s9, s{S_B}, 5")
    p("v_add_u32 v4, s9, v2")
    p("v_and_b32 v5, 3, v2")
    p("v_xor_b32 v5, v5, v3")
    p("v_lshlrev_b32 v5, 4, v5")
    p("v_lshl_add_u32 v5, v4, 9, v5")
    p("v_lshrrev_b32 v6, 2, v2")
    for r in range(4):
        p(f"v_xor_b32 v8, {r}, v6")
        p(f"v_lshl_add_u32 v{XR1+r}, v8, 6, v5")
    p("v_and_b32 v5, 2, v2")
    p("v_xor_b32 v5, v5, v3")
    p("v_lshlrev_b32 v5, 4, v5")
    p("v_mul_u32_u24 v4, 384, v4")
    p("v_add_u32 v5, v5, v4")
    p(f"v_add_u32 v5, {L_X2}, v5")
    p("v_and_b32 v6, 1, v6")
    p(f"v_lshl_add_u32 v{XR2}, v6, 6, v5")
    p("v_xor_b32 v6, 1, v6")
    p(f"v_lshl_add_u32 v{XR2+1}, v6, 6, v5")

def dma_x(p):
    p(f"s_lshl_b32 s9, s{S_W}, 13")
    p(f"s_mul_i32 s10, s{S_W}, {16*384}")
    for i in range(8):
        p(f"s_add_u32 m0, s9, {L_X + 1024*i}")
        p.vm(f"buffer_load_dwordx4 v{XD1[i]}, {sr(S_X)}, s{S_W14} offen sc1 lds", "x1")
    for i in range(6):
        p(f"s_add_u32 m0, s10, {L_X2 + 1024*i}")
        p.vm(f"buffer_load_dwordx4 v{XD2[i]}, {sr(S_X)}, s{S_W14} offen sc1 lds", "x2")

def dma_w1_items(chunk, tag, g=12):
    G = []
    for i in range(7):
        it = []
        if i in (0, 4):
            o = 4096 if i else 0
            it += [(f"s_add_u32 m0, s{S_W7}, {slot_base(chunk) + o}", "", None),
                   (f"s_add_u32 s{g}, s{S_W7}, {chunk * CHUNK + o}", "", None)]
        it.append((f"buffer_load_dwordx4 v{V_L16}, {sr(S_W1)}, s{g} offen offset:{1024*(i%4)} {'sc1 nt' if 'wnt1' in EXP else 'sc1'} lds", "vm", tag))
        G.append(it)
    return G

def dma_w1(p, chunk, tag):
    p(f"s_mul_i32 s9, s{S_W}, 7168")
    p(f"s_add_u32 s10, s9, {L_RING + (chunk % 3) * CHUNK}")
    p(f"s_add_u32 s9, s9, {chunk * CHUNK}")
    for grp, cnt in ((0, 4), (4, 3)):
        if grp:
            p("s_add_u32 s10, s10, 4096"); p("s_add_u32 s9, s9, 4096")
        p("s_mov_b32 m0, s10")
        for i in range(cnt):
            p.vm(f"buffer_load_dwordx4 v{V_L16}, {sr(S_W1)}, s9 offen offset:{1024*i} sc1 lds", tag)

def cost(t):
    op = t.split()[0]
    if op.startswith(("v_exp", "v_rcp", "v_rsq")): return 8
    if op.startswith("v_"): return 4
    return 0

def emit(p, item):
    t, kind, tag = item
    if kind == "lg": p.lg(t, tag)
    elif kind == "vm": p.vm(t, tag)
    elif kind == "wlg": p.wait_lg(tag)
    elif kind == "wvm": p.wait_vm(tag)
    else: p(t)

def schedule(p, M, V=(), N=None, vstart=0, vend=None):
    N = N or {}
    vend = len(M) if vend is None else vend
    total = sum(cost(x[0]) for x in V)
    done, cum = 0, 0
    for i, m in enumerate(M):
        if isinstance(m, tuple):
            for w in m[1]: emit(p, w)
            m = m[0]
        p(m)
        for it in N.get(i, []): emit(p, it)
        if i >= vstart and done < len(V):
            last = (i >= vend - 1)
            target = total * (i - vstart + 1) / max(1, vend - vstart)
            while done < len(V) and (last or cum + cost(V[done][0]) / 2 <= target):
                cum += cost(V[done][0]); emit(p, V[done]); done += 1
    while done < len(V):
        emit(p, V[done]); done += 1

def interleave(p, M, O, first=0):
    n = len(M) - first
    done = 0
    for i, m in enumerate(M):
        p(m)
        if i >= first:
            want = (len(O) * (i - first + 1) + n - 1) // n
            while done < want:
                t, kind, tag = O[done]; done += 1
                if kind == "lg": p.lg(t, tag)
                elif kind == "vm": p.vm(t, tag)
                else: p(t)

FA, AC1, ST_, HO = 16, 72, 96, 104
def silu_stages(T):
    z = AC1 + 8 * (T % 3); t = ST_
    E = [(f"v_exp_f32_e64 v{t+r}, -v{z+r}", "", None) for r in range(8)]
    A = [(f"v_add_f32 v{t+r}, 1.0, v{t+r}", "", None) for r in range(8)]
    C = [(f"v_rcp_f32 v{t+r}, v{t+r}", "", None) for r in range(8)]
    M = [(f"v_mul_f32 v{t+r}, v{z+r}, v{t+r}", "", None) for r in range(8)]
    V = []
    for nt in range(2):
        V.append((f"v_cvt_pk_bf16_f32 v{HO+2*nt}, v{t+4*nt}, v{t+4*nt+1}", "", None))
        V.append((f"v_cvt_pk_bf16_f32 v{HO+2*nt+1}, v{t+4*nt+2}, v{t+4*nt+3}", "", None))
    W = [(f"ds_write_b64 v{V_HW1 if T & 1 else V_HW}, {v(HO+2*nt,2)} offset:{L_X + nt*16*SH_ + 64*(T>>1)}", "lg", "hw") for nt in range(2)]
    return E, A, C, M, V, W

def gemm1(p):
    def areads(h):
        T, half, buf = h >> 1, h & 1, h & 1
        if T == 3: base, o = V_A3, 0
        else:
            sl = T if T < 3 else T - 4
            base, o = (V_A, sl * CHUNK) if sl < 2 else (V_A2, 0)
        return [(f"ds_read_b128 {v(FA+28*buf+4*i,4)}, v{base} offset:{o + 1024*(7*half+i)}", "lg", f"g{h}") for i in range(7)]
    if 'noown' not in EXP and 'pwall' not in EXP:
        p(f"s_lshr_b32 s9, s{S_MEM}, 1")
        p(f"s_cmp_eq_u32 s9, s{S_W}")
        p("s_cselect_b32 s9, 1, 0")
        p(f"s_and_b32 s10, s{S_MEM}, 1")
        p("s_xor_b32 s11, s10, 1")
        p("s_and_b32 s11, s11, s9"); p("s_and_b32 s10, s10, s9")
        p("s_lshl_b32 s11, s11, 31"); p("s_lshl_b32 s10, s10, 31")
        p(f"s_or_b32 s14, s{S_W14}, s11")
        p(f"s_or_b32 s15, s{S_W14}, s10")
        if 'pwboth' not in EXP:
            p(f"s_lshl_b32 s9, s{S_LAY}, 31")
            p("s_or_b32 s14, s14, s9"); p("s_or_b32 s15, s15, s9")
    p.wait_vm("x1")
    p("s_barrier")
    stamp(p, 12, True)
    def xread(k, nt):
        if k < 8: return (f"ds_read_b128 {xh(2*k+nt)}, v{XR1 + (k & 3)} offset:{L_X + 256*(k>>2) + nt*16*512}", "lg", f"x{k}")
        kk = k - 8
        return (f"ds_read_b128 {xh(2*k+nt)}, v{XR2 + (kk & 1)} offset:{128*(kk>>1) + nt*16*384}", "lg", f"x{k}")
    a0 = areads(0)
    for k in range(7):
        t, kind, _ = a0[k]
        emit(p, (t, kind, f"a0_{k}")); emit(p, xread(k, 0)); emit(p, xread(k, 1))
    silu = 'nosilu' not in EXP
    for h in range(14):
        T, half, buf = h >> 1, h & 1, h & 1
        nxt = areads(h + 1) if h < 13 else []
        pre = [[] for _ in range(14)]
        val = [[] for _ in range(14)]
        post = [[] for _ in range(14)]
        for i, it in enumerate(nxt): pre[i].append(it)
        if h == 0:
            pre[0].append(xread(7, 0)); pre[1].append(xread(7, 1))
            pre[2] += [(None, "wvm", "x2"), ("s_barrier", "", None)]
            extra = [xread(k, nt) for k in range(8, 14) for nt in range(2)]
            for i in range(12): pre[2 + i].append(extra[i])
            if 'pfb' in EXP:
                for g_, grp in zip((3, 5, 6, 8, 9, 11, 12), dma_w1_items(2, "c2")):
                    sal = [x for x in grp if x[1] == ""]; dm = [x for x in grp if x[1] == "vm"]
                    pre[g_] = sal + pre[g_] + dm
            if 'pwX' in EXP or 'pwH' in EXP:
                lab = p.uid("pwx")
                grp = [(f"s_cmp_eq_u32 s{S_LAY}, 0", "", None), (f"s_cbranch_scc0 {lab}", "", None)]
                for i in range(14):
                    if i % 4 == 0: grp.append((f"s_add_u32 s12, s{S_W14}, {1024*i}", "", None))
                    grp.append((f"buffer_load_dwordx4 v[124:127], v{V_L16}, {sr(S_PW)}, s12 offen offset:{1024*(i%4)}", "", None))
                grp.append((f"{lab}:", "", None))
                pre[3] = pre[3] + grp
        if 1 <= h <= 8 and 'nodma1' not in EXP:
            c = 3 + (h - 1) // 2
            grps = dma_w1_items(c, f"c{c}")
            grps = grps[:4] if h & 1 else grps[4:]
            at = [1, 4, 8, 11] if h & 1 else [2, 6, 10]
            for g_, grp in zip(at, grps):
                sal = [x for x in grp if x[1] == ""]; dm = [x for x in grp if x[1] == "vm"]
                pre[g_] = sal + pre[g_] + dm
        if 9 <= h <= 13 and 'noldwc' not in EXP and not any(x in ('pwX', 'pwY') for x in EXP) and 'pw7' not in EXP:
            first = 3 * (h - 9)
            for g_, i in zip((1, 5, 9), range(first, min(first + 3, 14))):
                pre[g_] = [(f"s_add_u32 s12, s{(14 if i < 7 else 15) if 'noown' not in EXP and 'pwall' not in EXP else S_W14}, {1024*i}", "", None)] + pre[g_] + [(f"buffer_load_dwordx4 v[124:127], v{V_L16}, {sr(S_PW)}, s12 offen {'sc1' if 'pwsc1' in EXP else ('nt' if 'pwnt' in EXP else '')}", "vm", "pw")]
        if 7 <= h <= 13 and 'pw7' in EXP:
            first = 2 * (h - 7)
            for g_, i in zip((3, 9), range(first, min(first + 2, 14))):
                pre[g_] = [(f"s_add_u32 s13, s{S_W14}, {1024*i}", "", None)] + pre[g_] + [(f"buffer_load_dwordx4 v[124:127], v{V_L16}, {sr(S_PW)}, s13 offen", "vm", "pw")]
        if silu:
            if half == 0 and T >= 2:
                E, A, C, M, V, W = silu_stages(T - 2)
                seq = M + V
                order = [2, 2, 2, 2, 2, 1, 1]
                for g_, cnt in enumerate(order):
                    for _ in range(cnt): val[g_].append(seq.pop(0))
                pre[7].append(W[0]); pre[9].append(W[1])
            if half == 0 and T >= 1:
                E = silu_stages(T - 1)[0]
                for r in range(7): val[7 + r].append(E[r])
                val[13].append(E[7])
            if half == 1 and T >= 1:
                E, A, C, M, V, W = silu_stages(T - 1)
                for r in range(7): val[r].append(A[r])
                val[6].append(A[7])
                for r in range(7): val[7 + r].append(C[r])
                val[13].append(C[7])
        if h < 13:
            w = [(None, "wlg", f"g{h+1}")]
            if h == 0: w.append((None, "wlg", "x13"))
            if half == 0 and (2 if 'pfb' in EXP else 3) <= T + 1 <= 6: w.append((None, "wvm", f"c{T+1}"))
            pre[13] = w + pre[13] if h != 0 else pre[13] + w
        for q_ in range(14):
            i, nt = q_ >> 1, q_ & 1
            k = 7 * half + i
            if h == 0 and nt == 0:
                p.wait_lg(f"a0_{i}"); p.wait_lg(f"x{k}")
            acc = v(AC1 + 8 * (T % 3) + 4 * nt, 4)
            p(f"v_mfma_f32_16x16x32_bf16 {acc}, {v(FA+28*buf+4*i,4)}, {xh(2*k+nt)}, {'0' if k == 0 else acc}")
            for it in pre[q_] + val[q_] + post[q_]: emit(p, it)
        if half == 0 and 'nobar1' not in EXP: p("s_barrier")
        if 'tt' in EXP: p(f"s_memtime s[{40+0}:{41}]" if False else f"s_memtime s[{34+2*(h+3)}:{35+2*(h+3)}]") if False else None
        if 'tt' in EXP and h < 12: p(f"s_memtime s[{40+2*h}:{41+2*h}]")
    if 'tt' in EXP:
        p("s_waitcnt lgkmcnt(0)"); p.lgq = []
        for h in range(12): p(f"v_mov_b32 v{108+h}, s{40+2*h}")
        p("s_lshl_b32 s9, s2, 6"); p(f"s_mul_i32 s10, s{S_LAY}, 16384"); p("s_add_u32 s9, s9, s10"); p(f"s_add_u32 s9, s9, {0x30000}")
        p("v_mov_b32 v120, s9")
        p("s_mov_b64 s[10:11], exec"); p("s_mov_b64 exec, 1")
        for q_ in range(3): p.vm(f"buffer_store_dwordx4 {v(108+4*q_,4)}, v120, s[92:95], 0 offen offset:{16*q_}")
        p("s_mov_b64 exec, s[10:11]")
    if silu:
        E, A, C, M, V, W = silu_stages(5)
        for it in M + V + W: emit(p, it)
        E, A, C, M, V, W = silu_stages(6)
        for it in E + A + C + M + V + W: emit(p, it)
    p.wait_lg()
    p("s_barrier")

AC2, CO = 72, 16
OUTLINE = []
OWNLINE = []
L_OWN = 143360
OWN_STR = 912
def gemm2(p):
    if 'l1sc1' in EXP or 'l1nt' in EXP: p(f"s_cmp_eq_u32 s{S_LAY}, 1")
    if 'l0sc1' in EXP: p(f"s_cmp_eq_u32 s{S_LAY}, 0")
    own = 'noown' not in EXP
    rot = own and 'norot' not in EXP
    if rot:
        HRV = [116, 117, 118, 119]
        p(f"s_lshr_b32 s10, s{S_MEM}, 1")
        for n_ in range(4):
            p(f"s_add_u32 s11, s10, {n_}"); p("s_and_b32 s11, s11, 3")
            p(f"s_mul_i32 s12, s11, {16*SH_}")
            p(f"v_add_u32 v{HRV[n_]}, s12, v{V_HR}")
            p(f"s_mul_i32 s{SA+n_}, s11, {16*ROWB}")
        hread = lambda nt, k: (f"ds_read_b128 {xh(7*nt+k)}, v{HRV[nt]} offset:{L_X + 64*k}", "lg", f"h{nt}_{k}")
        for k in range(7): emit(p, hread(0, k))
        p(f"s_and_b32 s11, s{S_MEM}, 1")
        p("s_mov_b32 s14, 0x00ff00ff")
        p("s_lshl_b32 s12, s11, 3")
        p("s_lshl_b32 s14, s14, s12")
        p("s_mov_b32 s15, s14")
        p("v_and_b32 v122, 15, v0")
        p(f"v_mul_u32_u24 v123, {ROWB}, v122")
        p("v_and_b32 v122, 7, v122")
        p(f"v_mul_u32_u24 v122, {OWN_STR}, v122")
        p("v_sub_u32 v122, v122, v123")
        p(f"v_add_u32 v122, {L_OWN}, v122")
        p(f"v_add_u32 v120, v122, v{V_PO}")
        p(f"v_add_u32 v121, v122, v{V_PO1}")
        p(f"v_add_u32 v122, {L_OWN + 8*912}, v{V_L16}")
        p("v_cndmask_b32 v120, v122, v120, s[14:15]")
        p("v_cndmask_b32 v121, v122, v121, s[14:15]")
        p("v_bfrev_b32 v123, 1")
        p(f"v_cndmask_b32 v122, v{V_PO}, v123, s[14:15]")
        p(f"v_cndmask_b32 v123, v{V_PO1}, v123, s[14:15]")
    else:
        hread = lambda nt, k: (f"ds_read_b128 {xh(7*nt+k)}, v{V_HR} offset:{L_X + nt*16*SH_ + 64*k}", "lg", f"h{nt}_{k}")
        for k in range(7): emit(p, hread(0, k))
        if own:
            p(f"s_lshr_b32 s10, s{S_MEM}, 1")
            p(f"s_and_b32 s11, s{S_MEM}, 1")
            p("s_mov_b32 s14, 0x00ff00ff")
            p("s_mul_i32 s12, s11, 8")
            p("s_lshl_b32 s14, s14, s12")
            p("s_mov_b32 s15, s14")
            p(f"s_mul_i32 s12, s11, {8*ROWB}")
            p(f"s_sub_u32 s12, {L_OWN}, s12")
            p(f"v_add_u32 v120, s12, v{V_PO}")
            p(f"v_add_u32 v121, s12, v{V_PO1}")
    pf = []
    units = [(3, nt) for nt in range(4)] + [(P, nt) for P in range(3) for nt in range(4)]
    def epi(u):
        P, nt = units[u]; ac = AC2 + 8 * (u & 1); o = CO + 4 * (u & 3)
        O = []
        O.append((f"v_cvt_pk_bf16_f32 v{o}, v{ac}, v{ac+1}", "", None))
        O.append((f"v_cvt_pk_bf16_f32 v{o+1}, v{ac+2}, v{ac+3}", "", None))
        if P < 3:
            O.append((f"v_cvt_pk_bf16_f32 v{o+2}, v{ac+4}, v{ac+5}", "", None))
            O.append((f"v_cvt_pk_bf16_f32 v{o+3}, v{ac+6}, v{ac+7}", "", None))
        st = [(f"s_mov_b32 s9, {nt*16*ROWB}", "", None)]
        sfl = "sc1" if 'psc1' in EXP else ("nt" if 'psnt' in EXP else ("sc0" if 'pssc0' in EXP else ""))
        base = f"buffer_store_dwordx4 {v(o,4)}, v{V_PO}, {sr(S_PW)}, s9 offen offset:{256*P}" if P < 3 else f"buffer_store_dwordx2 {v(o,2)}, v{V_PO1}, {sr(S_PW)}, s9 offen"
        if 'l1sc1' in EXP or 'l1nt' in EXP or 'l0sc1' in EXP:
            alt = "nt" if 'l1nt' in EXP else "sc1"
            la, lb = p.uid("stA"), p.uid("stB")
            st.append((f"s_cbranch_scc1 {la}", "", None))
            st.append((f"{base} {sfl}", "vm", "ps"))
            st.append((f"{lb}:", "", None))
            OUTLINE.append((la, f"{base} {alt}", lb))
        elif rot:
            so = f"s{SA+nt}"
            st = []
            if nt == 0:
                ad, ad1 = 122, 123
                w_ = f"ds_write_b128 v120, {v(o,4)} offset:{256*P}" if P < 3 else f"ds_write_b64 v121, {v(o,2)}"
            else: ad, ad1 = V_PO, V_PO1
            t_ = f"buffer_store_dwordx4 {v(o,4)}, v{ad}, {sr(S_PW)}, {so} offen offset:{256*P}" if P < 3 else f"buffer_store_dwordx2 {v(o,2)}, v{ad1}, {sr(S_PW)}, {so} offen"
            st.append((f"{t_} {sfl}", "vm", "ps"))
            if nt == 0: st.append((w_, "lg", "ow"))
        elif own:
            la, lb = p.uid("owA"), p.uid("owB")
            st.append((f"s_cmp_eq_u32 s10, {nt}", "", None))
            st.append((f"s_cbranch_scc1 {la}", "", None))
            st.append((f"{base} {sfl}", "vm", "ps"))
            st.append((f"{lb}:", "", None))
            w_ = f"ds_write_b128 v120, {v(o,4)} offset:{256*P}" if P < 3 else f"ds_write_b64 v121, {v(o,2)}"
            OWNLINE.append((la, f"{base} {sfl}", w_, lb))
        else:
            st.append((f"{base} {sfl}", "vm", "ps"))
        return O, st
    for u, (P, nt) in enumerate(units):
        ac = AC2 + 8 * (u & 1)
        M = []
        for k in range(7):
            for sub in range(2 if P < 3 else 1):
                Tt = 2 * P + sub
                acc = v(ac + 4 * sub, 4)
                t = f"v_mfma_f32_16x16x32_bf16 {acc}, {a(4*(7*k+Tt),4)}, {xh(7*nt+k)}, {'0' if k == 0 else acc}"
                w = [(None, "wlg", f"h{nt}_{k}")] if (u < 4 and sub == 0) else []
                M.append((t, w))
        n = len(M)
        N = {}
        if u < 3:
            for k in range(7): N.setdefault(k, []).append(hread(u + 1, k))
        V, st = epi(u - 1) if u else ([], [])
        if st and 'nostore' not in EXP: N.setdefault(n - 1 if n == 7 else 10, []).extend(st)
        schedule(p, M, V, N, vstart=(4 if n == 7 else 5), vend=(6 if n == 7 else 9))
    assert not pf
    V, st = epi(len(units) - 1)
    for it in V + st: emit(p, it)

def prewarm_burst(p, layer0_only=True):
    lab = p.uid("pwb")
    if layer0_only:
        p(f"s_cmp_eq_u32 s{S_LAY}, 0"); p(f"s_cbranch_scc0 {lab}")
    for i in range(14):
        if i % 4 == 0: p(f"s_add_u32 s12, s{S_W14}, {1024*i}")
        t = f"buffer_load_dwordx4 v[124:127], v{V_L16}, {sr(S_PW)}, s12 offen offset:{1024*(i%4)}"
        if layer0_only: p(t)
        else: p.vm(t, "pw")
    p.label(lab)

def prewarm_ld(p, stride=128):
    n = 57344 // stride
    for i in range((n + 255) // 256):
        p(f"v_add_u32 v2, {256*i}, v0")
        p(f"v_mul_u32_u24 v2, {stride}, v2")
        p.vm(f"buffer_load_dword v255, v2, {sr(S_PW)}, 0 offen", "pw")

def prewarm(p):
    if 'nowarm' in EXP: return
    fl = "sc1" if 'wsc1' in EXP else ("nt" if 'wnt' in EXP else "")
    stride = 64 if 'w64' in EXP else 128
    for i in range((57344 // stride + 255) // 256):
        p(f"v_add_u32 v2, {256*i}, v0")
        p(f"v_mul_u32_u24 v2, {stride}, v2")
        p(f"buffer_store_dword v0, v2, {sr(S_PW)}, 0 offen {fl}")
    p("v_lshlrev_b32 v1, 7, v0")
    p(f"s_mul_i32 s9, s{S_MEM}, {8*ROWB}")
    p("v_add_u32 v2, s9, v1")
    p(f"v_cmp_gt_u32 vcc, {8*ROWB}, v1")
    p("v_cndmask_b32 v2, -1, v2, vcc")
    p(f"buffer_store_dword v0, v2, {sr(S_X)}, 0 offen {fl}")

DESCRIPTION = """;
; One persistent launch, one 256-thread workgroup per CU (256 workgroups; ids past 255 leave at once). Generated by gen/gen_p.py.
;   x = q ; twice { x += LN(x) * Y ; x += silu(LN(x) W1) W2 },  Y = causal_conv(kv, ssm_k) + kv * D,  kv = shiftconv(k) * v
;   prep   224 workgroups: one 64x64 tile of kv, transposed into d_ws, and one 14-KB tile of W1 / W2 repacked as MFMA fragments
;   MLP    clusters of 8 workgroups own 64 rows; member j holds the 224-wide slice j of the hidden layer: W2 fragments stay in
;          AGPRs, W1 fragments stream through an LDS ring; bf16 partial sums are exchanged through d_ws, each member reduces and
; Hand-offs: data stores are drained, then a flag word equal to this launch's nonce (clock value published by workgroup 0 in
; d_debug) is stored; stale words of earlier launches never match. Global hand-offs use sc1 stores / loads. A cluster whose 8
; members report the same XCC id exchanges through its L2 with plain stores; any other placement takes the
"""

FORCE_SLOW = False
def build(stamps=False, force_slow=False):
    global FORCE_SLOW
    FORCE_SLOW = force_slow
    common.STAMPS[0] = stamps
    p = K()
    p("s_cmp_ge_u32 s2, 256")
    p("s_cbranch_scc1 K_end")
    p.load_ptrs()
    p(f"s_memrealtime {s(S_N,2)}")
    code_prefetch(p)
    p.wave_id(S_W, 1)
    p("s_and_b32 s4, s2, 7")
    p("s_lshr_b32 s5, s2, 3")
    p("s_lshl_b32 s4, s4, 5")
    p("s_add_u32 s4, s4, s5")
    p("s_lshr_b32 s5, s4, 3")
    p("s_and_b32 s6, s4, 7")
    p(f"s_lshr_b32 s{S_A}, s{S_W}, 1")
    p(f"s_and_b32 s{S_B}, s{S_W}, 1")
    p(f"s_mov_b32 s{S_LAY}, 0")
    p(f"s_mov_b32 s{S_FAST}, 0")
    p(f"s_mul_i32 s{S_W7}, s{S_W}, 7168")
    p(f"s_mul_i32 s{S_W14}, s{S_W}, 14336")
    prep_addr(p)
    p("s_waitcnt lgkmcnt(0)")
    nonce_threshold(p)
    if stamps:
        p.srd(92, P_WS, WS_FLAGS + 0x80000, 0x40000)
        p("v_mov_b32 v252, 0"); p("v_mov_b32 v253, 0")
    stamp(p, 0)
    p("s_cmp_ge_u32 s2, 224")
    p("s_cbranch_scc1 K_noprep")
    prep(p)
    stamp(p, 1)
    p.wait_vm("kvst")
    lab = p.uid("haven")
    nonce_try(p, 150, lab)
    saved = list(p.vmq)
    p.srd(SF_, P_DBG, 0, 256)
    get_nonce(p, lab)
    p.vmq = saved
    p.label(lab)
    p("s_barrier")
    flag_store_rep(p, FL_S1R, 2)
    stamp(p, 2)
    p.wait_vm()
    if 'hfirst' not in EXP: hbuild(p)
    p("s_branch K_prepdone")
    p.label("K_noprep")
    p.srd(S_FL, P_WS, WS_FLAGS, FLAGS_BYTES)
    mlp_setup(p)
    q_loads(p)
    p.srd(SF_, P_DBG, 0, 256)
    lab = p.uid("haven")
    get_nonce(p, lab)
    p.label(lab)
    p("s_barrier")
    p.label("K_prepdone")
    p.vmq = []; p.lgq = []
    lab = p.uid("xp")
    p(f"s_cmp_eq_u32 s{S_W}, 0")
    p(f"s_cbranch_scc0 {lab}")
    p("s_getreg_b32 s9, hwreg(HW_REG_XCC_ID, 0, 4)")
    p(f"s_add_u32 s9, s9, s{S_N}")
    p("v_mov_b32 v2, s9"); p(f"v_mov_b32 v3, s{S_N+1}")
    p(f"s_lshl_b32 s9, s{S_RB}, 3"); p(f"s_add_u32 s9, s9, {FL_XCC}")
    p("v_mov_b32 v1, s9")
    p("s_mov_b64 exec, 1")
    p(f"buffer_store_dwordx2 v[2:3], v1, {sr(S_FL)}, 0 offen sc1")
    p("s_mov_b64 exec, -1")
    p.label(lab)
    p(f"s_mul_i32 s9, s{S_MEM}, {7*CHUNK}"); p(f"s_add_u32 s9, s9, {hex(WS_W1P)}")
    p(f"s_add_u32 s{S_W1}, s{P_WS}, s9"); p(f"s_addc_u32 s{S_W1+1}, s{P_WS+1}, 0")
    p(f"s_mov_b32 s{S_W1+2}, {7*CHUNK}"); p(f"s_mov_b32 s{S_W1+3}, 0x20000")
    p(f"s_mul_i32 s9, s{S_CL}, {64*ROWB}"); p(f"s_add_u32 s9, s9, {hex(WS_XP)}")
    p(f"s_add_u32 s{S_X}, s{P_WS}, s9"); p(f"s_addc_u32 s{S_X+1}, s{P_WS+1}, 0")
    p(f"s_mov_b32 s{S_X+2}, {64*ROWB}"); p(f"s_mov_b32 s{S_X+3}, 0x20000")
    p(f"s_mul_i32 s9, s{S_RB}, {64*ROWB}"); p(f"s_add_u32 s9, s9, {hex(WS_PB)}")
    p(f"s_add_u32 s{S_PW}, s{P_WS}, s9"); p(f"s_addc_u32 s{S_PW+1}, s{P_WS+1}, 0")
    p(f"s_mov_b32 s{S_PW+2}, {64*ROWB}"); p(f"s_mov_b32 s{S_PW+3}, 0x20000")
    p(f"s_mul_i32 s9, s{S_CL}, {8*64*ROWB}"); p(f"s_add_u32 s9, s9, {hex(WS_PB)}")
    p(f"s_add_u32 s{S_PR}, s{P_WS}, s9"); p(f"s_addc_u32 s{S_PR+1}, s{P_WS+1}, 0")
    p(f"s_mov_b32 s{S_PR+2}, {8*64*ROWB}"); p(f"s_mov_b32 s{S_PR+3}, 0x20000")
    if 'warm1' in EXP: prewarm(p)
    p("v_and_b32 v1, 63, v0")
    p("s_lshr_b32 s9, s2, 5")
    p("s_min_u32 s9, s9, 6")
    p("v_mul_u32_u24 v8, 7, v1")
    p("v_add_u32 v8, s9, v8")
    p(f"s_mul_i32 s9, s{S_MEM}, 14")
    p("v_subrev_u32 v9, 32, v1")
    p("v_add_u32 v9, s9, v9")
    p("v_add_u32 v10, 98, v9")
    p("v_cmp_gt_u32 vcc, 46, v1")
    p("v_cndmask_b32 v9, v10, v9, vcc")
    p("v_cmp_gt_u32 vcc, 32, v1")
    p("v_cndmask_b32 v8, v9, v8, vcc")
    p("v_lshlrev_b32 v8, 3, v8")
    p(f"s_and_b32 s9, s2, {NREP-1}"); p("s_lshl_b32 s9, s9, 11"); p(f"s_add_u32 s9, s9, {FL_S1R}")
    p("v_add_u32 v8, s9, v8")
    p("s_waitcnt lgkmcnt(0)")
    poll(p, [8], 1, [60])
    stamp(p, 3)
    p(f"s_lshl_b32 s9, s{S_MEM}, 2"); p(f"s_add_u32 s9, s9, s{S_W}")
    p(f"s_mul_i32 s9, s9, {49*1024}"); p(f"s_add_u32 s9, s9, {hex(WS_W2P)}")
    p(f"s_add_u32 s{SE}, s{P_WS}, s9"); p(f"s_addc_u32 s{SE+1}, s{P_WS+1}, 0")
    p(f"s_mov_b32 s{SE+2}, {49*1024}"); p(f"s_mov_b32 s{SE+3}, 0x20000")
    p.srd(SD, P_WS, WS_YB, MAT)
    p("s_cmp_ge_u32 s2, 224")
    p("s_cbranch_scc1 K_noconv")
    p("s_lshl_b32 s9, s2, 13")
    p(f"s_add_u32 s{SA}, s{P_WS}, s9"); p(f"s_addc_u32 s{SA+1}, s{P_WS+1}, 0")
    p(f"s_mov_b32 s{SA+2}, 8192"); p(f"s_mov_b32 s{SA+3}, 0x20000")
    p("v_lshlrev_b32 v10, 4, v0")
    p.vm(f"buffer_load_dwordx4 v[64:67], v10, {sr(SA)}, 0 offen sc1", "u")
    p("v_add_u32 v11, 4096, v10")
    p.vm(f"buffer_load_dwordx4 v[68:71], v11, {sr(SA)}, 0 offen sc1", "u")
    if 'qlate' in EXP: q_loads(p)
    p("s_lshl_b32 s9, s2, 2")
    p(f"s_load_dword s13, s[{P_DV}:{P_DV+1}], s9")
    for g_ in w2_items(SE)[:W20]:
        for it in g_: emit(p, it)
    p(f"v_add_u32 v10, {L_U+512}, v10")
    p.wait_vm("u")
    p.lg("ds_write_b128 v10, v[64:67]")
    p.lg(f"ds_write_b128 v10, v[68:71] offset:{U_CH}")
    p("s_waitcnt lgkmcnt(0)"); p.lgq = []
    p("s_lshl_b32 s12, s13, 16")
    p("s_and_b32 s14, s13, 0xffff0000")
    p(f"s_cmp_eq_u32 s{S_B}, 0")
    p("s_cselect_b32 s14, s12, s14")
    p("s_barrier")
    if 'warm2' in EXP: prewarm(p)
    stamp(p, 4)
    conv_main(p)
    stamp(p, 5)
    conv_out(p, SD)
    signal(p, FL_S2R, 2, upto="yst")
    stamp(p, 6)
    p("s_branch K_convdone")
    p.label("K_noconv")
    p.vmq = []
    for g_ in w2_items(SE)[:W2A]:
        for it in g_: emit(p, it)
    idle = [x for x in EXP if x.startswith('idle')]
    if idle:
        nld = int(idle[0][4:])
        p("s_and_b32 s9, s2, 7"); p("s_lshl_b32 s9, s9, 2")
        p("s_sub_u32 s10, s2, 224"); p("s_lshr_b32 s10, s10, 3"); p("s_add_u32 s9, s9, s10")
        p(f"s_mul_i32 s9, s9, {8*64*ROWB}"); p(f"s_add_u32 s9, s9, {hex(WS_PB)}")
        p(f"s_add_u32 s{SA}, s{P_WS}, s9"); p(f"s_addc_u32 s{SA+1}, s{P_WS+1}, 0")
        p(f"s_mov_b32 s{SA+2}, {8*64*ROWB}"); p(f"s_mov_b32 s{SA+3}, 0x20000")
        p(f"s_mul_i32 s10, s{S_W}, {112*1024}")
        lab = p.uid("idl")
        p("s_mov_b32 s11, 0")
        p.label(lab)
        for i in range(4):
            p(f"buffer_load_dwordx4 v[124:127], v{V_L16}, {sr(SA)}, s10 offen offset:{1024*i}")
        p("s_add_u32 s10, s10, 4096"); p("s_add_u32 s11, s11, 4"); p(f"s_cmp_lt_u32 s11, {nld}")
        p(f"s_cbranch_scc1 {lab}")
    p.wait_vm()
    p.label("K_convdone")
    if 'warm3' in EXP: prewarm(p)
    if 'pws2' in EXP:
        lab = p.uid("pws")
        p(f"s_cmp_eq_u32 s{S_W}, 0"); p(f"s_cbranch_scc1 {lab}")
        p(f"s_sub_u32 s9, s{S_W}, 1"); p("s_mul_i32 s9, s9, 19456")
        for i in range(19):
            if i % 4 == 0: p(f"s_add_u32 s10, s9, {1024*i}")
            p(f"buffer_load_dwordx4 v[220:223], v{V_L16}, {sr(S_PW)}, s10 offen offset:{1024*(i%4)}")
        p.label(lab)
    p("s_waitcnt vmcnt(0)")
    p("v_mov_b32 v7, 0xffff0000")
    unpack(p, X, XP, 8)
    layernorm(p, X, T)
    poll_s2(p)
    stamp(p, 7)
    y_load(p, SD)
    fast_get(p)
    for g_ in dma_w1_items(0 if 'pfb' in EXP else 2, "pf2"):
        for it in g_: emit(p, it)
    if 'pwY' in EXP: prewarm_burst(p, False)
    for g_ in w2_items(SE)[W2A:]:
        for it in g_: emit(p, it)
    y_transpose(p)
    stamp(p, 8)
    p("v_mov_b32 v7, 0xffff0000")
    p("s_branch K_gate")
    p.label("K_layer")
    p.vmq = []; p.lgq = []
    layernorm(p, X, T)
    p.label("K_gate")
    p.vmq = []; p.lgq = []
    q = K()
    for i in range(0, 16, 2):
        q(f"v_pk_fma_f32 {v(X+i,2)}, {v(T+i,2)}, {v(YV+i,2)}, {v(X+i,2)}")
    layernorm(q, X, T, LOG2E)
    pack(q, PK, T, 8)
    body = [it.text for it in q.items]
    if 'pfb' in EXP: pf = dma_w1_items(1, "pf")
    elif 'pfafter' in EXP: pf = dma_w1_items(0, "pf")
    else: pf = [g for c in range(2) for g in dma_w1_items(c, "pf")]
    step = len(body) // (len(pf) + (5 if 'pfb' in EXP else 1))
    for i, t in enumerate(body):
        p(t)
        if pf and i % step == step - 1:
            for it in pf.pop(0): emit(p, it)
    assert not pf
    p(f"s_mul_i32 s9, s{S_CL}, {64*ROWB}")
    p(f"v_subrev_u32 v3, s9, v{OFFA}")
    p(f"v_subrev_u32 v4, s9, v{OFFB}")
    p(f"v_cndmask_b32 v3, -1, v3, {ACT}")
    p(f"v_cndmask_b32 v4, -1, v4, {ACT}")
    xfl = "nt" if 'xnt' in EXP else ""
    p.vm(f"buffer_store_dwordx4 {v(PK,4)}, v3, {sr(S_X)}, 0 offen {xfl}", "xs")
    p.vm(f"buffer_store_dwordx4 {v(PK+4,4)}, v4, {sr(S_X)}, 0 offen {xfl}", "xs")
    pack(p, XP, X, 8)
    if 'pfafter' in EXP:
        for g_ in dma_w1_items(1, "pf1"):
            for it in g_: emit(p, it)
    stamp(p, 9, True)
    if 'oldsync' in EXP:
        signal(p, FL_CA, S_RB, layer_off=True, cluster=True, upto="xs")
        stamp(p, 10, True)
        def cluster_offs():
            p("v_and_b32 v1, 7, v0")
            p(f"s_lshl_b32 s9, s{S_CL}, 7")
            p(f"s_lshl_b32 s10, s{S_LAY}, 13")
            p("s_add_u32 s9, s9, s10")
        cluster_offs()
        p(f"s_add_u32 s9, s9, {FL_CA}")
        p("v_lshl_add_u32 v10, v1, 3, s9")
        poll(p, [10], 1, [8], cluster=True)
    else:
        cluster_sync(p, FL_CA, upto="xs", sid=10)
    stamp(p, 11, True)
    dma_x(p)
    x_read_setup(p)
    if 'ldw128' in EXP: prewarm_ld(p, 128)
    if 'ldw64' in EXP: prewarm_ld(p, 64)
    gemm1(p)
    stamp(p, 13, True)
    gemm2(p)
    stamp(p, 14, True)
    if 'oldsync' in EXP:
        signal(p, FL_CC, S_RB, layer_off=True, cluster=True)
        if 'wb2' in EXP:
            lab = p.uid("wb2")
            p(f"s_cmp_eq_u32 s{S_LAY}, 1"); p(f"s_cbranch_scc0 {lab}")
            p(f"s_cmp_eq_u32 s{S_W}, 3"); p(f"s_cbranch_scc0 {lab}")
            p(f"s_and_b32 s9, s{S_RB}, 31"); p("s_cmp_eq_u32 s9, 0"); p(f"s_cbranch_scc0 {lab}")
            p("buffer_wbl2 sc1")
            p.label(lab)
        stamp(p, 15, True)
        partials_prelude(p)
        cluster_offs()
        p(f"s_add_u32 s9, s9, {FL_CC}")
        p("v_lshl_add_u32 v10, v1, 3, s9")
        poll(p, [10], 1, [8], cluster=True)
        if 'wb' in EXP:
            lab = p.uid("wb")
            p(f"s_cmp_eq_u32 s{S_LAY}, 1"); p(f"s_cbranch_scc0 {lab}")
            p(f"s_cmp_eq_u32 s{S_MEM}, 0"); p(f"s_cbranch_scc0 {lab}")
            p(f"s_cmp_eq_u32 s{S_W}, 3"); p(f"s_cbranch_scc0 {lab}")
            p("buffer_wbl2 sc1")
            p.label(lab)
    else:
        cluster_sync(p, FL_CC, before=lambda: partials_prelude(p), sid=15)
    stamp(p, 16, True)
    add_partials(p)
    stamp(p, 17, True)
    p(f"s_cmp_eq_u32 s{S_LAY}, 1")
    p("s_cbranch_scc1 K_final")
    p(f"s_mov_b32 s{S_LAY}, 1")
    p("s_branch K_layer")
    p.label("K_final")
    pack(p, XP, X, 8)
    p.srd(SA, P_OUT, 0, MAT)
    ofl = "sc1" if 'osc1' in EXP else ("nt" if 'ont' in EXP else "")
    p(f"buffer_store_dwordx4 {v(XP,4)}, v{OFFA}, {sr(SA)}, 0 offen {ofl}")
    p(f"buffer_store_dwordx4 {v(XP+4,4)}, v{OFFB}, {sr(SA)}, 0 offen {ofl}")
    stamp(p, 40)
    stamp_flush(p)
    if SLOWPATHS:
        p("s_endpgm")
        emit_slowpaths(p)
        for la, t, w_, lb in OWNLINE:
            p.label(la)
            p("s_not_b64 exec, s[14:15]")
            p(t)
            p("s_mov_b64 exec, s[14:15]")
            p(w_)
            p("s_mov_b64 exec, -1")
            p("s_nop 1")
            p(f"s_branch {lb}")
    if OUTLINE:
        p("s_endpgm")
        for la, t, lb in OUTLINE:
            p.label(la); p(t); p(f"s_branch {lb}")
    p.label("K_end")
    p("s_endpgm")
    txt, n = kernel_text(KNAME, p, 256, sgprs=102, agprs=256)
    print("nops inserted:", n, "instructions:", p.count(), file=sys.stderr)
    head = HEADER + f"; @launch grid=(256,1,1) block=(256,1,1) lds={LDS_BYTES}\n" + DESCRIPTION + '.amdgcn_target "amdgcn-amd-amdhsa--gfx950"\n'
    return head + txt

if __name__ == "__main__":
    open(sys.argv[1], "w").write(build(stamps="st" in sys.argv[2:], force_slow="slow" in sys.argv[2:]))
```
